```python
import torch

def _softmax(x, axis=-1):
    return torch.softmax(x, dim=axis)
def _gelu(x):
    return torch.nn.functional.gelu(x, approximate="tanh")
def _silu(x):
    return torch.nn.functional.silu(x)
def _sigmoid(x):
    return torch.sigmoid(x)
def _layernorm(x, axis=-1, eps=1e-5):
    m = x.mean(dim=axis, keepdim=True)
    v = x.var(dim=axis, keepdim=True, unbiased=False)
    return (x - m) / torch.sqrt(v + eps)
def _scatter_add(tgt, idx, src, axis=0):
    return tgt.clone().index_add_(axis, idx, src)
def _segment_sum(src, seg, n):
    out = torch.zeros((n,) + src.shape[1:], dtype=src.dtype)
    return out.index_add_(0, seg, src)
def _pad(x, pw):
    flat = tuple(v for pair in reversed(pw) for v in pair)
    return torch.nn.functional.pad(x, flat)

kernel_name = 'gated_mix__grouped_kv_mqa__dense_activation_squared_relu__prompt'

def setup_inputs():

    _w = (lambda a: (lambda t: t.to(torch.bfloat16) if t.is_floating_point() else t)(torch.as_tensor(a)))
    def _A_setup():
        B, S, D, H = 1, 2048, 512, 32
        Dh = D // H
        return {
            "x": _w((lambda *s: torch.randn(*s, dtype=torch.bfloat16) * 0.05)(B, S, D)),
            "wq": _w((lambda *s: torch.randn(*s, dtype=torch.bfloat16) * 0.8)(D, H * Dh)),
            "wk": _w((lambda *s: torch.randn(*s, dtype=torch.bfloat16) * 0.8)(D, Dh)),
            "wv": _w((lambda *s: torch.randn(*s, dtype=torch.bfloat16) * 0.2)(D, Dh)),
            "wo": _w((lambda *s: torch.randn(*s, dtype=torch.bfloat16) * 0.2)(H * Dh, D)),
        }
    _A_in = _A_setup()

    def _B_setup():
        B, S, D, F = 1, 2048, 512, 1792
        return {
            "x": _w((lambda *s: torch.randn(*s, dtype=torch.bfloat16) * 0.05)(B, S, D)),
            "w1": _w((lambda *s: torch.randn(*s, dtype=torch.bfloat16) * 0.05)(D, F)),
            "b1": _w((lambda *s: torch.randn(*s, dtype=torch.bfloat16) * 0.05)(F)),
            "w2": _w((lambda *s: torch.randn(*s, dtype=torch.bfloat16) * 0.05)(F, D)),
            "b2": _w((lambda *s: torch.randn(*s, dtype=torch.bfloat16) * 0.05)(D)),
        }
    _B_in = _B_setup()

    return {
        "A_x": _A_in["x"],
        "A_wq": _A_in["wq"],
        "A_wk": _A_in["wk"],
        "A_wv": _A_in["wv"],
        "A_wo": _A_in["wo"],
        "B_x": _B_in["x"],
        "B_w1": _B_in["w1"],
        "B_b1": _B_in["b1"],
        "B_w2": _B_in["w2"],
        "B_b2": _B_in["b2"],
        "gate_w": _w((lambda *s: torch.randn(*s, dtype=torch.bfloat16) * 0.05)(512) * 16.0),
    }

def reference(A_x, A_wq, A_wk, A_wv, A_wo, B_x, B_w1, B_b1, B_w2, B_b2, gate_w):
    def _A_ref(x, wq, wk, wv, wo):
        B, S, D = x.shape
        H = 32
        Dh = D // H
        q = (lambda x, *d: x.permute(*d))((x @ wq).reshape(B, S, H, Dh), 0, 2, 1, 3)
        k = x @ wk
        v = x @ wv
        scores = torch.einsum("bhqd,bkd->bhqk", q, k) * (Dh ** -0.5)
        p = _softmax(scores, axis=-1)
        o = torch.einsum("bhqk,bkd->bhqd", p, v)
        return (lambda x, *d: x.permute(*d))(o, 0, 2, 1, 3).reshape(B, S, H * Dh) @ wo

    def _B_ref(x, w1, b1, w2, b2):
        h = torch.einsum("bsd,df->bsf", x, w1) + b1
        zero = torch.zeros_like(h)
        r = torch.where(h > zero, h, zero)
        h = r * r
        out = torch.einsum("bsf,fd->bsd", h, w2) + b2
        return out

    x = A_x
    g = _sigmoid((x * gate_w).sum(-1, keepdims=True))
    a = _A_ref(x, A_wq, A_wk, A_wv, A_wo)
    b = _B_ref(x, B_w1, B_b1, B_w2, B_b2)
    return g * a + (1 - g) * b
```

```python
import sys, os
NAME = "gated_mix__grouped_kv_mqa__dense_activation_squared_relu__prompt"

class Asm:
    def __init__(self): self.l = []
    def __call__(self, s):
        for x in s.strip("\n").split("\n"):
            x = x.strip()
            if not x: continue
            self.l.append(x if x.endswith(":") else "    " + x)
    def text(self): return "\n".join(self.l) + "\n"

def vr(a, n): return f"v[{a}:{a+n-1}]"

X_ = 0; W_ = 65536; S_ = 131072
OACC = S_; SLOT = 2560
QF = S_ + 8*SLOT
MISC = QF + 8192
M_G = MISC
M_QMAX = MISC + 256
M_KMAX = MISC + 260
M_CNTA = MISC + 264
M_CNTG = MISC + 272
M_CNTS = MISC + 320
M_M = MISC + 1024
M_GATE = MISC + 2048
LDS_BYTES = 163840
WS_EPOCH = 0
WS_KVF = 0x1000
WS_HF = 0x10000
WS_OF = 0x40000
WS_K = 0x80000
WS_V = 0x90000
WS_O = 0x100000
WS_H = 0x400000
WS_DIAG = 0xC00000
WS_SIZE = 0x1000000
SX, SWQ, SWKV, SWO, SW1, SB1, SW2, SB2, SGT, SOUT, SWS, SH = 4, 8, 12, 16, 20, 24, 28, 32, 36, 40, 44, 56
def srd(b): return f"s[{b}:{b+3}]"
sW, sGRP, sJ, sTAG = "s50", "s51", "s52", "s53"
QSCALE = 0x3eb8aa3b
LOG2E = 0x3fb8aa3b
SPIN_MAX = 200000

def gen(diag=False, opts=None):
    o = dict(opts or {})
    a = Asm()
    nstamp = [0]
    def stamp(i):
        if diag:
            a(f"s_memtime s[{68+2*i}:{69+2*i}]\ns_waitcnt lgkmcnt(0)")
    def diag_out(lbl):
        if diag:
            a(f"s_lshl_b32 s60, s2, 3\ns_add_u32 s60, s60, {sW}\ns_lshl_b32 s60, s60, 7\ns_add_u32 s60, s60, {WS_DIAG}")
            a("s_waitcnt vmcnt(0) lgkmcnt(0)\ns_mov_b64 exec, 1")
            for i in range(17):
                a(f"v_mov_b32 v1, s{66+2*i}\nbuffer_store_dword v1, off, {srd(SWS)}, s60 offset:{4*i}\ns_nop 1")
            a("s_waitcnt vmcnt(0)")

    a(f"""
    s_cmp_ge_u32 s2, 256
    s_cbranch_scc1 L_end
    s_load_dwordx2 s[{SX}:{SX+1}], s[0:1], 0
    s_load_dwordx2 s[{SWS}:{SWS+1}], s[0:1], 104
    s_load_dwordx2 s[{SWKV}:{SWKV+1}], s[0:1], 16
    s_load_dwordx2 s[48:49], s[0:1], 24
    s_load_dwordx2 s[{SWQ}:{SWQ+1}], s[0:1], 8
    s_load_dwordx2 s[{SW1}:{SW1+1}], s[0:1], 48
    s_load_dwordx2 s[{SB1}:{SB1+1}], s[0:1], 56
    v_lshrrev_b32 v1, 6, v0
    v_and_b32 v255, 63, v0
    s_and_b32 s54, s2, 7
    v_readfirstlane_b32 {sW}, v1
    s_lshr_b32 s55, s2, 3
    s_and_b32 {sJ}, s55, 7
    s_lshr_b32 s55, s55, 3
    s_lshl_b32 {sGRP}, s54, 2
    s_add_u32 {sGRP}, {sGRP}, s55
    """)
    if diag:
        for i in range(1, 17): a(f"s_mov_b32 s{66+2*i}, 0")
        a("s_waitcnt lgkmcnt(0)\ns_memrealtime s[66:67]")
        stamp(0)
    for b, n in ((SX, 2097152), (SWS, WS_SIZE), (SWKV, 16384), (SWQ, 524288), (SW1, 1835008), (SB1, 3584),
                 (SWO, 524288), (SW2, 1835008), (SB2, 1024), (SGT, 1024), (SOUT, 2097152), (SH, WS_SIZE)):
        a(f"s_mov_b32 s{b+2}, {n}\ns_mov_b32 s{b+3}, 0x00020000")
    a(f"""
    s_waitcnt lgkmcnt(0)
    s_load_dwordx2 s[{SWO}:{SWO+1}], s[0:1], 32
    s_load_dwordx2 s[{SW2}:{SW2+1}], s[0:1], 64
    s_load_dwordx2 s[{SB2}:{SB2+1}], s[0:1], 72
    s_load_dwordx2 s[{SGT}:{SGT+1}], s[0:1], 80
    s_load_dwordx2 s[{SOUT}:{SOUT+1}], s[0:1], 88
    s_load_dwordx2 s[{SH}:{SH+1}], s[0:1], 104
    buffer_load_dword v253, off, {srd(SWS)}, 0 sc1
    s_cmp_ge_u32 {sW}, 4
    s_cbranch_scc1 L_G
    """)
    def make_tag():
        a(f"""
        v_readfirstlane_b32 {sTAG}, v253
        s_nop 3
        s_mul_i32 {sTAG}, {sTAG}, 0x9E3779B1
        s_add_u32 {sTAG}, {sTAG}, 0x7F4A7C15
        """)

    L = "v255"
    a(f"""
    v_lshrrev_b32 v1, 4, {L}
    v_and_b32 v2, 15, {L}
    v_xor_b32 v2, v1, v2
    v_lshlrev_b32 v2, 4, v2
    v_lshl_or_b32 v4, v1, 10, v2
    v_xor_b32 v5, 64, v4
    v_add_u32 v5, 3072, v5
    v_xor_b32 v6, 0x80, v4
    v_add_u32 v6, 6144, v6
    v_xor_b32 v7, 0xc0, v4
    v_add_u32 v7, 9216, v7
    v_lshrrev_b32 v1, 3, {L}
    v_and_b32 v2, 7, {L}
    v_bfe_u32 v3, {L}, 4, 1
    v_lshlrev_b32 v3, 2, v3
    v_xor_b32 v2, v3, v2
    v_lshlrev_b32 v2, 4, v2
    v_lshl_or_b32 v8, v1, 10, v2
    v_add_u32 v9, 7168, v8
    v_add_u32 v10, 14336, v8
    v_add_u32 v11, 21504, v8
    s_lshl_b32 s54, {sGRP}, 16
    s_lshl_b32 s55, {sW}, 14
    s_add_u32 s54, s54, s55
    s_lshl_b32 s55, {sW}, 15
    s_lshl_b32 s60, {sJ}, 7
    s_add_u32 s55, s55, s60
    s_lshl_b32 s61, {sW}, 12
    s_barrier
    """)
    for c in range(4):
        a(f"s_add_u32 m0, s61, {X_ + 16384*c}")
        a("s_nop 0")
        for q in range(4):
            a(f"buffer_load_dwordx4 v{4+q}, {srd(SX)}, s54 offen offset:{1024*q} lds")
        a(f"s_add_u32 m0, s61, {W_ + 16384*c}")
        a("s_add_u32 s54, s54, 256")
        for q in range(4):
            a(f"buffer_load_dwordx4 v{8+q}, {srd(SWQ)}, s55 offen offset:{1024*q} lds")
        if c < 3: a("s_add_u32 s55, s55, 131072")
    a("s_waitcnt lgkmcnt(0)")
    stamp(1)
    a(f"""
    s_lshr_b32 s60, {sW}, 1
    s_lshl_b32 s60, s60, 13
    v_and_b32 v1, 31, {L}
    v_lshrrev_b32 v2, 5, {L}
    v_and_b32 v3, 15, {L}
    v_xor_b32 v3, v2, v3
    v_lshlrev_b32 v3, 4, v3
    v_lshl_or_b32 v16, v1, 8, v3
    v_add_u32 v16, s60, v16
    """)
    for k in range(1, 8): a(f"v_xor_b32 v{16+k}, {32*k}, v16")
    def tr_addr(dst, hmul, t0=1, t1=2, t2=3):
        a(f"""
        v_lshrrev_b32 v{t0}, 5, {L}
        v_bfe_u32 v{t1}, {L}, 2, 2
        v_mad_u32_u24 v{t0}, v{t0}, {hmul}, v{t1}
        v_lshlrev_b32 v{t0}, 7, v{t0}
        v_bfe_u32 v{t1}, {L}, 3, 1
        v_lshl_or_b32 v{t0}, v{t1}, 6, v{t0}
        v_bfe_u32 v{t1}, {L}, 4, 1
        v_lshl_or_b32 v{t0}, v{t1}, 5, v{t0}
        v_and_b32 v{t1}, 3, {L}
        v_lshl_or_b32 v{dst}, v{t1}, 3, v{t0}
        """)
    tr_addr(24, 8)
    a(f"""
    s_and_b32 s60, {sW}, 1
    s_lshl_b32 s60, s60, 6
    v_xor_b32 v24, s60, v24
    v_add_u32 v24, {W_}, v24
    """)
    for r in range(64, 192): a(f"v_mov_b32 v{r}, 0x3f803f80")
    def qreads(ks):
        b = 192 + 8*(ks & 1)
        a(f"ds_read_b64_tr_b16 {vr(b,2)}, v24 offset:{2048*ks}")
        a(f"ds_read_b64_tr_b16 {vr(b+2,2)}, v24 offset:{2048*ks+512}")
        a(f"ds_read_b128 {vr(b+4,4)}, v{16+(ks&7)} offset:{16384*(ks>>3)}")
    for c in range(4):
        a(f"s_waitcnt vmcnt({8*(3-c)})\ns_barrier")
        if c == 0:
            make_tag()
            stamp(2)
        qreads(8*c)
        for k in range(8):
            ks = 8*c + k
            if k < 7:
                qreads(ks+1); a("s_waitcnt lgkmcnt(3)")
            else:
                a("s_waitcnt lgkmcnt(0)")
            b = 192 + 8*(ks & 1)
            a(f"v_mfma_f32_32x32x16_bf16 v[224:239], {vr(b,4)}, {vr(b+4,4)}, {'0' if ks == 0 else 'v[224:239]'}")
    stamp(3)
    a(f"""
    s_lshr_b32 s60, {sW}, 1
    s_lshl_b32 s60, s60, 12
    s_and_b32 s61, {sW}, 1
    s_lshl_b32 s61, s61, 11
    s_add_u32 s60, s60, s61
    s_add_u32 s60, s60, {QF}
    v_lshlrev_b32 v250, 4, {L}
    v_add_u32 v1, s60, v250
    s_mov_b32 s62, {QSCALE}
    v_mov_b32 v245, 1
    v_mov_b32 v251, {M_QMAX}
    s_nop 1
    """)
    for r in range(16): a(f"v_mul_f32 v{224+r}, s62, v{224+r}")
    for r in range(8): a(f"v_cvt_pk_bf16_f32 v{192+r}, v{224+2*r}, v{225+2*r}")
    a("ds_write_b128 v1, v[192:195]\nds_write_b128 v1, v[196:199] offset:1024")
    a("v_mul_f32 v2, v224, v224\nv_mul_f32 v3, v232, v232")
    for r in range(1, 8): a(f"v_fmac_f32 v2, v{224+r}, v{224+r}\nv_fmac_f32 v3, v{232+r}, v{232+r}")
    a(f"""
    s_nop 1
    v_permlane32_swap_b32 v2, v3
    v_add_f32 v2, v2, v3
    ds_max_u32 v251, v2
    v_lshlrev_b32 v247, 7, {L}
    v_lshlrev_b32 v244, 2, {L}
    v_add_u32 v244, {OACC}, v244
    v_add_u32 v246, {QF}, v250
    v_and_b32 v1, 15, {L}
    v_lshrrev_b32 v2, 5, {L}
    v_lshl_or_b32 v1, v2, 4, v1
    v_lshlrev_b32 v252, 4, v1
    v_add_u32 v252, {WS_V - WS_K}, v252
    s_lshl_b32 s60, {sW}, 13
    s_add_u32 s60, s60, {WS_KVF}
    s_lshl_b32 s61, {sW}, 14
    s_add_u32 s61, s61, {WS_K}
    s_mov_b32 s63, 0
    s_waitcnt lgkmcnt(1)
    s_barrier
    s_setprio 2
    ds_read_b128 v[240:243], v246
    v_add_u32 v246, 1024, v246
    """)
    stamp(4)
    a(f"""
    L_kvpoll:
    buffer_load_dwordx2 v[248:249], v247, {srd(SWS)}, s60 offen sc1
    s_add_u32 s63, s63, 1
    s_cmp_gt_u32 s63, {SPIN_MAX}
    s_cbranch_scc1 L_kvok
    s_waitcnt vmcnt(0)
    v_cmp_ne_u32 vcc, {sTAG}, v248
    s_cbranch_vccnz L_kvpoll
    L_kvok:
    s_mov_b32 s64, 0x0000ffff
    s_mov_b32 s65, 0x0000ffff
    """)
    stamp(5)
    for t in range(16):
        a(f"buffer_load_dwordx4 {vr(4*t,4)}, v250, {srd(SWS)}, s61 offen offset:{1024*(t&3)} sc1")
        a("s_mov_b64 exec, s[64:65]")
        a(f"buffer_load_dwordx4 {vr(64+8*t,4)}, v252, {srd(SWS)}, s61 offen offset:{1024*(t&3)} sc1")
        a(f"buffer_load_dwordx4 {vr(68+8*t,4)}, v252, {srd(SWS)}, s61 offen offset:{1024*(t&3)+512} sc1")
        a("s_mov_b64 exec, -1")
        if t & 3 == 3 and t < 15: a("s_add_u32 s61, s61, 4096")
    a(f"""
    ds_max_u32 v251, v249 offset:4
    ds_add_u32 v251, v245 offset:8
    s_mov_b32 s62, 8
    s_mov_b64 vcc, -1
    s_waitcnt vmcnt(47) lgkmcnt(0)
    v_mfma_f32_32x32x16_bf16 v[192:207], v[0:3], v[240:243], 0
    s_waitcnt vmcnt(44)
    """)
    stamp(6)
    a("s_nop 10")
    flush = [f"ds_add_f32 v244, v{224+r} offset:{256*r}" for r in range(9)] + ["ds_add_u32 v244, v245 offset:2304", f"v_add_u32 v244, {SLOT}, v244"]
    waits = {1: 35, 4: 26, 7: 17, 10: 8, 13: 0}
    def tile(t, first=False):
        S = [192, 208]
        cur = S[t & 1]; nxt = S[(t+1) & 1]
        Kn = 4*((t+1) % 16); Vp = 64 + 8*((t-1) % 16) + 4; Vc = 64 + 8*t
        m0 = f"v_mfma_f32_32x32x16_bf16 v[224:239], {vr(Vp,4)}, {vr(nxt+4,4)}, v[224:239]"
        m1 = f"v_mfma_f32_32x32x16_bf16 {vr(nxt,16)}, {vr(Kn,4)}, v[240:243], 0"
        m2 = f"v_mfma_f32_32x32x16_bf16 v[224:239], {vr(Vc,4)}, {vr(cur,4)}, {'0' if t == 0 else 'v[224:239]'}"
        e = lambda i: f"v_exp_f32 v{cur+i}, v{cur+i}"
        c = lambda i: f"v_cvt_pk_bf16_f32 v{cur+i}, v{cur+2*i}, v{cur+2*i+1}"
        cp7 = f"v_cvt_pk_bf16_f32 v{nxt+7}, v{nxt+14}, v{nxt+15}"
        seq = []
        if t in waits: seq.append(f"s_waitcnt vmcnt({waits[t]})")
        seq += [e(0)] + ([] if first else [cp7]) + [e(1), e(2)] + ([] if first else [m0]) + [c(0), e(3), e(4), c(1), e(5), e(6)]
        if t == 15: seq.append("s_waitcnt lgkmcnt(0)")
        seq.append(m1)
        if t == 14: seq += ["ds_read_b128 v[240:243], v246", "v_add_u32 v246, 1024, v246"]
        seq += [c(2), e(7), e(8), c(3), e(9), e(10)]
        if t == 0 and not first: seq += flush
        seq += [c(4), m2, e(11), e(12), c(5), e(13), e(14), c(6)]
        if t == 15: seq += ["s_sub_u32 s62, s62, 1"]
        seq += [e(15)]
        a("\n".join(seq))
    tile(0, first=True)
    a("s_branch L_t1\n.p2align 6\nL_top:".replace(".p2align 6", ".p2align 6"))
    tile(0)
    a("L_t1:")
    for t in range(1, 16): tile(t)
    a(f"""
    s_cbranch_vccnz L_check
    s_cmp_lg_u32 s62, 0
    s_cbranch_scc1 L_top
    v_cvt_pk_bf16_f32 v215, v222, v223
    s_nop 1
    v_mfma_f32_32x32x16_bf16 v[224:239], {vr(64+8*15+4,4)}, v[212:215], v[224:239]
    s_nop 11
    """)
    a("\n".join(flush))
    stamp(8)
    diag_out("a")
    a("s_endpgm")
    a(f"""
    L_check:
    s_mov_b32 s63, 0
    L_chk2:
    ds_read_b96 v[248:250], v251
    s_add_u32 s63, s63, 1
    s_cmp_gt_u32 s63, {SPIN_MAX}
    s_cbranch_scc1 L_chk3
    s_waitcnt lgkmcnt(0)
    v_cmp_ne_u32 vcc, 0x100, v250
    s_cbranch_vccnz L_chk2
    L_chk3:
    v_mul_f32 v248, v248, v249
    v_mov_b32 v249, 0x45700000
    """)
    stamp(7)
    a(f"""
    v_cmp_nle_f32 vcc, v248, v249
    s_cbranch_vccz L_top
    """)
    if o.get("force_slow"): a.l[-1] = "    s_nop 0"
    a(f"""
    v_lshlrev_b32 v246, 4, {L}
    v_add_u32 v246, {QF}, v246
    v_and_b32 v247, 31, {L}
    v_lshlrev_b32 v247, 2, v247
    v_add_u32 v247, {M_M}, v247
    v_mov_b32 v251, {M_CNTS}
    s_mov_b32 s62, 8
    L_slow:
    ds_read_b128 v[240:243], v246
    v_add_u32 v246, 1024, v246
    v_mov_b32 v248, 0xff800000
    s_waitcnt lgkmcnt(0)
    """)
    for t in range(16):
        a(f"v_mfma_f32_32x32x16_bf16 v[192:207], {vr(4*t,4)}, v[240:243], 0\ns_nop 11")
        for r in range(8): a(f"v_max3_f32 v248, v248, v{192+2*r}, v{193+2*r}")
    a(f"""
    ds_max_f32 v247, v248
    ds_add_u32 v251, v245
    s_mov_b32 s63, 0
    L_slow2:
    s_sleep 1
    ds_read_b32 v249, v251
    s_add_u32 s63, s63, 1
    s_cmp_gt_u32 s63, {SPIN_MAX}
    s_cbranch_scc1 L_slow3
    s_waitcnt lgkmcnt(0)
    v_cmp_ne_u32 vcc, 0x100, v249
    s_cbranch_vccnz L_slow2
    L_slow3:
    ds_read_b32 v248, v247
    v_add_u32 v247, 128, v247
    v_add_u32 v251, 4, v251
    s_waitcnt lgkmcnt(0)
    """)
    for t in range(16):
        a(f"v_mfma_f32_32x32x16_bf16 v[192:207], {vr(4*t,4)}, v[240:243], 0\ns_nop 11")
        for r in range(16): a(f"v_sub_f32 v{192+r}, v{192+r}, v248")
        for r in range(16): a(f"v_exp_f32 v{192+r}, v{192+r}")
        a("s_nop 0")
        for r in range(8): a(f"v_cvt_pk_bf16_f32 v{208+r}, v{192+2*r}, v{193+2*r}")
        a("s_nop 1")
        a(f"v_mfma_f32_32x32x16_bf16 v[224:239], {vr(64+8*t,4)}, v[208:211], {'0' if t == 0 else 'v[224:239]'}")
        a(f"v_mfma_f32_32x32x16_bf16 v[224:239], {vr(68+8*t,4)}, v[212:215], v[224:239]")
    a("s_nop 11")
    a("\n".join(flush))
    a(f"""
    s_sub_u32 s62, s62, 1
    s_cmp_lg_u32 s62, 0
    s_cbranch_scc1 L_slow
    """)
    diag_out("s")
    a("s_endpgm")

    a(f"""
    L_G:
    s_cmp_eq_u32 {sW}, 7
    s_cbranch_scc1 L_KV
    s_barrier
    s_waitcnt vmcnt(0)
    s_barrier
    s_sub_u32 s60, {sW}, 4
    s_mul_i32 s60, s60, 7168
    s_add_u32 s60, s60, {OACC}
    v_lshlrev_b32 v1, 4, {L}
    v_add_u32 v1, s60, v1
    v_mov_b32 v4, 0
    v_mov_b32 v5, 0
    v_mov_b32 v6, 0
    v_mov_b32 v7, 0
    """)
    for i in range(7): a(f"ds_write_b128 v1, v[4:7] offset:{1024*i}")
    a(f"""
    v_lshlrev_b32 v2, 4, {L}
    v_add_u32 v2, {MISC}, v2
    v_mov_b32 v8, 0xff800000
    v_mov_b32 v9, v8
    v_mov_b32 v10, v8
    v_mov_b32 v11, v8
    ds_write_b128 v2, v[4:7]
    ds_write_b128 v2, v[8:11] offset:1024
    s_waitcnt vmcnt(0) lgkmcnt(0)
    s_branch L_Gjoin
    """)
    a(f"""
    L_KV:
    s_setprio 3
    s_cmp_lt_u32 {sJ}, 4
    s_cselect_b32 s{SWKV}, s{SWKV}, s48
    s_cselect_b32 s{SWKV+1}, s{SWKV+1}, s49
    v_lshlrev_b32 v1, 4, {L}
    s_mov_b32 m0, {OACC}
    s_and_b32 s60, {sJ}, 3
    """)
    for d in range(16):
        if d & 3 == 0 and d: a(f"s_mov_b32 m0, {OACC + 1024*d}\ns_mov_b32 s61, {1024*d}")
        a(f"buffer_load_dwordx4 v1, {srd(SWKV)}, {'s61' if d >= 4 else '0'} offen offset:{1024*(d&3)} lds")
    a(f"""
    v_and_b32 v2, 15, {L}
    v_lshrrev_b32 v3, 4, {L}
    v_lshlrev_b32 v4, 4, v3
    v_lshl_or_b32 v4, v2, 10, v4
    s_lshl_b32 s61, {sGRP}, 2
    s_add_u32 s61, s61, s60
    s_lshl_b32 s62, s61, 14
    """)
    for s in range(16): a(f"buffer_load_dwordx4 {vr(64+4*s,4)}, v4, {srd(SX)}, s62 offen offset:{64*s}")
    a(f"""
    s_barrier
    v_lshlrev_b32 v5, 8, v3
    v_lshl_or_b32 v5, v2, 3, v5
    v_add_u32 v5, {OACC}, v5
    s_cmp_lt_u32 {sJ}, 4
    s_cselect_b32 s63, 9, 8
    v_and_b32 v6, 1, v3
    v_lshlrev_b32 v6, s63, v6
    v_lshl_or_b32 v6, v2, 4, v6
    v_lshrrev_b32 v7, 1, v3
    v_lshl_or_b32 v6, v7, 3, v6
    s_lshr_b32 s54, s61, 1
    s_lshl_b32 s54, s54, 10
    s_and_b32 s55, s61, 1
    s_lshl_b32 s55, s55, 8
    s_add_u32 s54, s54, s55
    s_add_u32 s54, s54, {WS_K}
    s_lshl_b32 s55, s61, 9
    s_add_u32 s55, s55, {WS_V}
    s_cmp_lt_u32 {sJ}, 4
    s_cselect_b32 s54, s54, s55
    s_lshl_b32 s55, {sGRP}, 3
    s_add_u32 s55, s55, {sJ}
    s_lshl_b32 s55, s55, 7
    s_add_u32 s55, s55, {WS_KVF}
    s_waitcnt vmcnt(16)
    """)
    stamp(1)
    for s in range(16):
        a(f"ds_read_b64_tr_b16 {vr(128+4*s,2)}, v5 offset:{1024*s}\nds_read_b64_tr_b16 {vr(130+4*s,2)}, v5 offset:{1024*s+128}")
    make_tag()
    a(f"s_cmp_lt_u32 {sJ}, 4\ns_waitcnt vmcnt(0) lgkmcnt(0)\ns_cbranch_scc0 L_KVv")
    for s in range(16): a(f"v_mfma_f32_16x16x32_bf16 v[192:195], {vr(128+4*s,4)}, {vr(64+4*s,4)}, {'0' if s == 0 else 'v[192:195]'}")
    a("s_branch L_KVd\nL_KVv:")
    for s in range(16): a(f"v_mfma_f32_16x16x32_bf16 v[192:195], {vr(64+4*s,4)}, {vr(128+4*s,4)}, {'0' if s == 0 else 'v[192:195]'}")
    a(f"""
    L_KVd:
    s_nop 7
    v_cvt_pk_bf16_f32 v196, v192, v193
    v_cvt_pk_bf16_f32 v197, v194, v195
    buffer_store_dwordx2 v[196:197], v6, {srd(SWS)}, s54 offen sc1
    s_barrier
    v_mul_f32 v8, v192, v192
    v_fmac_f32 v8, v193, v193
    v_fmac_f32 v8, v194, v194
    v_fmac_f32 v8, v195, v195
    v_mov_b32 v9, v8
    s_nop 1
    v_permlane32_swap_b32 v8, v9
    v_add_f32 v8, v8, v9
    v_mov_b32 v9, v8
    s_nop 1
    v_permlane16_swap_b32 v8, v9
    v_add_f32 v8, v8, v9
    s_nop 1
    v_max_u32_dpp v8, v8, v8 row_ror:8 row_mask:0xf bank_mask:0xf
    s_nop 1
    v_max_u32_dpp v8, v8, v8 row_ror:4 row_mask:0xf bank_mask:0xf
    s_nop 1
    v_max_u32_dpp v8, v8, v8 row_ror:2 row_mask:0xf bank_mask:0xf
    s_nop 1
    v_max_u32_dpp v9, v8, v8 row_ror:1 row_mask:0xf bank_mask:0xf
    s_cselect_b32 s63, -1, 0
    v_mov_b32 v8, {sTAG}
    v_and_b32 v9, s63, v9
    s_mov_b64 exec, 1
    s_waitcnt vmcnt(0)
    buffer_store_dwordx2 v[8:9], off, {srd(SWS)}, s55 sc1
    s_mov_b64 exec, -1
    s_setprio 0
    """)
    stamp(2)
    a(f"""
    L_Gjoin:
    s_barrier
    s_barrier
    s_barrier
    s_waitcnt lgkmcnt(0)
    s_sub_u32 {sW}, {sW}, 4
    """)
    gw = sW
    a(f"""
    s_lshr_b32 s60, {sJ}, 1
    s_mul_i32 s60, s60, 7
    s_and_b32 s61, {sJ}, 1
    s_lshl_b32 s62, s61, 2
    s_add_u32 s62, s62, {gw}
    s_cmp_eq_u32 {gw}, 3
    s_cselect_b32 s62, 3, s62
    s_cselect_b32 s61, s61, 0
    s_add_u32 s60, s60, s62
    s_lshl_b32 s48, s60, 1
    s_add_u32 s48, s48, s61
    s_lshl_b32 s54, s48, 6
    s_lshl_b32 s49, {gw}, 14
    s_add_u32 s49, s49, {W_}
    v_lshrrev_b32 v1, 3, {L}
    v_and_b32 v2, 7, {L}
    v_bfe_u32 v3, {L}, 4, 1
    v_lshlrev_b32 v3, 2, v3
    v_xor_b32 v2, v3, v2
    v_lshlrev_b32 v2, 4, v2
    v_lshl_or_b32 v150, v1, 10, v2
    v_add_u32 v151, 7168, v150
    v_mul_u32_u24 v148, 3584, v1
    v_add_u32 v148, v148, v2
    v_add_u32 v149, {8*3584-1024}, v148
    """)
    a(f"s_cmp_eq_u32 {gw}, 3\ns_cbranch_scc0 L_Gs1")
    a(f"""
    v_lshrrev_b32 v1, 2, {L}
    v_and_b32 v2, 3, {L}
    v_mul_u32_u24 v148, 3584, v1
    v_lshl_add_u32 v148, v2, 4, v148
    v_lshlrev_b32 v1, 4, {L}
    s_mov_b32 m0, {M_GATE}
    s_barrier
    buffer_load_dwordx4 v1, {srd(SGT)}, 0 offen lds
    """)
    for k in range(8):
        a(f"s_add_u32 m0, s49, {2048*k}\ns_nop 0\nbuffer_load_dwordx4 v148, {srd(SW1)}, s54 offen lds\ns_add_u32 s54, s54, {16*3584}")
    a("s_branch L_Gs2\nL_Gs1:\ns_barrier")
    for k in range(8):
        a(f"s_add_u32 m0, s49, {2048*k}\ns_nop 0\nbuffer_load_dwordx4 v148, {srd(SW1)}, s54 offen lds\nbuffer_load_dwordx4 v149, {srd(SW1)}, s54 offen offset:1024 lds\ns_add_u32 s54, s54, {16*3584}")
    a("L_Gs2:\ns_setprio 3")
    stamp(3)
    make_tag()
    a(f"""
    v_and_b32 v1, 31, {L}
    v_lshlrev_b32 v4, 1, v1
    s_lshl_b32 s60, s48, 6
    s_lshl_b32 s61, {sJ}, 7
    buffer_load_ushort v152, v4, {srd(SB1)}, s60 offen
    buffer_load_ushort v156, v4, {srd(SB1)}, s60 offen offset:64
    buffer_load_ushort v168, v4, {srd(SB2)}, s61 offen
    buffer_load_ushort v172, v4, {srd(SB2)}, s61 offen offset:64
    v_lshrrev_b32 v2, 5, {L}
    v_and_b32 v3, 15, {L}
    v_xor_b32 v3, v2, v3
    v_lshlrev_b32 v3, 4, v3
    v_lshl_or_b32 v136, v1, 8, v3
    """)
    for k in range(1, 8): a(f"v_xor_b32 v{136+k}, {32*k}, v136")
    tr_addr(144, 8)
    a("v_add_u32 v144, s49, v144\nv_xor_b32 v145, 64, v144")
    tr_addr(146, 4)
    a("v_add_u32 v176, 0, v146\nv_add_u32 v146, s49, v146\nv_xor_b32 v147, 64, v146")
    for r in (153, 154, 155, 157, 158, 159, 161, 162, 163, 169, 170, 171, 173, 174, 175): a(f"v_mov_b32 v{r}, 0")
    a(f"""
    v_cmp_gt_u32 vcc, 32, {L}
    v_mov_b32 v1, 0x3f80
    v_lshlrev_b32 v166, 4, {L}
    v_cndmask_b32 v160, 0, v1, vcc
    v_mov_b32 v167, 1
    v_mov_b32 v177, {M_CNTG}
    s_cmp_eq_u32 {gw}, 3
    s_cbranch_scc1 L_F1w3
    """)
    ACC = lambda mt, nt: 32*nt + 16*mt
    def mf(mt, nt, A_, B_, c0=False):
        d = vr(ACC(mt, nt), 16)
        a(f"v_mfma_f32_32x32x16_bf16 {d}, {vr(A_,4)}, {vr(B_,4)}, {'0' if c0 else d}")
    def f1reads(k, w3):
        ab = 120 + 8*(k & 1); bb = 64 + 8*(k & 1); u = k & 7
        if not w3:
            a(f"ds_read_b64_tr_b16 {vr(ab,2)}, v144 offset:{2048*u}\nds_read_b64_tr_b16 {vr(ab+2,2)}, v144 offset:{2048*u+512}")
            a(f"ds_read_b64_tr_b16 {vr(ab+4,2)}, v145 offset:{2048*u}\nds_read_b64_tr_b16 {vr(ab+6,2)}, v145 offset:{2048*u+512}")
        else:
            a(f"ds_read_b64_tr_b16 {vr(ab,2)}, v144 offset:{2048*u}\nds_read_b64_tr_b16 {vr(ab+2,2)}, v144 offset:{2048*u+256}")
            a(f"ds_read_b128 {vr(ab+4,4)}, v145 offset:{32*u}")
        a(f"ds_read_b128 {vr(bb,4)}, v{136+u}\nds_read_b128 {vr(bb+4,4)}, v{136+u} offset:8192")
    def ffn1(w3):
        nd = 1 if w3 else 2
        nr = 5 if w3 else 6
        lbl = "L_f1b" if w3 else "L_f1a"
        a("s_waitcnt vmcnt(0)\ns_setprio 0")
        for nt in range(2):
            mf(0, nt, 152, 160, True)
            mf(1, nt, 156, 160, True)
        f1reads(0, w3)
        a(f"s_mov_b32 s62, 4\n{lbl}:")
        a(f"s_cmp_eq_u32 s62, 1\ns_cselect_b32 s{SW1+2}, 0, s{SW1+2}")
        for u in range(8):
            a(f"s_waitcnt vmcnt({6*nd})")
            if u == 7:
                a("s_setprio 3")
                for k in range(8): a(f"v_add_u32 v{136+k}, 0x4000, v{136+k}")
                if w3: a("v_add_u32 v145, 0x100, v145")
                a("s_setprio 0")
            f1reads(u+1, w3)
            a(f"s_add_u32 m0, s49, {2048*u}\ns_waitcnt lgkmcnt({nr})")
            a(f"buffer_load_dwordx4 v148, {srd(SW1)}, s54 offen lds")
            if not w3: a(f"buffer_load_dwordx4 v149, {srd(SW1)}, s54 offen offset:1024 lds")
            a(f"s_add_u32 s54, s54, {16*3584}")
            ab = 120 + 8*(u & 1); bb = 64 + 8*(u & 1)
            mf(0, 0, ab, bb); mf(1, 0, ab+4, bb); mf(0, 1, ab, bb+4); mf(1, 1, ab+4, bb+4)
        a(f"s_sub_u32 s62, s62, 1\ns_cmp_lg_u32 s62, 0\ns_cbranch_scc1 {lbl}")
    ffn1(False)
    a("s_branch L_F1done\nL_F1w3:")
    a(f"""
    v_lshrrev_b32 v1, 5, {L}
    v_bfe_u32 v2, {L}, 2, 2
    v_lshl_or_b32 v2, v1, 3, v2
    v_lshlrev_b32 v2, 6, v2
    v_bfe_u32 v3, {L}, 4, 1
    v_lshl_or_b32 v2, v3, 5, v2
    v_and_b32 v3, 3, {L}
    v_lshl_or_b32 v2, v3, 3, v2
    v_add_u32 v144, s49, v2
    v_lshlrev_b32 v145, 4, v1
    v_add_u32 v145, {M_GATE}, v145
    s_waitcnt vmcnt(0)
    v_mov_b32 v156, 0
    """)
    ffn1(True)
    a("L_F1done:\ns_waitcnt lgkmcnt(0)\ns_setprio 3")
    stamp(4)
    a(f"""
    s_lshl_b32 s60, {sGRP}, 1
    s_mul_i32 s60, s60, {112*1024}
    s_lshl_b32 s61, s48, 11
    s_add_u32 s60, s60, s61
    s_add_u32 s60, s60, {WS_H}
    s_add_u32 s61, s60, {112*1024}
    s_nop 4
    """)
    def hst(mt, nt):
        b = ACC(mt, nt)
        for r in range(16): a(f"v_max_f32 v{b+r}, 0, v{b+r}")
        for r in range(8): a(f"v_pk_mul_f32 {vr(b+2*r,2)}, {vr(b+2*r,2)}, {vr(b+2*r,2)}")
        for r in range(8): a(f"v_cvt_pk_bf16_f32 v{b+r}, v{b+2*r}, v{b+2*r+1}")
        so = "s61" if nt else "s60"
        a(f"buffer_store_dwordx4 {vr(b,4)}, v166, {srd(SWS)}, {so} offen offset:{2048*mt} sc1")
        a(f"buffer_store_dwordx4 {vr(b+4,4)}, v166, {srd(SWS)}, {so} offen offset:{2048*mt+1024} sc1")
    hst(0, 0); hst(0, 1)
    a(f"s_cmp_eq_u32 {gw}, 3\ns_cbranch_scc1 L_gate")
    hst(1, 0); hst(1, 1)
    a(f"""
    s_branch L_gated
    L_gate:
    v_mul_f32 v16, {0x80000000 | LOG2E}, v16
    v_mul_f32 v48, {0x80000000 | LOG2E}, v48
    v_exp_f32 v16, v16
    v_exp_f32 v48, v48
    v_and_b32 v17, 31, {L}
    v_add_f32 v16, 1.0, v16
    v_add_f32 v48, 1.0, v48
    v_rcp_f32 v16, v16
    v_rcp_f32 v48, v48
    v_lshlrev_b32 v17, 2, v17
    v_add_u32 v17, {M_G}, v17
    ds_write_b32 v17, v16
    ds_write_b32 v17, v48 offset:128
    L_gated:
    ds_add_u32 v177, v167
    """)
    a(f"""
    s_mul_i32 s54, {gw}, {448*1024}
    s_lshl_b32 s55, {sJ}, 7
    s_add_u32 s54, s54, s55
    s_lshl_b32 s60, {sGRP}, 5
    s_lshl_b32 s61, {sJ}, 2
    s_add_u32 s61, s61, {gw}
    s_add_u32 s61, s61, s60
    s_lshl_b32 s61, s61, 7
    s_add_u32 s61, s61, {WS_HF}
    v_mov_b32 v1, {sTAG}
    s_waitcnt vmcnt(0)
    s_mov_b64 exec, 1
    buffer_store_dword v1, off, {srd(SWS)}, s61 sc1
    s_mov_b64 exec, -1
    """)
    stamp(5)
    for k in range(7):
        a(f"s_add_u32 m0, s49, {2048*k}\ns_nop 0\nbuffer_load_dwordx4 v150, {srd(SW2)}, s54 offen lds\nbuffer_load_dwordx4 v151, {srd(SW2)}, s54 offen offset:1024 lds\ns_add_u32 s54, s54, 16384")
    def lds_wait(lbl, addr, off, val, sleep=2):
        a(f"""
        s_mov_b32 s63, 0
        {lbl}:
        ds_read_b32 v178, {addr} offset:{off}
        s_add_u32 s63, s63, 1
        s_cmp_gt_u32 s63, {SPIN_MAX}
        s_cbranch_scc1 {lbl}_x
        s_waitcnt lgkmcnt(0)
        v_cmp_ne_u32 vcc, {val}, v178
        s_cbranch_vccz {lbl}_x
        s_sleep {sleep}
        s_branch {lbl}
        {lbl}_x:
        """)
    def flag_wait(lbl, vaddr, soff, sleep=2):
        a(f"""
        s_mov_b32 s63, 0
        {lbl}:
        buffer_load_dword v178, {vaddr}, {srd(SWS)}, {soff} offen sc1
        s_add_u32 s63, s63, 1
        s_cmp_gt_u32 s63, {SPIN_MAX}
        s_cbranch_scc1 {lbl}_x
        s_waitcnt vmcnt(0)
        v_cmp_ne_u32 vcc, {sTAG}, v178
        s_cbranch_vccz {lbl}_x
        s_sleep {sleep}
        s_branch {lbl}
        {lbl}_x:
        """)
    lds_wait("L_gs1", "v177", 0, "0x100")
    a(f"""
    v_and_b32 v1, 31, {L}
    v_lshlrev_b32 v1, 2, v1
    v_add_u32 v1, {M_G}, v1
    ds_read_b32 v164, v1
    ds_read_b32 v165, v1 offset:128
    s_lshl_b32 s60, {gw}, 17
    s_add_u32 s60, s60, s55
    s_lshl_b32 s61, {gw}, 14
    v_add_u32 v176, s61, v176
    v_xor_b32 v179, 64, v176
    """)
    for k in range(8):
        a(f"s_add_u32 m0, s61, {X_ + 2048*k}\ns_nop 0\nbuffer_load_dwordx4 v150, {srd(SWO)}, s60 offen lds\nbuffer_load_dwordx4 v151, {srd(SWO)}, s60 offen offset:1024 lds\ns_add_u32 s60, s60, 16384")
    a(f"""
    s_cmp_eq_u32 {gw}, 0
    s_cselect_b32 s60, -1, 0
    v_and_b32 v160, s60, v160
    v_and_b32 v1, 7, {L}
    v_lshlrev_b32 v180, 7, v1
    s_lshl_b32 s60, {sGRP}, 5
    s_lshl_b32 s61, {gw}, 3
    s_add_u32 s60, s60, s61
    s_lshl_b32 s60, s60, 7
    s_add_u32 s60, s60, {WS_HF}
    """)
    for nt in range(2):
        mf(0, nt, 168, 160, True); mf(1, nt, 172, 160, True)
    flag_wait("L_hw", "v180", "s60")
    stamp(6)
    a(f"""
    s_setprio 0
    s_lshl_b32 s60, {sGRP}, 1
    s_mul_i32 s60, s60, {112*1024}
    s_mul_i32 s61, {gw}, {28*1024}
    s_add_u32 s60, s60, s61
    s_add_u32 s60, s60, {WS_H}
    s_add_u32 s61, s60, {112*1024}
    """)
    def hload(u):
        a(f"buffer_load_dwordx4 {vr(64+8*u,4)}, v166, {srd(SH)}, s60 offen sc1\nbuffer_load_dwordx4 {vr(68+8*u,4)}, v166, {srd(SH)}, s61 offen sc1")
        a("s_add_u32 s60, s60, 1024\ns_add_u32 s61, s61, 1024")
    for u in range(7): hload(u)
    def f2reads(slot, par):
        ab = 120 + 8*par
        a(f"ds_read_b64_tr_b16 {vr(ab,2)}, v146 offset:{2048*slot}\nds_read_b64_tr_b16 {vr(ab+2,2)}, v146 offset:{2048*slot+1024}")
        a(f"ds_read_b64_tr_b16 {vr(ab+4,2)}, v147 offset:{2048*slot}\nds_read_b64_tr_b16 {vr(ab+6,2)}, v147 offset:{2048*slot+1024}")
    f2reads(0, 0)
    a("s_waitcnt vmcnt(0)\ns_mov_b32 s62, 2\nL_f2:")
    for it in range(2):
        if it == 1: a(f"s_cmp_eq_u32 s62, 1\ns_cselect_b32 s{SW2+2}, 0, s{SW2+2}\ns_cselect_b32 s{SH+2}, 0, s{SH+2}")
        for u in range(7):
            par = (7*it + u) & 1
            a("s_waitcnt vmcnt(22)")
            f2reads((u+1) % 7, par ^ 1)
            a(f"s_add_u32 m0, s49, {2048*u}\ns_waitcnt lgkmcnt(4)")
            a(f"buffer_load_dwordx4 v150, {srd(SW2)}, s54 offen lds\nbuffer_load_dwordx4 v151, {srd(SW2)}, s54 offen offset:1024 lds\ns_add_u32 s54, s54, 16384")
            ab = 120 + 8*par; bb = 64 + 8*u
            mf(0, 0, ab, bb); mf(1, 0, ab+4, bb); mf(0, 1, ab, bb+4); mf(1, 1, ab+4, bb+4)
            hload(u)
    a("s_sub_u32 s62, s62, 1\ns_cmp_lg_u32 s62, 0\ns_cbranch_scc1 L_f2")
    a("s_waitcnt vmcnt(0) lgkmcnt(0)\ns_setprio 3")
    stamp(7)
    a("v_sub_f32 v182, 1.0, v164\nv_sub_f32 v184, 1.0, v165\ns_nop 4")
    for r in range(16): a(f"v_pk_mul_f32 {vr(2*r,2)}, {vr(2*r,2)}, v[182:183] op_sel_hi:[1,0]")
    for r in range(16, 32): a(f"v_pk_mul_f32 {vr(2*r,2)}, {vr(2*r,2)}, v[184:185] op_sel_hi:[1,0]")
    a(f"""
    s_mul_i32 s60, {gw}, {SLOT}
    s_add_u32 s60, s60, {OACC}
    v_lshlrev_b32 v181, 2, {L}
    v_add_u32 v181, s60, v181
    v_and_b32 v120, 31, {L}
    v_lshrrev_b32 v121, 5, {L}
    v_and_b32 v122, 7, {L}
    v_xor_b32 v121, v121, v122
    v_lshlrev_b32 v121, 4, v121
    v_lshl_or_b32 v186, v120, 8, v121
    s_lshl_b32 s60, {gw}, 14
    s_add_u32 s60, s60, {W_}
    v_add_u32 v186, s60, v186
    v_xor_b32 v187, 32, v186
    v_xor_b32 v188, 64, v186
    v_xor_b32 v189, 0x60, v186
    v_lshrrev_b32 v120, 3, {L}
    v_lshlrev_b32 v121, 1, v122
    v_xor_b32 v121, v120, v121
    v_lshlrev_b32 v121, 4, v121
    v_lshl_or_b32 v190, v120, 8, v121
    s_lshl_b32 s60, {gw}, 11
    s_add_u32 s60, s60, {W_}
    v_add_u32 v190, s60, v190
    v_xor_b32 v191, 16, v190
    v_lshlrev_b32 v121, 4, v122
    v_lshl_or_b32 v192, v120, 10, v121
    v_bfe_u32 v120, {L}, 2, 1
    v_and_b32 v121, 3, {L}
    v_lshlrev_b32 v121, 7, v121
    v_lshl_or_b32 v180, v120, 10, v121
    s_lshl_b32 s54, {sGRP}, 3
    s_add_u32 s55, s54, {sJ}
    s_lshl_b32 s55, s55, 3
    s_add_u32 s55, s55, {gw}
    s_lshl_b32 s64, s55, 7
    s_add_u32 s64, s64, {WS_OF}
    s_lshl_b32 s55, s55, 10
    s_add_u32 s55, s55, {WS_O}
    s_lshl_b32 s60, {gw}, 1
    s_add_u32 s54, s54, s60
    s_lshl_b32 s65, s54, 10
    s_add_u32 s65, s65, {WS_OF}
    s_lshl_b32 s54, s54, 13
    s_add_u32 s54, s54, {WS_O}
    s_lshl_b32 s48, {sGRP}, 16
    s_lshl_b32 s60, {gw}, 13
    s_add_u32 s48, s48, s60
    s_lshl_b32 s60, {sJ}, 7
    s_add_u32 s48, s48, s60
    s_mov_b32 s62, 0
    L_stage:
    """)
    lds_wait("L_fw", "v181", 2304, "4")
    stamp(8)
    for r in range(4): a(f"ds_read2st64_b32 {vr(120+2*r,2)}, v181 offset0:{2*r} offset1:{2*r+1}")
    a(f"""
    ds_read_b32 v128, v181 offset:2048
    v_mov_b32 v129, {sTAG}
    s_waitcnt lgkmcnt(0)
    v_rcp_f32 v128, v128
    s_or_b32 s60, s2, {gw}
    s_or_b32 s60, s60, s62
    v_mul_f32 v128, v128, v164
    """)
    for r in range(4): a(f"v_pk_mul_f32 {vr(120+2*r,2)}, {vr(120+2*r,2)}, v[128:129] op_sel_hi:[1,0]")
    for r in range(4): a(f"v_cvt_pk_bf16_f32 v{120+r}, v{120+2*r}, v{121+2*r}")
    a(f"""
    buffer_store_dwordx4 v[120:123], v166, {srd(SWS)}, s55 offen sc1
    s_mov_b64 exec, 1
    s_cmp_lg_u32 s60, 0
    s_cbranch_scc1 L_noep
    buffer_store_dword v129, off, {srd(SWS)}, 0 sc1
    L_noep:
    s_waitcnt vmcnt(0)
    buffer_store_dword v129, off, {srd(SWS)}, s64 sc1
    s_mov_b64 exec, -1
    """)
    def woreads(i, par):
        ab = 120 + 8*par
        a(f"ds_read_b64_tr_b16 {vr(ab,2)}, v176 offset:{2048*i}\nds_read_b64_tr_b16 {vr(ab+2,2)}, v176 offset:{2048*i+1024}")
        a(f"ds_read_b64_tr_b16 {vr(ab+4,2)}, v179 offset:{2048*i}\nds_read_b64_tr_b16 {vr(ab+6,2)}, v179 offset:{2048*i+1024}")
    flag_wait("L_ow", "v180", "s65", 1)
    stamp(9)
    a("s_add_u32 s60, s54, 8192")
    for i in range(8):
        a(f"buffer_load_dwordx4 {vr(64+4*i,4)}, v166, {srd(SWS)}, {'s60' if i >= 4 else 's54'} offen offset:{1024*(i&3)} sc1")
    woreads(0, 0)
    a("s_setprio 0")
    for i in range(8):
        if i < 7:
            woreads(i+1, (i+1) & 1); a(f"s_waitcnt vmcnt({7-i}) lgkmcnt(4)")
        else: a("s_waitcnt vmcnt(0) lgkmcnt(0)")
        ab = 120 + 8*(i & 1)
        mf(0, 0, ab, 64+4*i); mf(1, 0, ab+4, 64+4*i)
    a("s_setprio 3\ns_nop 10")
    stamp(10)
    for mt in range(2):
        for i in range(4):
            a(f"ds_write_b128 v{186+i}, {vr(16*mt+4*i,4)} offset:{128*mt}")
    a("ds_add_u32 v177, v167 offset:4")
    lds_wait("L_rw", "v177", 4, "0x100", 1)
    for p in range(4):
        a(f"ds_read_b128 {vr(64+8*p,4)}, v190 offset:{16384*p}\nds_read_b128 {vr(68+8*p,4)}, v191 offset:{16384*p}")
    a("s_waitcnt lgkmcnt(4)")
    for r in range(4): a(f"v_pk_add_f32 {vr(64+2*r,2)}, {vr(64+2*r,2)}, {vr(72+2*r,2)}")
    a("s_waitcnt lgkmcnt(0)")
    for r in range(4): a(f"v_pk_add_f32 {vr(80+2*r,2)}, {vr(80+2*r,2)}, {vr(88+2*r,2)}")
    for r in range(4): a(f"v_pk_add_f32 {vr(64+2*r,2)}, {vr(64+2*r,2)}, {vr(80+2*r,2)}")
    for r in range(4): a(f"v_cvt_pk_bf16_f32 v{64+r}, v{64+2*r}, v{65+2*r}")
    a(f"buffer_store_dwordx4 v[64:67], v192, {srd(SOUT)}, s48 offen")
    stamp(11)
    a("s_cmp_lg_u32 s62, 0\ns_cbranch_scc1 L_gend")
    if diag:
        for i in range(4): a(f"s_mov_b32 s{68+2*(12+i)}, s{68+2*(8+i)}")
    for r in range(16): a(f"v_mov_b64 {vr(2*r,2)}, {vr(32+2*r,2)}")
    a(f"""
    v_mov_b32 v164, v165
    v_add_u32 v181, {4*SLOT}, v181
    v_add_u32 v177, 4, v177
    v_add_u32 v186, 0x2000, v186
    v_add_u32 v187, 0x2000, v187
    v_add_u32 v188, 0x2000, v188
    v_add_u32 v189, 0x2000, v189
    v_add_u32 v190, 0x2000, v190
    v_add_u32 v191, 0x2000, v191
    s_add_u32 s55, s55, 4096
    s_add_u32 s64, s64, 512
    s_add_u32 s54, s54, 4096
    s_add_u32 s65, s65, 512
    s_add_u32 s48, s48, 0x8000
    s_mov_b32 s62, 1
    s_branch L_stage
    L_gend:
    """)
    if diag: a(f"s_add_u32 {sW}, {sW}, 4")
    diag_out("g")
    a("L_end:\ns_endpgm")

    hdr = open(os.path.join(os.path.dirname(os.path.abspath(__file__)), "..", "cdna_kernels", NAME + ".s.ref")).read().split("\n")
    i0 = next(i for i, l in enumerate(hdr) if l.startswith("; Override"))
    head = "\n".join(hdr[:i0]) + f"\n; @launch grid=(256,1,1) block=(512,1,1) lds={LDS_BYTES}\n"
    return head + f""".amdgcn_target "amdgcn-amd-amdhsa--gfx950"
.text
.globl {NAME}_kernel
.p2align 8
.type {NAME}_kernel,@function
{NAME}_kernel:
{a.text()}.section .rodata,"a"
.p2align 6
.amdhsa_kernel {NAME}_kernel
  .amdhsa_next_free_vgpr 256
  .amdhsa_next_free_sgpr 102
  .amdhsa_accum_offset 256
  .amdhsa_group_segment_fixed_size 0
  .amdhsa_kernarg_size 112
  .amdhsa_user_sgpr_count 2
  .amdhsa_user_sgpr_kernarg_segment_ptr 1
  .amdhsa_system_sgpr_workgroup_id_x 1
.end_amdhsa_kernel
"""

if __name__ == "__main__":
    out = sys.argv[1] if len(sys.argv) > 1 else os.path.join(os.path.dirname(os.path.abspath(__file__)), "..", "cdna_kernels", NAME + ".s")
    opts = dict(x.split("=") if "=" in x else (x, 1) for x in sys.argv[2:])
    open(out, "w").write(gen(diag=bool(opts.pop("diag", 0)), opts=opts))
```

```python
import sys, os
NAME = "gated_mix__grouped_kv_mqa__dense_activation_squared_relu__prompt"

class Asm:
    def __init__(self): self.l = []
    def __call__(self, s):
        for x in s.strip("\n").split("\n"):
            x = x.strip()
            if not x: continue
            self.l.append(x if x.endswith(":") else "    " + x)
    def text(self): return "\n".join(self.l) + "\n"

def vr(a, n): return f"v[{a}:{a+n-1}]"

X_ = 0; W_ = 65536; S_ = 131072
OACC = S_; SLOT = 10240
QF = S_ + 2*SLOT
MISC = QF + 8192
M_G = MISC
M_QMAX = MISC + 256
M_KMAX = MISC + 260
M_CNTA = MISC + 264
M_CNTG = MISC + 272
M_CNTS = MISC + 320
M_M = MISC + 1024
M_GATE = MISC + 2048
LDS_BYTES = 163840
WS_EPOCH = 0
WS_KVF = 0x1000
WS_HF = 0x10000
WS_OF = 0x40000
WS_K = 0x80000
WS_V = 0x90000
WS_O = 0x100000
WS_H = 0x400000
WS_DIAG = 0xC00000
WS_SIZE = 0x1000000
SX, SWQ, SWKV, SWO, SW1, SB1, SW2, SB2, SGT, SOUT, SWS, SH = 4, 8, 12, 16, 20, 24, 28, 32, 36, 40, 44, 56
def srd(b): return f"s[{b}:{b+3}]"
sW, sGRP, sJ, sTAG = "s50", "s51", "s52", "s53"
QSCALE = 0x3eb8aa3b
LOG2E = 0x3fb8aa3b
SPIN_MAX = 200000

def gen(diag=False, opts=None):
    o = dict(opts or {})
    a = Asm()
    nstamp = [0]
    def stamp(i):
        if diag:
            a(f"s_memtime s[{68+2*i}:{69+2*i}]\ns_waitcnt lgkmcnt(0)")
    def diag_out(lbl):
        if diag:
            a(f"s_lshl_b32 s60, s2, 3\ns_add_u32 s60, s60, {sW}\ns_lshl_b32 s60, s60, 7\ns_add_u32 s60, s60, {WS_DIAG}")
            a("s_waitcnt vmcnt(0) lgkmcnt(0)\ns_mov_b64 exec, 1")
            for i in range(17):
                a(f"v_mov_b32 v1, s{66+2*i}\nbuffer_store_dword v1, off, {srd(SWS)}, s60 offset:{4*i}\ns_nop 1")
            a("s_waitcnt vmcnt(0)")

    a(f"""
    s_cmp_ge_u32 s2, 256
    s_cbranch_scc1 L_end
    s_load_dwordx2 s[{SX}:{SX+1}], s[0:1], 0
    s_load_dwordx2 s[{SWS}:{SWS+1}], s[0:1], 104
    s_load_dwordx2 s[{SWKV}:{SWKV+1}], s[0:1], 16
    s_load_dwordx2 s[48:49], s[0:1], 24
    s_load_dwordx2 s[{SWQ}:{SWQ+1}], s[0:1], 8
    s_load_dwordx2 s[{SW1}:{SW1+1}], s[0:1], 48
    s_load_dwordx2 s[{SB1}:{SB1+1}], s[0:1], 56
    v_lshrrev_b32 v1, 6, v0
    v_and_b32 v255, 63, v0
    s_and_b32 s54, s2, 7
    v_readfirstlane_b32 {sW}, v1
    s_lshr_b32 s55, s2, 3
    s_and_b32 {sJ}, s55, 7
    s_lshr_b32 s55, s55, 3
    s_lshl_b32 {sGRP}, s54, 2
    s_add_u32 {sGRP}, {sGRP}, s55
    """)
    if diag:
        for i in range(1, 17): a(f"s_mov_b32 s{66+2*i}, 0")
        a("s_waitcnt lgkmcnt(0)\ns_memrealtime s[66:67]")
        stamp(0)
    for b, n in ((SX, 2097152), (SWS, WS_SIZE), (SWKV, 16384), (SWQ, 524288), (SW1, 1835008), (SB1, 3584),
                 (SWO, 524288), (SW2, 1835008), (SB2, 1024), (SGT, 1024), (SOUT, 2097152), (SH, WS_SIZE)):
        a(f"s_mov_b32 s{b+2}, {n}\ns_mov_b32 s{b+3}, 0x00020000")
    a(f"""
    s_waitcnt lgkmcnt(0)
    s_load_dwordx2 s[{SWO}:{SWO+1}], s[0:1], 32
    s_load_dwordx2 s[{SW2}:{SW2+1}], s[0:1], 64
    s_load_dwordx2 s[{SB2}:{SB2+1}], s[0:1], 72
    s_load_dwordx2 s[{SGT}:{SGT+1}], s[0:1], 80
    s_load_dwordx2 s[{SOUT}:{SOUT+1}], s[0:1], 88
    s_load_dwordx2 s[{SH}:{SH+1}], s[0:1], 104
    buffer_load_dword v253, off, {srd(SWS)}, 0 sc1
    s_cmp_ge_u32 {sW}, 4
    s_cbranch_scc1 L_G
    """)
    def make_tag():
        a(f"""
        v_readfirstlane_b32 {sTAG}, v253
        s_nop 3
        s_mul_i32 {sTAG}, {sTAG}, 0x9E3779B1
        s_add_u32 {sTAG}, {sTAG}, 0x7F4A7C15
        """)

    L = "v255"
    a(f"""
    v_lshrrev_b32 v1, 4, {L}
    v_and_b32 v2, 15, {L}
    v_xor_b32 v2, v1, v2
    v_lshlrev_b32 v2, 4, v2
    v_lshl_or_b32 v4, v1, 10, v2
    v_xor_b32 v5, 64, v4
    v_add_u32 v5, 3072, v5
    v_xor_b32 v6, 0x80, v4
    v_add_u32 v6, 6144, v6
    v_xor_b32 v7, 0xc0, v4
    v_add_u32 v7, 9216, v7
    v_lshrrev_b32 v1, 3, {L}
    v_and_b32 v2, 7, {L}
    v_bfe_u32 v3, {L}, 4, 1
    v_lshlrev_b32 v3, 2, v3
    v_xor_b32 v2, v3, v2
    v_lshlrev_b32 v2, 4, v2
    v_lshl_or_b32 v8, v1, 10, v2
    v_add_u32 v9, 7168, v8
    v_add_u32 v10, 14336, v8
    v_add_u32 v11, 21504, v8
    s_lshl_b32 s54, {sGRP}, 16
    s_lshl_b32 s55, {sW}, 14
    s_add_u32 s54, s54, s55
    s_lshl_b32 s55, {sW}, 15
    s_lshl_b32 s60, {sJ}, 7
    s_add_u32 s55, s55, s60
    s_lshl_b32 s61, {sW}, 12
    s_barrier
    """)
    for c in range(4):
        a(f"s_add_u32 m0, s61, {X_ + 16384*c}")
        a("s_nop 0")
        for q in range(4):
            a(f"buffer_load_dwordx4 v{4+q}, {srd(SX)}, s54 offen offset:{1024*q} lds")
        a(f"s_add_u32 m0, s61, {W_ + 16384*c}")
        a("s_add_u32 s54, s54, 256")
        for q in range(4):
            a(f"buffer_load_dwordx4 v{8+q}, {srd(SWQ)}, s55 offen offset:{1024*q} lds")
        if c < 3: a("s_add_u32 s55, s55, 131072")
    a("s_waitcnt lgkmcnt(0)")
    stamp(1)
    a(f"""
    s_lshr_b32 s60, {sW}, 1
    s_lshl_b32 s60, s60, 13
    v_and_b32 v1, 31, {L}
    v_lshrrev_b32 v2, 5, {L}
    v_and_b32 v3, 15, {L}
    v_xor_b32 v3, v2, v3
    v_lshlrev_b32 v3, 4, v3
    v_lshl_or_b32 v16, v1, 8, v3
    v_add_u32 v16, s60, v16
    """)
    for k in range(1, 8): a(f"v_xor_b32 v{16+k}, {32*k}, v16")
    def tr_addr(dst, hmul, t0=1, t1=2, t2=3):
        a(f"""
        v_lshrrev_b32 v{t0}, 5, {L}
        v_bfe_u32 v{t1}, {L}, 2, 2
        v_mad_u32_u24 v{t0}, v{t0}, {hmul}, v{t1}
        v_lshlrev_b32 v{t0}, 7, v{t0}
        v_bfe_u32 v{t1}, {L}, 3, 1
        v_lshl_or_b32 v{t0}, v{t1}, 6, v{t0}
        v_bfe_u32 v{t1}, {L}, 4, 1
        v_lshl_or_b32 v{t0}, v{t1}, 5, v{t0}
        v_and_b32 v{t1}, 3, {L}
        v_lshl_or_b32 v{dst}, v{t1}, 3, v{t0}
        """)
    tr_addr(24, 8)
    a(f"""
    s_and_b32 s60, {sW}, 1
    s_lshl_b32 s60, s60, 6
    v_xor_b32 v24, s60, v24
    v_add_u32 v24, {W_}, v24
    """)
    for r in range(64, 192): a(f"v_mov_b32 v{r}, 0x3f803f80")
    def qreads(ks):
        b = 192 + 8*(ks & 1)
        a(f"ds_read_b64_tr_b16 {vr(b,2)}, v24 offset:{2048*ks}")
        a(f"ds_read_b64_tr_b16 {vr(b+2,2)}, v24 offset:{2048*ks+512}")
        a(f"ds_read_b128 {vr(b+4,4)}, v{16+(ks&7)} offset:{16384*(ks>>3)}")
    for c in range(4):
        a(f"s_waitcnt vmcnt({8*(3-c)})\ns_barrier")
        if c == 0:
            make_tag()
            stamp(2)
        qreads(8*c)
        for k in range(8):
            ks = 8*c + k
            if k < 7:
                qreads(ks+1); a("s_waitcnt lgkmcnt(3)")
            else:
                a("s_waitcnt lgkmcnt(0)")
            b = 192 + 8*(ks & 1)
            a(f"v_mfma_f32_32x32x16_bf16 v[224:239], {vr(b,4)}, {vr(b+4,4)}, {'0' if ks == 0 else 'v[224:239]'}")
    stamp(3)
    a(f"""
    s_lshr_b32 s60, {sW}, 1
    s_lshl_b32 s60, s60, 12
    s_and_b32 s61, {sW}, 1
    s_lshl_b32 s61, s61, 11
    s_add_u32 s60, s60, s61
    s_add_u32 s60, s60, {QF}
    v_lshlrev_b32 v250, 4, {L}
    v_add_u32 v1, s60, v250
    s_mov_b32 s62, {QSCALE}
    v_mov_b32 v245, {sTAG}
    v_mov_b32 v251, {M_QMAX}
    s_nop 1
    """)
    for r in range(16): a(f"v_mul_f32 v{224+r}, s62, v{224+r}")
    for r in range(8): a(f"v_cvt_pk_bf16_f32 v{192+r}, v{224+2*r}, v{225+2*r}")
    a("ds_write_b128 v1, v[192:195]\nds_write_b128 v1, v[196:199] offset:1024")
    a("v_mul_f32 v2, v224, v224\nv_mul_f32 v3, v232, v232")
    for r in range(1, 8): a(f"v_fmac_f32 v2, v{224+r}, v{224+r}\nv_fmac_f32 v3, v{232+r}, v{232+r}")
    a(f"""
    s_nop 1
    v_permlane32_swap_b32 v2, v3
    v_add_f32 v254, v2, v3
    v_lshlrev_b32 v247, 7, {L}
    s_lshl_b32 s60, {sW}, 8
    s_add_u32 s60, s60, {OACC}
    v_lshlrev_b32 v244, 2, {L}
    v_add_u32 v244, s60, v244
    v_add_u32 v246, {QF}, v250
    v_and_b32 v1, 15, {L}
    v_lshrrev_b32 v2, 5, {L}
    v_lshl_or_b32 v1, v2, 4, v1
    v_lshlrev_b32 v252, 4, v1
    v_add_u32 v252, {WS_V - WS_K}, v252
    s_lshl_b32 s60, {sW}, 13
    s_add_u32 s60, s60, {WS_KVF}
    s_lshl_b32 s61, {sW}, 14
    s_add_u32 s61, s61, {WS_K}
    s_mov_b32 s63, 0
    s_waitcnt lgkmcnt(0)
    s_barrier
    s_setprio 2
    ds_read_b128 v[240:243], v246
    v_add_u32 v246, 1024, v246
    """)
    stamp(4)
    a(f"""
    L_kvpoll:
    buffer_load_dwordx2 v[248:249], v247, {srd(SWS)}, s60 offen sc1
    s_add_u32 s63, s63, 1
    s_cmp_gt_u32 s63, {SPIN_MAX}
    s_cbranch_scc1 L_kvok
    s_waitcnt vmcnt(0)
    v_cmp_ne_u32 vcc, {sTAG}, v248
    s_cbranch_vccnz L_kvpoll
    L_kvok:
    s_mov_b32 s64, 0x0000ffff
    s_mov_b32 s65, 0x0000ffff
    """)
    stamp(5)
    for t in range(16):
        a(f"buffer_load_dwordx4 {vr(4*t,4)}, v250, {srd(SWS)}, s61 offen offset:{1024*(t&3)} sc1")
        a("s_mov_b64 exec, s[64:65]")
        a(f"buffer_load_dwordx4 {vr(64+8*t,4)}, v252, {srd(SWS)}, s61 offen offset:{1024*(t&3)} sc1")
        a(f"buffer_load_dwordx4 {vr(68+8*t,4)}, v252, {srd(SWS)}, s61 offen offset:{1024*(t&3)+512} sc1")
        a("s_mov_b64 exec, -1")
        if t & 3 == 3 and t < 15: a("s_add_u32 s61, s61, 4096")
    a(f"""
    v_max_u32_dpp v254, v254, v254 row_ror:8 row_mask:0xf bank_mask:0xf
    v_max_u32_dpp v249, v249, v249 row_ror:8 row_mask:0xf bank_mask:0xf
    v_mov_b32 v253, 1
    v_max_u32_dpp v254, v254, v254 row_ror:4 row_mask:0xf bank_mask:0xf
    v_max_u32_dpp v249, v249, v249 row_ror:4 row_mask:0xf bank_mask:0xf
    s_mov_b32 s64, 0x00010001
    v_max_u32_dpp v254, v254, v254 row_ror:2 row_mask:0xf bank_mask:0xf
    v_max_u32_dpp v249, v249, v249 row_ror:2 row_mask:0xf bank_mask:0xf
    s_mov_b32 s65, 0x00010001
    v_max_u32_dpp v254, v254, v254 row_ror:1 row_mask:0xf bank_mask:0xf
    v_max_u32_dpp v249, v249, v249 row_ror:1 row_mask:0xf bank_mask:0xf
    s_mov_b64 exec, s[64:65]
    ds_max_u32 v251, v254
    ds_max_u32 v251, v249 offset:4
    ds_add_u32 v251, v253 offset:8
    s_mov_b64 exec, -1
    s_mov_b32 s62, 8
    s_mov_b32 s64, 0xa0
    s_waitcnt vmcnt(47) lgkmcnt(0)
    v_mfma_f32_32x32x16_bf16 v[192:207], v[0:3], v[240:243], 0
    s_waitcnt vmcnt(44)
    """)
    stamp(6)
    a("s_nop 10")
    flush = [f"ds_write2st64_b32 v244, v{224+2*r}, v{225+2*r} offset0:{8*r} offset1:{8*r+4}" for r in range(4)] + ["ds_write2st64_b32 v244, v232, v245 offset0:32 offset1:36", f"v_add_u32 v244, {SLOT}, v244"]
    waits = {1: 35, 4: 26, 7: 17, 10: 8, 13: 0}
    def tile(t, first=False):
        S = [192, 208]
        cur = S[t & 1]; nxt = S[(t+1) & 1]
        Kn = 4*((t+1) % 16); Vp = 64 + 8*((t-1) % 16) + 4; Vc = 64 + 8*t
        m0 = f"v_mfma_f32_32x32x16_bf16 v[224:239], {vr(Vp,4)}, {vr(nxt+4,4)}, v[224:239]"
        m1 = f"v_mfma_f32_32x32x16_bf16 {vr(nxt,16)}, {vr(Kn,4)}, v[240:243], 0"
        m2 = f"v_mfma_f32_32x32x16_bf16 v[224:239], {vr(Vc,4)}, {vr(cur,4)}, {'0' if t == 0 else 'v[224:239]'}"
        e = lambda i: f"v_exp_f32 v{cur+i}, v{cur+i}"
        c = lambda i: f"v_cvt_pk_bf16_f32 v{cur+i}, v{cur+2*i}, v{cur+2*i+1}"
        cp7 = f"v_cvt_pk_bf16_f32 v{nxt+7}, v{nxt+14}, v{nxt+15}"
        seq = []
        if t in waits: seq.append(f"s_waitcnt vmcnt({waits[t]})")
        seq += [e(0)] + ([] if first else [cp7]) + [e(1), e(2)] + ([] if first else [m0]) + [c(0), e(3), e(4), c(1), e(5), e(6)]
        if t == 15: seq.append("s_waitcnt lgkmcnt(0)")
        seq.append(m1)
        if t == 14: seq += ["ds_read_b128 v[240:243], v246", "v_add_u32 v246, 1024, v246"]
        seq += [c(2), e(7), e(8), c(3), e(9), e(10)]
        if t == 0 and not first: seq += flush
        seq += [c(4), m2, e(11), e(12), c(5), e(13), e(14), c(6)]
        if t == 15: seq += ["s_sub_u32 s62, s62, 1"]
        seq += [e(15)]
        a("\n".join(seq))
    tile(0, first=True)
    a("s_branch L_t1\n.p2align 6\nL_top:".replace(".p2align 6", ".p2align 6"))
    tile(0)
    a("L_t1:")
    for t in range(1, 16): tile(t)
    a(f"""
    s_bitcmp1_b32 s64, s62
    s_cbranch_scc1 L_check
    s_cmp_lg_u32 s62, 0
    s_cbranch_scc1 L_top
    v_cvt_pk_bf16_f32 v215, v222, v223
    s_nop 1
    v_mfma_f32_32x32x16_bf16 v[224:239], {vr(64+8*15+4,4)}, v[212:215], v[224:239]
    s_nop 11
    """)
    a("\n".join(flush))
    stamp(8)
    diag_out("a")
    a("s_endpgm")
    a(f"""
    L_check:
    s_mov_b32 s63, 0
    s_cmp_eq_u32 s62, 7
    s_cbranch_scc1 L_chk2
    L_xw:
    ds_read_b32 v248, v251 offset:{M_CNTG - M_QMAX}
    s_add_u32 s63, s63, 1
    s_cmp_gt_u32 s63, {SPIN_MAX}
    s_cbranch_scc1 L_xw_x
    s_waitcnt lgkmcnt(0)
    v_cmp_ne_u32 vcc, 4, v248
    s_cbranch_vccnz L_xw
    L_xw_x:
    v_subrev_u32 v244, {OACC + 2*SLOT - X_}, v244
    s_branch L_top
    L_chk2:
    ds_read_b96 v[248:250], v251
    s_add_u32 s63, s63, 1
    s_cmp_gt_u32 s63, {SPIN_MAX}
    s_cbranch_scc1 L_chk3
    s_waitcnt lgkmcnt(0)
    v_cmp_ne_u32 vcc, 16, v250
    s_cbranch_vccnz L_chk2
    L_chk3:
    v_mul_f32 v248, v248, v249
    v_mov_b32 v249, 0x45700000
    """)
    stamp(7)
    a(f"""
    v_cmp_nle_f32 vcc, v248, v249
    s_cbranch_vccz L_top
    """)
    if o.get("force_slow"): a.l[-1] = "    s_nop 0"
    a(f"""
    v_lshlrev_b32 v246, 4, {L}
    v_add_u32 v246, {QF}, v246
    v_and_b32 v247, 31, {L}
    v_lshlrev_b32 v247, 2, v247
    v_add_u32 v247, {M_M}, v247
    v_mov_b32 v251, {M_CNTS}
    s_mov_b32 s62, 8
    L_slow:
    ds_read_b128 v[240:243], v246
    v_add_u32 v246, 1024, v246
    v_mov_b32 v248, 0xff800000
    s_waitcnt lgkmcnt(0)
    """)
    for t in range(16):
        a(f"v_mfma_f32_32x32x16_bf16 v[192:207], {vr(4*t,4)}, v[240:243], 0\ns_nop 11")
        for r in range(8): a(f"v_max3_f32 v248, v248, v{192+2*r}, v{193+2*r}")
    a(f"""
    ds_max_f32 v247, v248
    s_mov_b64 exec, 1
    ds_add_u32 v251, v253
    s_mov_b64 exec, -1
    s_mov_b32 s63, 0
    L_slow2:
    s_sleep 1
    ds_read_b32 v249, v251
    s_add_u32 s63, s63, 1
    s_cmp_gt_u32 s63, {SPIN_MAX}
    s_cbranch_scc1 L_slow3
    s_waitcnt lgkmcnt(0)
    v_cmp_ne_u32 vcc, 4, v249
    s_cbranch_vccnz L_slow2
    L_slow3:
    ds_read_b32 v248, v247
    v_add_u32 v247, 128, v247
    v_add_u32 v251, 4, v251
    s_waitcnt lgkmcnt(0)
    """)
    for t in range(16):
        a(f"v_mfma_f32_32x32x16_bf16 v[192:207], {vr(4*t,4)}, v[240:243], 0\ns_nop 11")
        for r in range(16): a(f"v_sub_f32 v{192+r}, v{192+r}, v248")
        for r in range(16): a(f"v_exp_f32 v{192+r}, v{192+r}")
        a("s_nop 0")
        for r in range(8): a(f"v_cvt_pk_bf16_f32 v{208+r}, v{192+2*r}, v{193+2*r}")
        a("s_nop 1")
        a(f"v_mfma_f32_32x32x16_bf16 v[224:239], {vr(64+8*t,4)}, v[208:211], {'0' if t == 0 else 'v[224:239]'}")
        a(f"v_mfma_f32_32x32x16_bf16 v[224:239], {vr(68+8*t,4)}, v[212:215], v[224:239]")
    a(f"""
    s_cmp_lg_u32 s62, 6
    s_cbranch_scc1 L_slow5
    s_mov_b32 s63, 0
    v_mov_b32 v249, {M_CNTG}
    L_slow4:
    ds_read_b32 v248, v249
    s_add_u32 s63, s63, 1
    s_cmp_gt_u32 s63, {SPIN_MAX}
    s_cbranch_scc1 L_slow4x
    s_waitcnt lgkmcnt(0)
    v_cmp_ne_u32 vcc, 4, v248
    s_cbranch_vccnz L_slow4
    L_slow4x:
    v_subrev_u32 v244, {OACC + 2*SLOT - X_}, v244
    L_slow5:
    """)
    a("s_nop 11")
    a("\n".join(flush))
    a(f"""
    s_sub_u32 s62, s62, 1
    s_cmp_lg_u32 s62, 0
    s_cbranch_scc1 L_slow
    """)
    diag_out("s")
    a("s_endpgm")

    a(f"""
    L_G:
    s_cmp_eq_u32 {sW}, 7
    s_cbranch_scc1 L_KV
    s_barrier
    s_waitcnt vmcnt(0)
    s_barrier
    v_mov_b32 v4, 0
    v_mov_b32 v5, 0
    v_mov_b32 v6, 0
    v_mov_b32 v7, 0
    """)
    a(f"""
    v_lshlrev_b32 v2, 4, {L}
    v_add_u32 v2, {MISC}, v2
    v_mov_b32 v8, 0xff800000
    v_mov_b32 v9, v8
    v_mov_b32 v10, v8
    v_mov_b32 v11, v8
    ds_write_b128 v2, v[4:7]
    ds_write_b128 v2, v[8:11] offset:1024
    s_waitcnt vmcnt(0) lgkmcnt(0)
    s_branch L_Gjoin
    """)
    a(f"""
    L_KV:
    s_setprio 3
    s_cmp_lt_u32 {sJ}, 4
    s_cselect_b32 s{SWKV}, s{SWKV}, s48
    s_cselect_b32 s{SWKV+1}, s{SWKV+1}, s49
    v_lshlrev_b32 v1, 4, {L}
    s_mov_b32 m0, {OACC}
    s_and_b32 s60, {sJ}, 3
    """)
    for d in range(16):
        if d & 3 == 0 and d: a(f"s_mov_b32 m0, {OACC + 1024*d}\ns_mov_b32 s61, {1024*d}")
        a(f"buffer_load_dwordx4 v1, {srd(SWKV)}, {'s61' if d >= 4 else '0'} offen offset:{1024*(d&3)} lds")
    a(f"""
    v_and_b32 v2, 15, {L}
    v_lshrrev_b32 v3, 4, {L}
    v_lshlrev_b32 v4, 4, v3
    v_lshl_or_b32 v4, v2, 10, v4
    s_lshl_b32 s61, {sGRP}, 2
    s_add_u32 s61, s61, s60
    s_lshl_b32 s62, s61, 14
    """)
    for s in range(16): a(f"buffer_load_dwordx4 {vr(64+4*s,4)}, v4, {srd(SX)}, s62 offen offset:{64*s}")
    a(f"""
    s_barrier
    v_lshlrev_b32 v5, 8, v3
    v_lshl_or_b32 v5, v2, 3, v5
    v_add_u32 v5, {OACC}, v5
    s_cmp_lt_u32 {sJ}, 4
    s_cselect_b32 s63, 9, 8
    v_and_b32 v6, 1, v3
    v_lshlrev_b32 v6, s63, v6
    v_lshl_or_b32 v6, v2, 4, v6
    v_lshrrev_b32 v7, 1, v3
    v_lshl_or_b32 v6, v7, 3, v6
    s_lshr_b32 s54, s61, 1
    s_lshl_b32 s54, s54, 10
    s_and_b32 s55, s61, 1
    s_lshl_b32 s55, s55, 8
    s_add_u32 s54, s54, s55
    s_add_u32 s54, s54, {WS_K}
    s_lshl_b32 s55, s61, 9
    s_add_u32 s55, s55, {WS_V}
    s_cmp_lt_u32 {sJ}, 4
    s_cselect_b32 s54, s54, s55
    s_lshl_b32 s55, {sGRP}, 3
    s_add_u32 s55, s55, {sJ}
    s_lshl_b32 s55, s55, 7
    s_add_u32 s55, s55, {WS_KVF}
    s_waitcnt vmcnt(16)
    """)
    stamp(1)
    for s in range(16):
        a(f"ds_read_b64_tr_b16 {vr(128+4*s,2)}, v5 offset:{1024*s}\nds_read_b64_tr_b16 {vr(130+4*s,2)}, v5 offset:{1024*s+128}")
    make_tag()
    a(f"s_cmp_lt_u32 {sJ}, 4\ns_waitcnt vmcnt(0) lgkmcnt(0)\ns_cbranch_scc0 L_KVv")
    for s in range(16): a(f"v_mfma_f32_16x16x32_bf16 v[192:195], {vr(128+4*s,4)}, {vr(64+4*s,4)}, {'0' if s == 0 else 'v[192:195]'}")
    a("s_branch L_KVd\nL_KVv:")
    for s in range(16): a(f"v_mfma_f32_16x16x32_bf16 v[192:195], {vr(64+4*s,4)}, {vr(128+4*s,4)}, {'0' if s == 0 else 'v[192:195]'}")
    a(f"""
    L_KVd:
    s_nop 7
    v_cvt_pk_bf16_f32 v196, v192, v193
    v_cvt_pk_bf16_f32 v197, v194, v195
    buffer_store_dwordx2 v[196:197], v6, {srd(SWS)}, s54 offen sc1
    s_barrier
    v_mul_f32 v8, v192, v192
    v_fmac_f32 v8, v193, v193
    v_fmac_f32 v8, v194, v194
    v_fmac_f32 v8, v195, v195
    v_mov_b32 v9, v8
    s_nop 1
    v_permlane32_swap_b32 v8, v9
    v_add_f32 v8, v8, v9
    v_mov_b32 v9, v8
    s_nop 1
    v_permlane16_swap_b32 v8, v9
    v_add_f32 v8, v8, v9
    s_nop 1
    v_max_u32_dpp v8, v8, v8 row_ror:8 row_mask:0xf bank_mask:0xf
    s_nop 1
    v_max_u32_dpp v8, v8, v8 row_ror:4 row_mask:0xf bank_mask:0xf
    s_nop 1
    v_max_u32_dpp v8, v8, v8 row_ror:2 row_mask:0xf bank_mask:0xf
    s_nop 1
    v_max_u32_dpp v9, v8, v8 row_ror:1 row_mask:0xf bank_mask:0xf
    s_cselect_b32 s63, -1, 0
    v_mov_b32 v8, {sTAG}
    v_and_b32 v9, s63, v9
    s_mov_b64 exec, 1
    s_waitcnt vmcnt(0)
    buffer_store_dwordx2 v[8:9], off, {srd(SWS)}, s55 sc1
    s_mov_b64 exec, -1
    s_setprio 0
    """)
    stamp(2)
    a(f"""
    L_Gjoin:
    s_barrier
    s_barrier
    s_barrier
    s_waitcnt lgkmcnt(0)
    s_sub_u32 {sW}, {sW}, 4
    """)
    gw = sW
    a(f"""
    s_lshr_b32 s60, {sJ}, 1
    s_mul_i32 s60, s60, 7
    s_and_b32 s61, {sJ}, 1
    s_lshl_b32 s62, s61, 2
    s_add_u32 s62, s62, {gw}
    s_cmp_eq_u32 {gw}, 3
    s_cselect_b32 s62, 3, s62
    s_cselect_b32 s61, s61, 0
    s_add_u32 s60, s60, s62
    s_lshl_b32 s48, s60, 1
    s_add_u32 s48, s48, s61
    s_lshl_b32 s54, s48, 6
    s_lshl_b32 s49, {gw}, 14
    s_add_u32 s49, s49, {W_}
    v_lshrrev_b32 v1, 3, {L}
    v_and_b32 v2, 7, {L}
    v_bfe_u32 v3, {L}, 4, 1
    v_lshlrev_b32 v3, 2, v3
    v_xor_b32 v2, v3, v2
    v_lshlrev_b32 v2, 4, v2
    v_lshl_or_b32 v150, v1, 10, v2
    v_add_u32 v151, 7168, v150
    v_mul_u32_u24 v148, 3584, v1
    v_add_u32 v148, v148, v2
    v_add_u32 v149, {8*3584-1024}, v148
    """)
    a(f"s_cmp_eq_u32 {gw}, 3\ns_cbranch_scc0 L_Gs1")
    a(f"""
    v_lshrrev_b32 v1, 2, {L}
    v_and_b32 v2, 3, {L}
    v_mul_u32_u24 v148, 3584, v1
    v_lshl_add_u32 v148, v2, 4, v148
    v_lshlrev_b32 v1, 4, {L}
    s_mov_b32 m0, {M_GATE}
    s_barrier
    buffer_load_dwordx4 v1, {srd(SGT)}, 0 offen lds
    """)
    for k in range(8):
        a(f"s_add_u32 m0, s49, {2048*k}\ns_nop 0\nbuffer_load_dwordx4 v148, {srd(SW1)}, s54 offen lds\ns_add_u32 s54, s54, {16*3584}")
    a("s_branch L_Gs2\nL_Gs1:\ns_barrier")
    for k in range(8):
        a(f"s_add_u32 m0, s49, {2048*k}\ns_nop 0\nbuffer_load_dwordx4 v148, {srd(SW1)}, s54 offen lds\nbuffer_load_dwordx4 v149, {srd(SW1)}, s54 offen offset:1024 lds\ns_add_u32 s54, s54, {16*3584}")
    a("L_Gs2:\ns_setprio 3")
    stamp(3)
    make_tag()
    a(f"""
    v_and_b32 v1, 31, {L}
    v_lshlrev_b32 v4, 1, v1
    s_lshl_b32 s60, s48, 6
    s_lshl_b32 s61, {sJ}, 7
    buffer_load_ushort v152, v4, {srd(SB1)}, s60 offen
    buffer_load_ushort v156, v4, {srd(SB1)}, s60 offen offset:64
    buffer_load_ushort v168, v4, {srd(SB2)}, s61 offen
    buffer_load_ushort v172, v4, {srd(SB2)}, s61 offen offset:64
    v_lshrrev_b32 v2, 5, {L}
    v_and_b32 v3, 15, {L}
    v_xor_b32 v3, v2, v3
    v_lshlrev_b32 v3, 4, v3
    v_lshl_or_b32 v136, v1, 8, v3
    """)
    for k in range(1, 8): a(f"v_xor_b32 v{136+k}, {32*k}, v136")
    tr_addr(144, 8)
    a("v_add_u32 v144, s49, v144\nv_xor_b32 v145, 64, v144")
    tr_addr(146, 4)
    a("v_add_u32 v146, s49, v146\nv_xor_b32 v147, 64, v146")
    for r in (153, 154, 155, 157, 158, 159, 161, 162, 163, 169, 170, 171, 173, 174, 175): a(f"v_mov_b32 v{r}, 0")
    a(f"""
    v_cmp_gt_u32 vcc, 32, {L}
    v_mov_b32 v1, 0x3f80
    v_lshlrev_b32 v166, 4, {L}
    v_cndmask_b32 v160, 0, v1, vcc
    v_mov_b32 v167, 1
    v_mov_b32 v177, {M_CNTG}
    s_cmp_eq_u32 {gw}, 3
    s_cbranch_scc1 L_F1w3
    """)
    ACC = lambda mt, nt: 32*nt + 16*mt
    def mf(mt, nt, A_, B_, c0=False):
        d = vr(ACC(mt, nt), 16)
        a(f"v_mfma_f32_32x32x16_bf16 {d}, {vr(A_,4)}, {vr(B_,4)}, {'0' if c0 else d}")
    def f1reads(k, w3):
        ab = 120 + 8*(k & 1); bb = 64 + 8*(k & 1); u = k & 7
        if not w3:
            a(f"ds_read_b64_tr_b16 {vr(ab,2)}, v144 offset:{2048*u}\nds_read_b64_tr_b16 {vr(ab+2,2)}, v144 offset:{2048*u+512}")
            a(f"ds_read_b64_tr_b16 {vr(ab+4,2)}, v145 offset:{2048*u}\nds_read_b64_tr_b16 {vr(ab+6,2)}, v145 offset:{2048*u+512}")
        else:
            a(f"ds_read_b64_tr_b16 {vr(ab,2)}, v144 offset:{2048*u}\nds_read_b64_tr_b16 {vr(ab+2,2)}, v144 offset:{2048*u+256}")
            a(f"ds_read_b128 {vr(ab+4,4)}, v145 offset:{32*u}")
        a(f"ds_read_b128 {vr(bb,4)}, v{136+u}\nds_read_b128 {vr(bb+4,4)}, v{136+u} offset:8192")
    def ffn1(w3):
        nd = 1 if w3 else 2
        nr = 5 if w3 else 6
        lbl = "L_f1b" if w3 else "L_f1a"
        a("s_waitcnt vmcnt(0)\ns_setprio 0")
        for nt in range(2):
            mf(0, nt, 152, 160, True)
            mf(1, nt, 156, 160, True)
        f1reads(0, w3)
        a(f"s_mov_b32 s62, 4\n{lbl}:")
        a(f"s_cmp_eq_u32 s62, 1\ns_cselect_b32 s{SW1+2}, 0, s{SW1+2}")
        for u in range(8):
            a(f"s_waitcnt vmcnt({6*nd})")
            if u == 7:
                a("s_setprio 3")
                for k in range(8): a(f"v_add_u32 v{136+k}, 0x4000, v{136+k}")
                if w3: a("v_add_u32 v145, 0x100, v145")
                a("s_setprio 0")
            f1reads(u+1, w3)
            a(f"s_add_u32 m0, s49, {2048*u}\ns_waitcnt lgkmcnt({nr})")
            a(f"buffer_load_dwordx4 v148, {srd(SW1)}, s54 offen lds")
            if not w3: a(f"buffer_load_dwordx4 v149, {srd(SW1)}, s54 offen offset:1024 lds")
            a(f"s_add_u32 s54, s54, {16*3584}")
            ab = 120 + 8*(u & 1); bb = 64 + 8*(u & 1)
            mf(0, 0, ab, bb); mf(1, 0, ab+4, bb); mf(0, 1, ab, bb+4); mf(1, 1, ab+4, bb+4)
        a(f"s_sub_u32 s62, s62, 1\ns_cmp_lg_u32 s62, 0\ns_cbranch_scc1 {lbl}")
    ffn1(False)
    a("s_branch L_F1done\nL_F1w3:")
    a(f"""
    v_lshrrev_b32 v1, 5, {L}
    v_bfe_u32 v2, {L}, 2, 2
    v_lshl_or_b32 v2, v1, 3, v2
    v_lshlrev_b32 v2, 6, v2
    v_bfe_u32 v3, {L}, 4, 1
    v_lshl_or_b32 v2, v3, 5, v2
    v_and_b32 v3, 3, {L}
    v_lshl_or_b32 v2, v3, 3, v2
    v_add_u32 v144, s49, v2
    v_lshlrev_b32 v145, 4, v1
    v_add_u32 v145, {M_GATE}, v145
    s_waitcnt vmcnt(0)
    v_mov_b32 v156, 0
    """)
    ffn1(True)
    a("L_F1done:\ns_waitcnt lgkmcnt(0)\ns_setprio 3")
    stamp(4)
    a(f"""
    s_lshl_b32 s60, {sGRP}, 1
    s_mul_i32 s60, s60, {112*1024}
    s_lshl_b32 s61, s48, 11
    s_add_u32 s60, s60, s61
    s_add_u32 s60, s60, {WS_H}
    s_add_u32 s61, s60, {112*1024}
    s_nop 4
    """)
    def hst(mt, nt):
        b = ACC(mt, nt)
        for r in range(16): a(f"v_max_f32 v{b+r}, 0, v{b+r}")
        for r in range(8): a(f"v_pk_mul_f32 {vr(b+2*r,2)}, {vr(b+2*r,2)}, {vr(b+2*r,2)}")
        for r in range(8): a(f"v_cvt_pk_bf16_f32 v{b+r}, v{b+2*r}, v{b+2*r+1}")
        so = "s61" if nt else "s60"
        a(f"buffer_store_dwordx4 {vr(b,4)}, v166, {srd(SWS)}, {so} offen offset:{2048*mt} sc1")
        a(f"buffer_store_dwordx4 {vr(b+4,4)}, v166, {srd(SWS)}, {so} offen offset:{2048*mt+1024} sc1")
    hst(0, 0); hst(0, 1)
    a(f"s_cmp_eq_u32 {gw}, 3\ns_cbranch_scc1 L_gate")
    hst(1, 0); hst(1, 1)
    a(f"""
    s_branch L_gated
    L_gate:
    v_mul_f32 v16, {0x80000000 | LOG2E}, v16
    v_mul_f32 v48, {0x80000000 | LOG2E}, v48
    v_exp_f32 v16, v16
    v_exp_f32 v48, v48
    v_and_b32 v17, 31, {L}
    v_add_f32 v16, 1.0, v16
    v_add_f32 v48, 1.0, v48
    v_rcp_f32 v16, v16
    v_rcp_f32 v48, v48
    v_lshlrev_b32 v17, 2, v17
    v_add_u32 v17, {M_G}, v17
    ds_write_b32 v17, v16
    ds_write_b32 v17, v48 offset:128
    L_gated:
    s_mov_b64 exec, 1
    ds_add_u32 v177, v167
    s_mov_b64 exec, -1
    """)
    a(f"""
    s_mul_i32 s54, {gw}, {448*1024}
    s_lshl_b32 s55, {sJ}, 7
    s_add_u32 s54, s54, s55
    s_lshl_b32 s60, {sGRP}, 5
    s_lshl_b32 s61, {sJ}, 2
    s_add_u32 s61, s61, {gw}
    s_add_u32 s61, s61, s60
    s_lshl_b32 s61, s61, 7
    s_add_u32 s61, s61, {WS_HF}
    v_mov_b32 v1, {sTAG}
    s_waitcnt vmcnt(0)
    s_mov_b64 exec, 1
    buffer_store_dword v1, off, {srd(SWS)}, s61 sc1
    s_mov_b64 exec, -1
    """)
    stamp(5)
    for k in range(7):
        a(f"s_add_u32 m0, s49, {2048*k}\ns_nop 0\nbuffer_load_dwordx4 v150, {srd(SW2)}, s54 offen lds\nbuffer_load_dwordx4 v151, {srd(SW2)}, s54 offen offset:1024 lds\ns_add_u32 s54, s54, 16384")
    def lds_wait(lbl, addr, off, val, sleep=2):
        a(f"""
        s_mov_b32 s63, 0
        {lbl}:
        ds_read_b32 v178, {addr} offset:{off}
        s_add_u32 s63, s63, 1
        s_cmp_gt_u32 s63, {SPIN_MAX}
        s_cbranch_scc1 {lbl}_x
        s_waitcnt lgkmcnt(0)
        v_cmp_ne_u32 vcc, {val}, v178
        s_cbranch_vccz {lbl}_x
        s_sleep {sleep}
        s_branch {lbl}
        {lbl}_x:
        """)
    def flag_wait(lbl, vaddr, soff, sleep=2):
        a(f"""
        s_mov_b32 s63, 0
        {lbl}:
        buffer_load_dword v178, {vaddr}, {srd(SWS)}, {soff} offen sc1
        s_add_u32 s63, s63, 1
        s_cmp_gt_u32 s63, {SPIN_MAX}
        s_cbranch_scc1 {lbl}_x
        s_waitcnt vmcnt(0)
        v_cmp_ne_u32 vcc, {sTAG}, v178
        s_cbranch_vccz {lbl}_x
        s_sleep {sleep}
        s_branch {lbl}
        {lbl}_x:
        """)
    lds_wait("L_gs1", "v177", 0, "4")
    a(f"""
    v_and_b32 v1, 31, {L}
    v_lshlrev_b32 v1, 2, v1
    v_add_u32 v1, {M_G}, v1
    ds_read_b32 v164, v1
    ds_read_b32 v165, v1 offset:128
    s_lshl_b32 s64, {gw}, 17
    s_add_u32 s64, s64, s55
    s_add_u32 s60, s64, {7*16384}
    s_add_u32 m0, s49, {2048*7}
    s_nop 0
    buffer_load_dwordx4 v150, {srd(SWO)}, s60 offen lds
    buffer_load_dwordx4 v151, {srd(SWO)}, s60 offen offset:1024 lds
    """)
    a(f"""
    s_cmp_eq_u32 {gw}, 0
    s_cselect_b32 s60, -1, 0
    v_and_b32 v160, s60, v160
    v_and_b32 v1, 7, {L}
    v_lshlrev_b32 v180, 7, v1
    s_lshl_b32 s60, {sGRP}, 5
    s_lshl_b32 s61, {gw}, 3
    s_add_u32 s60, s60, s61
    s_lshl_b32 s60, s60, 7
    s_add_u32 s60, s60, {WS_HF}
    """)
    for nt in range(2):
        mf(0, nt, 168, 160, True); mf(1, nt, 172, 160, True)
    flag_wait("L_hw", "v180", "s60")
    stamp(6)
    a(f"""
    s_setprio 0
    s_lshl_b32 s60, {sGRP}, 1
    s_mul_i32 s60, s60, {112*1024}
    s_mul_i32 s61, {gw}, {28*1024}
    s_add_u32 s60, s60, s61
    s_add_u32 s60, s60, {WS_H}
    s_add_u32 s61, s60, {112*1024}
    """)
    def hload(u):
        a(f"buffer_load_dwordx4 {vr(64+8*u,4)}, v166, {srd(SH)}, s60 offen sc1\nbuffer_load_dwordx4 {vr(68+8*u,4)}, v166, {srd(SH)}, s61 offen sc1")
        a("s_add_u32 s60, s60, 1024\ns_add_u32 s61, s61, 1024")
    for u in range(7): hload(u)
    def f2reads(slot, par):
        ab = 120 + 8*par
        a(f"ds_read_b64_tr_b16 {vr(ab,2)}, v146 offset:{2048*slot}\nds_read_b64_tr_b16 {vr(ab+2,2)}, v146 offset:{2048*slot+1024}")
        a(f"ds_read_b64_tr_b16 {vr(ab+4,2)}, v147 offset:{2048*slot}\nds_read_b64_tr_b16 {vr(ab+6,2)}, v147 offset:{2048*slot+1024}")
    f2reads(0, 0)
    a("s_waitcnt vmcnt(0)\ns_mov_b32 s62, 2\nL_f2:")
    for it in range(2):
        if it == 1: a(f"s_cmp_eq_u32 s62, 1\ns_cselect_b32 s{SW2}, s{SWO}, s{SW2}\ns_cselect_b32 s{SW2+1}, s{SWO+1}, s{SW2+1}\ns_cselect_b32 s{SW2+2}, s{SWO+2}, s{SW2+2}\ns_cselect_b32 s54, s64, s54\ns_cselect_b32 s{SH+2}, 0, s{SH+2}")
        for u in range(7):
            par = (7*it + u) & 1
            a("s_waitcnt vmcnt(22)")
            f2reads((u+1) % 7, par ^ 1)
            a(f"s_add_u32 m0, s49, {2048*u}\ns_waitcnt lgkmcnt(4)")
            a(f"buffer_load_dwordx4 v150, {srd(SW2)}, s54 offen lds\nbuffer_load_dwordx4 v151, {srd(SW2)}, s54 offen offset:1024 lds\ns_add_u32 s54, s54, 16384")
            ab = 120 + 8*par; bb = 64 + 8*u
            mf(0, 0, ab, bb); mf(1, 0, ab+4, bb); mf(0, 1, ab, bb+4); mf(1, 1, ab+4, bb+4)
            hload(u)
    a("s_sub_u32 s62, s62, 1\ns_cmp_lg_u32 s62, 0\ns_cbranch_scc1 L_f2")
    a("s_waitcnt vmcnt(0) lgkmcnt(0)\ns_setprio 3")
    stamp(7)
    for i in range(8):
        ab = 192 + 8*i
        a(f"ds_read_b64_tr_b16 {vr(ab,2)}, v146 offset:{2048*i}\nds_read_b64_tr_b16 {vr(ab+2,2)}, v146 offset:{2048*i+1024}")
        if i < 7:
            a(f"ds_read_b64_tr_b16 {vr(ab+4,2)}, v147 offset:{2048*i}\nds_read_b64_tr_b16 {vr(ab+6,2)}, v147 offset:{2048*i+1024}")
        else:
            a(f"ds_read_b64_tr_b16 v[136:137], v147 offset:{2048*i}\nds_read_b64_tr_b16 v[138:139], v147 offset:{2048*i+1024}")
    a("v_sub_f32 v182, 1.0, v164\nv_sub_f32 v184, 1.0, v165\ns_nop 4")
    for r in range(16): a(f"v_pk_mul_f32 {vr(2*r,2)}, {vr(2*r,2)}, v[182:183] op_sel_hi:[1,0]")
    for r in range(16, 32): a(f"v_pk_mul_f32 {vr(2*r,2)}, {vr(2*r,2)}, v[184:185] op_sel_hi:[1,0]")
    a(f"""
    s_mul_i32 s60, {gw}, {SLOT}
    s_add_u32 s61, s60, {OACC}
    s_sub_u32 s60, s60, {2*SLOT - X_}
    s_cmp_lt_u32 {gw}, 2
    s_cselect_b32 s61, s61, s60
    s_add_u32 s49, s60, {4*SLOT}
    v_lshlrev_b32 v181, 2, {L}
    v_add_u32 v176, s61, v166
    v_add_u32 v181, s61, v181
    v_and_b32 v120, 31, {L}
    v_lshrrev_b32 v121, 5, {L}
    v_and_b32 v122, 7, {L}
    v_xor_b32 v121, v121, v122
    v_lshlrev_b32 v121, 4, v121
    v_lshl_or_b32 v186, v120, 8, v121
    s_lshl_b32 s60, {gw}, 14
    s_add_u32 s60, s60, {W_}
    v_add_u32 v186, s60, v186
    v_xor_b32 v187, 32, v186
    v_xor_b32 v188, 64, v186
    v_xor_b32 v189, 0x60, v186
    v_lshrrev_b32 v120, 3, {L}
    v_lshlrev_b32 v121, 1, v122
    v_xor_b32 v121, v120, v121
    v_lshlrev_b32 v121, 4, v121
    v_lshl_or_b32 v190, v120, 8, v121
    s_lshl_b32 s60, {gw}, 11
    s_add_u32 s60, s60, {W_}
    v_add_u32 v190, s60, v190
    v_xor_b32 v191, 16, v190
    v_lshlrev_b32 v121, 4, v122
    v_lshl_or_b32 v179, v120, 10, v121
    v_bfe_u32 v120, {L}, 2, 1
    v_and_b32 v121, 3, {L}
    v_lshlrev_b32 v121, 7, v121
    v_lshl_or_b32 v180, v120, 10, v121
    s_lshl_b32 s54, {sGRP}, 3
    s_add_u32 s55, s54, {sJ}
    s_lshl_b32 s55, s55, 3
    s_add_u32 s55, s55, {gw}
    s_lshl_b32 s64, s55, 7
    s_add_u32 s64, s64, {WS_OF}
    s_lshl_b32 s55, s55, 10
    s_add_u32 s55, s55, {WS_O}
    s_lshl_b32 s60, {gw}, 1
    s_add_u32 s54, s54, s60
    s_lshl_b32 s65, s54, 10
    s_add_u32 s65, s65, {WS_OF}
    s_lshl_b32 s54, s54, 13
    s_add_u32 s54, s54, {WS_O}
    s_lshl_b32 s48, {sGRP}, 16
    s_lshl_b32 s60, {gw}, 13
    s_add_u32 s48, s48, s60
    s_lshl_b32 s60, {sJ}, 7
    s_add_u32 s48, s48, s60
    s_mov_b32 s62, 0
    L_stage:
    """)
    a(f"""
    s_mov_b32 s63, 0
    L_fw:
    ds_read_b128 v[64:67], v176 offset:9216
    s_add_u32 s63, s63, 1
    s_cmp_gt_u32 s63, {SPIN_MAX}
    s_cbranch_scc1 L_fw_x
    s_waitcnt lgkmcnt(0)
    v_xor_b32 v64, {sTAG}, v64
    v_xor_b32 v65, {sTAG}, v65
    v_xor_b32 v66, {sTAG}, v66
    v_xor_b32 v67, {sTAG}, v67
    v_or3_b32 v64, v64, v65, v66
    v_or_b32 v64, v64, v67
    v_cmp_ne_u32 vcc, 0, v64
    s_cbranch_vccz L_fw_x
    s_sleep 2
    s_branch L_fw
    L_fw_x:
    """)
    stamp(8)
    a("ds_read2st64_b32 v[96:97], v181 offset0:32 offset1:33\nds_read2st64_b32 v[98:99], v181 offset0:34 offset1:35")
    for w in range(4):
        for r in range(4): a(f"ds_read2st64_b32 {vr(64+8*w+2*r,2)}, v181 offset0:{8*r+w} offset1:{8*r+4+w}")
    a("v_mov_b32 v129, " + sTAG + "\ns_waitcnt lgkmcnt(15)\ns_waitcnt lgkmcnt(8)\nv_pk_add_f32 v[96:97], v[96:97], v[98:99]")
    for r in range(4): a(f"v_pk_add_f32 {vr(64+2*r,2)}, {vr(64+2*r,2)}, {vr(72+2*r,2)}")
    a("v_add_f32 v128, v96, v97\ns_waitcnt lgkmcnt(0)")
    for r in range(4): a(f"v_pk_add_f32 {vr(80+2*r,2)}, {vr(80+2*r,2)}, {vr(88+2*r,2)}")
    for r in range(4): a(f"v_pk_add_f32 {vr(120+2*r,2)}, {vr(64+2*r,2)}, {vr(80+2*r,2)}")
    a(f"""
    v_rcp_f32 v128, v128
    s_or_b32 s60, s2, {gw}
    s_or_b32 s60, s60, s62
    v_mul_f32 v128, v128, v164
    """)
    for r in range(4): a(f"v_pk_mul_f32 {vr(120+2*r,2)}, {vr(120+2*r,2)}, v[128:129] op_sel_hi:[1,0]")
    for r in range(4): a(f"v_cvt_pk_bf16_f32 v{120+r}, v{120+2*r}, v{121+2*r}")
    a(f"""
    buffer_store_dwordx4 v[120:123], v166, {srd(SWS)}, s55 offen sc1
    s_mov_b64 exec, 1
    s_cmp_lg_u32 s60, 0
    s_cbranch_scc1 L_noep
    buffer_store_dword v129, off, {srd(SWS)}, 0 sc1
    L_noep:
    s_waitcnt vmcnt(0)
    buffer_store_dword v129, off, {srd(SWS)}, s64 sc1
    s_mov_b64 exec, -1
    """)
    def woreads(i, par):
        ab = 120 + 8*par
        a(f"ds_read_b64_tr_b16 {vr(ab,2)}, v176 offset:{2048*i}\nds_read_b64_tr_b16 {vr(ab+2,2)}, v176 offset:{2048*i+1024}")
        a(f"ds_read_b64_tr_b16 {vr(ab+4,2)}, v179 offset:{2048*i}\nds_read_b64_tr_b16 {vr(ab+6,2)}, v179 offset:{2048*i+1024}")
    flag_wait("L_ow", "v180", "s65", 1)
    stamp(9)
    a("s_add_u32 s60, s54, 8192")
    for i in range(8):
        a(f"buffer_load_dwordx4 {vr(64+4*i,4)}, v166, {srd(SWS)}, {'s60' if i >= 4 else 's54'} offen offset:{1024*(i&3)} sc1")
    a("s_setprio 0")
    for i in range(8):
        a(f"s_waitcnt vmcnt({7-i})")
        ab = 192 + 8*i
        mf(0, 0, ab, 64+4*i); mf(1, 0, ab+4 if i < 7 else 136, 64+4*i)
    a("s_setprio 3\ns_nop 10")
    stamp(10)
    for mt in range(2):
        for i in range(4):
            a(f"ds_write_b128 v{186+i}, {vr(16*mt+4*i,4)} offset:{128*mt}")
    a("s_mov_b64 exec, 1\nds_add_u32 v177, v167 offset:4\ns_mov_b64 exec, -1")
    lds_wait("L_rw", "v177", 4, "4", 1)
    for p in range(4):
        a(f"ds_read_b128 {vr(64+8*p,4)}, v190 offset:{16384*p}\nds_read_b128 {vr(68+8*p,4)}, v191 offset:{16384*p}")
    a("s_waitcnt lgkmcnt(4)")
    for r in range(4): a(f"v_pk_add_f32 {vr(64+2*r,2)}, {vr(64+2*r,2)}, {vr(72+2*r,2)}")
    a("s_waitcnt lgkmcnt(0)")
    for r in range(4): a(f"v_pk_add_f32 {vr(80+2*r,2)}, {vr(80+2*r,2)}, {vr(88+2*r,2)}")
    for r in range(4): a(f"v_pk_add_f32 {vr(64+2*r,2)}, {vr(64+2*r,2)}, {vr(80+2*r,2)}")
    for r in range(4): a(f"v_cvt_pk_bf16_f32 v{64+r}, v{64+2*r}, v{65+2*r}")
    a(f"buffer_store_dwordx4 v[64:67], v179, {srd(SOUT)}, s48 offen")
    stamp(11)
    a("s_cmp_lg_u32 s62, 0\ns_cbranch_scc1 L_gend")
    if diag:
        for i in range(4): a(f"s_mov_b32 s{68+2*(12+i)}, s{68+2*(8+i)}")
    for r in range(16): a(f"v_mov_b64 {vr(2*r,2)}, {vr(32+2*r,2)}")
    a(f"""
    v_mov_b32 v164, v165
    v_lshlrev_b32 v181, 2, {L}
    v_add_u32 v176, s49, v166
    v_add_u32 v181, s49, v181
    v_add_u32 v177, 4, v177
    v_add_u32 v186, 0x2000, v186
    v_add_u32 v187, 0x2000, v187
    v_add_u32 v188, 0x2000, v188
    v_add_u32 v189, 0x2000, v189
    v_add_u32 v190, 0x2000, v190
    v_add_u32 v191, 0x2000, v191
    s_add_u32 s55, s55, 4096
    s_add_u32 s64, s64, 512
    s_add_u32 s54, s54, 4096
    s_add_u32 s65, s65, 512
    s_add_u32 s48, s48, 0x8000
    s_mov_b32 s62, 1
    s_branch L_stage
    L_gend:
    """)
    if diag: a(f"s_add_u32 {sW}, {sW}, 4")
    diag_out("g")
    a("L_end:\ns_endpgm")

    hdr = open(os.path.join(os.path.dirname(os.path.abspath(__file__)), "..", "cdna_kernels", NAME + ".s.ref")).read().split("\n")
    i0 = next(i for i, l in enumerate(hdr) if l.startswith("; Override"))
    head = "\n".join(hdr[:i0]) + f"\n; @launch grid=(256,1,1) block=(512,1,1) lds={LDS_BYTES}\n"
    return head + f""".amdgcn_target "amdgcn-amd-amdhsa--gfx950"
.text
.globl {NAME}_kernel
.p2align 8
.type {NAME}_kernel,@function
{NAME}_kernel:
{a.text()}.section .rodata,"a"
.p2align 6
.amdhsa_kernel {NAME}_kernel
  .amdhsa_next_free_vgpr 256
  .amdhsa_next_free_sgpr 102
  .amdhsa_accum_offset 256
  .amdhsa_group_segment_fixed_size 0
  .amdhsa_kernarg_size 112
  .amdhsa_user_sgpr_count 2
  .amdhsa_user_sgpr_kernarg_segment_ptr 1
  .amdhsa_system_sgpr_workgroup_id_x 1
.end_amdhsa_kernel
"""

if __name__ == "__main__":
    out = sys.argv[1] if len(sys.argv) > 1 else os.path.join(os.path.dirname(os.path.abspath(__file__)), "..", "cdna_kernels", NAME + ".s")
    opts = dict(x.split("=") if "=" in x else (x, 1) for x in sys.argv[2:])
    open(out, "w").write(gen(diag=bool(opts.pop("diag", 0)), opts=opts))
```

```python
import sys, os
NAME = "gated_mix__grouped_kv_mqa__dense_activation_squared_relu__prompt"

class Asm:
    def __init__(self): self.l = []
    def __call__(self, s):
        for x in s.strip("\n").split("\n"):
            x = x.strip()
            if not x: continue
            self.l.append(x if x.endswith(":") else "    " + x)
    def text(self): return "\n".join(self.l) + "\n"

def vr(a, n): return f"v[{a}:{a+n-1}]"

X_ = 0; W_ = 65536; S_ = 131072
OACC = S_; SLOT = 10240
QF = S_ + 2*SLOT
MISC = QF + 8192
M_G = MISC
M_QMAX = MISC + 256
M_KMAX = MISC + 260
M_CNTA = MISC + 264
M_CNTG = MISC + 272
M_CNTS = MISC + 320
M_M = MISC + 1024
M_GATE = MISC + 2048
LDS_BYTES = 163840
WS_EPOCH = 0
WS_KVF = 0x1000
WS_HF = 0x10000
WS_OF = 0x40000
WS_K = 0x80000
WS_V = 0x90000
WS_O = 0x100000
WS_H = 0x400000
WS_DIAG = 0xC00000
WS_SIZE = 0x1000000
SX, SWQ, SWKV, SWO, SW1, SB1, SW2, SB2, SGT, SOUT, SWS, SH = 4, 8, 12, 16, 20, 24, 28, 32, 36, 40, 44, 56
def srd(b): return f"s[{b}:{b+3}]"
sW, sGRP, sJ, sTAG = "s50", "s51", "s52", "s53"
QSCALE = 0x3eb8aa3b
LOG2E = 0x3fb8aa3b
SPIN_MAX = 200000

def gen(diag=False, opts=None):
    o = dict(opts or {})
    a = Asm()
    nstamp = [0]
    rt = o.get("rt")
    def stamp(i):
        if diag:
            a(f"{'s_memrealtime' if rt else 's_memtime'} s[{68+2*i}:{69+2*i}]\ns_waitcnt lgkmcnt(0)")
    def diag_out(lbl):
        if diag and rt:
            idx = {"a": [(1, 1), (2, 2), (4, 3), (5, 4), (6, 5), (7, 6), (8, 7)], "s": [], "g": [(2, 8), (3, 9), (4, 10), (6, 11), (7, 12), (15, 13), (9, 14), (11, 15)]}[lbl]
            a("s_load_dwordx2 s[60:61], s[0:1], 96\ns_mov_b32 s62, 256\ns_mov_b32 s63, 0x00020000\ns_waitcnt vmcnt(0) lgkmcnt(0)\ns_mov_b64 exec, 1")
            a("s_not_b32 s66, s66\nv_mov_b32 v1, s66\nbuffer_atomic_umax v1, off, s[60:63], 0\ns_nop 1")
            for st, d in idx:
                a(f"v_mov_b32 v1, s{68+2*st}\nbuffer_atomic_umax v1, off, s[60:63], 0 offset:{4*d}\ns_nop 1")
            a("s_waitcnt vmcnt(0)")
        elif diag:
            a(f"s_lshl_b32 s60, s2, 3\ns_add_u32 s60, s60, {sW}\ns_lshl_b32 s60, s60, 7\ns_add_u32 s60, s60, {WS_DIAG}")
            a("s_waitcnt vmcnt(0) lgkmcnt(0)\ns_mov_b64 exec, 1")
            for i in range(17):
                a(f"v_mov_b32 v1, s{66+2*i}\nbuffer_store_dword v1, off, {srd(SWS)}, s60 offset:{4*i}\ns_nop 1")
            a("s_waitcnt vmcnt(0)")

    a(f"""
    s_cmp_ge_u32 s2, 256
    s_cbranch_scc1 L_end
    s_load_dwordx2 s[{SX}:{SX+1}], s[0:1], 0
    s_load_dwordx2 s[{SWS}:{SWS+1}], s[0:1], 104
    s_load_dwordx2 s[{SWKV}:{SWKV+1}], s[0:1], 16
    s_load_dwordx2 s[48:49], s[0:1], 24
    s_load_dwordx2 s[{SWQ}:{SWQ+1}], s[0:1], 8
    s_load_dwordx2 s[{SW1}:{SW1+1}], s[0:1], 48
    s_load_dwordx2 s[{SB1}:{SB1+1}], s[0:1], 56
    v_lshrrev_b32 v1, 6, v0
    v_and_b32 v255, 63, v0
    s_and_b32 s54, s2, 7
    v_readfirstlane_b32 {sW}, v1
    s_lshr_b32 s55, s2, 3
    s_and_b32 {sJ}, s55, 7
    s_lshr_b32 s55, s55, 3
    s_lshl_b32 {sGRP}, s54, 2
    s_add_u32 {sGRP}, {sGRP}, s55
    """)
    if diag:
        for i in range(1, 17): a(f"s_mov_b32 s{66+2*i}, 0")
        a("s_waitcnt lgkmcnt(0)\ns_memrealtime s[66:67]")
        stamp(0)
    for b, n in ((SX, 2097152), (SWS, WS_SIZE), (SWKV, 16384), (SWQ, 524288), (SW1, 1835008), (SB1, 3584),
                 (SWO, 524288), (SW2, 1835008), (SB2, 1024), (SGT, 1024), (SOUT, 2097152), (SH, WS_SIZE)):
        a(f"s_mov_b32 s{b+2}, {n}\ns_mov_b32 s{b+3}, 0x00020000")
    a(f"""
    s_waitcnt lgkmcnt(0)
    s_load_dwordx2 s[{SWO}:{SWO+1}], s[0:1], 32
    s_load_dwordx2 s[{SW2}:{SW2+1}], s[0:1], 64
    s_load_dwordx2 s[{SB2}:{SB2+1}], s[0:1], 72
    s_load_dwordx2 s[{SGT}:{SGT+1}], s[0:1], 80
    s_load_dwordx2 s[{SOUT}:{SOUT+1}], s[0:1], 88
    s_load_dwordx2 s[{SH}:{SH+1}], s[0:1], 104
    buffer_load_dword v253, off, {srd(SWS)}, 0 sc1
    s_cmp_ge_u32 {sW}, 4
    s_cbranch_scc1 L_G
    """)
    def make_tag():
        a(f"""
        v_readfirstlane_b32 {sTAG}, v253
        s_nop 3
        s_mul_i32 {sTAG}, {sTAG}, 0x9E3779B1
        s_add_u32 {sTAG}, {sTAG}, 0x7F4A7C15
        """)

    L = "v255"
    a(f"""
    v_lshrrev_b32 v1, 4, {L}
    v_and_b32 v2, 15, {L}
    v_xor_b32 v2, v1, v2
    v_lshlrev_b32 v2, 4, v2
    v_lshl_or_b32 v4, v1, 10, v2
    v_xor_b32 v5, 64, v4
    v_add_u32 v5, 3072, v5
    v_xor_b32 v6, 0x80, v4
    v_add_u32 v6, 6144, v6
    v_xor_b32 v7, 0xc0, v4
    v_add_u32 v7, 9216, v7
    v_lshrrev_b32 v1, 3, {L}
    v_and_b32 v2, 7, {L}
    v_bfe_u32 v3, {L}, 4, 1
    v_lshlrev_b32 v3, 2, v3
    v_xor_b32 v2, v3, v2
    v_lshlrev_b32 v2, 4, v2
    v_lshl_or_b32 v8, v1, 10, v2
    v_add_u32 v9, 7168, v8
    v_add_u32 v10, 14336, v8
    v_add_u32 v11, 21504, v8
    s_lshl_b32 s54, {sGRP}, 16
    s_lshl_b32 s55, {sW}, 14
    s_add_u32 s54, s54, s55
    s_lshl_b32 s55, {sW}, 15
    s_lshl_b32 s60, {sJ}, 7
    s_add_u32 s55, s55, s60
    s_lshl_b32 s61, {sW}, 12
    s_barrier
    """)
    for c in range(4):
        a(f"s_add_u32 m0, s61, {X_ + 16384*c}")
        a("s_nop 0")
        for q in range(4):
            a(f"buffer_load_dwordx4 v{4+q}, {srd(SX)}, s54 offen offset:{1024*q} lds")
        a(f"s_add_u32 m0, s61, {W_ + 16384*c}")
        a("s_add_u32 s54, s54, 256")
        for q in range(4):
            a(f"buffer_load_dwordx4 v{8+q}, {srd(SWQ)}, s55 offen offset:{1024*q} lds")
        if c < 3: a("s_add_u32 s55, s55, 131072")
    a("s_waitcnt lgkmcnt(0)")
    stamp(1)
    a(f"""
    s_lshr_b32 s60, {sW}, 1
    s_lshl_b32 s60, s60, 13
    v_and_b32 v1, 31, {L}
    v_lshrrev_b32 v2, 5, {L}
    v_and_b32 v3, 15, {L}
    v_xor_b32 v3, v2, v3
    v_lshlrev_b32 v3, 4, v3
    v_lshl_or_b32 v16, v1, 8, v3
    v_add_u32 v16, s60, v16
    """)
    for k in range(1, 8): a(f"v_xor_b32 v{16+k}, {32*k}, v16")
    def tr_addr(dst, hmul, t0=1, t1=2, t2=3):
        a(f"""
        v_lshrrev_b32 v{t0}, 5, {L}
        v_bfe_u32 v{t1}, {L}, 2, 2
        v_mad_u32_u24 v{t0}, v{t0}, {hmul}, v{t1}
        v_lshlrev_b32 v{t0}, 7, v{t0}
        v_bfe_u32 v{t1}, {L}, 3, 1
        v_lshl_or_b32 v{t0}, v{t1}, 6, v{t0}
        v_bfe_u32 v{t1}, {L}, 4, 1
        v_lshl_or_b32 v{t0}, v{t1}, 5, v{t0}
        v_and_b32 v{t1}, 3, {L}
        v_lshl_or_b32 v{dst}, v{t1}, 3, v{t0}
        """)
    tr_addr(24, 8)
    a(f"""
    s_and_b32 s60, {sW}, 1
    s_lshl_b32 s60, s60, 6
    v_xor_b32 v24, s60, v24
    v_add_u32 v24, {W_}, v24
    """)
    for r in range(64, 192): a(f"v_mov_b32 v{r}, 0x3f803f80")
    def qreads(ks):
        b = 192 + 8*(ks & 1)
        a(f"ds_read_b64_tr_b16 {vr(b,2)}, v24 offset:{2048*ks}")
        a(f"ds_read_b64_tr_b16 {vr(b+2,2)}, v24 offset:{2048*ks+512}")
        a(f"ds_read_b128 {vr(b+4,4)}, v{16+(ks&7)} offset:{16384*(ks>>3)}")
    for c in range(4):
        a(f"s_waitcnt vmcnt({8*(3-c)})\ns_barrier")
        if c == 0:
            make_tag()
            stamp(2)
        qreads(8*c)
        for k in range(8):
            ks = 8*c + k
            if k < 7:
                qreads(ks+1); a("s_waitcnt lgkmcnt(3)")
            else:
                a("s_waitcnt lgkmcnt(0)")
            b = 192 + 8*(ks & 1)
            a(f"v_mfma_f32_32x32x16_bf16 v[224:239], {vr(b,4)}, {vr(b+4,4)}, {'0' if ks == 0 else 'v[224:239]'}")
    stamp(3)
    a(f"""
    s_lshr_b32 s60, {sW}, 1
    s_lshl_b32 s60, s60, 12
    s_and_b32 s61, {sW}, 1
    s_lshl_b32 s61, s61, 11
    s_add_u32 s60, s60, s61
    s_add_u32 s60, s60, {QF}
    v_lshlrev_b32 v250, 4, {L}
    v_add_u32 v1, s60, v250
    s_mov_b32 s62, {QSCALE}
    v_mov_b32 v245, {sTAG}
    v_mov_b32 v251, {M_QMAX}
    s_nop 1
    """)
    for r in range(16): a(f"v_mul_f32 v{224+r}, s62, v{224+r}")
    for r in range(8): a(f"v_cvt_pk_bf16_f32 v{192+r}, v{224+2*r}, v{225+2*r}")
    a("ds_write_b128 v1, v[192:195]\nds_write_b128 v1, v[196:199] offset:1024")
    a("v_mul_f32 v2, v224, v224\nv_mul_f32 v3, v232, v232")
    for r in range(1, 8): a(f"v_fmac_f32 v2, v{224+r}, v{224+r}\nv_fmac_f32 v3, v{232+r}, v{232+r}")
    a(f"""
    s_nop 1
    v_permlane32_swap_b32 v2, v3
    v_add_f32 v254, v2, v3
    v_lshlrev_b32 v247, 7, {L}
    s_lshl_b32 s60, {sW}, 8
    s_add_u32 s60, s60, {OACC}
    v_lshlrev_b32 v244, 2, {L}
    v_add_u32 v244, s60, v244
    v_add_u32 v246, {QF}, v250
    v_and_b32 v1, 15, {L}
    v_lshrrev_b32 v2, 5, {L}
    v_lshl_or_b32 v1, v2, 4, v1
    v_lshlrev_b32 v252, 4, v1
    v_add_u32 v252, {WS_V - WS_K}, v252
    s_lshl_b32 s60, {sW}, 13
    s_add_u32 s60, s60, {WS_KVF}
    s_lshl_b32 s61, {sW}, 14
    s_add_u32 s61, s61, {WS_K}
    s_mov_b32 s63, 0
    s_waitcnt lgkmcnt(0)
    s_barrier
    s_setprio 2
    ds_read_b128 v[240:243], v246
    v_add_u32 v246, 1024, v246
    """)
    stamp(4)
    a(f"""
    L_kvpoll:
    buffer_load_dwordx2 v[248:249], v247, {srd(SWS)}, s60 offen sc1
    s_add_u32 s63, s63, 1
    s_cmp_gt_u32 s63, {SPIN_MAX}
    s_cbranch_scc1 L_kvok
    s_waitcnt vmcnt(0)
    v_cmp_ne_u32 vcc, {sTAG}, v248
    s_cbranch_vccnz L_kvpoll
    L_kvok:
    s_mov_b32 s64, 0x0000ffff
    s_mov_b32 s65, 0x0000ffff
    """)
    stamp(5)
    for t in range(16):
        a(f"buffer_load_dwordx4 {vr(4*t,4)}, v250, {srd(SWS)}, s61 offen offset:{1024*(t&3)} sc1")
        a("s_mov_b64 exec, s[64:65]")
        a(f"buffer_load_dwordx4 {vr(64+8*t,4)}, v252, {srd(SWS)}, s61 offen offset:{1024*(t&3)} sc1")
        a(f"buffer_load_dwordx4 {vr(68+8*t,4)}, v252, {srd(SWS)}, s61 offen offset:{1024*(t&3)+512} sc1")
        a("s_mov_b64 exec, -1")
        if t & 3 == 3 and t < 15: a("s_add_u32 s61, s61, 4096")
    a(f"""
    v_max_u32_dpp v254, v254, v254 row_ror:8 row_mask:0xf bank_mask:0xf
    v_max_u32_dpp v249, v249, v249 row_ror:8 row_mask:0xf bank_mask:0xf
    v_mov_b32 v253, 1
    v_max_u32_dpp v254, v254, v254 row_ror:4 row_mask:0xf bank_mask:0xf
    v_max_u32_dpp v249, v249, v249 row_ror:4 row_mask:0xf bank_mask:0xf
    s_mov_b32 s64, 0x00010001
    v_max_u32_dpp v254, v254, v254 row_ror:2 row_mask:0xf bank_mask:0xf
    v_max_u32_dpp v249, v249, v249 row_ror:2 row_mask:0xf bank_mask:0xf
    s_mov_b32 s65, 0x00010001
    v_max_u32_dpp v254, v254, v254 row_ror:1 row_mask:0xf bank_mask:0xf
    v_max_u32_dpp v249, v249, v249 row_ror:1 row_mask:0xf bank_mask:0xf
    s_mov_b64 exec, s[64:65]
    ds_max_u32 v251, v254
    ds_max_u32 v251, v249 offset:4
    ds_add_u32 v251, v253 offset:8
    s_mov_b64 exec, -1
    s_mov_b32 s62, 8
    s_mov_b32 s64, 0xa0
    s_waitcnt vmcnt(47) lgkmcnt(0)
    v_mfma_f32_32x32x16_bf16 v[192:207], v[0:3], v[240:243], 0
    s_waitcnt vmcnt(44)
    """)
    stamp(6)
    a("s_nop 10")
    flush = [f"ds_write2st64_b32 v244, v{224+2*r}, v{225+2*r} offset0:{8*r} offset1:{8*r+4}" for r in range(4)] + ["ds_write2st64_b32 v244, v232, v245 offset0:32 offset1:36", f"v_add_u32 v244, {SLOT}, v244"]
    waits = {1: 35, 4: 26, 7: 17, 10: 8, 13: 0}
    def tile(t, first=False):
        S = [192, 208]
        cur = S[t & 1]; nxt = S[(t+1) & 1]
        Kn = 4*((t+1) % 16); Vp = 64 + 8*((t-1) % 16) + 4; Vc = 64 + 8*t
        m0 = f"v_mfma_f32_32x32x16_bf16 v[224:239], {vr(Vp,4)}, {vr(nxt+4,4)}, v[224:239]"
        m1 = f"v_mfma_f32_32x32x16_bf16 {vr(nxt,16)}, {vr(Kn,4)}, v[240:243], 0"
        m2 = f"v_mfma_f32_32x32x16_bf16 v[224:239], {vr(Vc,4)}, {vr(cur,4)}, {'0' if t == 0 else 'v[224:239]'}"
        e = lambda i: f"v_exp_f32 v{cur+i}, v{cur+i}"
        c = lambda i: f"v_cvt_pk_bf16_f32 v{cur+i}, v{cur+2*i}, v{cur+2*i+1}"
        cp7 = f"v_cvt_pk_bf16_f32 v{nxt+7}, v{nxt+14}, v{nxt+15}"
        seq = []
        if t in waits: seq.append(f"s_waitcnt vmcnt({waits[t]})")
        seq += [e(0)] + ([] if first else [cp7]) + [e(1), e(2)] + ([] if first else [m0]) + [c(0), e(3), e(4), c(1), e(5), e(6)]
        if t == 15: seq.append("s_waitcnt lgkmcnt(0)")
        seq.append(m1)
        if t == 14: seq += ["ds_read_b128 v[240:243], v246", "v_add_u32 v246, 1024, v246"]
        seq += [c(2), e(7), e(8), c(3), e(9), e(10)]
        if t == 0 and not first: seq += flush
        seq += [c(4), m2, e(11), e(12), c(5), e(13), e(14), c(6)]
        if t == 15: seq += ["s_sub_u32 s62, s62, 1"]
        seq += [e(15)]
        a("\n".join(seq))
    tile(0, first=True)
    a("s_branch L_t1\n.p2align 6\nL_top:".replace(".p2align 6", ".p2align 6"))
    tile(0)
    a("L_t1:")
    for t in range(1, 16): tile(t)
    a(f"""
    s_bitcmp1_b32 s64, s62
    s_cbranch_scc1 L_check
    s_cmp_lg_u32 s62, 0
    s_cbranch_scc1 L_top
    v_cvt_pk_bf16_f32 v215, v222, v223
    s_nop 1
    v_mfma_f32_32x32x16_bf16 v[224:239], {vr(64+8*15+4,4)}, v[212:215], v[224:239]
    s_nop 11
    """)
    a("\n".join(flush))
    stamp(8)
    diag_out("a")
    a("s_endpgm")
    a(f"""
    L_check:
    s_mov_b32 s63, 0
    s_cmp_eq_u32 s62, 7
    s_cbranch_scc1 L_chk2
    L_xw:
    ds_read_b32 v248, v251 offset:{M_CNTG - M_QMAX}
    s_add_u32 s63, s63, 1
    s_cmp_gt_u32 s63, {SPIN_MAX}
    s_cbranch_scc1 L_xw_x
    s_waitcnt lgkmcnt(0)
    v_cmp_ne_u32 vcc, 4, v248
    s_cbranch_vccnz L_xw
    L_xw_x:
    v_subrev_u32 v244, {OACC + 2*SLOT - X_}, v244
    s_branch L_top
    L_chk2:
    ds_read_b96 v[248:250], v251
    s_add_u32 s63, s63, 1
    s_cmp_gt_u32 s63, {SPIN_MAX}
    s_cbranch_scc1 L_chk3
    s_waitcnt lgkmcnt(0)
    v_cmp_ne_u32 vcc, 16, v250
    s_cbranch_vccnz L_chk2
    L_chk3:
    v_mul_f32 v248, v248, v249
    v_mov_b32 v249, 0x45700000
    """)
    stamp(7)
    a(f"""
    v_cmp_nle_f32 vcc, v248, v249
    s_cbranch_vccz L_top
    """)
    if o.get("force_slow"): a.l[-1] = "    s_nop 0"
    a(f"""
    v_lshlrev_b32 v246, 4, {L}
    v_add_u32 v246, {QF}, v246
    v_and_b32 v247, 31, {L}
    v_lshlrev_b32 v247, 2, v247
    v_add_u32 v247, {M_M}, v247
    v_mov_b32 v251, {M_CNTS}
    s_mov_b32 s62, 8
    L_slow:
    ds_read_b128 v[240:243], v246
    v_add_u32 v246, 1024, v246
    v_mov_b32 v248, 0xff800000
    s_waitcnt lgkmcnt(0)
    """)
    for t in range(16):
        a(f"v_mfma_f32_32x32x16_bf16 v[192:207], {vr(4*t,4)}, v[240:243], 0\ns_nop 11")
        for r in range(8): a(f"v_max3_f32 v248, v248, v{192+2*r}, v{193+2*r}")
    a(f"""
    ds_max_f32 v247, v248
    s_mov_b64 exec, 1
    ds_add_u32 v251, v253
    s_mov_b64 exec, -1
    s_mov_b32 s63, 0
    L_slow2:
    s_sleep 1
    ds_read_b32 v249, v251
    s_add_u32 s63, s63, 1
    s_cmp_gt_u32 s63, {SPIN_MAX}
    s_cbranch_scc1 L_slow3
    s_waitcnt lgkmcnt(0)
    v_cmp_ne_u32 vcc, 4, v249
    s_cbranch_vccnz L_slow2
    L_slow3:
    ds_read_b32 v248, v247
    v_add_u32 v247, 128, v247
    v_add_u32 v251, 4, v251
    s_waitcnt lgkmcnt(0)
    """)
    for t in range(16):
        a(f"v_mfma_f32_32x32x16_bf16 v[192:207], {vr(4*t,4)}, v[240:243], 0\ns_nop 11")
        for r in range(16): a(f"v_sub_f32 v{192+r}, v{192+r}, v248")
        for r in range(16): a(f"v_exp_f32 v{192+r}, v{192+r}")
        a("s_nop 0")
        for r in range(8): a(f"v_cvt_pk_bf16_f32 v{208+r}, v{192+2*r}, v{193+2*r}")
        a("s_nop 1")
        a(f"v_mfma_f32_32x32x16_bf16 v[224:239], {vr(64+8*t,4)}, v[208:211], {'0' if t == 0 else 'v[224:239]'}")
        a(f"v_mfma_f32_32x32x16_bf16 v[224:239], {vr(68+8*t,4)}, v[212:215], v[224:239]")
    a(f"""
    s_cmp_lg_u32 s62, 6
    s_cbranch_scc1 L_slow5
    s_mov_b32 s63, 0
    v_mov_b32 v249, {M_CNTG}
    L_slow4:
    ds_read_b32 v248, v249
    s_add_u32 s63, s63, 1
    s_cmp_gt_u32 s63, {SPIN_MAX}
    s_cbranch_scc1 L_slow4x
    s_waitcnt lgkmcnt(0)
    v_cmp_ne_u32 vcc, 4, v248
    s_cbranch_vccnz L_slow4
    L_slow4x:
    v_subrev_u32 v244, {OACC + 2*SLOT - X_}, v244
    L_slow5:
    """)
    a("s_nop 11")
    a("\n".join(flush))
    a(f"""
    s_sub_u32 s62, s62, 1
    s_cmp_lg_u32 s62, 0
    s_cbranch_scc1 L_slow
    """)
    diag_out("s")
    a("s_endpgm")

    a(f"""
    L_G:
    s_cmp_eq_u32 {sW}, 7
    s_cbranch_scc1 L_KV
    s_barrier
    s_waitcnt vmcnt(0)
    s_barrier
    v_mov_b32 v4, 0
    v_mov_b32 v5, 0
    v_mov_b32 v6, 0
    v_mov_b32 v7, 0
    """)
    a(f"""
    v_lshlrev_b32 v2, 4, {L}
    v_add_u32 v2, {MISC}, v2
    v_mov_b32 v8, 0xff800000
    v_mov_b32 v9, v8
    v_mov_b32 v10, v8
    v_mov_b32 v11, v8
    ds_write_b128 v2, v[4:7]
    ds_write_b128 v2, v[8:11] offset:1024
    s_waitcnt vmcnt(0) lgkmcnt(0)
    s_branch L_Gjoin
    """)
    a(f"""
    L_KV:
    s_setprio 3
    s_cmp_lt_u32 {sJ}, 4
    s_cselect_b32 s{SWKV}, s{SWKV}, s48
    s_cselect_b32 s{SWKV+1}, s{SWKV+1}, s49
    v_lshlrev_b32 v1, 4, {L}
    s_mov_b32 m0, {OACC}
    s_and_b32 s60, {sJ}, 3
    """)
    for d in range(16):
        if d & 3 == 0 and d: a(f"s_mov_b32 m0, {OACC + 1024*d}\ns_mov_b32 s61, {1024*d}")
        a(f"buffer_load_dwordx4 v1, {srd(SWKV)}, {'s61' if d >= 4 else '0'} offen offset:{1024*(d&3)} lds")
    a(f"""
    v_and_b32 v2, 15, {L}
    v_lshrrev_b32 v3, 4, {L}
    v_lshlrev_b32 v4, 4, v3
    v_lshl_or_b32 v4, v2, 10, v4
    s_lshl_b32 s61, {sGRP}, 2
    s_add_u32 s61, s61, s60
    s_lshl_b32 s62, s61, 14
    """)
    for s in range(16): a(f"buffer_load_dwordx4 {vr(64+4*s,4)}, v4, {srd(SX)}, s62 offen offset:{64*s}")
    a(f"""
    s_barrier
    v_lshlrev_b32 v5, 8, v3
    v_lshl_or_b32 v5, v2, 3, v5
    v_add_u32 v5, {OACC}, v5
    s_cmp_lt_u32 {sJ}, 4
    s_cselect_b32 s63, 9, 8
    v_and_b32 v6, 1, v3
    v_lshlrev_b32 v6, s63, v6
    v_lshl_or_b32 v6, v2, 4, v6
    v_lshrrev_b32 v7, 1, v3
    v_lshl_or_b32 v6, v7, 3, v6
    s_lshr_b32 s54, s61, 1
    s_lshl_b32 s54, s54, 10
    s_and_b32 s55, s61, 1
    s_lshl_b32 s55, s55, 8
    s_add_u32 s54, s54, s55
    s_add_u32 s54, s54, {WS_K}
    s_lshl_b32 s55, s61, 9
    s_add_u32 s55, s55, {WS_V}
    s_cmp_lt_u32 {sJ}, 4
    s_cselect_b32 s54, s54, s55
    s_lshl_b32 s55, {sGRP}, 3
    s_add_u32 s55, s55, {sJ}
    s_lshl_b32 s55, s55, 7
    s_add_u32 s55, s55, {WS_KVF}
    s_waitcnt vmcnt(16)
    """)
    stamp(1)
    for s in range(16):
        a(f"ds_read_b64_tr_b16 {vr(128+4*s,2)}, v5 offset:{1024*s}\nds_read_b64_tr_b16 {vr(130+4*s,2)}, v5 offset:{1024*s+128}")
    make_tag()
    a(f"s_cmp_lt_u32 {sJ}, 4\ns_waitcnt vmcnt(0) lgkmcnt(0)\ns_cbranch_scc0 L_KVv")
    for s in range(16): a(f"v_mfma_f32_16x16x32_bf16 v[192:195], {vr(128+4*s,4)}, {vr(64+4*s,4)}, {'0' if s == 0 else 'v[192:195]'}")
    a("s_branch L_KVd\nL_KVv:")
    for s in range(16): a(f"v_mfma_f32_16x16x32_bf16 v[192:195], {vr(64+4*s,4)}, {vr(128+4*s,4)}, {'0' if s == 0 else 'v[192:195]'}")
    a(f"""
    L_KVd:
    s_nop 7
    v_cvt_pk_bf16_f32 v196, v192, v193
    v_cvt_pk_bf16_f32 v197, v194, v195
    buffer_store_dwordx2 v[196:197], v6, {srd(SWS)}, s54 offen sc1
    s_barrier
    v_mul_f32 v8, v192, v192
    v_fmac_f32 v8, v193, v193
    v_fmac_f32 v8, v194, v194
    v_fmac_f32 v8, v195, v195
    v_mov_b32 v9, v8
    s_nop 1
    v_permlane32_swap_b32 v8, v9
    v_add_f32 v8, v8, v9
    v_mov_b32 v9, v8
    s_nop 1
    v_permlane16_swap_b32 v8, v9
    v_add_f32 v8, v8, v9
    s_nop 1
    v_max_u32_dpp v8, v8, v8 row_ror:8 row_mask:0xf bank_mask:0xf
    s_nop 1
    v_max_u32_dpp v8, v8, v8 row_ror:4 row_mask:0xf bank_mask:0xf
    s_nop 1
    v_max_u32_dpp v8, v8, v8 row_ror:2 row_mask:0xf bank_mask:0xf
    s_nop 1
    v_max_u32_dpp v9, v8, v8 row_ror:1 row_mask:0xf bank_mask:0xf
    s_cselect_b32 s63, -1, 0
    v_mov_b32 v8, {sTAG}
    v_and_b32 v9, s63, v9
    s_mov_b64 exec, 1
    s_waitcnt vmcnt(0)
    buffer_store_dwordx2 v[8:9], off, {srd(SWS)}, s55 sc1
    s_mov_b64 exec, -1
    s_setprio 0
    """)
    stamp(2)
    a(f"""
    L_Gjoin:
    s_barrier
    s_barrier
    s_barrier
    s_waitcnt lgkmcnt(0)
    s_sub_u32 {sW}, {sW}, 4
    """)
    gw = sW
    a(f"""
    s_lshr_b32 s60, {sJ}, 1
    s_mul_i32 s60, s60, 7
    s_and_b32 s61, {sJ}, 1
    s_lshl_b32 s62, s61, 2
    s_add_u32 s62, s62, {gw}
    s_cmp_eq_u32 {gw}, 3
    s_cselect_b32 s62, 3, s62
    s_cselect_b32 s61, s61, 0
    s_add_u32 s60, s60, s62
    s_lshl_b32 s48, s60, 1
    s_add_u32 s48, s48, s61
    s_lshl_b32 s54, s48, 6
    s_lshl_b32 s49, {gw}, 14
    s_add_u32 s49, s49, {W_}
    v_lshrrev_b32 v1, 3, {L}
    v_and_b32 v2, 7, {L}
    v_bfe_u32 v3, {L}, 4, 1
    v_lshlrev_b32 v3, 2, v3
    v_xor_b32 v2, v3, v2
    v_lshlrev_b32 v2, 4, v2
    v_lshl_or_b32 v150, v1, 10, v2
    v_add_u32 v151, 7168, v150
    v_mul_u32_u24 v148, 3584, v1
    v_add_u32 v148, v148, v2
    v_add_u32 v149, {8*3584-1024}, v148
    """)
    a(f"s_cmp_eq_u32 {gw}, 3\ns_cbranch_scc0 L_Gs1")
    a(f"""
    v_lshrrev_b32 v1, 2, {L}
    v_and_b32 v2, 3, {L}
    v_mul_u32_u24 v148, 3584, v1
    v_lshl_add_u32 v148, v2, 4, v148
    v_lshlrev_b32 v1, 4, {L}
    s_mov_b32 m0, {M_GATE}
    s_barrier
    buffer_load_dwordx4 v1, {srd(SGT)}, 0 offen lds
    """)
    for k in range(8):
        a(f"s_add_u32 m0, s49, {2048*k}\ns_nop 0\nbuffer_load_dwordx4 v148, {srd(SW1)}, s54 offen lds\ns_add_u32 s54, s54, {16*3584}")
    a("s_branch L_Gs2\nL_Gs1:\ns_barrier")
    for k in range(8):
        a(f"s_add_u32 m0, s49, {2048*k}\ns_nop 0\nbuffer_load_dwordx4 v148, {srd(SW1)}, s54 offen lds\nbuffer_load_dwordx4 v149, {srd(SW1)}, s54 offen offset:1024 lds\ns_add_u32 s54, s54, {16*3584}")
    a("L_Gs2:\ns_setprio 3")
    stamp(3)
    make_tag()
    a(f"""
    v_and_b32 v1, 31, {L}
    v_lshlrev_b32 v4, 1, v1
    s_lshl_b32 s60, s48, 6
    s_lshl_b32 s61, {sJ}, 7
    buffer_load_ushort v152, v4, {srd(SB1)}, s60 offen
    buffer_load_ushort v156, v4, {srd(SB1)}, s60 offen offset:64
    buffer_load_ushort v168, v4, {srd(SB2)}, s61 offen
    buffer_load_ushort v172, v4, {srd(SB2)}, s61 offen offset:64
    v_lshrrev_b32 v2, 5, {L}
    v_and_b32 v3, 15, {L}
    v_xor_b32 v3, v2, v3
    v_lshlrev_b32 v3, 4, v3
    v_lshl_or_b32 v136, v1, 8, v3
    """)
    for k in range(1, 8): a(f"v_xor_b32 v{136+k}, {32*k}, v136")
    tr_addr(144, 8)
    a("v_add_u32 v144, s49, v144\nv_xor_b32 v145, 64, v144")
    tr_addr(146, 4)
    a("v_add_u32 v146, s49, v146\nv_xor_b32 v147, 64, v146")
    for r in (153, 154, 155, 157, 158, 159, 161, 162, 163, 169, 170, 171, 173, 174, 175): a(f"v_mov_b32 v{r}, 0")
    a(f"""
    v_cmp_gt_u32 vcc, 32, {L}
    v_mov_b32 v1, 0x3f80
    v_lshlrev_b32 v166, 4, {L}
    v_cndmask_b32 v160, 0, v1, vcc
    v_mov_b32 v167, 1
    v_mov_b32 v177, {M_CNTG}
    s_cmp_eq_u32 {gw}, 3
    s_cbranch_scc1 L_F1w3
    """)
    ACC = lambda mt, nt: 32*nt + 16*mt
    def mf(mt, nt, A_, B_, c0=False):
        d = vr(ACC(mt, nt), 16)
        a(f"v_mfma_f32_32x32x16_bf16 {d}, {vr(A_,4)}, {vr(B_,4)}, {'0' if c0 else d}")
    def f1reads(k, w3):
        ab = 120 + 8*(k & 1); bb = 64 + 8*(k & 1); u = k & 7
        if not w3:
            a(f"ds_read_b64_tr_b16 {vr(ab,2)}, v144 offset:{2048*u}\nds_read_b64_tr_b16 {vr(ab+2,2)}, v144 offset:{2048*u+512}")
            a(f"ds_read_b64_tr_b16 {vr(ab+4,2)}, v145 offset:{2048*u}\nds_read_b64_tr_b16 {vr(ab+6,2)}, v145 offset:{2048*u+512}")
        else:
            a(f"ds_read_b64_tr_b16 {vr(ab,2)}, v144 offset:{2048*u}\nds_read_b64_tr_b16 {vr(ab+2,2)}, v144 offset:{2048*u+256}")
            a(f"ds_read_b128 {vr(ab+4,4)}, v145 offset:{32*u}")
        a(f"ds_read_b128 {vr(bb,4)}, v{136+u}\nds_read_b128 {vr(bb+4,4)}, v{136+u} offset:8192")
    def ffn1(w3):
        nd = 1 if w3 else 2
        nr = 5 if w3 else 6
        lbl = "L_f1b" if w3 else "L_f1a"
        a("s_waitcnt vmcnt(0)\ns_setprio 0")
        for nt in range(2):
            mf(0, nt, 152, 160, True)
            mf(1, nt, 156, 160, True)
        f1reads(0, w3)
        a(f"s_mov_b32 s62, 4\n{lbl}:")
        a(f"s_cmp_eq_u32 s62, 1\ns_cselect_b32 s{SW1+2}, 0, s{SW1+2}")
        for u in range(8):
            a(f"s_waitcnt vmcnt({6*nd})")
            if u == 7:
                a("s_setprio 3")
                for k in range(8): a(f"v_add_u32 v{136+k}, 0x4000, v{136+k}")
                if w3: a("v_add_u32 v145, 0x100, v145")
                a("s_setprio 0")
            f1reads(u+1, w3)
            a(f"s_add_u32 m0, s49, {2048*u}\ns_waitcnt lgkmcnt({nr})")
            a(f"buffer_load_dwordx4 v148, {srd(SW1)}, s54 offen lds")
            if not w3: a(f"buffer_load_dwordx4 v149, {srd(SW1)}, s54 offen offset:1024 lds")
            a(f"s_add_u32 s54, s54, {16*3584}")
            ab = 120 + 8*(u & 1); bb = 64 + 8*(u & 1)
            mf(0, 0, ab, bb); mf(1, 0, ab+4, bb); mf(0, 1, ab, bb+4); mf(1, 1, ab+4, bb+4)
        a(f"s_sub_u32 s62, s62, 1\ns_cmp_lg_u32 s62, 0\ns_cbranch_scc1 {lbl}")
    ffn1(False)
    a("s_branch L_F1done\nL_F1w3:")
    a(f"""
    v_lshrrev_b32 v1, 5, {L}
    v_bfe_u32 v2, {L}, 2, 2
    v_lshl_or_b32 v2, v1, 3, v2
    v_lshlrev_b32 v2, 6, v2
    v_bfe_u32 v3, {L}, 4, 1
    v_lshl_or_b32 v2, v3, 5, v2
    v_and_b32 v3, 3, {L}
    v_lshl_or_b32 v2, v3, 3, v2
    v_add_u32 v144, s49, v2
    v_lshlrev_b32 v145, 4, v1
    v_add_u32 v145, {M_GATE}, v145
    s_waitcnt vmcnt(0)
    v_mov_b32 v156, 0
    """)
    ffn1(True)
    a("L_F1done:\ns_waitcnt lgkmcnt(0)\ns_setprio 3")
    stamp(4)
    a(f"""
    s_lshl_b32 s60, {sGRP}, 1
    s_mul_i32 s60, s60, {112*1024}
    s_lshl_b32 s61, s48, 11
    s_add_u32 s60, s60, s61
    s_add_u32 s60, s60, {WS_H}
    s_add_u32 s61, s60, {112*1024}
    s_nop 4
    """)
    def hst(mt, nt):
        b = ACC(mt, nt)
        for r in range(16): a(f"v_max_f32 v{b+r}, 0, v{b+r}")
        for r in range(8): a(f"v_pk_mul_f32 {vr(b+2*r,2)}, {vr(b+2*r,2)}, {vr(b+2*r,2)}")
        for r in range(8): a(f"v_cvt_pk_bf16_f32 v{b+r}, v{b+2*r}, v{b+2*r+1}")
        so = "s61" if nt else "s60"
        a(f"buffer_store_dwordx4 {vr(b,4)}, v166, {srd(SWS)}, {so} offen offset:{2048*mt} sc1")
        a(f"buffer_store_dwordx4 {vr(b+4,4)}, v166, {srd(SWS)}, {so} offen offset:{2048*mt+1024} sc1")
    hst(0, 0); hst(0, 1)
    a(f"s_cmp_eq_u32 {gw}, 3\ns_cbranch_scc1 L_gate")
    hst(1, 0); hst(1, 1)
    a(f"""
    s_branch L_gated
    L_gate:
    v_mul_f32 v16, {0x80000000 | LOG2E}, v16
    v_mul_f32 v48, {0x80000000 | LOG2E}, v48
    v_exp_f32 v16, v16
    v_exp_f32 v48, v48
    v_and_b32 v17, 31, {L}
    v_add_f32 v16, 1.0, v16
    v_add_f32 v48, 1.0, v48
    v_rcp_f32 v16, v16
    v_rcp_f32 v48, v48
    v_lshlrev_b32 v17, 2, v17
    v_add_u32 v17, {M_G}, v17
    ds_write_b32 v17, v16
    ds_write_b32 v17, v48 offset:128
    L_gated:
    s_mov_b64 exec, 1
    ds_add_u32 v177, v167
    s_mov_b64 exec, -1
    """)
    a(f"""
    s_mul_i32 s54, {gw}, {448*1024}
    s_lshl_b32 s55, {sJ}, 7
    s_add_u32 s54, s54, s55
    s_lshl_b32 s60, {sGRP}, 5
    s_lshl_b32 s61, {sJ}, 2
    s_add_u32 s61, s61, {gw}
    s_add_u32 s61, s61, s60
    s_lshl_b32 s61, s61, 7
    s_add_u32 s61, s61, {WS_HF}
    v_mov_b32 v1, {sTAG}
    s_waitcnt vmcnt(0)
    s_mov_b64 exec, 1
    buffer_store_dword v1, off, {srd(SWS)}, s61 sc1
    s_mov_b64 exec, -1
    """)
    stamp(5)
    for k in range(7):
        a(f"s_add_u32 m0, s49, {2048*k}\ns_nop 0\nbuffer_load_dwordx4 v150, {srd(SW2)}, s54 offen lds\nbuffer_load_dwordx4 v151, {srd(SW2)}, s54 offen offset:1024 lds\ns_add_u32 s54, s54, 16384")
    def lds_wait(lbl, addr, off, val, sleep=2):
        a(f"""
        s_mov_b32 s63, 0
        {lbl}:
        ds_read_b32 v178, {addr} offset:{off}
        s_add_u32 s63, s63, 1
        s_cmp_gt_u32 s63, {SPIN_MAX}
        s_cbranch_scc1 {lbl}_x
        s_waitcnt lgkmcnt(0)
        v_cmp_ne_u32 vcc, {val}, v178
        s_cbranch_vccz {lbl}_x
        s_sleep {sleep}
        s_branch {lbl}
        {lbl}_x:
        """)
    def flag_wait(lbl, vaddr, soff, sleep=2):
        a(f"""
        s_mov_b32 s63, 0
        {lbl}:
        buffer_load_dword v178, {vaddr}, {srd(SWS)}, {soff} offen sc1
        s_add_u32 s63, s63, 1
        s_cmp_gt_u32 s63, {SPIN_MAX}
        s_cbranch_scc1 {lbl}_x
        s_waitcnt vmcnt(0)
        v_cmp_ne_u32 vcc, {sTAG}, v178
        s_cbranch_vccz {lbl}_x
        s_sleep {sleep}
        s_branch {lbl}
        {lbl}_x:
        """)
    lds_wait("L_gs1", "v177", 0, "4")
    a(f"""
    v_and_b32 v1, 31, {L}
    v_lshlrev_b32 v1, 2, v1
    v_add_u32 v1, {M_G}, v1
    ds_read_b32 v164, v1
    ds_read_b32 v165, v1 offset:128
    s_lshl_b32 s64, {gw}, 17
    s_add_u32 s64, s64, s55
    s_add_u32 s60, s64, {7*16384}
    s_add_u32 m0, s49, {2048*7}
    s_nop 0
    buffer_load_dwordx4 v150, {srd(SWO)}, s60 offen lds
    buffer_load_dwordx4 v151, {srd(SWO)}, s60 offen offset:1024 lds
    """)
    a(f"""
    s_cmp_eq_u32 {gw}, 0
    s_cselect_b32 s60, -1, 0
    v_and_b32 v160, s60, v160
    v_and_b32 v1, 7, {L}
    v_lshlrev_b32 v180, 7, v1
    s_lshl_b32 s60, {sGRP}, 5
    s_lshl_b32 s61, {gw}, 3
    s_add_u32 s60, s60, s61
    s_lshl_b32 s60, s60, 7
    s_add_u32 s60, s60, {WS_HF}
    """)
    for nt in range(2):
        mf(0, nt, 168, 160, True); mf(1, nt, 172, 160, True)
    flag_wait("L_hw", "v180", "s60")
    stamp(6)
    a(f"""
    s_setprio 0
    s_lshl_b32 s60, {sGRP}, 1
    s_mul_i32 s60, s60, {112*1024}
    s_mul_i32 s61, {gw}, {28*1024}
    s_add_u32 s60, s60, s61
    s_add_u32 s60, s60, {WS_H}
    s_add_u32 s61, s60, {112*1024}
    """)
    def hload(u):
        a(f"buffer_load_dwordx4 {vr(64+8*u,4)}, v166, {srd(SH)}, s60 offen sc1\nbuffer_load_dwordx4 {vr(68+8*u,4)}, v166, {srd(SH)}, s61 offen sc1")
        a("s_add_u32 s60, s60, 1024\ns_add_u32 s61, s61, 1024")
    for u in range(7): hload(u)
    def f2reads(slot, par):
        ab = 120 + 8*par
        a(f"ds_read_b64_tr_b16 {vr(ab,2)}, v146 offset:{2048*slot}\nds_read_b64_tr_b16 {vr(ab+2,2)}, v146 offset:{2048*slot+1024}")
        a(f"ds_read_b64_tr_b16 {vr(ab+4,2)}, v147 offset:{2048*slot}\nds_read_b64_tr_b16 {vr(ab+6,2)}, v147 offset:{2048*slot+1024}")
    f2reads(0, 0)
    a("s_waitcnt vmcnt(0)\ns_mov_b32 s62, 2\nL_f2:")
    for it in range(2):
        if it == 1: a(f"s_cmp_eq_u32 s62, 1\ns_cselect_b32 s{SW2}, s{SWO}, s{SW2}\ns_cselect_b32 s{SW2+1}, s{SWO+1}, s{SW2+1}\ns_cselect_b32 s{SW2+2}, s{SWO+2}, s{SW2+2}\ns_cselect_b32 s54, s64, s54\ns_cselect_b32 s{SH+2}, 0, s{SH+2}")
        for u in range(7):
            par = (7*it + u) & 1
            a("s_waitcnt vmcnt(22)")
            f2reads((u+1) % 7, par ^ 1)
            a(f"s_add_u32 m0, s49, {2048*u}\ns_waitcnt lgkmcnt(4)")
            a(f"buffer_load_dwordx4 v150, {srd(SW2)}, s54 offen lds\nbuffer_load_dwordx4 v151, {srd(SW2)}, s54 offen offset:1024 lds\ns_add_u32 s54, s54, 16384")
            ab = 120 + 8*par; bb = 64 + 8*u
            mf(0, 0, ab, bb); mf(1, 0, ab+4, bb); mf(0, 1, ab, bb+4); mf(1, 1, ab+4, bb+4)
            hload(u)
    a("s_sub_u32 s62, s62, 1\ns_cmp_lg_u32 s62, 0\ns_cbranch_scc1 L_f2")
    a("s_waitcnt vmcnt(0) lgkmcnt(0)\ns_setprio 3")
    stamp(7)
    for i in range(8):
        ab = 192 + 8*i
        a(f"ds_read_b64_tr_b16 {vr(ab,2)}, v146 offset:{2048*i}\nds_read_b64_tr_b16 {vr(ab+2,2)}, v146 offset:{2048*i+1024}")
        if i < 7:
            a(f"ds_read_b64_tr_b16 {vr(ab+4,2)}, v147 offset:{2048*i}\nds_read_b64_tr_b16 {vr(ab+6,2)}, v147 offset:{2048*i+1024}")
        else:
            a(f"ds_read_b64_tr_b16 v[136:137], v147 offset:{2048*i}\nds_read_b64_tr_b16 v[138:139], v147 offset:{2048*i+1024}")
    a("v_sub_f32 v182, 1.0, v164\nv_sub_f32 v184, 1.0, v165\ns_nop 4")
    for r in range(16): a(f"v_pk_mul_f32 {vr(2*r,2)}, {vr(2*r,2)}, v[182:183] op_sel_hi:[1,0]")
    for r in range(16, 32): a(f"v_pk_mul_f32 {vr(2*r,2)}, {vr(2*r,2)}, v[184:185] op_sel_hi:[1,0]")
    a(f"""
    s_mul_i32 s60, {gw}, {SLOT}
    s_add_u32 s61, s60, {OACC}
    s_sub_u32 s60, s60, {2*SLOT - X_}
    s_cmp_lt_u32 {gw}, 2
    s_cselect_b32 s61, s61, s60
    s_add_u32 s49, s60, {4*SLOT}
    v_lshlrev_b32 v181, 2, {L}
    v_add_u32 v176, s61, v166
    v_add_u32 v181, s61, v181
    v_and_b32 v120, 31, {L}
    v_lshrrev_b32 v121, 5, {L}
    v_and_b32 v122, 7, {L}
    v_xor_b32 v121, v121, v122
    v_lshlrev_b32 v121, 4, v121
    v_lshl_or_b32 v186, v120, 8, v121
    s_lshl_b32 s60, {gw}, 14
    s_add_u32 s60, s60, {W_}
    v_add_u32 v186, s60, v186
    v_xor_b32 v187, 32, v186
    v_xor_b32 v188, 64, v186
    v_xor_b32 v189, 0x60, v186
    v_lshrrev_b32 v120, 3, {L}
    v_lshlrev_b32 v121, 1, v122
    v_xor_b32 v121, v120, v121
    v_lshlrev_b32 v121, 4, v121
    v_lshl_or_b32 v190, v120, 8, v121
    s_lshl_b32 s60, {gw}, 11
    s_add_u32 s60, s60, {W_}
    v_add_u32 v190, s60, v190
    v_xor_b32 v191, 16, v190
    v_lshlrev_b32 v121, 4, v122
    v_lshl_or_b32 v179, v120, 10, v121
    v_bfe_u32 v120, {L}, 2, 1
    v_and_b32 v121, 3, {L}
    v_lshlrev_b32 v121, 7, v121
    v_lshl_or_b32 v180, v120, 10, v121
    s_lshl_b32 s54, {sGRP}, 3
    s_add_u32 s55, s54, {sJ}
    s_lshl_b32 s55, s55, 3
    s_add_u32 s55, s55, {gw}
    s_lshl_b32 s64, s55, 7
    s_add_u32 s64, s64, {WS_OF}
    s_lshl_b32 s55, s55, 10
    s_add_u32 s55, s55, {WS_O}
    s_lshl_b32 s60, {gw}, 1
    s_add_u32 s54, s54, s60
    s_lshl_b32 s65, s54, 10
    s_add_u32 s65, s65, {WS_OF}
    s_lshl_b32 s54, s54, 13
    s_add_u32 s54, s54, {WS_O}
    s_lshl_b32 s48, {sGRP}, 16
    s_lshl_b32 s60, {gw}, 13
    s_add_u32 s48, s48, s60
    s_lshl_b32 s60, {sJ}, 7
    s_add_u32 s48, s48, s60
    s_mov_b32 s62, 0
    L_stage:
    """)
    a(f"""
    s_mov_b32 s63, 0
    L_fw:
    ds_read_b128 v[64:67], v176 offset:9216
    s_add_u32 s63, s63, 1
    s_cmp_gt_u32 s63, {SPIN_MAX}
    s_cbranch_scc1 L_fw_x
    s_waitcnt lgkmcnt(0)
    v_xor_b32 v64, {sTAG}, v64
    v_xor_b32 v65, {sTAG}, v65
    v_xor_b32 v66, {sTAG}, v66
    v_xor_b32 v67, {sTAG}, v67
    v_or3_b32 v64, v64, v65, v66
    v_or_b32 v64, v64, v67
    v_cmp_ne_u32 vcc, 0, v64
    s_cbranch_vccz L_fw_x
    s_sleep 2
    s_branch L_fw
    L_fw_x:
    """)
    stamp(8)
    a("ds_read2st64_b32 v[96:97], v181 offset0:32 offset1:33\nds_read2st64_b32 v[98:99], v181 offset0:34 offset1:35")
    for w in range(4):
        for r in range(4): a(f"ds_read2st64_b32 {vr(64+8*w+2*r,2)}, v181 offset0:{8*r+w} offset1:{8*r+4+w}")
    a("v_mov_b32 v129, " + sTAG + "\ns_waitcnt lgkmcnt(15)\ns_waitcnt lgkmcnt(8)\nv_pk_add_f32 v[96:97], v[96:97], v[98:99]")
    for r in range(4): a(f"v_pk_add_f32 {vr(64+2*r,2)}, {vr(64+2*r,2)}, {vr(72+2*r,2)}")
    a("v_add_f32 v128, v96, v97\ns_waitcnt lgkmcnt(0)")
    for r in range(4): a(f"v_pk_add_f32 {vr(80+2*r,2)}, {vr(80+2*r,2)}, {vr(88+2*r,2)}")
    for r in range(4): a(f"v_pk_add_f32 {vr(120+2*r,2)}, {vr(64+2*r,2)}, {vr(80+2*r,2)}")
    a(f"""
    v_rcp_f32 v128, v128
    s_or_b32 s60, s2, {gw}
    s_or_b32 s60, s60, s62
    v_mul_f32 v128, v128, v164
    """)
    for r in range(4): a(f"v_pk_mul_f32 {vr(120+2*r,2)}, {vr(120+2*r,2)}, v[128:129] op_sel_hi:[1,0]")
    for r in range(4): a(f"v_cvt_pk_bf16_f32 v{120+r}, v{120+2*r}, v{121+2*r}")
    a(f"""
    buffer_store_dwordx4 v[120:123], v166, {srd(SWS)}, s55 offen sc1
    s_mov_b64 exec, 1
    s_cmp_lg_u32 s60, 0
    s_cbranch_scc1 L_noep
    buffer_store_dword v129, off, {srd(SWS)}, 0 sc1
    L_noep:
    s_waitcnt vmcnt(0)
    buffer_store_dword v129, off, {srd(SWS)}, s64 sc1
    s_mov_b64 exec, -1
    """)
    def woreads(i, par):
        ab = 120 + 8*par
        a(f"ds_read_b64_tr_b16 {vr(ab,2)}, v176 offset:{2048*i}\nds_read_b64_tr_b16 {vr(ab+2,2)}, v176 offset:{2048*i+1024}")
        a(f"ds_read_b64_tr_b16 {vr(ab+4,2)}, v179 offset:{2048*i}\nds_read_b64_tr_b16 {vr(ab+6,2)}, v179 offset:{2048*i+1024}")
    flag_wait("L_ow", "v180", "s65", 1)
    stamp(9)
    a("s_add_u32 s60, s54, 8192")
    for i in range(8):
        a(f"buffer_load_dwordx4 {vr(64+4*i,4)}, v166, {srd(SWS)}, {'s60' if i >= 4 else 's54'} offen offset:{1024*(i&3)} sc1")
    a("s_setprio 0")
    for i in range(8):
        a(f"s_waitcnt vmcnt({7-i})")
        ab = 192 + 8*i
        mf(0, 0, ab, 64+4*i); mf(1, 0, ab+4 if i < 7 else 136, 64+4*i)
    a("s_setprio 3\ns_nop 10")
    stamp(10)
    for mt in range(2):
        for i in range(4):
            a(f"ds_write_b128 v{186+i}, {vr(16*mt+4*i,4)} offset:{128*mt}")
    a("s_mov_b64 exec, 1\nds_add_u32 v177, v167 offset:4\ns_mov_b64 exec, -1")
    lds_wait("L_rw", "v177", 4, "4", 1)
    for p in range(4):
        a(f"ds_read_b128 {vr(64+8*p,4)}, v190 offset:{16384*p}\nds_read_b128 {vr(68+8*p,4)}, v191 offset:{16384*p}")
    a("s_waitcnt lgkmcnt(4)")
    for r in range(4): a(f"v_pk_add_f32 {vr(64+2*r,2)}, {vr(64+2*r,2)}, {vr(72+2*r,2)}")
    a("s_waitcnt lgkmcnt(0)")
    for r in range(4): a(f"v_pk_add_f32 {vr(80+2*r,2)}, {vr(80+2*r,2)}, {vr(88+2*r,2)}")
    for r in range(4): a(f"v_pk_add_f32 {vr(64+2*r,2)}, {vr(64+2*r,2)}, {vr(80+2*r,2)}")
    for r in range(4): a(f"v_cvt_pk_bf16_f32 v{64+r}, v{64+2*r}, v{65+2*r}")
    a(f"buffer_store_dwordx4 v[64:67], v179, {srd(SOUT)}, s48 offen")
    stamp(11)
    a("s_cmp_lg_u32 s62, 0\ns_cbranch_scc1 L_gend")
    if diag:
        for i in range(4): a(f"s_mov_b32 s{68+2*(12+i)}, s{68+2*(8+i)}")
    for r in range(16): a(f"v_mov_b64 {vr(2*r,2)}, {vr(32+2*r,2)}")
    a(f"""
    v_mov_b32 v164, v165
    v_lshlrev_b32 v181, 2, {L}
    v_add_u32 v176, s49, v166
    v_add_u32 v181, s49, v181
    v_add_u32 v177, 4, v177
    v_add_u32 v186, 0x2000, v186
    v_add_u32 v187, 0x2000, v187
    v_add_u32 v188, 0x2000, v188
    v_add_u32 v189, 0x2000, v189
    v_add_u32 v190, 0x2000, v190
    v_add_u32 v191, 0x2000, v191
    s_add_u32 s55, s55, 4096
    s_add_u32 s64, s64, 512
    s_add_u32 s54, s54, 4096
    s_add_u32 s65, s65, 512
    s_add_u32 s48, s48, 0x8000
    s_mov_b32 s62, 1
    s_branch L_stage
    L_gend:
    """)
    if diag: a(f"s_add_u32 {sW}, {sW}, 4")
    diag_out("g")
    a("L_end:\ns_endpgm")

    hdr = open(os.path.join(os.path.dirname(os.path.abspath(__file__)), "..", "cdna_kernels", NAME + ".s.ref")).read().split("\n")
    i0 = next(i for i, l in enumerate(hdr) if l.startswith("; Override"))
    head = "\n".join(hdr[:i0]) + f"\n; @launch grid=(256,1,1) block=(512,1,1) lds={LDS_BYTES}\n"
    return head + f""".amdgcn_target "amdgcn-amd-amdhsa--gfx950"
.text
.globl {NAME}_kernel
.p2align 8
.type {NAME}_kernel,@function
{NAME}_kernel:
{a.text()}.section .rodata,"a"
.p2align 6
.amdhsa_kernel {NAME}_kernel
  .amdhsa_next_free_vgpr 256
  .amdhsa_next_free_sgpr 102
  .amdhsa_accum_offset 256
  .amdhsa_group_segment_fixed_size 0
  .amdhsa_kernarg_size 112
  .amdhsa_user_sgpr_count 2
  .amdhsa_user_sgpr_kernarg_segment_ptr 1
  .amdhsa_system_sgpr_workgroup_id_x 1
.end_amdhsa_kernel
"""

if __name__ == "__main__":
    out = sys.argv[1] if len(sys.argv) > 1 else os.path.join(os.path.dirname(os.path.abspath(__file__)), "..", "cdna_kernels", NAME + ".s")
    opts = dict(x.split("=") if "=" in x else (x, 1) for x in sys.argv[2:])
    open(out, "w").write(gen(diag=bool(opts.pop("diag", 0)), opts=opts))
```

```python
import sys, os
NAME = "gated_mix__grouped_kv_mqa__dense_activation_squared_relu__prompt"

class Asm:
    def __init__(self): self.l = []
    def __call__(self, s):
        for x in s.strip("\n").split("\n"):
            x = x.strip()
            if not x: continue
            self.l.append(x if x.endswith(":") else "    " + x)
    def text(self): return "\n".join(self.l) + "\n"

def vr(a, n): return f"v[{a}:{a+n-1}]"

X_ = 0; W_ = 65536; S_ = 131072
OACC = S_; SLOT = 10240
QF = S_ + 2*SLOT
MISC = QF + 8192
M_G = MISC
M_QMAX = MISC + 256
M_KMAX = MISC + 260
M_CNTA = MISC + 264
M_CNTG = MISC + 272
M_CNTS = MISC + 320
M_M = MISC + 1024
M_GATE = MISC + 2048
M_TAG = MISC + 3072
M_B1 = MISC + 3136
M_B2 = MISC + 3584
LDS_BYTES = 163840
WS_EPOCH = 0
WS_KVF = 0x1000
WS_HF = 0x10000
WS_OF = 0x40000
WS_K = 0x80000
WS_V = 0x90000
WS_O = 0x100000
WS_H = 0x400000
WS_DIAG = 0xC00000
WS_SIZE = 0x1000000
SX, SWQ, SWKV, SWO, SW1, SB1, SW2, SB2, SGT, SOUT, SWS, SH = 4, 8, 12, 16, 20, 24, 28, 32, 36, 40, 44, 56
def srd(b): return f"s[{b}:{b+3}]"
sW, sGRP, sJ, sTAG, sC0 = "s50", "s51", "s52", "s53", "s3"
QSCALE = 0x3eb8aa3b
LOG2E = 0x3fb8aa3b
SPIN_MAX = 200000

def gen(diag=False, opts=None):
    o = dict(opts or {})
    a = Asm()
    nstamp = [0]
    rt = o.get("rt") or o.get("enc")
    def stamp(i):
        if diag:
            a(f"{'s_memrealtime' if rt else 's_memtime'} s[{68+2*i}:{69+2*i}]\ns_waitcnt lgkmcnt(0)")
    def diag_out(lbl):
        if diag and o.get("enc"):
            role, st = o["enc"][0], int(o["enc"][1:])
            wv = {"a": 0, "g": 7}[role]
            if lbl == role:
                a(f"s_cmp_lg_u32 s2, 0\ns_cbranch_scc1 L_encx{lbl}\ns_cmp_lg_u32 {sW}, {wv}\ns_cbranch_scc1 L_encx{lbl}")
                if st < 16: a(f"s_sub_u32 s60, s{68+2*st}, s66\ns_lshl_b32 s60, s60, 4")
                else: a("s_mov_b32 s60, 0")
                a(f"s_add_u32 s60, s60, 5000\nL_enc{lbl}:\ns_sleep 4\ns_memrealtime s[62:63]\ns_waitcnt lgkmcnt(0)\ns_sub_u32 s62, s62, s66\ns_cmp_lt_u32 s62, s60\ns_cbranch_scc1 L_enc{lbl}\nL_encx{lbl}:")
        elif diag and rt:
            idx = {"a": [(1, 1), (2, 2), (4, 3), (5, 4), (6, 5), (7, 6), (8, 7)], "s": [], "g": [(2, 8), (3, 9), (4, 10), (6, 11), (7, 12), (15, 13), (9, 14), (11, 15)]}[lbl]
            a("s_load_dwordx2 s[60:61], s[0:1], 96\ns_mov_b32 s62, 256\ns_mov_b32 s63, 0x00020000\ns_waitcnt vmcnt(0) lgkmcnt(0)\ns_mov_b64 exec, 1")
            a("s_not_b32 s66, s66\nv_mov_b32 v1, s66\nbuffer_atomic_umax v1, off, s[60:63], 0\ns_nop 1")
            for st, d in idx:
                a(f"v_mov_b32 v1, s{68+2*st}\nbuffer_atomic_umax v1, off, s[60:63], 0 offset:{4*d}\ns_nop 1")
            a("s_waitcnt vmcnt(0)")
        elif diag:
            a(f"s_lshl_b32 s60, s2, 3\ns_add_u32 s60, s60, {sW}\ns_lshl_b32 s60, s60, 7\ns_add_u32 s60, s60, {WS_DIAG}")
            a("s_waitcnt vmcnt(0) lgkmcnt(0)\ns_mov_b64 exec, 1")
            for i in range(17):
                a(f"v_mov_b32 v1, s{66+2*i}\nbuffer_store_dword v1, off, {srd(SWS)}, s60 offset:{4*i}\ns_nop 1")
            a("s_waitcnt vmcnt(0)")

    if diag: a("s_memrealtime s[66:67]\ns_memtime s[68:69]")
    a(f"""
    s_cmp_ge_u32 s2, 256
    s_cbranch_scc1 L_end
    s_load_dwordx2 s[{SX}:{SX+1}], s[0:1], 0
    s_load_dwordx2 s[{SWS}:{SWS+1}], s[0:1], 104
    s_load_dwordx2 s[{SWKV}:{SWKV+1}], s[0:1], 16
    s_load_dwordx2 s[48:49], s[0:1], 24
    s_load_dwordx2 s[{SWQ}:{SWQ+1}], s[0:1], 8
    s_load_dwordx2 s[{SW1}:{SW1+1}], s[0:1], 48
    s_load_dwordx2 s[{SB1}:{SB1+1}], s[0:1], 56
    v_lshrrev_b32 v1, 6, v0
    v_and_b32 v255, 63, v0
    s_and_b32 s54, s2, 7
    v_readfirstlane_b32 {sW}, v1
    s_lshr_b32 s55, s2, 3
    s_and_b32 {sJ}, s55, 7
    s_lshr_b32 s55, s55, 3
    s_lshl_b32 {sGRP}, s54, 2
    s_add_u32 {sGRP}, {sGRP}, s55
    s_add_u32 {sC0}, s55, {sJ}
    s_and_b32 {sC0}, {sC0}, 3
    """)
    if diag:
        for i in range(2, 17): a(f"s_mov_b32 s{66+2*i}, 0")
    for b, n in ((SX, 2097152), (SWS, WS_SIZE), (SWKV, 16384), (SWQ, 524288), (SW1, 1835008), (SB1, 3584),
                 (SWO, 524288), (SW2, 1835008), (SB2, 1024), (SGT, 1024), (SOUT, 2097152), (SH, WS_SIZE)):
        a(f"s_mov_b32 s{b+2}, {n}\ns_mov_b32 s{b+3}, 0x00020000")
    a(f"""
    s_waitcnt lgkmcnt(0)
    s_load_dwordx2 s[{SWO}:{SWO+1}], s[0:1], 32
    s_load_dwordx2 s[{SW2}:{SW2+1}], s[0:1], 64
    s_load_dwordx2 s[{SB2}:{SB2+1}], s[0:1], 72
    s_load_dwordx2 s[{SGT}:{SGT+1}], s[0:1], 80
    s_load_dwordx2 s[{SOUT}:{SOUT+1}], s[0:1], 88
    s_load_dwordx2 s[{SH}:{SH+1}], s[0:1], 104
    s_cmp_eq_u32 {sW}, 7
    s_cbranch_scc1 L_KV
    """)
    epoch = f"buffer_load_dword v253, off, {srd(SWS)}, 0 sc1"
    def make_tag():
        a(f"""
        v_readfirstlane_b32 {sTAG}, v253
        s_nop 3
        s_mul_i32 {sTAG}, {sTAG}, 0x9E3779B1
        s_add_u32 {sTAG}, {sTAG}, 0x7F4A7C15
        """)
    def get_tag():
        a(f"v_mov_b32 v253, {M_TAG}\nds_read_b32 v253, v253\ns_waitcnt lgkmcnt(0)\nv_readfirstlane_b32 {sTAG}, v253\ns_nop 3")

    L = "v255"
    a(f"""
    v_lshrrev_b32 v1, 4, {L}
    v_and_b32 v2, 15, {L}
    v_xor_b32 v2, v1, v2
    v_lshlrev_b32 v2, 4, v2
    v_lshl_or_b32 v4, v1, 10, v2
    v_xor_b32 v5, 64, v4
    v_add_u32 v5, 3072, v5
    v_xor_b32 v6, 0x80, v4
    v_add_u32 v6, 6144, v6
    v_xor_b32 v7, 0xc0, v4
    v_add_u32 v7, 9216, v7
    v_lshrrev_b32 v1, 3, {L}
    v_and_b32 v2, 7, {L}
    v_bfe_u32 v3, {L}, 4, 1
    v_lshlrev_b32 v3, 2, v3
    v_xor_b32 v2, v3, v2
    v_lshlrev_b32 v2, 4, v2
    v_lshl_or_b32 v8, v1, 10, v2
    v_add_u32 v9, 7168, v8
    v_add_u32 v10, 14336, v8
    v_add_u32 v11, 21504, v8
    s_lshl_b32 s54, {sGRP}, 16
    s_lshl_b32 s60, {sJ}, 7
    s_cmp_ge_u32 {sW}, 4
    s_cbranch_scc1 L_G
    s_lshl_b32 s55, {sW}, 14
    s_add_u32 s54, s54, s55
    s_lshl_b32 s55, {sC0}, 8
    s_add_u32 s54, s54, s55
    s_lshl_b32 s55, {sC0}, 2
    s_add_u32 s55, s55, {sW}
    s_lshl_b32 s55, s55, 15
    s_add_u32 s55, s55, s60
    s_lshl_b32 s61, {sW}, 12
    s_add_u32 m0, s61, {X_}
    s_barrier
    """)
    for q in range(4): a(f"buffer_load_dwordx4 v{4+q}, {srd(SX)}, s54 offen offset:{1024*q} lds")
    a(f"s_add_u32 m0, s61, {W_}\ns_nop 0")
    for q in range(4): a(f"buffer_load_dwordx4 v{8+q}, {srd(SWQ)}, s55 offen offset:{1024*q} lds")
    a("s_barrier\ns_waitcnt lgkmcnt(0)")
    stamp(1)
    a(f"""
    s_lshr_b32 s60, {sW}, 1
    s_lshl_b32 s60, s60, 13
    v_and_b32 v1, 31, {L}
    v_lshrrev_b32 v2, 5, {L}
    v_and_b32 v3, 15, {L}
    v_xor_b32 v3, v2, v3
    v_lshlrev_b32 v3, 4, v3
    v_lshl_or_b32 v16, v1, 8, v3
    v_add_u32 v16, s60, v16
    """)
    for k in range(1, 8): a(f"v_xor_b32 v{16+k}, {32*k}, v16")
    def tr_addr(dst, hmul, t0=1, t1=2, t2=3):
        a(f"""
        v_lshrrev_b32 v{t0}, 5, {L}
        v_bfe_u32 v{t1}, {L}, 2, 2
        v_mad_u32_u24 v{t0}, v{t0}, {hmul}, v{t1}
        v_lshlrev_b32 v{t0}, 7, v{t0}
        v_bfe_u32 v{t1}, {L}, 3, 1
        v_lshl_or_b32 v{t0}, v{t1}, 6, v{t0}
        v_bfe_u32 v{t1}, {L}, 4, 1
        v_lshl_or_b32 v{t0}, v{t1}, 5, v{t0}
        v_and_b32 v{t1}, 3, {L}
        v_lshl_or_b32 v{dst}, v{t1}, 3, v{t0}
        """)
    tr_addr(24, 8)
    a(f"""
    s_and_b32 s60, {sW}, 1
    s_lshl_b32 s60, s60, 6
    v_xor_b32 v24, s60, v24
    v_add_u32 v24, {W_}, v24
    """)
    a(f"v_and_b32 v1, 27, {L}\nv_cmp_eq_u32 vcc, 16, v1\nv_mov_b32 v2, 0x3f803f80\ns_nop 0\nv_cndmask_b32 v64, 0, v2, vcc\nv_mov_b32 v65, v64")
    for r in range(66, 192, 2): a(f"v_mov_b64 {vr(r,2)}, v[64:65]")
    def qreads(ks):
        b = 192 + 8*(ks & 1)
        a(f"ds_read_b64_tr_b16 {vr(b,2)}, v24 offset:{2048*ks}")
        a(f"ds_read_b64_tr_b16 {vr(b+2,2)}, v24 offset:{2048*ks+512}")
        a(f"ds_read_b128 {vr(b+4,4)}, v{16+(ks&7)} offset:{16384*(ks>>3)}")
    for c in range(4):
        a(("s_waitcnt vmcnt(0)\n" if c == 0 else "") + "s_barrier")
        if c == 0:
            get_tag()
            stamp(2)
        qreads(8*c)
        for k in range(8):
            ks = 8*c + k
            if k < 7:
                qreads(ks+1); a("s_waitcnt lgkmcnt(3)")
            else:
                a("s_waitcnt lgkmcnt(0)")
            b = 192 + 8*(ks & 1)
            a(f"v_mfma_f32_32x32x16_bf16 v[224:239], {vr(b,4)}, {vr(b+4,4)}, {'0' if ks == 0 else 'v[224:239]'}")
    stamp(3)
    a(f"""
    s_lshr_b32 s60, {sW}, 1
    s_lshl_b32 s60, s60, 12
    s_and_b32 s61, {sW}, 1
    s_lshl_b32 s61, s61, 11
    s_add_u32 s60, s60, s61
    s_add_u32 s60, s60, {QF}
    v_lshlrev_b32 v250, 4, {L}
    v_add_u32 v1, s60, v250
    s_mov_b32 s62, {QSCALE}
    v_mov_b32 v245, {sTAG}
    v_mov_b32 v251, {M_QMAX}
    s_nop 1
    """)
    for r in range(16): a(f"v_mul_f32 v{224+r}, s62, v{224+r}")
    for r in range(8): a(f"v_cvt_pk_bf16_f32 v{192+r}, v{224+2*r}, v{225+2*r}")
    a("ds_write_b128 v1, v[192:195]\nds_write_b128 v1, v[196:199] offset:1024")
    a("v_mul_f32 v2, v224, v224\nv_mul_f32 v3, v232, v232")
    for r in range(1, 8): a(f"v_fmac_f32 v2, v{224+r}, v{224+r}\nv_fmac_f32 v3, v{232+r}, v{232+r}")
    a(f"""
    s_nop 1
    v_permlane32_swap_b32 v2, v3
    v_add_f32 v254, v2, v3
    v_lshlrev_b32 v247, 7, {L}
    s_lshl_b32 s60, {sW}, 8
    s_add_u32 s60, s60, {OACC}
    v_lshlrev_b32 v244, 2, {L}
    v_add_u32 v244, s60, v244
    v_add_u32 v246, {QF}, v250
    v_and_b32 v1, 15, {L}
    v_lshrrev_b32 v2, 5, {L}
    v_lshl_or_b32 v1, v2, 4, v1
    v_lshlrev_b32 v252, 4, v1
    v_add_u32 v252, {WS_V - WS_K}, v252
    s_lshl_b32 s60, {sW}, 13
    s_add_u32 s60, s60, {WS_KVF}
    s_lshl_b32 s61, {sW}, 14
    s_add_u32 s61, s61, {WS_K}
    s_mov_b32 s63, 0
    s_waitcnt lgkmcnt(0)
    s_barrier
    s_setprio 2
    ds_read_b128 v[240:243], v246
    v_add_u32 v246, 1024, v246
    """)
    stamp(4)
    a(f"""
    L_kvpoll:
    buffer_load_dwordx2 v[248:249], v247, {srd(SWS)}, s60 offen sc1
    s_add_u32 s63, s63, 1
    s_cmp_gt_u32 s63, {SPIN_MAX}
    s_cbranch_scc1 L_kvok
    s_waitcnt vmcnt(0)
    v_cmp_ne_u32 vcc, {sTAG}, v248
    s_cbranch_vccnz L_kvpoll
    L_kvok:
    s_mov_b32 s64, 0x0000ffff
    s_mov_b32 s65, 0x0000ffff
    """)
    stamp(5)
    for t in range(16):
        a(f"buffer_load_dwordx4 {vr(4*t,4)}, v250, {srd(SWS)}, s61 offen offset:{1024*(t&3)} sc1")
        a("s_mov_b64 exec, s[64:65]")
        a(f"buffer_load_dwordx4 {vr(64+8*t,4)}, v252, {srd(SWS)}, s61 offen offset:{1024*(t&3)} sc1")
        a(f"buffer_load_dwordx4 {vr(68+8*t,4)}, v252, {srd(SWS)}, s61 offen offset:{1024*(t&3)+512} sc1")
        a("s_mov_b64 exec, -1")
        if t & 3 == 3 and t < 15: a("s_add_u32 s61, s61, 4096")
    a("s_barrier")
    a(f"""
    v_max_u32_dpp v254, v254, v254 row_ror:8 row_mask:0xf bank_mask:0xf
    v_max_u32_dpp v249, v249, v249 row_ror:8 row_mask:0xf bank_mask:0xf
    v_mov_b32 v253, 1
    v_max_u32_dpp v254, v254, v254 row_ror:4 row_mask:0xf bank_mask:0xf
    v_max_u32_dpp v249, v249, v249 row_ror:4 row_mask:0xf bank_mask:0xf
    s_mov_b32 s64, 0x00010001
    v_max_u32_dpp v254, v254, v254 row_ror:2 row_mask:0xf bank_mask:0xf
    v_max_u32_dpp v249, v249, v249 row_ror:2 row_mask:0xf bank_mask:0xf
    s_mov_b32 s65, 0x00010001
    v_max_u32_dpp v254, v254, v254 row_ror:1 row_mask:0xf bank_mask:0xf
    v_max_u32_dpp v249, v249, v249 row_ror:1 row_mask:0xf bank_mask:0xf
    s_mov_b64 exec, s[64:65]
    ds_max_u32 v251, v254
    ds_max_u32 v251, v249 offset:4
    ds_add_u32 v251, v253 offset:8
    s_mov_b64 exec, -1
    s_mov_b32 s62, 8
    s_mov_b32 s64, 0xa4
    s_waitcnt vmcnt(47) lgkmcnt(0)
    v_mfma_f32_32x32x16_bf16 v[192:207], v[0:3], v[240:243], 0
    s_waitcnt vmcnt(44)
    """)
    stamp(6)
    if diag: a("s_memrealtime s[86:87]\ns_waitcnt lgkmcnt(0)")
    a("s_nop 10")
    flush = [f"ds_write2st64_b32 v244, v{224+2*r}, v{225+2*r} offset0:{8*r} offset1:{8*r+4}" for r in range(4)] + ["ds_write2st64_b32 v244, v232, v245 offset0:32 offset1:36", f"v_add_u32 v244, {SLOT}, v244"]
    waits = {1: 35, 4: 26, 7: 17, 10: 8, 13: 0}
    def tile(t, first=False):
        S = [192, 208]
        cur = S[t & 1]; nxt = S[(t+1) & 1]
        Kn = 4*((t+1) % 16); Vp = 64 + 8*((t-1) % 16) + 4; Vc = 64 + 8*t
        m0 = f"v_mfma_f32_32x32x16_bf16 v[224:239], {vr(Vp,4)}, {vr(nxt+4,4)}, v[224:239]"
        m1 = f"v_mfma_f32_32x32x16_bf16 {vr(nxt,16)}, {vr(Kn,4)}, v[240:243], 0"
        m2 = f"v_mfma_f32_32x32x16_bf16 v[224:239], {vr(Vc,4)}, {vr(cur,4)}, {'0' if t == 0 else 'v[224:239]'}"
        e = lambda i: f"v_exp_f32 v{cur+i}, v{cur+i}"
        c = lambda i: f"v_cvt_pk_bf16_f32 v{cur+i}, v{cur+2*i}, v{cur+2*i+1}"
        cp7 = f"v_cvt_pk_bf16_f32 v{nxt+7}, v{nxt+14}, v{nxt+15}"
        seq = []
        if t in waits: seq.append(f"s_waitcnt vmcnt({waits[t]})")
        seq += [e(0)] + ([] if first else [cp7]) + [e(1), e(2)] + ([] if first else [m0]) + [c(0), e(3), e(4), c(1), e(5), e(6)]
        if t == 15: seq.append("s_waitcnt lgkmcnt(0)")
        seq.append(m1)
        if t == 14: seq += ["ds_read_b128 v[240:243], v246", "v_add_u32 v246, 1024, v246"]
        seq += [c(2), e(7), e(8), c(3), e(9), e(10)]
        if t == 0 and not first: seq += flush
        seq += [c(4), m2, e(11), e(12), c(5), e(13), e(14), c(6)]
        if t == 15: seq += ["s_sub_u32 s62, s62, 1"]
        seq += [e(15)]
        a("\n".join(seq))
    tile(0, first=True)
    a("s_branch L_t1\n.p2align 6\nL_top:".replace(".p2align 6", ".p2align 6"))
    tile(0)
    a("L_t1:")
    for t in range(1, 16): tile(t)
    a(f"""
    s_bitcmp1_b32 s64, s62
    s_cbranch_scc1 L_check
    s_cmp_lg_u32 s62, 0
    s_cbranch_scc1 L_top
    v_cvt_pk_bf16_f32 v215, v222, v223
    s_nop 1
    v_mfma_f32_32x32x16_bf16 v[224:239], {vr(64+8*15+4,4)}, v[212:215], v[224:239]
    s_nop 11
    """)
    a("\n".join(flush))
    stamp(8)
    if diag: a("s_memrealtime s[88:89]\ns_waitcnt lgkmcnt(0)")
    diag_out("a")
    a("s_endpgm")
    a(f"""
    L_check:
    s_mov_b32 s63, 0
    s_cmp_eq_u32 s62, 7
    s_cbranch_scc1 L_chk2
    s_cmp_eq_u32 s62, 5
    s_cselect_b32 s60, 4, 12
    s_cselect_b32 s61, {OACC + 2*SLOT - X_}, 0
    s_add_u32 s60, s60, {M_CNTG}
    v_mov_b32 v249, s60
    L_xw:
    ds_read_b32 v248, v249
    s_add_u32 s63, s63, 1
    s_cmp_gt_u32 s63, {SPIN_MAX}
    s_cbranch_scc1 L_xw_x
    s_waitcnt lgkmcnt(0)
    v_cmp_ne_u32 vcc, 4, v248
    s_cbranch_vccnz L_xw
    L_xw_x:
    v_subrev_u32 v244, s61, v244
    s_branch L_top
    L_chk2:
    ds_read_b96 v[248:250], v251
    s_add_u32 s63, s63, 1
    s_cmp_gt_u32 s63, {SPIN_MAX}
    s_cbranch_scc1 L_chk3
    s_waitcnt lgkmcnt(0)
    v_cmp_ne_u32 vcc, 16, v250
    s_cbranch_vccnz L_chk2
    L_chk3:
    v_mul_f32 v248, v248, v249
    v_mov_b32 v249, 0x45700000
    """)
    stamp(7)
    a(f"""
    v_cmp_nle_f32 vcc, v248, v249
    s_cbranch_vccz L_top
    """)
    if o.get("force_slow"): a.l[-1] = "    s_nop 0"
    a(f"""
    v_lshlrev_b32 v246, 4, {L}
    v_add_u32 v246, {QF}, v246
    v_and_b32 v247, 31, {L}
    v_lshlrev_b32 v247, 2, v247
    v_add_u32 v247, {M_M}, v247
    v_mov_b32 v251, {M_CNTS}
    s_mov_b32 s62, 8
    L_slow:
    ds_read_b128 v[240:243], v246
    v_add_u32 v246, 1024, v246
    v_mov_b32 v248, 0xff800000
    s_waitcnt lgkmcnt(0)
    """)
    for t in range(16):
        a(f"v_mfma_f32_32x32x16_bf16 v[192:207], {vr(4*t,4)}, v[240:243], 0\ns_nop 11")
        for r in range(8): a(f"v_max3_f32 v248, v248, v{192+2*r}, v{193+2*r}")
    a(f"""
    ds_max_f32 v247, v248
    s_mov_b64 exec, 1
    ds_add_u32 v251, v253
    s_mov_b64 exec, -1
    s_mov_b32 s63, 0
    L_slow2:
    s_sleep 1
    ds_read_b32 v249, v251
    s_add_u32 s63, s63, 1
    s_cmp_gt_u32 s63, {SPIN_MAX}
    s_cbranch_scc1 L_slow3
    s_waitcnt lgkmcnt(0)
    v_cmp_ne_u32 vcc, 4, v249
    s_cbranch_vccnz L_slow2
    L_slow3:
    ds_read_b32 v248, v247
    v_add_u32 v247, 128, v247
    v_add_u32 v251, 4, v251
    s_waitcnt lgkmcnt(0)
    """)
    for t in range(16):
        a(f"v_mfma_f32_32x32x16_bf16 v[192:207], {vr(4*t,4)}, v[240:243], 0\ns_nop 11")
        for r in range(16): a(f"v_sub_f32 v{192+r}, v{192+r}, v248")
        for r in range(16): a(f"v_exp_f32 v{192+r}, v{192+r}")
        a("s_nop 0")
        for r in range(8): a(f"v_cvt_pk_bf16_f32 v{208+r}, v{192+2*r}, v{193+2*r}")
        a("s_nop 1")
        a(f"v_mfma_f32_32x32x16_bf16 v[224:239], {vr(64+8*t,4)}, v[208:211], {'0' if t == 0 else 'v[224:239]'}")
        a(f"v_mfma_f32_32x32x16_bf16 v[224:239], {vr(68+8*t,4)}, v[212:215], v[224:239]")
    a(f"""
    s_cmp_lg_u32 s62, 6
    s_cbranch_scc1 L_slow5
    s_mov_b32 s63, 0
    v_mov_b32 v249, {M_CNTG + 12}
    L_slow4:
    ds_read_b32 v248, v249
    s_add_u32 s63, s63, 1
    s_cmp_gt_u32 s63, {SPIN_MAX}
    s_cbranch_scc1 L_slow4x
    s_waitcnt lgkmcnt(0)
    v_cmp_ne_u32 vcc, 4, v248
    s_cbranch_vccnz L_slow4
    L_slow4x:
    v_subrev_u32 v244, {OACC + 2*SLOT - X_}, v244
    L_slow5:
    """)
    a("s_nop 11")
    a("\n".join(flush))
    a(f"""
    s_sub_u32 s62, s62, 1
    s_cmp_lg_u32 s62, 0
    s_cbranch_scc1 L_slow
    """)
    diag_out("s")
    a("s_endpgm")

    a(f"""
    L_G:
    s_cmp_eq_u32 {sW}, 6
    s_cbranch_scc1 L_G6
    s_mov_b32 s62, 4
    s_cmp_eq_u32 {sW}, 5
    s_barrier
    s_barrier
    s_cbranch_scc1 L_G5
    L_G4:
    s_lshr_b32 s55, s62, 2
    s_add_u32 s55, s55, {sC0}
    s_and_b32 s55, s55, 3
    s_lshl_b32 s55, s55, 8
    s_and_b32 s60, s62, 3
    s_lshl_b32 s60, s60, 14
    s_add_u32 s55, s55, s60
    s_lshl_b32 m0, s62, 12
    s_add_u32 s55, s55, s54
    """)
    for q in range(4): a(f"buffer_load_dwordx4 v{4+q}, {srd(SX)}, s55 offen offset:{1024*q} lds")
    a(f"""
    s_add_u32 s62, s62, 1
    s_cmp_lt_u32 s62, 16
    s_cbranch_scc1 L_G4
    s_branch L_G45
    L_G5:
    s_lshl_b32 s55, {sC0}, 2
    s_add_u32 s55, s55, s62
    s_and_b32 s55, s55, 15
    s_lshl_b32 s55, s55, 15
    s_lshl_b32 s61, s62, 12
    s_add_u32 m0, s61, {W_}
    s_add_u32 s55, s55, s60
    """)
    for q in range(4): a(f"buffer_load_dwordx4 v{8+q}, {srd(SWQ)}, s55 offen offset:{1024*q} lds")
    a(f"""
    s_add_u32 s62, s62, 1
    s_cmp_lt_u32 s62, 16
    s_cbranch_scc1 L_G5
    L_G45:
    s_barrier
    s_waitcnt vmcnt(32)
    s_barrier
    s_waitcnt vmcnt(16)
    s_barrier
    s_waitcnt vmcnt(0)
    s_barrier
    s_branch L_Gjoin
    L_G6:
    s_lshl_b32 s61, {sC0}, 4
    v_add_u32 v1, s61, {L}
    v_and_b32 v1, 63, v1
    v_lshlrev_b32 v1, 4, v1
    v_lshlrev_b32 v2, 4, {L}
    s_mul_i32 s61, {sJ}, 448
    s_mov_b32 m0, {M_GATE}
    s_waitcnt lgkmcnt(0)
    buffer_load_dwordx4 v1, {srd(SGT)}, 0 offen lds
    s_mov_b32 m0, {M_B1}
    s_mov_b64 exec, 0xfffffff
    buffer_load_dwordx4 v2, {srd(SB1)}, s61 offen lds
    s_mov_b32 m0, {M_B2}
    s_mov_b64 exec, 0xff
    buffer_load_dwordx4 v2, {srd(SB2)}, s60 offen lds
    s_mov_b64 exec, -1
    s_barrier
    s_barrier
    v_mov_b32 v4, 0
    v_mov_b32 v5, 0
    v_mov_b32 v6, 0
    v_mov_b32 v7, 0
    v_lshlrev_b32 v2, 4, {L}
    v_add_u32 v2, {MISC}, v2
    v_mov_b32 v8, 0xff800000
    v_mov_b32 v9, v8
    v_mov_b32 v10, v8
    v_mov_b32 v11, v8
    ds_write_b128 v2, v[4:7]
    ds_write_b128 v2, v[8:11] offset:1024
    s_waitcnt vmcnt(0) lgkmcnt(0)
    s_branch L_G67
    """)
    a(f"""
    L_KV:
    s_setprio 3
    s_cmp_lt_u32 {sJ}, 4
    s_cselect_b32 s{SWKV}, s{SWKV}, s48
    s_cselect_b32 s{SWKV+1}, s{SWKV+1}, s49
    v_lshlrev_b32 v1, 4, {L}
    s_mov_b32 m0, {OACC}
    s_and_b32 s60, {sJ}, 3
    """)
    for d in range(16):
        if d & 3 == 0 and d: a(f"s_mov_b32 m0, {OACC + 1024*d}\ns_mov_b32 s61, {1024*d}")
        a(f"buffer_load_dwordx4 v1, {srd(SWKV)}, {'s61' if d >= 4 else '0'} offen offset:{1024*(d&3)} lds")
    a(f"""
    v_and_b32 v2, 15, {L}
    v_lshrrev_b32 v3, 4, {L}
    v_lshlrev_b32 v4, 4, v3
    v_lshl_or_b32 v4, v2, 10, v4
    s_lshl_b32 s61, {sGRP}, 2
    s_add_u32 s61, s61, s60
    s_lshl_b32 s62, s61, 14
    """)
    for s in range(16): a(f"buffer_load_dwordx4 {vr(64+4*s,4)}, v4, {srd(SX)}, s62 offen offset:{64*s}")
    a(f"""
    s_barrier
    s_barrier
    {epoch}
    v_lshlrev_b32 v5, 8, v3
    v_lshl_or_b32 v5, v2, 3, v5
    v_add_u32 v5, {OACC}, v5
    s_cmp_lt_u32 {sJ}, 4
    s_cselect_b32 s63, 9, 8
    v_and_b32 v6, 1, v3
    v_lshlrev_b32 v6, s63, v6
    v_lshl_or_b32 v6, v2, 4, v6
    v_lshrrev_b32 v7, 1, v3
    v_lshl_or_b32 v6, v7, 3, v6
    s_lshr_b32 s54, s61, 1
    s_lshl_b32 s54, s54, 10
    s_and_b32 s55, s61, 1
    s_lshl_b32 s55, s55, 8
    s_add_u32 s54, s54, s55
    s_add_u32 s54, s54, {WS_K}
    s_lshl_b32 s55, s61, 9
    s_add_u32 s55, s55, {WS_V}
    s_cmp_lt_u32 {sJ}, 4
    s_cselect_b32 s54, s54, s55
    s_lshl_b32 s55, {sGRP}, 3
    s_add_u32 s55, s55, {sJ}
    s_lshl_b32 s55, s55, 7
    s_add_u32 s55, s55, {WS_KVF}
    s_waitcnt vmcnt(17)
    """)
    stamp(1)
    for s in range(16):
        a(f"ds_read_b64_tr_b16 {vr(128+4*s,2)}, v5 offset:{1024*s}\nds_read_b64_tr_b16 {vr(130+4*s,2)}, v5 offset:{1024*s+128}")
    a(f"s_cmp_lt_u32 {sJ}, 4\ns_waitcnt vmcnt(1) lgkmcnt(0)\ns_cbranch_scc0 L_KVv")
    for s in range(16): a(f"v_mfma_f32_16x16x32_bf16 v[192:195], {vr(128+4*s,4)}, {vr(64+4*s,4)}, {'0' if s == 0 else 'v[192:195]'}")
    a("s_branch L_KVd\nL_KVv:")
    for s in range(16): a(f"v_mfma_f32_16x16x32_bf16 v[192:195], {vr(64+4*s,4)}, {vr(128+4*s,4)}, {'0' if s == 0 else 'v[192:195]'}")
    a(f"""
    L_KVd:
    s_nop 7
    v_cvt_pk_bf16_f32 v196, v192, v193
    v_cvt_pk_bf16_f32 v197, v194, v195
    buffer_store_dwordx2 v[196:197], v6, {srd(SWS)}, s54 offen sc1
    v_mul_f32 v8, v192, v192
    v_fmac_f32 v8, v193, v193
    v_fmac_f32 v8, v194, v194
    v_fmac_f32 v8, v195, v195
    v_mov_b32 v9, v8
    s_nop 1
    v_permlane32_swap_b32 v8, v9
    v_add_f32 v8, v8, v9
    v_mov_b32 v9, v8
    s_nop 1
    v_permlane16_swap_b32 v8, v9
    v_add_f32 v8, v8, v9
    s_nop 1
    v_max_u32_dpp v8, v8, v8 row_ror:8 row_mask:0xf bank_mask:0xf
    s_nop 1
    v_max_u32_dpp v8, v8, v8 row_ror:4 row_mask:0xf bank_mask:0xf
    s_nop 1
    v_max_u32_dpp v8, v8, v8 row_ror:2 row_mask:0xf bank_mask:0xf
    s_nop 1
    v_max_u32_dpp v9, v8, v8 row_ror:1 row_mask:0xf bank_mask:0xf
    s_cselect_b32 s63, -1, 0
    s_waitcnt vmcnt(1)
    """)
    make_tag()
    a(f"""
    v_and_b32 v9, s63, v9
    v_mov_b32 v8, {sTAG}
    s_mov_b64 exec, 1
    s_waitcnt vmcnt(0)
    buffer_store_dwordx2 v[8:9], off, {srd(SWS)}, s55 sc1
    v_mov_b32 v10, {M_TAG}
    ds_write_b32 v10, v8
    s_mov_b64 exec, -1
    s_setprio 0
    s_waitcnt lgkmcnt(0)
    """)
    stamp(2)
    a(f"""
    L_G67:
    s_barrier
    s_barrier
    s_barrier
    s_barrier
    L_Gjoin:
    s_waitcnt lgkmcnt(0)
    s_sub_u32 {sW}, {sW}, 4
    """)
    gw = sW
    a(f"""
    s_lshr_b32 s60, {sJ}, 1
    s_mul_i32 s60, s60, 7
    s_and_b32 s61, {sJ}, 1
    s_lshl_b32 s62, s61, 2
    s_add_u32 s62, s62, {gw}
    s_cmp_eq_u32 {gw}, 3
    s_cselect_b32 s62, 3, s62
    s_cselect_b32 s61, s61, 0
    s_add_u32 s60, s60, s62
    s_lshl_b32 s48, s60, 1
    s_add_u32 s48, s48, s61
    s_lshl_b32 s54, s48, 6
    s_lshl_b32 s49, {gw}, 14
    s_add_u32 s49, s49, {W_}
    v_lshrrev_b32 v1, 3, {L}
    v_and_b32 v2, 7, {L}
    v_bfe_u32 v3, {L}, 4, 1
    v_lshlrev_b32 v3, 2, v3
    v_xor_b32 v2, v3, v2
    v_lshlrev_b32 v2, 4, v2
    v_lshl_or_b32 v150, v1, 10, v2
    v_add_u32 v151, 7168, v150
    v_mul_u32_u24 v148, 3584, v1
    v_add_u32 v148, v148, v2
    v_add_u32 v149, {8*3584-1024}, v148
    """)
    a(f"s_mov_b32 s65, s54\ns_mul_i32 s55, {sC0}, {128*3584}\ns_add_u32 s54, s54, s55")
    get_tag()
    a(f"""
    v_and_b32 v1, 31, {L}
    v_lshlrev_b32 v4, 1, v1
    s_mul_i32 s61, {sJ}, 7
    s_sub_u32 s60, s48, s61
    s_lshl_b32 s60, s60, 6
    s_add_u32 s60, s60, {M_B1}
    v_add_u32 v5, s60, v4
    v_add_u32 v4, {M_B2}, v4
    ds_read_u16 v152, v5
    ds_read_u16 v156, v5 offset:64
    ds_read_u16 v168, v4
    ds_read_u16 v172, v4 offset:64
    v_lshrrev_b32 v2, 5, {L}
    v_and_b32 v3, 15, {L}
    v_xor_b32 v3, v2, v3
    v_lshlrev_b32 v3, 4, v3
    v_lshl_or_b32 v136, v1, 8, v3
    """)
    for k in range(1, 8): a(f"v_xor_b32 v{136+k}, {32*k}, v136")
    tr_addr(144, 8)
    a("v_add_u32 v144, s49, v144\nv_xor_b32 v145, 64, v144")
    tr_addr(146, 4)
    a("v_add_u32 v146, s49, v146\nv_xor_b32 v147, 64, v146")
    for r in (153, 154, 155, 157, 158, 159, 161, 162, 163, 169, 170, 171, 173, 174, 175): a(f"v_mov_b32 v{r}, 0")
    a(f"""
    v_cmp_gt_u32 vcc, 32, {L}
    v_mov_b32 v1, 0x3f80
    v_lshlrev_b32 v166, 4, {L}
    v_cndmask_b32 v160, 0, v1, vcc
    v_mov_b32 v167, 1
    v_mov_b32 v177, {M_CNTG - 4}
    s_cmp_eq_u32 {gw}, 3
    s_cbranch_scc1 L_F1w3
    s_barrier
    s_barrier
    """)
    stamp(3)
    for k in range(8):
        a(f"s_add_u32 m0, s49, {2048*k}\ns_nop 0\nbuffer_load_dwordx4 v148, {srd(SW1)}, s54 offen lds\nbuffer_load_dwordx4 v149, {srd(SW1)}, s54 offen offset:1024 lds\ns_add_u32 s54, s54, {16*3584}")
    ACC = lambda mt, nt: 32*nt + 16*mt
    def mf(mt, nt, A_, B_, c0=False):
        d = vr(ACC(mt, nt), 16)
        a(f"v_mfma_f32_32x32x16_bf16 {d}, {vr(A_,4)}, {vr(B_,4)}, {'0' if c0 else d}")
    def f1reads(k, w3):
        ab = 120 + 8*(k & 1); bb = 64 + 8*(k & 1); u = k & 7
        if not w3:
            a(f"ds_read_b64_tr_b16 {vr(ab,2)}, v144 offset:{2048*u}\nds_read_b64_tr_b16 {vr(ab+2,2)}, v144 offset:{2048*u+512}")
            a(f"ds_read_b64_tr_b16 {vr(ab+4,2)}, v145 offset:{2048*u}\nds_read_b64_tr_b16 {vr(ab+6,2)}, v145 offset:{2048*u+512}")
        else:
            a(f"ds_read_b64_tr_b16 {vr(ab,2)}, v144 offset:{2048*u}\nds_read_b64_tr_b16 {vr(ab+2,2)}, v144 offset:{2048*u+256}")
            a(f"ds_read_b128 {vr(ab+4,4)}, v145 offset:{32*u}")
        a(f"ds_read_b128 {vr(bb,4)}, v{136+u}\nds_read_b128 {vr(bb+4,4)}, v{136+u} offset:8192")
    def ffn1(w3):
        nd = 1 if w3 else 2
        nr = 5 if w3 else 6
        lbl = "L_f1b" if w3 else "L_f1a"
        a(f"s_waitcnt vmcnt({7*nd}) lgkmcnt(0)")
        for nt in range(2):
            mf(0, nt, 152, 160, True)
            mf(1, nt, 156, 160, True)
        f1reads(0, w3)
        a(f"s_mov_b32 s62, 4\n{lbl}:")
        a(f"s_sub_u32 s55, {sC0}, s62\ns_add_u32 s55, s55, 1\ns_and_b32 s55, s55, 3\ns_mul_i32 s55, s55, {128*3584}\ns_add_u32 s54, s65, s55")
        a(f"s_cmp_eq_u32 s62, 1\ns_cselect_b32 s{SW1+2}, 0, s{SW1+2}")
        for u in range(8):
            a(f"s_waitcnt vmcnt({6*nd})")
            if u == 7:
                a("s_setprio 3")
                for k in range(8): a(f"v_add_u32 v{136+k}, 0x4000, v{136+k}")
                if w3: a("v_add_u32 v145, 0x100, v145")
                a("v_add_u32 v177, 4, v177\ns_setprio 0")
            f1reads(u+1, w3)
            a(f"s_add_u32 m0, s49, {2048*u}\ns_waitcnt lgkmcnt({nr})")
            if u == 7: a("s_mov_b64 exec, 1\nds_add_u32 v177, v167\ns_mov_b64 exec, -1")
            a(f"buffer_load_dwordx4 v148, {srd(SW1)}, s54 offen lds")
            if not w3: a(f"buffer_load_dwordx4 v149, {srd(SW1)}, s54 offen offset:1024 lds")
            a(f"s_add_u32 s54, s54, {16*3584}")
            ab = 120 + 8*(u & 1); bb = 64 + 8*(u & 1)
            mf(0, 0, ab, bb); mf(1, 0, ab+4, bb); mf(0, 1, ab, bb+4); mf(1, 1, ab+4, bb+4)
        a(f"s_sub_u32 s62, s62, 1\ns_cmp_lg_u32 s62, 0\ns_cbranch_scc1 {lbl}")
    ffn1(False)
    a("s_branch L_F1done\nL_F1w3:")
    a(f"""
    v_lshrrev_b32 v1, 5, {L}
    v_bfe_u32 v2, {L}, 2, 2
    v_lshl_or_b32 v2, v1, 3, v2
    v_lshlrev_b32 v2, 6, v2
    v_bfe_u32 v3, {L}, 4, 1
    v_lshl_or_b32 v2, v3, 5, v2
    v_and_b32 v3, 3, {L}
    v_lshl_or_b32 v2, v3, 3, v2
    v_add_u32 v144, s49, v2
    v_lshlrev_b32 v145, 4, v1
    v_add_u32 v145, {M_GATE}, v145
    v_lshrrev_b32 v1, 2, {L}
    v_and_b32 v2, 3, {L}
    v_mul_u32_u24 v148, 3584, v1
    v_lshl_add_u32 v148, v2, 4, v148
    s_waitcnt lgkmcnt(0)
    v_mov_b32 v156, 0
    s_barrier
    s_barrier
    """)
    stamp(3)
    for k in range(8):
        a(f"s_add_u32 m0, s49, {2048*k}\ns_nop 0\nbuffer_load_dwordx4 v148, {srd(SW1)}, s54 offen lds\ns_add_u32 s54, s54, {16*3584}")
    ffn1(True)
    a("L_F1done:\ns_waitcnt lgkmcnt(0)\ns_setprio 3")
    stamp(4)
    a(f"""
    s_lshl_b32 s60, {sGRP}, 1
    s_mul_i32 s60, s60, {112*1024}
    s_lshl_b32 s61, s48, 11
    s_add_u32 s60, s60, s61
    s_add_u32 s60, s60, {WS_H}
    s_add_u32 s61, s60, {112*1024}
    s_nop 4
    """)
    def hst(mt, nt):
        b = ACC(mt, nt)
        for r in range(16): a(f"v_max_f32 v{b+r}, 0, v{b+r}")
        for r in range(8): a(f"v_pk_mul_f32 {vr(b+2*r,2)}, {vr(b+2*r,2)}, {vr(b+2*r,2)}")
        for r in range(8): a(f"v_cvt_pk_bf16_f32 v{b+r}, v{b+2*r}, v{b+2*r+1}")
        so = "s61" if nt else "s60"
        a(f"buffer_store_dwordx4 {vr(b,4)}, v166, {srd(SWS)}, {so} offen offset:{2048*mt} sc1")
        a(f"buffer_store_dwordx4 {vr(b+4,4)}, v166, {srd(SWS)}, {so} offen offset:{2048*mt+1024} sc1")
    hst(0, 0); hst(0, 1)
    a(f"s_cmp_eq_u32 {gw}, 3\ns_cbranch_scc1 L_gate")
    hst(1, 0); hst(1, 1)
    a(f"""
    s_branch L_gated
    L_gate:
    v_mul_f32 v16, {0x80000000 | LOG2E}, v16
    v_mul_f32 v48, {0x80000000 | LOG2E}, v48
    v_exp_f32 v16, v16
    v_exp_f32 v48, v48
    v_and_b32 v17, 31, {L}
    v_add_f32 v16, 1.0, v16
    v_add_f32 v48, 1.0, v48
    v_rcp_f32 v16, v16
    v_rcp_f32 v48, v48
    v_lshlrev_b32 v17, 2, v17
    v_add_u32 v17, {M_G}, v17
    ds_write_b32 v17, v16
    ds_write_b32 v17, v48 offset:128
    L_gated:
    s_mov_b64 exec, 1
    ds_add_u32 v177, v167 offset:4
    s_mov_b64 exec, -1
    """)
    def lds_wait(lbl, addr, off, val, sleep=2):
        a(f"""
        s_mov_b32 s63, 0
        {lbl}:
        ds_read_b32 v178, {addr} offset:{off}
        s_add_u32 s63, s63, 1
        s_cmp_gt_u32 s63, {SPIN_MAX}
        s_cbranch_scc1 {lbl}_x
        s_waitcnt lgkmcnt(0)
        v_cmp_ne_u32 vcc, {val}, v178
        s_cbranch_vccz {lbl}_x
        s_sleep {sleep}
        s_branch {lbl}
        {lbl}_x:
        """)
    def flag_wait(lbl, vaddr, soff, sleep=2):
        a(f"""
        s_mov_b32 s63, 0
        {lbl}:
        buffer_load_dword v178, {vaddr}, {srd(SWS)}, {soff} offen sc1
        s_add_u32 s63, s63, 1
        s_cmp_gt_u32 s63, {SPIN_MAX}
        s_cbranch_scc1 {lbl}_x
        s_waitcnt vmcnt(0)
        v_cmp_ne_u32 vcc, {sTAG}, v178
        s_cbranch_vccz {lbl}_x
        s_sleep {sleep}
        s_branch {lbl}
        {lbl}_x:
        """)
    a(f"""
    s_mul_i32 s4, {gw}, {448*1024}
    s_lshl_b32 s55, {sJ}, 7
    s_add_u32 s4, s4, s55
    s_lshl_b32 s7, {gw}, 17
    s_add_u32 s7, s7, s55
    s_mul_i32 s5, {sGRP}, {2*112*1024}
    s_mul_i32 s61, {gw}, {28*1024}
    s_add_u32 s5, s5, s61
    s_add_u32 s5, s5, {WS_H}
    s_and_b32 s6, {sGRP}, 3
    s_mul_i32 s54, s6, {7*16384}
    s_add_u32 s54, s54, s4
    s_lshl_b32 s10, {sGRP}, 3
    s_add_u32 s8, s10, {sJ}
    s_lshl_b32 s61, s8, 2
    s_add_u32 s61, s61, {gw}
    s_lshl_b32 s61, s61, 7
    s_add_u32 s61, s61, {WS_HF}
    s_lshl_b32 s8, s8, 3
    s_add_u32 s8, s8, {gw}
    s_lshl_b32 s9, s8, 7
    s_add_u32 s9, s9, {WS_OF}
    s_lshl_b32 s8, s8, 10
    s_add_u32 s8, s8, {WS_O}
    s_lshl_b32 s60, {gw}, 1
    s_add_u32 s10, s10, s60
    s_lshl_b32 s64, s10, 9
    s_add_u32 s64, s64, {WS_HF}
    s_lshl_b32 s11, s10, 10
    s_add_u32 s11, s11, {WS_OF}
    s_lshl_b32 s10, s10, 13
    s_add_u32 s10, s10, {WS_O}
    s_lshl_b32 s12, {sGRP}, 16
    s_lshl_b32 s60, {gw}, 13
    s_add_u32 s12, s12, s60
    s_add_u32 s12, s12, s55
    s_mov_b32 s13, 0
    s_mul_i32 s60, {gw}, {SLOT}
    s_add_u32 s65, s60, {OACC}
    s_sub_u32 s60, s60, {2*SLOT - X_}
    s_cmp_lt_u32 {gw}, 2
    s_cselect_b32 s65, s65, s60
    s_add_u32 s48, s60, {4*SLOT}
    v_mov_b32 v129, {sTAG}
    v_lshlrev_b32 v181, 2, {L}
    v_add_u32 v176, s65, v166
    v_add_u32 v181, s65, v181
    v_and_b32 v1, 7, {L}
    v_lshlrev_b32 v180, 7, v1
    v_and_b32 v1, 31, {L}
    v_lshlrev_b32 v1, 2, v1
    v_add_u32 v1, {M_G}, v1
    s_cmp_eq_u32 {gw}, 0
    s_cselect_b32 s60, -1, 0
    v_and_b32 v160, s60, v160
    s_waitcnt vmcnt(0)
    s_mov_b64 exec, 1
    buffer_store_dword v129, off, {srd(SWS)}, s61 sc1
    s_mov_b64 exec, -1
    """)
    stamp(5)
    for k in range(7):
        a(f"s_add_u32 m0, s49, {2048*k}\ns_nop 0\nbuffer_load_dwordx4 v150, {srd(SW2)}, s54 offen lds\nbuffer_load_dwordx4 v151, {srd(SW2)}, s54 offen offset:1024 lds\ns_add_u32 s54, s54, 16384")
    a(f"""
    s_add_u32 s60, s7, {7*16384}
    s_add_u32 m0, s49, {2048*7}
    s_nop 0
    buffer_load_dwordx4 v150, {srd(SWO)}, s60 offen lds
    buffer_load_dwordx4 v151, {srd(SWO)}, s60 offen offset:1024 lds
    """)
    lds_wait("L_gs1", "v177", 4, "4")
    a("ds_read_b32 v164, v1\nds_read_b32 v165, v1 offset:128")
    a("s_call_b64 s[14:15], L_fin")
    for nt in range(2):
        mf(0, nt, 168, 160, True); mf(1, nt, 172, 160, True)
    flag_wait("L_hw", "v180", "s64")
    stamp(6)
    a(f"""
    s_setprio 0
    s_mul_i32 s60, s6, 7168
    s_add_u32 s60, s60, s5
    s_add_u32 s61, s60, {112*1024}
    """)
    def hload(u):
        a(f"buffer_load_dwordx4 {vr(64+8*u,4)}, v166, {srd(SH)}, s60 offen sc1\nbuffer_load_dwordx4 {vr(68+8*u,4)}, v166, {srd(SH)}, s61 offen sc1")
        a("s_add_u32 s60, s60, 1024\ns_add_u32 s61, s61, 1024")
    for u in range(7):
        a(f"buffer_load_dword v178, off, {srd(SW1)}, 0\nbuffer_load_dword v178, off, {srd(SW1)}, 0")
        hload(u)
    def f2reads(slot, par):
        ab = 120 + 8*par
        a(f"ds_read_b64_tr_b16 {vr(ab,2)}, v146 offset:{2048*slot}\nds_read_b64_tr_b16 {vr(ab+2,2)}, v146 offset:{2048*slot+1024}")
        a(f"ds_read_b64_tr_b16 {vr(ab+4,2)}, v147 offset:{2048*slot}\nds_read_b64_tr_b16 {vr(ab+6,2)}, v147 offset:{2048*slot+1024}")
    f2reads(0, 0)
    a("s_mov_b32 s62, 2\nL_f2:")
    for it in range(2):
        a(f"s_add_u32 s6, s6, 1\ns_and_b32 s6, s6, 3\ns_mul_i32 s54, s6, {7*16384}\ns_add_u32 s54, s54, s4\ns_mul_i32 s60, s6, 7168\ns_add_u32 s60, s60, s5\ns_add_u32 s61, s60, {112*1024}")
        if it == 1: a(f"s_cmp_eq_u32 s62, 1\ns_cselect_b32 s{SW2}, s{SWO}, s{SW2}\ns_cselect_b32 s{SW2+1}, s{SWO+1}, s{SW2+1}\ns_cselect_b32 s{SW2+2}, s{SWO+2}, s{SW2+2}\ns_cselect_b32 s54, s7, s54\ns_cselect_b32 s{SH+2}, 0, s{SH+2}")
        for u in range(7):
            par = (7*it + u) & 1
            a("s_waitcnt vmcnt(22)")
            f2reads((u+1) % 7, par ^ 1)
            a(f"s_add_u32 m0, s49, {2048*u}\ns_waitcnt lgkmcnt(4)")
            a(f"buffer_load_dwordx4 v150, {srd(SW2)}, s54 offen lds\nbuffer_load_dwordx4 v151, {srd(SW2)}, s54 offen offset:1024 lds\ns_add_u32 s54, s54, 16384")
            ab = 120 + 8*par; bb = 64 + 8*u
            mf(0, 0, ab, bb); mf(1, 0, ab+4, bb); mf(0, 1, ab, bb+4); mf(1, 1, ab+4, bb+4)
            hload(u)
    a("s_sub_u32 s62, s62, 1\ns_cmp_lg_u32 s62, 0\ns_cbranch_scc1 L_f2")
    a("s_setprio 3")
    stamp(7)
    a(f"""
    v_sub_f32 v182, 1.0, v164
    v_sub_f32 v184, 1.0, v165
    v_and_b32 v140, 31, {L}
    v_lshrrev_b32 v141, 5, {L}
    v_and_b32 v142, 7, {L}
    v_xor_b32 v141, v141, v142
    v_lshlrev_b32 v141, 4, v141
    v_lshl_or_b32 v186, v140, 8, v141
    v_add_u32 v186, s49, v186
    v_xor_b32 v187, 32, v186
    v_xor_b32 v188, 64, v186
    v_xor_b32 v189, 0x60, v186
    v_lshrrev_b32 v140, 3, {L}
    v_lshlrev_b32 v141, 1, v142
    v_xor_b32 v141, v140, v141
    v_lshlrev_b32 v141, 4, v141
    v_lshl_or_b32 v190, v140, 8, v141
    s_lshl_b32 s60, {gw}, 11
    s_add_u32 s60, s60, {W_}
    v_add_u32 v190, s60, v190
    v_xor_b32 v191, 16, v190
    v_lshlrev_b32 v141, 4, v142
    v_lshl_or_b32 v179, v140, 10, v141
    v_bfe_u32 v140, {L}, 2, 1
    v_and_b32 v141, 3, {L}
    v_lshlrev_b32 v141, 7, v141
    v_lshl_or_b32 v180, v140, 10, v141
    """)
    for r in range(16): a(f"v_pk_mul_f32 {vr(2*r,2)}, {vr(2*r,2)}, v[182:183] op_sel_hi:[1,0]")
    for r in range(16, 32): a(f"v_pk_mul_f32 {vr(2*r,2)}, {vr(2*r,2)}, v[184:185] op_sel_hi:[1,0]")
    a("s_waitcnt vmcnt(0) lgkmcnt(0)")
    for i in range(8):
        ab = 192 + 8*i
        a(f"ds_read_b64_tr_b16 {vr(ab,2)}, v146 offset:{2048*i}\nds_read_b64_tr_b16 {vr(ab+2,2)}, v146 offset:{2048*i+1024}")
        if i < 7:
            a(f"ds_read_b64_tr_b16 {vr(ab+4,2)}, v147 offset:{2048*i}\nds_read_b64_tr_b16 {vr(ab+6,2)}, v147 offset:{2048*i+1024}")
        else:
            a(f"ds_read_b64_tr_b16 v[136:137], v147 offset:{2048*i}\nds_read_b64_tr_b16 v[138:139], v147 offset:{2048*i+1024}")
    stamp(8)
    a("L_stage:")
    flag_wait("L_ow", "v180", "s11", 1)
    stamp(9)
    a("s_add_u32 s60, s10, 8192")
    for i in range(8):
        a(f"buffer_load_dwordx4 {vr(64+4*i,4)}, v166, {srd(SWS)}, {'s60' if i >= 4 else 's10'} offen offset:{1024*(i&3)} sc1")
    a("s_waitcnt lgkmcnt(0)\ns_setprio 0")
    for i in range(8):
        a(f"s_waitcnt vmcnt({7-i})")
        ab = 192 + 8*i
        mf(0, 0, ab, 64+4*i); mf(1, 0, ab+4 if i < 7 else 136, 64+4*i)
    a("s_setprio 3\ns_nop 10")
    stamp(10)
    for mt in range(2):
        for i in range(4):
            a(f"ds_write_b128 v{186+i}, {vr(16*mt+4*i,4)} offset:{128*mt}")
    a("s_mov_b64 exec, 1\nds_add_u32 v177, v167 offset:8\ns_mov_b64 exec, -1")
    lds_wait("L_rw", "v177", 8, "4", 1)
    for p in range(4):
        a(f"ds_read_b128 {vr(64+8*p,4)}, v190 offset:{16384*p}\nds_read_b128 {vr(68+8*p,4)}, v191 offset:{16384*p}")
    a("s_waitcnt lgkmcnt(4)")
    for r in range(4): a(f"v_pk_add_f32 {vr(64+2*r,2)}, {vr(64+2*r,2)}, {vr(72+2*r,2)}")
    a("s_waitcnt lgkmcnt(0)")
    for r in range(4): a(f"v_pk_add_f32 {vr(80+2*r,2)}, {vr(80+2*r,2)}, {vr(88+2*r,2)}")
    for r in range(4): a(f"v_pk_add_f32 {vr(64+2*r,2)}, {vr(64+2*r,2)}, {vr(80+2*r,2)}")
    for r in range(4): a(f"v_cvt_pk_bf16_f32 v{64+r}, v{64+2*r}, v{65+2*r}")
    a(f"buffer_store_dwordx4 v[64:67], v179, {srd(SOUT)}, s12 offen")
    stamp(11)
    a("s_cmp_lg_u32 s13, 0\ns_cbranch_scc1 L_gend")
    if diag:
        for i in range(4): a(f"s_mov_b32 s{68+2*(12+i)}, s{68+2*(8+i)}")
    for r in range(16): a(f"v_mov_b64 {vr(2*r,2)}, {vr(32+2*r,2)}")
    a(f"""
    v_mov_b32 v164, v165
    v_lshlrev_b32 v181, 2, {L}
    v_add_u32 v176, s48, v166
    v_add_u32 v181, s48, v181
    v_add_u32 v177, 4, v177
    v_add_u32 v186, 0x2000, v186
    v_add_u32 v187, 0x2000, v187
    v_add_u32 v188, 0x2000, v188
    v_add_u32 v189, 0x2000, v189
    v_add_u32 v190, 0x2000, v190
    v_add_u32 v191, 0x2000, v191
    s_add_u32 s8, s8, 4096
    s_add_u32 s9, s9, 512
    s_add_u32 s10, s10, 4096
    s_add_u32 s11, s11, 512
    s_add_u32 s12, s12, 0x8000
    s_mov_b32 s13, 1
    s_call_b64 s[14:15], L_fin
    s_branch L_stage
    """)
    a(f"""
    L_fin:
    s_mov_b32 s63, 0
    L_fw:
    ds_read_b128 v[64:67], v176 offset:9216
    s_add_u32 s63, s63, 1
    s_cmp_gt_u32 s63, {SPIN_MAX}
    s_cbranch_scc1 L_fw_x
    s_waitcnt lgkmcnt(0)
    v_xor_b32 v64, {sTAG}, v64
    v_xor_b32 v65, {sTAG}, v65
    v_xor_b32 v66, {sTAG}, v66
    v_xor_b32 v67, {sTAG}, v67
    v_or3_b32 v64, v64, v65, v66
    v_or_b32 v64, v64, v67
    v_cmp_ne_u32 vcc, 0, v64
    s_cbranch_vccz L_fw_x
    s_sleep 2
    s_branch L_fw
    L_fw_x:
    """)
    stamp(8)
    a("ds_read2st64_b32 v[96:97], v181 offset0:32 offset1:33\nds_read2st64_b32 v[98:99], v181 offset0:34 offset1:35")
    for w in range(4):
        for r in range(4): a(f"ds_read2st64_b32 {vr(64+8*w+2*r,2)}, v181 offset0:{8*r+w} offset1:{8*r+4+w}")
    a("s_waitcnt lgkmcnt(8)\nv_pk_add_f32 v[96:97], v[96:97], v[98:99]")
    for r in range(4): a(f"v_pk_add_f32 {vr(64+2*r,2)}, {vr(64+2*r,2)}, {vr(72+2*r,2)}")
    a("v_add_f32 v128, v96, v97\ns_waitcnt lgkmcnt(0)")
    for r in range(4): a(f"v_pk_add_f32 {vr(80+2*r,2)}, {vr(80+2*r,2)}, {vr(88+2*r,2)}")
    a("v_rcp_f32 v128, v128")
    for r in range(4): a(f"v_pk_add_f32 {vr(64+2*r,2)}, {vr(64+2*r,2)}, {vr(80+2*r,2)}")
    a(f"""
    v_mul_f32 v128, v128, v164
    s_or_b32 s60, s2, {gw}
    s_or_b32 s60, s60, s13
    """)
    for r in range(4): a(f"v_pk_mul_f32 {vr(64+2*r,2)}, {vr(64+2*r,2)}, v[128:129] op_sel_hi:[1,0]")
    for r in range(4): a(f"v_cvt_pk_bf16_f32 v{64+r}, v{64+2*r}, v{65+2*r}")
    a(f"""
    v_mov_b32 v129, {sTAG}
    buffer_store_dwordx4 v[64:67], v166, {srd(SWS)}, s8 offen sc1
    s_mov_b64 exec, 1
    s_cmp_lg_u32 s60, 0
    s_cbranch_scc1 L_noep
    buffer_store_dword v129, off, {srd(SWS)}, 0 sc1
    L_noep:
    s_waitcnt vmcnt(0)
    buffer_store_dword v129, off, {srd(SWS)}, s9 sc1
    s_mov_b64 exec, -1
    s_setpc_b64 s[14:15]
    L_gend:
    """)
    if diag: a(f"s_add_u32 {sW}, {sW}, 4")
    diag_out("g")
    a("L_end:\ns_endpgm")

    hdr = open(os.path.join(os.path.dirname(os.path.abspath(__file__)), "..", "cdna_kernels", NAME + ".s.ref")).read().split("\n")
    i0 = next(i for i, l in enumerate(hdr) if l.startswith("; Override"))
    head = "\n".join(hdr[:i0]) + f"\n; @launch grid=(256,1,1) block=(512,1,1) lds={LDS_BYTES}\n"
    return head + f""".amdgcn_target "amdgcn-amd-amdhsa--gfx950"
.text
.globl {NAME}_kernel
.p2align 8
.type {NAME}_kernel,@function
{NAME}_kernel:
{a.text()}.section .rodata,"a"
.p2align 6
.amdhsa_kernel {NAME}_kernel
  .amdhsa_next_free_vgpr 256
  .amdhsa_next_free_sgpr 102
  .amdhsa_accum_offset 256
  .amdhsa_group_segment_fixed_size 0
  .amdhsa_kernarg_size 112
  .amdhsa_user_sgpr_count 2
  .amdhsa_user_sgpr_kernarg_segment_ptr 1
  .amdhsa_system_sgpr_workgroup_id_x 1
.end_amdhsa_kernel
"""

if __name__ == "__main__":
    out = sys.argv[1] if len(sys.argv) > 1 else os.path.join(os.path.dirname(os.path.abspath(__file__)), "..", "cdna_kernels", NAME + ".s")
    opts = dict(x.split("=") if "=" in x else (x, 1) for x in sys.argv[2:])
    open(out, "w").write(gen(diag=bool(opts.pop("diag", 0)), opts=opts))
```

```python
import sys, os
NAME = "gated_mix__grouped_kv_mqa__dense_activation_squared_relu__prompt"

class Asm:
    def __init__(self): self.l = []
    def __call__(self, s):
        for x in s.strip("\n").split("\n"):
            x = x.strip()
            if not x: continue
            self.l.append(x if x.endswith(":") else "    " + x)
    def text(self): return "\n".join(self.l) + "\n"

def vr(a, n): return f"v[{a}:{a+n-1}]"

X_ = 0; W_ = 65536; S_ = 131072
OACC = S_; SLOT = 10240
QF = S_ + 2*SLOT
MISC = QF + 8192
M_G = MISC
M_QMAX = MISC + 256
M_KMAX = MISC + 260
M_CNTA = MISC + 264
M_CNTG = MISC + 272
M_CNTS = MISC + 320
M_M = MISC + 1024
M_GATE = MISC + 2048
M_TAG = MISC + 3072
M_Q0 = MISC + 3076
M_B1 = MISC + 3136
M_B2 = MISC + 3584
LDS_BYTES = 163840
WS_EPOCH = 0
WS_KVF = 0x1000
WS_HF = 0x10000
WS_OF = 0x40000
WS_K = 0x80000
WS_V = 0x90000
WS_O = 0x100000
WS_H = 0x400000
WS_DIAG = 0xC00000
WS_SIZE = 0x1000000
SX, SWQ, SWKV, SWO, SW1, SB1, SW2, SB2, SGT, SOUT, SWS, SH = 4, 8, 12, 16, 20, 24, 28, 32, 36, 40, 44, 56
def srd(b): return f"s[{b}:{b+3}]"
sW, sGRP, sJ, sTAG, sC0 = "s50", "s51", "s52", "s53", "s3"
QSCALE = 0x3eb8aa3b
LOG2E = 0x3fb8aa3b
SPIN_MAX = 200000

def gen(diag=False, opts=None):
    o = dict(opts or {})
    a = Asm()
    nstamp = [0]
    rt = o.get("rt") or o.get("enc")
    def stamp(i):
        if diag:
            a(f"{'s_memrealtime' if rt else 's_memtime'} s[{68+2*i}:{69+2*i}]\ns_waitcnt lgkmcnt(0)")
    def diag_out(lbl):
        if diag and o.get("enc"):
            role, st = o["enc"][0], int(o["enc"][1:])
            wv = {"a": int(o.get("wv", 0)), "g": 7}[role]
            if lbl == role:
                a(f"s_cmp_lg_u32 s2, 0\ns_cbranch_scc1 L_encx{lbl}\ns_cmp_lg_u32 {sW}, {wv}\ns_cbranch_scc1 L_encx{lbl}")
                if st < 16: a(f"s_sub_u32 s60, s{68+2*st}, s66\ns_lshl_b32 s60, s60, 4")
                else: a("s_mov_b32 s60, 0")
                a(f"s_add_u32 s60, s60, 5000\nL_enc{lbl}:\ns_sleep 4\ns_memrealtime s[62:63]\ns_waitcnt lgkmcnt(0)\ns_sub_u32 s62, s62, s66\ns_cmp_lt_u32 s62, s60\ns_cbranch_scc1 L_enc{lbl}\nL_encx{lbl}:")
        elif diag and rt:
            idx = {"a": [(1, 1), (2, 2), (4, 3), (5, 4), (6, 5), (7, 6), (8, 7)], "s": [], "g": [(2, 8), (3, 9), (4, 10), (6, 11), (7, 12), (15, 13), (9, 14), (11, 15)]}[lbl]
            a("s_load_dwordx2 s[60:61], s[0:1], 96\ns_mov_b32 s62, 256\ns_mov_b32 s63, 0x00020000\ns_waitcnt vmcnt(0) lgkmcnt(0)\ns_mov_b64 exec, 1")
            a("s_not_b32 s66, s66\nv_mov_b32 v1, s66\nbuffer_atomic_umax v1, off, s[60:63], 0\ns_nop 1")
            for st, d in idx:
                a(f"v_mov_b32 v1, s{68+2*st}\nbuffer_atomic_umax v1, off, s[60:63], 0 offset:{4*d}\ns_nop 1")
            a("s_waitcnt vmcnt(0)")
        elif diag:
            a(f"s_lshl_b32 s60, s2, 3\ns_add_u32 s60, s60, {sW}\ns_lshl_b32 s60, s60, 7\ns_add_u32 s60, s60, {WS_DIAG}")
            a("s_waitcnt vmcnt(0) lgkmcnt(0)\ns_mov_b64 exec, 1")
            for i in range(17):
                a(f"v_mov_b32 v1, s{66+2*i}\nbuffer_store_dword v1, off, {srd(SWS)}, s60 offset:{4*i}\ns_nop 1")
            a("s_waitcnt vmcnt(0)")

    L = "v255"
    if diag: a("s_memrealtime s[66:67]\ns_memtime s[68:69]")
    a(f"""
    s_cmp_ge_u32 s2, 256
    s_cbranch_scc1 L_end
    s_load_dwordx2 s[{SWKV}:{SWKV+1}], s[0:1], 16
    s_load_dwordx2 s[48:49], s[0:1], 24
    s_load_dwordx2 s[{SX}:{SX+1}], s[0:1], 0
    s_load_dwordx2 s[{SWS}:{SWS+1}], s[0:1], 104
    s_load_dwordx2 s[{SWQ}:{SWQ+1}], s[0:1], 8
    s_getpc_b64 s[60:61]
    L_pc:
    s_mov_b32 s62, L_end - L_pc
    s_mov_b32 s63, 0x00020000
    v_lshlrev_b32 v2, 7, v0
    v_lshrrev_b32 v1, 6, v0
    buffer_load_dword v254, v2, s[60:63], 0 offen
    v_and_b32 v255, 63, v0
    v_readfirstlane_b32 {sW}, v1
    s_and_b32 s54, s2, 7
    s_lshr_b32 s55, s2, 3
    s_and_b32 {sJ}, s55, 7
    s_lshr_b32 s55, s55, 3
    s_lshl_b32 {sGRP}, s54, 2
    s_add_u32 {sGRP}, {sGRP}, s55
    s_add_u32 {sC0}, s55, {sJ}
    s_and_b32 {sC0}, {sC0}, 3
    s_mov_b32 s{SWKV+2}, 16384
    s_mov_b32 s{SWKV+3}, s63
    s_mov_b32 s{SX+2}, 2097152
    s_mov_b32 s{SX+3}, s63
    s_mov_b32 s{SWS+2}, {WS_SIZE}
    s_mov_b32 s{SWS+3}, s63
    s_mov_b32 s{SWQ+2}, 524288
    s_mov_b32 s{SWQ+3}, s63
    v_lshlrev_b32 v1, 4, {L}
    """)
    if diag:
        for i in range(2, 17): a(f"s_mov_b32 s{66+2*i}, 0")
    a(f"""
    s_cmp_eq_u32 {sW}, 7
    s_cbranch_scc0 L_nKV
    """)
    def get_tag():
        a(f"v_mov_b32 v253, {M_TAG}\nds_read_b32 v253, v253\ns_waitcnt lgkmcnt(0)\nv_readfirstlane_b32 {sTAG}, v253\ns_nop 3")
    a(f"""
    s_setprio 3
    s_mov_b32 m0, {OACC}
    s_and_b32 s60, {sJ}, 3
    v_and_b32 v2, 15, {L}
    v_lshrrev_b32 v3, 4, {L}
    v_lshlrev_b32 v4, 4, v3
    v_lshl_or_b32 v4, v2, 10, v4
    s_lshl_b32 s61, {sGRP}, 2
    s_add_u32 s64, s61, s60
    s_lshl_b32 s62, s64, 14
    s_cmp_lt_u32 {sJ}, 4
    s_waitcnt lgkmcnt(0)
    s_cselect_b32 s{SWKV}, s{SWKV}, s48
    s_cselect_b32 s{SWKV+1}, s{SWKV+1}, s49
    """)
    for d in range(16):
        if d & 3 == 0 and d: a(f"s_mov_b32 m0, {OACC + 1024*d}\ns_movk_i32 s61, {1024*d}")
        a(f"buffer_load_dwordx4 v1, {srd(SWKV)}, {'s61' if d >= 4 else '0'} offen offset:{1024*(d&3)} lds")
    for s in range(16): a(f"buffer_load_dwordx4 {vr(64+4*s,4)}, v4, {srd(SX)}, s62 offen offset:{64*s}")
    a(f"""
    buffer_load_dword v253, off, {srd(SWS)}, 0 sc1
    s_barrier
    v_lshlrev_b32 v5, 8, v3
    v_lshl_or_b32 v5, v2, 3, v5
    v_add_u32 v5, {OACC}, v5
    v_and_b32 v6, 1, v3
    v_lshlrev_b32 v6, 9, v6
    v_lshl_or_b32 v6, v2, 4, v6
    v_lshrrev_b32 v7, 1, v3
    v_lshl_or_b32 v6, v7, 3, v6
    v_mov_b32 v10, {M_TAG}
    s_lshr_b32 s54, s64, 1
    s_lshl_b32 s54, s54, 10
    s_and_b32 s55, s64, 1
    s_lshl_b32 s55, s55, 8
    s_add_u32 s54, s54, s55
    s_cmp_lt_u32 {sJ}, 4
    s_cselect_b32 s55, 0, {WS_V - WS_K}
    s_cselect_b32 s63, -1, 0
    s_add_u32 s54, s54, s55
    s_add_u32 s54, s54, {WS_K}
    s_lshl_b32 s55, {sGRP}, 3
    s_add_u32 s55, s55, {sJ}
    s_lshl_b32 s55, s55, 7
    s_add_u32 s55, s55, {WS_KVF}
    s_cmp_lt_u32 {sJ}, 4
    s_waitcnt vmcnt(17)
    """)
    stamp(1)
    def kvreads(s): a(f"ds_read_b64_tr_b16 {vr(128+4*s,2)}, v5 offset:{1024*s}\nds_read_b64_tr_b16 {vr(130+4*s,2)}, v5 offset:{1024*s+128}")
    for s in range(6): kvreads(s)
    a("s_cbranch_scc0 L_KVv")
    for swap in range(2):
        for s in range(16):
            if s + 6 < 16: kvreads(s+6)
            a(f"s_waitcnt vmcnt({16-s}) lgkmcnt({min(12, 2*(15-s))})")
            A_, B_ = (64+4*s, 128+4*s) if swap else (128+4*s, 64+4*s)
            a(f"v_mfma_f32_16x16x32_bf16 v[192:195], {vr(A_,4)}, {vr(B_,4)}, {'0' if s == 0 else 'v[192:195]'}")
        if not swap: a("s_branch L_KVd\nL_KVv:")
    a(f"""
    L_KVd:
    s_waitcnt vmcnt(0)
    v_readfirstlane_b32 {sTAG}, v253
    s_nop 3
    s_mul_i32 {sTAG}, {sTAG}, 0x9E3779B1
    s_add_u32 {sTAG}, {sTAG}, 0x7F4A7C15
    v_cvt_pk_bf16_f32 v196, v192, v193
    v_cvt_pk_bf16_f32 v197, v194, v195
    v_mov_b32 v11, {sTAG}
    buffer_store_dwordx2 v[196:197], v6, {srd(SWS)}, s54 offen sc1
    ds_write_b32 v10, v11
    v_mul_f32 v8, v192, v192
    v_fmac_f32 v8, v193, v193
    v_fmac_f32 v8, v194, v194
    v_fmac_f32 v8, v195, v195
    v_mov_b32 v9, v8
    s_waitcnt lgkmcnt(0)
    s_barrier
    v_permlane32_swap_b32 v8, v9
    v_add_f32 v8, v8, v9
    v_mov_b32 v9, v8
    s_nop 1
    v_permlane16_swap_b32 v8, v9
    v_add_f32 v8, v8, v9
    s_nop 1
    v_max_u32_dpp v8, v8, v8 row_ror:8 row_mask:0xf bank_mask:0xf
    s_nop 1
    v_max_u32_dpp v8, v8, v8 row_ror:4 row_mask:0xf bank_mask:0xf
    s_nop 1
    v_max_u32_dpp v8, v8, v8 row_ror:2 row_mask:0xf bank_mask:0xf
    s_nop 1
    v_max_u32_dpp v9, v8, v8 row_ror:1 row_mask:0xf bank_mask:0xf
    v_mov_b32 v8, {sTAG}
    v_and_b32 v9, s63, v9
    s_mov_b64 exec, 1
    s_waitcnt vmcnt(0)
    buffer_store_dwordx2 v[8:9], off, {srd(SWS)}, s55 sc1
    s_mov_b64 exec, -1
    s_setprio 0
    """)
    stamp(2)
    a(f"""
    s_barrier
    s_barrier
    s_barrier
    s_call_b64 s[14:15], L_gsetup
    s_branch L_Gjoin
    """)

    a(f"""
    L_nKV:
    v_lshrrev_b32 v1, 4, {L}
    v_and_b32 v2, 15, {L}
    v_xor_b32 v2, v1, v2
    v_lshlrev_b32 v2, 4, v2
    v_lshl_or_b32 v4, v1, 10, v2
    v_xor_b32 v5, 64, v4
    v_add_u32 v5, 3072, v5
    v_xor_b32 v6, 0x80, v4
    v_add_u32 v6, 6144, v6
    v_xor_b32 v7, 0xc0, v4
    v_add_u32 v7, 9216, v7
    v_lshrrev_b32 v1, 3, {L}
    v_and_b32 v2, 7, {L}
    v_bfe_u32 v3, {L}, 4, 1
    v_lshlrev_b32 v3, 2, v3
    v_xor_b32 v2, v3, v2
    v_lshlrev_b32 v2, 4, v2
    v_lshl_or_b32 v8, v1, 10, v2
    v_add_u32 v9, 7168, v8
    v_add_u32 v10, 14336, v8
    v_add_u32 v11, 21504, v8
    s_lshl_b32 s54, {sGRP}, 16
    s_lshl_b32 s60, {sJ}, 7
    s_cmp_ge_u32 {sW}, 4
    s_waitcnt lgkmcnt(0)
    s_cbranch_scc1 L_G
    s_lshl_b32 s55, {sW}, 14
    s_add_u32 s54, s54, s55
    s_lshl_b32 s55, {sC0}, 8
    s_add_u32 s54, s54, s55
    s_lshl_b32 s55, {sC0}, 2
    s_add_u32 s55, s55, {sW}
    s_lshl_b32 s55, s55, 15
    s_add_u32 s55, s55, s60
    s_lshl_b32 s61, {sW}, 12
    s_add_u32 m0, s61, {X_}
    s_nop 0
    """)
    for q in range(4): a(f"buffer_load_dwordx4 v{4+q}, {srd(SX)}, s54 offen offset:{1024*q} lds")
    a(f"s_add_u32 m0, s61, {W_}\ns_nop 0")
    for q in range(4): a(f"buffer_load_dwordx4 v{8+q}, {srd(SWQ)}, s55 offen offset:{1024*q} lds")
    a("s_barrier")
    stamp(1)
    a(f"""
    s_lshr_b32 s60, {sW}, 1
    s_lshl_b32 s60, s60, 13
    v_and_b32 v1, 31, {L}
    v_lshrrev_b32 v2, 5, {L}
    v_and_b32 v3, 15, {L}
    v_xor_b32 v3, v2, v3
    v_lshlrev_b32 v3, 4, v3
    v_lshl_or_b32 v16, v1, 8, v3
    v_add_u32 v16, s60, v16
    """)
    for k in range(1, 8): a(f"v_xor_b32 v{16+k}, {32*k}, v16")
    def tr_addr(dst, hmul, t0=1, t1=2):
        a(f"""
        v_lshrrev_b32 v{t0}, 5, {L}
        v_bfe_u32 v{t1}, {L}, 2, 2
        v_mad_u32_u24 v{t0}, v{t0}, {hmul}, v{t1}
        v_lshlrev_b32 v{t0}, 7, v{t0}
        v_bfe_u32 v{t1}, {L}, 3, 1
        v_lshl_or_b32 v{t0}, v{t1}, 6, v{t0}
        v_bfe_u32 v{t1}, {L}, 4, 1
        v_lshl_or_b32 v{t0}, v{t1}, 5, v{t0}
        v_and_b32 v{t1}, 3, {L}
        v_lshl_or_b32 v{dst}, v{t1}, 3, v{t0}
        """)
    tr_addr(24, 8)
    a(f"""
    s_and_b32 s60, {sW}, 1
    s_lshl_b32 s60, s60, 6
    v_xor_b32 v24, s60, v24
    v_add_u32 v24, {W_}, v24
    v_and_b32 v1, 11, {L}
    v_cmp_eq_u32 vcc, 0, v1
    v_mov_b32 v2, 0x3f803f80
    v_lshlrev_b32 v250, 4, {L}
    v_cndmask_b32 v68, 0, v2, vcc
    v_mov_b32 v251, {M_QMAX}
    v_mov_b32 v69, v68
    v_lshlrev_b32 v247, 7, {L}
    s_lshl_b32 s60, {sW}, 8
    s_add_u32 s60, s60, {OACC}
    v_lshlrev_b32 v244, 2, {L}
    v_add_u32 v244, s60, v244
    v_add_u32 v246, {QF}, v250
    v_add_u32 v252, {WS_V - WS_K}, v250
    s_lshr_b32 s60, {sW}, 1
    s_lshl_b32 s60, s60, 12
    s_and_b32 s61, {sW}, 1
    s_lshl_b32 s61, s61, 11
    s_add_u32 s60, s60, s61
    v_add_u32 v220, s60, v246
    s_lshl_b32 s60, {sW}, 13
    s_add_u32 s60, s60, {WS_KVF}
    s_lshl_b32 s54, {sW}, 14
    s_add_u32 s54, s54, {WS_K}
    s_and_b32 s55, {sJ}, 3
    s_lshl_b32 s55, s55, 12
    s_mov_b32 s62, {QSCALE}
    s_mov_b32 s63, 0
    s_add_u32 s8, s54, s55
    s_add_u32 s55, s55, 4096
    s_and_b32 s55, s55, 0x3fff
    s_add_u32 s9, s54, s55
    s_add_u32 s55, s55, 4096
    s_and_b32 s55, s55, 0x3fff
    s_add_u32 s10, s54, s55
    s_add_u32 s55, s55, 4096
    s_and_b32 s55, s55, 0x3fff
    s_add_u32 s11, s54, s55
    """)
    for t in range(16):
        for r in (68 + 8*t, 70 + 8*t):
            if r != 68: a(f"v_mov_b64 {vr(r,2)}, v[68:69]")
    def qreads(ks):
        b = 192 + 8*(ks % 3)
        a(f"ds_read_b64_tr_b16 {vr(b,2)}, v24 offset:{2048*ks}")
        a(f"ds_read_b64_tr_b16 {vr(b+2,2)}, v24 offset:{2048*ks+512}")
        a(f"ds_read_b128 {vr(b+4,4)}, v{16+(ks&7)} offset:{16384*(ks>>3)}")
    poll = f"buffer_load_dwordx2 v[248:249], v247, {srd(SWS)}, s60 offen sc1"
    for c in range(4):
        a(("s_waitcnt vmcnt(0)\n" if c == 0 else "") + "s_barrier")
        if c == 0: stamp(2)
        if c == 1: a(f"v_mov_b32 v253, {M_TAG}\nds_read_b32 v253, v253")
        if c == 3: a(poll)
        qreads(8*c); qreads(8*c+1)
        for k in range(8):
            ks = 8*c + k
            if k < 6:
                qreads(ks+2); a("s_waitcnt lgkmcnt(6)")
            else:
                a(f"s_waitcnt lgkmcnt({3*(7-k)})")
            if c == 3 and k == 7: a("s_barrier")
            b = 192 + 8*(ks % 3)
            a(f"v_mfma_f32_32x32x16_bf16 v[224:239], {vr(b,4)}, {vr(b+4,4)}, {'0' if ks == 0 else 'v[224:239]'}")
        if c == 1: a(f"v_readfirstlane_b32 {sTAG}, v253")
    stamp(3)
    a(f"""
    s_branch L_kvchk
    L_kvpoll:
    {poll}
    s_add_u32 s63, s63, 1
    s_cmp_gt_u32 s63, {SPIN_MAX}
    s_cbranch_scc1 L_kvok
    L_kvchk:
    s_waitcnt vmcnt(0)
    v_cmp_ne_u32 vcc, {sTAG}, v248
    s_cbranch_vccnz L_kvpoll
    L_kvok:
    s_setprio 2
    """)
    stamp(5)
    D = int(o.get("D", 5))
    def kvload(t):
        return [f"buffer_load_dwordx4 {vr(4*t,4)}, v250, {srd(SWS)}, s{8+(t>>2)} offen offset:{1024*(t&3)} sc1",
                f"buffer_load_dwordx4 {vr(64+8*t,4)}, v252, {srd(SWS)}, s{8+(t>>2)} offen offset:{1024*(t&3)} sc1"]
    for t in range(D): a("\n".join(kvload(t)))
    a("s_nop 0")
    for r in range(16): a(f"v_mul_f32 v{224+r}, s62, v{224+r}")
    for r in range(8): a(f"v_cvt_pk_bf16_f32 v{192+r}, v{224+2*r}, v{225+2*r}")
    a(f"v_mov_b32 v245, {sTAG}\nds_write_b128 v220, v[192:195]\nds_write_b128 v220, v[196:199] offset:1024")
    a(f"s_cmp_lg_u32 {sW}, 0\ns_cbranch_scc1 L_q0s\nds_write_b32 v251, v245 offset:{M_Q0 - M_QMAX}\nL_q0s:")
    stamp(4)
    a("v_mul_f32 v208, v224, v224\nv_mul_f32 v209, v232, v232")
    for r in range(1, 8): a(f"v_fmac_f32 v208, v{224+r}, v{224+r}\nv_fmac_f32 v209, v{232+r}, v{232+r}")
    a(f"""
    s_mov_b32 s63, 0
    L_q0w:
    ds_read_b32 v210, v251 offset:{M_Q0 - M_QMAX}
    ds_read_b128 v[240:243], v246
    s_add_u32 s63, s63, 1
    s_cmp_gt_u32 s63, {SPIN_MAX}
    s_cbranch_scc1 L_q0x
    s_waitcnt lgkmcnt(0)
    v_cmp_ne_u32 vcc, {sTAG}, v210
    s_cbranch_vccnz L_q0w
    L_q0x:
    s_waitcnt vmcnt({2*D-1})
    v_mfma_f32_32x32x16_bf16 v[192:207], v[0:3], v[240:243], 0
    v_permlane32_swap_b32 v208, v209
    v_max_u32_dpp v249, v249, v249 row_ror:8 row_mask:0xf bank_mask:0xf
    v_add_f32 v254, v208, v209
    v_mov_b32 v253, 1
    v_max_u32_dpp v249, v249, v249 row_ror:4 row_mask:0xf bank_mask:0xf
    v_max_u32_dpp v254, v254, v254 row_ror:8 row_mask:0xf bank_mask:0xf
    s_mov_b32 s64, 0x00010001
    v_max_u32_dpp v249, v249, v249 row_ror:2 row_mask:0xf bank_mask:0xf
    v_max_u32_dpp v254, v254, v254 row_ror:4 row_mask:0xf bank_mask:0xf
    s_mov_b32 s65, 0x00010001
    v_max_u32_dpp v249, v249, v249 row_ror:1 row_mask:0xf bank_mask:0xf
    v_max_u32_dpp v254, v254, v254 row_ror:2 row_mask:0xf bank_mask:0xf
    v_add_u32 v246, 1024, v246
    s_mov_b32 s62, 8
    v_max_u32_dpp v254, v254, v254 row_ror:1 row_mask:0xf bank_mask:0xf
    s_mov_b64 exec, s[64:65]
    ds_max_u32 v251, v254
    ds_max_u32 v251, v249 offset:4
    ds_add_u32 v251, v253 offset:8
    s_mov_b64 exec, -1
    s_mov_b32 s64, 0x24
    """)
    stamp(6)
    if diag: a("s_memrealtime s[86:87]\ns_waitcnt lgkmcnt(0)")
    flush = [f"ds_write2st64_b32 v244, v{224+2*r}, v{225+2*r} offset0:{8*r} offset1:{8*r+4}" for r in range(4)] + ["ds_write2st64_b32 v244, v232, v245 offset0:32 offset1:36", f"v_add_u32 v244, {SLOT}, v244"]
    def tile(t, peel=False):
        first = peel and t == 0
        S = [192, 208]
        cur = S[t & 1]; nxt = S[(t+1) & 1]
        Kn = 4*((t+1) % 16); Vp = 64 + 8*((t-1) % 16) + 4; Vc = 64 + 8*t
        m0 = f"v_mfma_f32_32x32x16_bf16 v[224:239], {vr(Vp,4)}, {vr(nxt+4,4)}, v[224:239]"
        m1 = f"v_mfma_f32_32x32x16_bf16 {vr(nxt,16)}, {vr(Kn,4)}, v[240:243], 0"
        m2 = f"v_mfma_f32_32x32x16_bf16 v[224:239], {vr(Vc,4)}, {vr(cur,4)}, {'0' if t == 0 else 'v[224:239]'}"
        e = lambda i: f"v_exp_f32 v{cur+i}, v{cur+i}"
        c = lambda i: f"v_cvt_pk_bf16_f32 v{cur+i}, v{cur+2*i}, v{cur+2*i+1}"
        cp7 = f"v_cvt_pk_bf16_f32 v{nxt+7}, v{nxt+14}, v{nxt+15}"
        seq = []
        if peel:
            if t + D < 16: seq += kvload(t + D)
            seq.append(f"s_waitcnt vmcnt({max(2*min(t+D+1, 16) - (2*t+3), 0)})")
            seq += [f"v_permlane16_swap_b32 v{Vc+r}, v{Vc+4+r}" for r in range(4)]
        seq += [e(0)] + ([] if first else [cp7]) + [e(1), e(2)] + ([] if first else [m0]) + [c(0), e(3), e(4), c(1), e(5), e(6)]
        if t == 15: seq.append("s_waitcnt lgkmcnt(0)")
        seq.append(m1)
        if t == 14: seq += ["ds_read_b128 v[240:243], v246", "v_add_u32 v246, 1024, v246"]
        seq += [c(2), e(7), e(8), c(3), e(9), e(10)]
        if t == 0 and not first: seq += flush
        seq += [c(4), m2, e(11), e(12), c(5), e(13), e(14), c(6)]
        if t == 15: seq += ["s_sub_u32 s62, s62, 1"]
        seq += [e(15)]
        a("\n".join(seq))
    for t in range(16): tile(t, peel=True)
    a("s_mov_b32 s63, 0\ns_branch L_chk2\n.p2align 6\nL_top:")
    for t in range(16): tile(t)
    a(f"""
    s_bitcmp1_b32 s64, s62
    s_cbranch_scc1 L_check
    s_cmp_lg_u32 s62, 0
    s_cbranch_scc1 L_top
    v_cvt_pk_bf16_f32 v215, v222, v223
    s_nop 1
    v_mfma_f32_32x32x16_bf16 v[224:239], {vr(64+8*15+4,4)}, v[212:215], v[224:239]
    s_nop 11
    """)
    a("\n".join(flush))
    stamp(8)
    if diag: a("s_memrealtime s[88:89]\ns_waitcnt lgkmcnt(0)")
    diag_out("a")
    a("s_endpgm")
    a(f"""
    L_check:
    s_mov_b32 s63, 0
    s_cmp_eq_u32 s62, 5
    s_cselect_b32 s60, 4, 12
    s_cselect_b32 s61, {OACC + 2*SLOT - X_}, 0
    s_add_u32 s60, s60, {M_CNTG}
    v_mov_b32 v249, s60
    L_xw:
    ds_read_b32 v248, v249
    s_add_u32 s63, s63, 1
    s_cmp_gt_u32 s63, {SPIN_MAX}
    s_cbranch_scc1 L_xw_x
    s_waitcnt lgkmcnt(0)
    v_cmp_ne_u32 vcc, 4, v248
    s_cbranch_vccnz L_xw
    L_xw_x:
    v_subrev_u32 v244, s61, v244
    s_branch L_top
    L_chk2:
    ds_read_b96 v[248:250], v251
    s_add_u32 s63, s63, 1
    s_cmp_gt_u32 s63, {SPIN_MAX}
    s_cbranch_scc1 L_chk3
    s_waitcnt lgkmcnt(0)
    v_cmp_ne_u32 vcc, 16, v250
    s_cbranch_vccnz L_chk2
    L_chk3:
    v_mul_f32 v248, v248, v249
    v_mov_b32 v249, 0x45700000
    """)
    stamp(7)
    a(f"""
    v_cmp_nle_f32 vcc, v248, v249
    s_cbranch_vccz L_top
    """)
    if o.get("force_slow"): a.l[-1] = "    s_nop 0"
    a(f"""
    v_lshlrev_b32 v246, 4, {L}
    v_add_u32 v246, {QF}, v246
    v_and_b32 v247, 31, {L}
    v_lshlrev_b32 v247, 2, v247
    v_add_u32 v247, {M_M}, v247
    v_mov_b32 v251, {M_CNTS}
    s_mov_b32 s62, 8
    L_slow:
    ds_read_b128 v[240:243], v246
    v_add_u32 v246, 1024, v246
    v_mov_b32 v248, 0xff800000
    s_waitcnt lgkmcnt(0)
    """)
    for t in range(16):
        a(f"v_mfma_f32_32x32x16_bf16 v[192:207], {vr(4*t,4)}, v[240:243], 0\ns_nop 11")
        for r in range(8): a(f"v_max3_f32 v248, v248, v{192+2*r}, v{193+2*r}")
    a(f"""
    ds_max_f32 v247, v248
    s_mov_b64 exec, 1
    ds_add_u32 v251, v253
    s_mov_b64 exec, -1
    s_mov_b32 s63, 0
    L_slow2:
    s_sleep 1
    ds_read_b32 v249, v251
    s_add_u32 s63, s63, 1
    s_cmp_gt_u32 s63, {SPIN_MAX}
    s_cbranch_scc1 L_slow3
    s_waitcnt lgkmcnt(0)
    v_cmp_ne_u32 vcc, 4, v249
    s_cbranch_vccnz L_slow2
    L_slow3:
    ds_read_b32 v248, v247
    v_add_u32 v247, 128, v247
    v_add_u32 v251, 4, v251
    s_waitcnt lgkmcnt(0)
    """)
    for t in range(16):
        a(f"v_mfma_f32_32x32x16_bf16 v[192:207], {vr(4*t,4)}, v[240:243], 0\ns_nop 11")
        for r in range(16): a(f"v_sub_f32 v{192+r}, v{192+r}, v248")
        for r in range(16): a(f"v_exp_f32 v{192+r}, v{192+r}")
        a("s_nop 0")
        for r in range(8): a(f"v_cvt_pk_bf16_f32 v{208+r}, v{192+2*r}, v{193+2*r}")
        a("s_nop 1")
        a(f"v_mfma_f32_32x32x16_bf16 v[224:239], {vr(64+8*t,4)}, v[208:211], {'0' if t == 0 else 'v[224:239]'}")
        a(f"v_mfma_f32_32x32x16_bf16 v[224:239], {vr(68+8*t,4)}, v[212:215], v[224:239]")
    a(f"""
    s_cmp_lg_u32 s62, 6
    s_cbranch_scc1 L_slow5
    s_mov_b32 s63, 0
    v_mov_b32 v249, {M_CNTG + 12}
    L_slow4:
    ds_read_b32 v248, v249
    s_add_u32 s63, s63, 1
    s_cmp_gt_u32 s63, {SPIN_MAX}
    s_cbranch_scc1 L_slow4x
    s_waitcnt lgkmcnt(0)
    v_cmp_ne_u32 vcc, 4, v248
    s_cbranch_vccnz L_slow4
    L_slow4x:
    v_subrev_u32 v244, {OACC + 2*SLOT - X_}, v244
    L_slow5:
    """)
    a("s_nop 11")
    a("\n".join(flush))
    a(f"""
    s_sub_u32 s62, s62, 1
    s_cmp_lg_u32 s62, 0
    s_cbranch_scc1 L_slow
    """)
    diag_out("s")
    a("s_endpgm")

    a(f"""
    L_G:
    s_cmp_eq_u32 {sW}, 6
    s_cbranch_scc1 L_G6
    s_mov_b32 s64, s60
    s_mov_b32 s65, 1
    s_call_b64 s[14:15], L_gsetup
    s_barrier
    s_call_b64 s[14:15], L_G45
    s_call_b64 s[14:15], L_G45
    s_barrier
    s_call_b64 s[14:15], L_G45
    s_waitcnt vmcnt(32)
    s_barrier
    s_waitcnt vmcnt(16)
    s_barrier
    s_waitcnt vmcnt(0)
    s_barrier
    s_branch L_Gjoin
    L_G45:
    s_add_u32 s55, s65, {sC0}
    s_and_b32 s55, s55, 3
    s_lshl_b32 s61, s65, 14
    s_add_u32 s65, s65, 1
    s_cmp_eq_u32 {sW}, 5
    s_cbranch_scc1 L_G5
    s_lshl_b32 s55, s55, 8
    s_lshl_b32 s60, {sGRP}, 16
    s_add_u32 s55, s55, s60
    """)
    for i in range(4):
        a(f"s_add_u32 m0, s61, {X_ + 4096*i}\ns_nop 0")
        for q in range(4): a(f"buffer_load_dwordx4 v{4+q}, {srd(SX)}, s55 offen offset:{1024*q} lds")
        if i < 3: a("s_add_u32 s55, s55, 16384")
    a(f"""
    s_setpc_b64 s[14:15]
    L_G5:
    s_lshl_b32 s55, s55, 17
    s_add_u32 s55, s55, s64
    """)
    for i in range(4):
        a(f"s_add_u32 m0, s61, {W_ + 4096*i}\ns_nop 0")
        for q in range(4): a(f"buffer_load_dwordx4 v{8+q}, {srd(SWQ)}, s55 offen offset:{1024*q} lds")
        if i < 3: a("s_add_u32 s55, s55, 32768")
    a(f"""
    s_setpc_b64 s[14:15]
    L_G6:
    s_load_dwordx2 s[{SB1}:{SB1+1}], s[0:1], 56
    s_load_dwordx2 s[{SB2}:{SB2+1}], s[0:1], 72
    s_load_dwordx2 s[{SGT}:{SGT+1}], s[0:1], 80
    s_mov_b32 s{SB1+2}, 3584
    s_mov_b32 s{SB1+3}, 0x00020000
    s_mov_b32 s{SB2+2}, 1024
    s_mov_b32 s{SB2+3}, 0x00020000
    s_mov_b32 s{SGT+2}, 1024
    s_mov_b32 s{SGT+3}, 0x00020000
    s_lshl_b32 s61, {sC0}, 4
    v_add_u32 v1, s61, {L}
    v_and_b32 v1, 63, v1
    v_lshlrev_b32 v1, 4, v1
    v_lshlrev_b32 v2, 4, {L}
    s_mul_i32 s61, {sJ}, 448
    s_mov_b32 m0, {M_GATE}
    s_barrier
    s_waitcnt lgkmcnt(0)
    buffer_load_dwordx4 v1, {srd(SGT)}, 0 offen lds
    s_mov_b32 m0, {M_B1}
    s_mov_b64 exec, 0xfffffff
    buffer_load_dwordx4 v2, {srd(SB1)}, s61 offen lds
    s_mov_b32 m0, {M_B2}
    s_mov_b64 exec, 0xff
    buffer_load_dwordx4 v2, {srd(SB2)}, s60 offen lds
    s_mov_b64 exec, -1
    v_mov_b32 v4, 0
    v_mov_b32 v5, 0
    v_mov_b32 v6, 0
    v_mov_b32 v7, 0
    v_add_u32 v2, {MISC}, v2
    v_mov_b32 v8, 0xff800000
    v_mov_b32 v9, v8
    v_mov_b32 v10, v8
    v_mov_b32 v11, v8
    ds_write_b128 v2, v[4:7]
    ds_write_b128 v2, v[8:11] offset:1024
    s_call_b64 s[14:15], L_gsetup
    s_waitcnt lgkmcnt(0)
    s_barrier
    s_barrier
    s_barrier
    s_waitcnt vmcnt(0)
    s_barrier
    L_Gjoin:
    s_sub_u32 {sW}, {sW}, 4
    """)
    gw = sW
    a(f"s_cmp_eq_u32 {gw}, 3\ns_cbranch_scc1 L_F1w3")
    for k in range(8):
        a(f"s_add_u32 m0, s49, {2048*k}\ns_nop 0\nbuffer_load_dwordx4 v148, {srd(SW1)}, s54 offen lds\nbuffer_load_dwordx4 v149, {srd(SW1)}, s54 offen offset:1024 lds\ns_add_u32 s54, s54, {16*3584}")
    a("s_barrier")
    stamp(3)
    def bias_tag():
        a(f"""
        v_mov_b32 v253, {M_TAG}
        ds_read_b32 v253, v253
        ds_read_u16 v152, v12
        ds_read_u16 v156, v12 offset:64
        ds_read_u16 v168, v13
        ds_read_u16 v172, v13 offset:64
        s_waitcnt lgkmcnt(0)
        v_readfirstlane_b32 {sTAG}, v253
        """)
    bias_tag()
    ACC = lambda mt, nt: 32*nt + 16*mt
    def mf(mt, nt, A_, B_, c0=False):
        d = vr(ACC(mt, nt), 16)
        a(f"v_mfma_f32_32x32x16_bf16 {d}, {vr(A_,4)}, {vr(B_,4)}, {'0' if c0 else d}")
    def f1reads(k, w3):
        ab = 120 + 8*(k & 1); bb = 64 + 8*(k & 1); u = k & 7
        if not w3:
            a(f"ds_read_b64_tr_b16 {vr(ab,2)}, v144 offset:{2048*u}\nds_read_b64_tr_b16 {vr(ab+2,2)}, v144 offset:{2048*u+512}")
            a(f"ds_read_b64_tr_b16 {vr(ab+4,2)}, v145 offset:{2048*u}\nds_read_b64_tr_b16 {vr(ab+6,2)}, v145 offset:{2048*u+512}")
        else:
            a(f"ds_read_b64_tr_b16 {vr(ab,2)}, v144 offset:{2048*u}\nds_read_b64_tr_b16 {vr(ab+2,2)}, v144 offset:{2048*u+256}")
            a(f"ds_read_b128 {vr(ab+4,4)}, v145 offset:{32*u}")
        a(f"ds_read_b128 {vr(bb,4)}, v{136+u}\nds_read_b128 {vr(bb+4,4)}, v{136+u} offset:8192")
    def ffn1(w3):
        nd = 1 if w3 else 2
        nr = 5 if w3 else 6
        lbl = "L_f1b" if w3 else "L_f1a"
        a(f"s_waitcnt vmcnt({7*nd}) lgkmcnt(0)")
        for nt in range(2):
            mf(0, nt, 152, 160, True)
            mf(1, nt, 156, 160, True)
        f1reads(0, w3)
        a(f"s_mov_b32 s62, 4\n{lbl}:")
        a(f"s_sub_u32 s55, {sC0}, s62\ns_add_u32 s55, s55, 1\ns_and_b32 s55, s55, 3\ns_mul_i32 s55, s55, {128*3584}\ns_add_u32 s54, s100, s55")
        a(f"s_cmp_eq_u32 s62, 1\ns_cselect_b32 s{SW1+2}, 0, s{SW1+2}")
        for u in range(8):
            a(f"s_waitcnt vmcnt({6*nd})")
            if u == 7:
                a("s_setprio 3")
                for k in range(8): a(f"v_add_u32 v{136+k}, 0x4000, v{136+k}")
                if w3: a("v_add_u32 v145, 0x100, v145")
                a("v_add_u32 v177, 4, v177\ns_setprio 0")
            f1reads(u+1, w3)
            a(f"s_add_u32 m0, s49, {2048*u}\ns_waitcnt lgkmcnt({nr})")
            if u == 7: a("s_mov_b64 exec, 1\nds_add_u32 v177, v167\ns_mov_b64 exec, -1")
            a(f"buffer_load_dwordx4 v148, {srd(SW1)}, s54 offen lds")
            if not w3: a(f"buffer_load_dwordx4 v149, {srd(SW1)}, s54 offen offset:1024 lds")
            a(f"s_add_u32 s54, s54, {16*3584}")
            ab = 120 + 8*(u & 1); bb = 64 + 8*(u & 1)
            mf(0, 0, ab, bb); mf(1, 0, ab+4, bb); mf(0, 1, ab, bb+4); mf(1, 1, ab+4, bb+4)
        a(f"s_sub_u32 s62, s62, 1\ns_cmp_lg_u32 s62, 0\ns_cbranch_scc1 {lbl}")
    ffn1(False)
    a("s_branch L_F1done\nL_F1w3:")
    a("s_barrier")
    stamp(3)
    for k in range(8):
        a(f"s_add_u32 m0, s49, {2048*k}\ns_nop 0\nbuffer_load_dwordx4 v148, {srd(SW1)}, s54 offen lds\ns_add_u32 s54, s54, {16*3584}")
    bias_tag()
    a("v_mov_b32 v156, 0")
    ffn1(True)
    a("L_F1done:\ns_waitcnt lgkmcnt(0)\ns_setprio 3")
    stamp(4)
    a(f"""
    s_lshl_b32 s60, {sGRP}, 1
    s_mul_i32 s60, s60, {112*1024}
    s_lshl_b32 s61, s48, 11
    s_add_u32 s60, s60, s61
    s_add_u32 s60, s60, {WS_H}
    s_add_u32 s61, s60, {112*1024}
    s_nop 4
    """)
    def hst(mt, nt):
        b = ACC(mt, nt)
        for r in range(16): a(f"v_max_f32 v{b+r}, 0, v{b+r}")
        for r in range(8): a(f"v_pk_mul_f32 {vr(b+2*r,2)}, {vr(b+2*r,2)}, {vr(b+2*r,2)}")
        for r in range(8): a(f"v_cvt_pk_bf16_f32 v{b+r}, v{b+2*r}, v{b+2*r+1}")
        so = "s61" if nt else "s60"
        a(f"buffer_store_dwordx4 {vr(b,4)}, v166, {srd(SWS)}, {so} offen offset:{2048*mt} sc1")
        a(f"buffer_store_dwordx4 {vr(b+4,4)}, v166, {srd(SWS)}, {so} offen offset:{2048*mt+1024} sc1")
    hst(0, 0); hst(0, 1)
    a(f"s_cmp_eq_u32 {gw}, 3\ns_cbranch_scc1 L_gate")
    hst(1, 0); hst(1, 1)
    a(f"""
    s_branch L_gated
    L_gate:
    v_mul_f32 v16, {0x80000000 | LOG2E}, v16
    v_mul_f32 v48, {0x80000000 | LOG2E}, v48
    v_exp_f32 v16, v16
    v_exp_f32 v48, v48
    s_nop 0
    v_add_f32 v16, 1.0, v16
    v_add_f32 v48, 1.0, v48
    v_rcp_f32 v16, v16
    v_rcp_f32 v48, v48
    s_nop 1
    ds_write_b32 v192, v16
    ds_write_b32 v192, v48 offset:128
    L_gated:
    s_mov_b64 exec, 1
    ds_add_u32 v177, v167 offset:4
    s_mov_b64 exec, -1
    """)
    def lds_wait(lbl, addr, off, val, sleep=2):
        a(f"""
        s_mov_b32 s63, 0
        {lbl}:
        ds_read_b32 v178, {addr} offset:{off}
        s_add_u32 s63, s63, 1
        s_cmp_gt_u32 s63, {SPIN_MAX}
        s_cbranch_scc1 {lbl}_x
        s_waitcnt lgkmcnt(0)
        v_cmp_ne_u32 vcc, {val}, v178
        s_cbranch_vccz {lbl}_x
        s_sleep {sleep}
        s_branch {lbl}
        {lbl}_x:
        """)
    def flag_wait(lbl, vaddr, soff, sleep=2):
        a(f"""
        s_mov_b32 s63, 0
        {lbl}:
        buffer_load_dword v178, {vaddr}, {srd(SWS)}, {soff} offen sc1
        s_add_u32 s63, s63, 1
        s_cmp_gt_u32 s63, {SPIN_MAX}
        s_cbranch_scc1 {lbl}_x
        s_waitcnt vmcnt(0)
        v_cmp_ne_u32 vcc, {sTAG}, v178
        s_cbranch_vccz {lbl}_x
        s_sleep {sleep}
        s_branch {lbl}
        {lbl}_x:
        """)
    a(f"""
    s_mul_i32 s4, {gw}, {448*1024}
    s_lshl_b32 s55, {sJ}, 7
    s_add_u32 s4, s4, s55
    s_lshl_b32 s7, {gw}, 17
    s_add_u32 s7, s7, s55
    s_mul_i32 s5, {sGRP}, {2*112*1024}
    s_mul_i32 s61, {gw}, {28*1024}
    s_add_u32 s5, s5, s61
    s_add_u32 s5, s5, {WS_H}
    s_and_b32 s6, {sGRP}, 3
    s_mul_i32 s54, s6, {7*16384}
    s_add_u32 s54, s54, s4
    s_lshl_b32 s10, {sGRP}, 3
    s_add_u32 s8, s10, {sJ}
    s_lshl_b32 s61, s8, 2
    s_add_u32 s61, s61, {gw}
    s_lshl_b32 s61, s61, 7
    s_add_u32 s61, s61, {WS_HF}
    s_lshl_b32 s8, s8, 3
    s_add_u32 s8, s8, {gw}
    s_lshl_b32 s9, s8, 7
    s_add_u32 s9, s9, {WS_OF}
    s_lshl_b32 s8, s8, 10
    s_add_u32 s8, s8, {WS_O}
    s_lshl_b32 s60, {gw}, 1
    s_add_u32 s10, s10, s60
    s_lshl_b32 s64, s10, 9
    s_add_u32 s64, s64, {WS_HF}
    s_lshl_b32 s11, s10, 10
    s_add_u32 s11, s11, {WS_OF}
    s_lshl_b32 s10, s10, 13
    s_add_u32 s10, s10, {WS_O}
    s_lshl_b32 s12, {sGRP}, 16
    s_lshl_b32 s60, {gw}, 13
    s_add_u32 s12, s12, s60
    s_add_u32 s12, s12, s55
    s_mov_b32 s13, 0
    s_movk_i32 s48, {4*SLOT // 4}
    s_cmp_lt_u32 {gw}, 2
    s_cselect_b32 s48, {(2*SLOT + X_ - OACC) // 4 & 0xffffffff}, s48
    s_lshl_b32 s48, s48, 2
    v_mov_b32 v129, {sTAG}
    s_cmp_eq_u32 {gw}, 0
    s_cselect_b32 s60, -1, 0
    v_and_b32 v160, s60, v160
    s_waitcnt vmcnt(0)
    s_mov_b64 exec, 1
    buffer_store_dword v129, off, {srd(SWS)}, s61 sc1
    s_mov_b64 exec, -1
    """)
    stamp(5)
    for k in range(7):
        a(f"s_add_u32 m0, s49, {2048*k}\ns_nop 0\nbuffer_load_dwordx4 v150, {srd(SW2)}, s54 offen lds\nbuffer_load_dwordx4 v151, {srd(SW2)}, s54 offen offset:1024 lds\ns_add_u32 s54, s54, 16384")
    a(f"""
    s_add_u32 s60, s7, {7*16384}
    s_add_u32 m0, s49, {2048*7}
    s_nop 0
    buffer_load_dwordx4 v150, {srd(SWO)}, s60 offen lds
    buffer_load_dwordx4 v151, {srd(SWO)}, s60 offen offset:1024 lds
    """)
    lds_wait("L_gs1", "v177", 4, "4")
    a("ds_read_b32 v164, v192\nds_read_b32 v165, v192 offset:128")
    a("s_call_b64 s[14:15], L_fin")
    for nt in range(2):
        mf(0, nt, 168, 160, True); mf(1, nt, 172, 160, True)
    flag_wait("L_hw", "v180", "s64")
    stamp(6)
    a(f"""
    s_setprio 0
    s_mul_i32 s60, s6, 7168
    s_add_u32 s60, s60, s5
    s_add_u32 s61, s60, {112*1024}
    """)
    def hload(u):
        a(f"buffer_load_dwordx4 {vr(64+8*u,4)}, v166, {srd(SH)}, s60 offen sc1\nbuffer_load_dwordx4 {vr(68+8*u,4)}, v166, {srd(SH)}, s61 offen sc1")
        a("s_add_u32 s60, s60, 1024\ns_add_u32 s61, s61, 1024")
    for u in range(7):
        a(f"buffer_load_dword v178, off, {srd(SW1)}, 0\nbuffer_load_dword v178, off, {srd(SW1)}, 0")
        hload(u)
    def f2reads(slot, par):
        ab = 120 + 8*par
        a(f"ds_read_b64_tr_b16 {vr(ab,2)}, v146 offset:{2048*slot}\nds_read_b64_tr_b16 {vr(ab+2,2)}, v146 offset:{2048*slot+1024}")
        a(f"ds_read_b64_tr_b16 {vr(ab+4,2)}, v147 offset:{2048*slot}\nds_read_b64_tr_b16 {vr(ab+6,2)}, v147 offset:{2048*slot+1024}")
    f2reads(0, 0)
    a("s_mov_b32 s62, 2\nL_f2:")
    for it in range(2):
        a(f"s_add_u32 s6, s6, 1\ns_and_b32 s6, s6, 3\ns_mul_i32 s54, s6, {7*16384}\ns_add_u32 s54, s54, s4\ns_mul_i32 s60, s6, 7168\ns_add_u32 s60, s60, s5\ns_add_u32 s61, s60, {112*1024}")
        if it == 1: a(f"s_cmp_eq_u32 s62, 1\ns_cselect_b32 s{SW2}, s{SWO}, s{SW2}\ns_cselect_b32 s{SW2+1}, s{SWO+1}, s{SW2+1}\ns_cselect_b32 s{SW2+2}, s{SWO+2}, s{SW2+2}\ns_cselect_b32 s54, s7, s54\ns_cselect_b32 s{SH+2}, 0, s{SH+2}")
        for u in range(7):
            par = (7*it + u) & 1
            a("s_waitcnt vmcnt(22)")
            f2reads((u+1) % 7, par ^ 1)
            a(f"s_add_u32 m0, s49, {2048*u}\ns_waitcnt lgkmcnt(4)")
            a(f"buffer_load_dwordx4 v150, {srd(SW2)}, s54 offen lds\nbuffer_load_dwordx4 v151, {srd(SW2)}, s54 offen offset:1024 lds\ns_add_u32 s54, s54, 16384")
            ab = 120 + 8*par; bb = 64 + 8*u
            mf(0, 0, ab, bb); mf(1, 0, ab+4, bb); mf(0, 1, ab, bb+4); mf(1, 1, ab+4, bb+4)
            hload(u)
    a("s_sub_u32 s62, s62, 1\ns_cmp_lg_u32 s62, 0\ns_cbranch_scc1 L_f2")
    a("s_setprio 3")
    stamp(7)
    a(f"""
    v_sub_f32 v182, 1.0, v164
    v_sub_f32 v184, 1.0, v165
    s_nop 6
    """)
    for r in range(16): a(f"v_pk_mul_f32 {vr(2*r,2)}, {vr(2*r,2)}, v[182:183] op_sel_hi:[1,0]")
    for r in range(16, 32): a(f"v_pk_mul_f32 {vr(2*r,2)}, {vr(2*r,2)}, v[184:185] op_sel_hi:[1,0]")
    a("s_waitcnt vmcnt(0) lgkmcnt(0)")
    for i in range(8):
        ab = 192 + 8*i
        a(f"ds_read_b64_tr_b16 {vr(ab,2)}, v146 offset:{2048*i}\nds_read_b64_tr_b16 {vr(ab+2,2)}, v146 offset:{2048*i+1024}")
        if i < 7:
            a(f"ds_read_b64_tr_b16 {vr(ab+4,2)}, v147 offset:{2048*i}\nds_read_b64_tr_b16 {vr(ab+6,2)}, v147 offset:{2048*i+1024}")
        else:
            a(f"ds_read_b64_tr_b16 v[136:137], v147 offset:{2048*i}\nds_read_b64_tr_b16 v[138:139], v147 offset:{2048*i+1024}")
    stamp(8)
    a("L_stage:")
    flag_wait("L_ow", "v185", "s11", 1)
    stamp(9)
    a("s_add_u32 s60, s10, 8192")
    for i in range(8):
        a(f"buffer_load_dwordx4 {vr(64+4*i,4)}, v166, {srd(SWS)}, {'s60' if i >= 4 else 's10'} offen offset:{1024*(i&3)} sc1")
    a("s_waitcnt lgkmcnt(0)\ns_setprio 0")
    for i in range(8):
        a(f"s_waitcnt vmcnt({7-i})")
        ab = 192 + 8*i
        mf(0, 0, ab, 64+4*i); mf(1, 0, ab+4 if i < 7 else 136, 64+4*i)
    a("s_setprio 3\ns_nop 10")
    stamp(10)
    for mt in range(2):
        for i in range(4):
            a(f"ds_write_b128 v{186+i}, {vr(16*mt+4*i,4)} offset:{128*mt}")
    a("s_mov_b64 exec, 1\nds_add_u32 v177, v167 offset:8\ns_mov_b64 exec, -1")
    lds_wait("L_rw", "v177", 8, "4", 1)
    for p in range(4):
        a(f"ds_read_b128 {vr(64+8*p,4)}, v190 offset:{16384*p}\nds_read_b128 {vr(68+8*p,4)}, v191 offset:{16384*p}")
    a("s_waitcnt lgkmcnt(4)")
    for r in range(4): a(f"v_pk_add_f32 {vr(64+2*r,2)}, {vr(64+2*r,2)}, {vr(72+2*r,2)}")
    a("s_waitcnt lgkmcnt(0)")
    for r in range(4): a(f"v_pk_add_f32 {vr(80+2*r,2)}, {vr(80+2*r,2)}, {vr(88+2*r,2)}")
    for r in range(4): a(f"v_pk_add_f32 {vr(64+2*r,2)}, {vr(64+2*r,2)}, {vr(80+2*r,2)}")
    for r in range(4): a(f"v_cvt_pk_bf16_f32 v{64+r}, v{64+2*r}, v{65+2*r}")
    a(f"buffer_store_dwordx4 v[64:67], v179, {srd(SOUT)}, s12 offen")
    stamp(11)
    a("s_cmp_lg_u32 s13, 0\ns_cbranch_scc1 L_gend")
    if diag:
        for i in range(4): a(f"s_mov_b32 s{68+2*(12+i)}, s{68+2*(8+i)}")
    for r in range(16): a(f"v_mov_b64 {vr(2*r,2)}, {vr(32+2*r,2)}")
    a(f"""
    v_mov_b32 v164, v165
    v_add_u32 v176, s48, v176
    v_add_u32 v181, s48, v181
    v_add_u32 v177, 4, v177
    v_add_u32 v186, 0x2000, v186
    v_add_u32 v187, 0x2000, v187
    v_add_u32 v188, 0x2000, v188
    v_add_u32 v189, 0x2000, v189
    v_add_u32 v190, 0x2000, v190
    v_add_u32 v191, 0x2000, v191
    s_add_u32 s8, s8, 4096
    s_add_u32 s9, s9, 512
    s_add_u32 s10, s10, 4096
    s_add_u32 s11, s11, 512
    s_add_u32 s12, s12, 0x8000
    s_mov_b32 s13, 1
    s_call_b64 s[14:15], L_fin
    s_branch L_stage
    """)
    a(f"""
    L_gsetup:
    s_load_dwordx2 s[{SW1}:{SW1+1}], s[0:1], 48
    s_load_dwordx2 s[{SWO}:{SWO+1}], s[0:1], 32
    s_load_dwordx2 s[{SW2}:{SW2+1}], s[0:1], 64
    s_load_dwordx2 s[{SOUT}:{SOUT+1}], s[0:1], 88
    s_load_dwordx2 s[{SH}:{SH+1}], s[0:1], 104
    s_mov_b32 s{SW1+2}, 1835008
    s_mov_b32 s{SW1+3}, 0x00020000
    s_mov_b32 s{SWO+2}, 524288
    s_mov_b32 s{SWO+3}, 0x00020000
    s_mov_b32 s{SW2+2}, 1835008
    s_mov_b32 s{SW2+3}, 0x00020000
    s_mov_b32 s{SOUT+2}, 2097152
    s_mov_b32 s{SOUT+3}, 0x00020000
    s_mov_b32 s{SH+2}, {WS_SIZE}
    s_mov_b32 s{SH+3}, 0x00020000
    s_sub_u32 s101, {sW}, 4
    s_lshr_b32 s48, {sJ}, 1
    s_mul_i32 s48, s48, 7
    s_and_b32 s63, {sJ}, 1
    s_lshl_b32 s62, s63, 2
    s_add_u32 s62, s62, s101
    s_cmp_eq_u32 s101, 3
    s_cselect_b32 s62, 3, s62
    s_cselect_b32 s63, s63, 0
    s_add_u32 s48, s48, s62
    s_lshl_b32 s48, s48, 1
    s_add_u32 s48, s48, s63
    s_lshl_b32 s100, s48, 6
    s_mul_i32 s54, {sC0}, {128*3584}
    s_add_u32 s54, s54, s100
    s_lshl_b32 s49, s101, 14
    s_add_u32 s49, s49, {W_}
    v_lshrrev_b32 v14, 3, {L}
    v_and_b32 v15, 7, {L}
    v_bfe_u32 v3, {L}, 4, 1
    v_lshlrev_b32 v3, 2, v3
    v_xor_b32 v2, v3, v15
    v_lshlrev_b32 v2, 4, v2
    v_lshl_or_b32 v150, v14, 10, v2
    v_add_u32 v151, 7168, v150
    v_mul_u32_u24 v148, 3584, v14
    v_add_u32 v148, v148, v2
    v_add_u32 v149, {8*3584-1024}, v148
    v_lshlrev_b32 v180, 7, v15
    v_lshlrev_b32 v2, 1, v15
    v_xor_b32 v2, v14, v2
    v_lshlrev_b32 v2, 4, v2
    v_lshl_or_b32 v190, v14, 8, v2
    s_lshl_b32 s62, s101, 11
    s_add_u32 s62, s62, {W_}
    v_add_u32 v190, s62, v190
    v_xor_b32 v191, 16, v190
    v_lshlrev_b32 v2, 4, v15
    v_lshl_or_b32 v179, v14, 10, v2
    v_and_b32 v1, 31, {L}
    v_lshrrev_b32 v14, 5, {L}
    v_xor_b32 v2, v14, v15
    v_lshlrev_b32 v2, 4, v2
    v_lshl_or_b32 v186, v1, 8, v2
    v_add_u32 v186, s49, v186
    v_xor_b32 v187, 32, v186
    v_xor_b32 v188, 64, v186
    v_xor_b32 v189, 0x60, v186
    s_mul_i32 s62, {sJ}, 7
    s_sub_u32 s62, s48, s62
    s_lshl_b32 s62, s62, 6
    s_add_u32 s62, s62, {M_B1}
    v_lshlrev_b32 v13, 1, v1
    v_add_u32 v12, s62, v13
    v_add_u32 v13, {M_B2}, v13
    v_lshlrev_b32 v192, 2, v1
    v_add_u32 v192, {M_G}, v192
    v_and_b32 v3, 15, {L}
    v_xor_b32 v3, v14, v3
    v_lshlrev_b32 v3, 4, v3
    v_lshl_or_b32 v136, v1, 8, v3
    """)
    for k in range(1, 8): a(f"v_xor_b32 v{136+k}, {32*k}, v136")
    tr_addr(144, 8)
    a("v_add_u32 v144, s49, v144\nv_xor_b32 v145, 64, v144")
    tr_addr(146, 4)
    a("v_add_u32 v146, s49, v146\nv_xor_b32 v147, 64, v146")
    for r in (153, 154, 155, 157, 158, 159, 161, 162, 163, 169, 170, 171, 173, 174, 175): a(f"v_mov_b32 v{r}, 0")
    a(f"""
    v_cmp_gt_u32 vcc, 32, {L}
    v_mov_b32 v1, 0x3f80
    v_lshlrev_b32 v166, 4, {L}
    v_cndmask_b32 v160, 0, v1, vcc
    v_mov_b32 v167, 1
    v_mov_b32 v177, {M_CNTG - 4}
    v_bfe_u32 v1, {L}, 2, 1
    v_and_b32 v2, 3, {L}
    v_lshlrev_b32 v3, 7, v2
    v_lshl_or_b32 v185, v1, 10, v3
    s_mul_i32 s62, s101, {SLOT}
    s_add_u32 s63, s62, {OACC}
    s_sub_u32 s62, s62, {2*SLOT - X_}
    s_cmp_lt_u32 s101, 2
    s_cselect_b32 s62, s63, s62
    v_lshlrev_b32 v181, 2, {L}
    v_add_u32 v181, s62, v181
    s_add_u32 s62, s62, {9216 + 252}
    v_lshl_add_u32 v176, v2, 8, s62
    s_cmp_eq_u32 s101, 3
    s_cbranch_scc0 L_gsx
    v_bfe_u32 v2, {L}, 2, 2
    v_lshl_or_b32 v2, v14, 3, v2
    v_lshlrev_b32 v2, 6, v2
    v_bfe_u32 v3, {L}, 4, 1
    v_lshl_or_b32 v2, v3, 5, v2
    v_and_b32 v3, 3, {L}
    v_lshl_or_b32 v2, v3, 3, v2
    v_add_u32 v144, s49, v2
    v_lshlrev_b32 v145, 4, v14
    v_add_u32 v145, {M_GATE}, v145
    v_lshrrev_b32 v1, 2, {L}
    v_mul_u32_u24 v148, 3584, v1
    v_lshl_add_u32 v148, v3, 4, v148
    L_gsx:
    s_waitcnt lgkmcnt(0)
    s_setpc_b64 s[14:15]
    """)
    a(f"""
    L_fin:
    s_mov_b32 s63, 0
    L_fw:
    ds_read_b32 v64, v176
    s_add_u32 s63, s63, 1
    s_cmp_gt_u32 s63, {SPIN_MAX}
    s_cbranch_scc1 L_fw_x
    s_waitcnt lgkmcnt(0)
    v_cmp_ne_u32 vcc, {sTAG}, v64
    s_cbranch_vccz L_fw_x
    s_sleep 3
    s_branch L_fw
    L_fw_x:
    """)
    stamp(8)
    a("ds_read2st64_b32 v[96:97], v181 offset0:32 offset1:33\nds_read2st64_b32 v[98:99], v181 offset0:34 offset1:35")
    for w in range(4):
        for r in range(4): a(f"ds_read2st64_b32 {vr(64+8*w+2*r,2)}, v181 offset0:{8*r+w} offset1:{8*r+4+w}")
    a("s_waitcnt lgkmcnt(8)\nv_pk_add_f32 v[96:97], v[96:97], v[98:99]")
    for r in range(4): a(f"v_pk_add_f32 {vr(64+2*r,2)}, {vr(64+2*r,2)}, {vr(72+2*r,2)}")
    a("v_add_f32 v128, v96, v97\ns_waitcnt lgkmcnt(0)")
    for r in range(4): a(f"v_pk_add_f32 {vr(80+2*r,2)}, {vr(80+2*r,2)}, {vr(88+2*r,2)}")
    a("v_rcp_f32 v128, v128")
    for r in range(4): a(f"v_pk_add_f32 {vr(64+2*r,2)}, {vr(64+2*r,2)}, {vr(80+2*r,2)}")
    a(f"""
    v_mul_f32 v128, v128, v164
    s_or_b32 s60, s2, {gw}
    s_or_b32 s60, s60, s13
    """)
    for r in range(4): a(f"v_pk_mul_f32 {vr(64+2*r,2)}, {vr(64+2*r,2)}, v[128:129] op_sel_hi:[1,0]")
    for r in range(4): a(f"v_cvt_pk_bf16_f32 v{64+r}, v{64+2*r}, v{65+2*r}")
    a(f"""
    v_mov_b32 v129, {sTAG}
    buffer_store_dwordx4 v[64:67], v166, {srd(SWS)}, s8 offen sc1
    s_mov_b64 exec, 1
    s_cmp_lg_u32 s60, 0
    s_cbranch_scc1 L_noep
    buffer_store_dword v129, off, {srd(SWS)}, 0 sc1
    L_noep:
    s_waitcnt vmcnt(0)
    buffer_store_dword v129, off, {srd(SWS)}, s9 sc1
    s_mov_b64 exec, -1
    s_setpc_b64 s[14:15]
    L_gend:
    """)
    if diag: a(f"s_add_u32 {sW}, {sW}, 4")
    diag_out("g")
    a("L_end:\ns_endpgm")

    hdr = open(os.path.join(os.path.dirname(os.path.abspath(__file__)), "..", "cdna_kernels", NAME + ".s.ref")).read().split("\n")
    i0 = next(i for i, l in enumerate(hdr) if l.startswith("; Override"))
    head = "\n".join(hdr[:i0]) + f"\n; @launch grid=(256,1,1) block=(512,1,1) lds={LDS_BYTES}\n"
    return head + f""".amdgcn_target "amdgcn-amd-amdhsa--gfx950"
.text
.globl {NAME}_kernel
.p2align 8
.type {NAME}_kernel,@function
{NAME}_kernel:
{a.text()}.section .rodata,"a"
.p2align 6
.amdhsa_kernel {NAME}_kernel
  .amdhsa_next_free_vgpr 256
  .amdhsa_next_free_sgpr 102
  .amdhsa_accum_offset 256
  .amdhsa_group_segment_fixed_size 0
  .amdhsa_kernarg_size 112
  .amdhsa_user_sgpr_count 2
  .amdhsa_user_sgpr_kernarg_segment_ptr 1
  .amdhsa_system_sgpr_workgroup_id_x 1
.end_amdhsa_kernel
"""

if __name__ == "__main__":
    out = sys.argv[1] if len(sys.argv) > 1 else os.path.join(os.path.dirname(os.path.abspath(__file__)), "..", "cdna_kernels", NAME + ".s")
    opts = dict(x.split("=") if "=" in x else (x, 1) for x in sys.argv[2:])
    open(out, "w").write(gen(diag=bool(opts.pop("diag", 0)), opts=opts))
```

```python
import sys, os
NAME = "gated_mix__grouped_kv_mqa__dense_activation_squared_relu__prompt"

class Asm:
    def __init__(self): self.l = []
    def __call__(self, s):
        for x in s.strip("\n").split("\n"):
            x = x.strip()
            if not x: continue
            self.l.append(x if x.endswith(":") else "    " + x)
    def text(self): return "\n".join(self.l) + "\n"

def vr(a, n): return f"v[{a}:{a+n-1}]"

X_ = 0; W_ = 65536; S_ = 131072
OACC = S_; SLOT = 10240
QF = S_ + 2*SLOT
MISC = QF + 8192
M_G = MISC
M_QMAX = MISC + 256
M_KMAX = MISC + 260
M_CNTA = MISC + 264
M_CNTG = MISC + 272
M_CNTS = MISC + 320
M_M = MISC + 1024
M_GATE = MISC + 2048
M_TAG = MISC + 3072
M_Q0 = MISC + 3076
M_GO = MISC + 3080
M_B1 = MISC + 3136
M_B2 = MISC + 3584
LDS_BYTES = 163840
WS_EPOCH = 0
WS_KVF = 0x1000
WS_HF = 0x10000
WS_OF = 0x40000
WS_K = 0x80000
WS_V = 0x90000
WS_O = 0x100000
WS_H = 0x400000
WS_DIAG = 0xC00000
WS_SIZE = 0x1000000
SX, SWQ, SWKV, SWO, SW1, SB1, SW2, SB2, SGT, SOUT, SWS, SH = 4, 8, 12, 16, 20, 24, 28, 32, 36, 40, 44, 56
def srd(b): return f"s[{b}:{b+3}]"
sW, sGRP, sJ, sTAG, sC0 = "s50", "s51", "s52", "s53", "s3"
QSCALE = 0x3eb8aa3b
LOG2E = 0x3fb8aa3b
SPIN_MAX = 200000

def gen(diag=False, opts=None):
    o = dict(opts or {})
    a = Asm()
    nstamp = [0]
    rt = o.get("rt") or o.get("enc")
    def stamp(i):
        if diag:
            a(f"{'s_memrealtime' if rt else 's_memtime'} s[{68+2*i}:{69+2*i}]\ns_waitcnt lgkmcnt(0)")
    def diag_out(lbl):
        if diag and o.get("enc"):
            role, st = o["enc"][0], int(o["enc"][1:])
            wv = {"a": int(o.get("wv", 0)), "g": 7}[role]
            if lbl == role:
                a(f"s_cmp_lg_u32 s2, 0\ns_cbranch_scc1 L_encx{lbl}\ns_cmp_lg_u32 {sW}, {wv}\ns_cbranch_scc1 L_encx{lbl}")
                if st < 16: a(f"s_sub_u32 s60, s{68+2*st}, s66\ns_lshl_b32 s60, s60, 4")
                else: a("s_mov_b32 s60, 0")
                a(f"s_add_u32 s60, s60, 5000\nL_enc{lbl}:\ns_sleep 4\ns_memrealtime s[62:63]\ns_waitcnt lgkmcnt(0)\ns_sub_u32 s62, s62, s66\ns_cmp_lt_u32 s62, s60\ns_cbranch_scc1 L_enc{lbl}\nL_encx{lbl}:")
        elif diag and rt:
            idx = {"a": [(1, 1), (2, 2), (4, 3), (5, 4), (6, 5), (7, 6), (8, 7)], "s": [], "g": [(2, 8), (3, 9), (4, 10), (6, 11), (7, 12), (15, 13), (9, 14), (11, 15)]}[lbl]
            a("s_load_dwordx2 s[60:61], s[0:1], 96\ns_mov_b32 s62, 256\ns_mov_b32 s63, 0x00020000\ns_waitcnt vmcnt(0) lgkmcnt(0)\ns_mov_b64 exec, 1")
            a("s_not_b32 s66, s66\nv_mov_b32 v1, s66\nbuffer_atomic_umax v1, off, s[60:63], 0\ns_nop 1")
            for st, d in idx:
                a(f"v_mov_b32 v1, s{68+2*st}\nbuffer_atomic_umax v1, off, s[60:63], 0 offset:{4*d}\ns_nop 1")
            a("s_waitcnt vmcnt(0)")
        elif diag:
            a(f"s_lshl_b32 s60, s2, 3\ns_add_u32 s60, s60, {sW}\ns_lshl_b32 s60, s60, 7\ns_add_u32 s60, s60, {WS_DIAG}")
            a("s_waitcnt vmcnt(0) lgkmcnt(0)\ns_mov_b64 exec, 1")
            for i in range(17):
                a(f"v_mov_b32 v1, s{66+2*i}\nbuffer_store_dword v1, off, {srd(SWS)}, s60 offset:{4*i}\ns_nop 1")
            a("s_waitcnt vmcnt(0)")

    L = "v255"
    if diag: a("s_memrealtime s[66:67]\ns_memtime s[68:69]")
    a(f"""
    s_cmp_ge_u32 s2, 256
    s_cbranch_scc1 L_end
    s_load_dwordx2 s[{SWKV}:{SWKV+1}], s[0:1], 16
    s_load_dwordx2 s[48:49], s[0:1], 24
    s_load_dwordx2 s[{SX}:{SX+1}], s[0:1], 0
    s_load_dwordx2 s[{SWS}:{SWS+1}], s[0:1], 104
    s_load_dwordx2 s[{SWQ}:{SWQ+1}], s[0:1], 8
    s_getpc_b64 s[60:61]
    L_pc:
    s_mov_b32 s62, L_end - L_pc
    s_mov_b32 s63, 0x00020000
    v_lshlrev_b32 v2, 7, v0
    v_lshrrev_b32 v1, 6, v0
    buffer_load_dword v178, v2, s[60:63], 0 offen
    v_and_b32 v255, 63, v0
    v_readfirstlane_b32 {sW}, v1
    s_and_b32 s54, s2, 7
    s_lshr_b32 s55, s2, 3
    s_and_b32 {sJ}, s55, 7
    s_lshr_b32 s55, s55, 3
    s_lshl_b32 {sGRP}, s54, 2
    s_add_u32 {sGRP}, {sGRP}, s55
    s_add_u32 {sC0}, {'s55' if o.get('rot1') else '0'}, {sJ}
    s_and_b32 {sC0}, {sC0}, 3
    s_mov_b32 s{SWKV+2}, 16384
    s_mov_b32 s{SWKV+3}, s63
    s_mov_b32 s{SX+2}, 2097152
    s_mov_b32 s{SX+3}, s63
    s_mov_b32 s{SWS+2}, {WS_SIZE}
    s_mov_b32 s{SWS+3}, s63
    s_mov_b32 s{SWQ+2}, 524288
    s_mov_b32 s{SWQ+3}, s63
    v_lshlrev_b32 v1, 4, {L}
    """)
    if diag:
        for i in range(2, 17): a(f"s_mov_b32 s{66+2*i}, 0")
    a(f"""
    s_cmp_eq_u32 {sW}, 7
    s_cbranch_scc0 L_nKV
    """)
    def get_tag():
        a(f"v_mov_b32 v253, {M_TAG}\nds_read_b32 v253, v253\ns_waitcnt lgkmcnt(0)\nv_readfirstlane_b32 {sTAG}, v253\ns_nop 3")
    a(f"""
    s_setprio 3
    s_mov_b32 m0, {OACC}
    s_and_b32 s60, {sJ}, 3
    v_and_b32 v2, 15, {L}
    v_lshrrev_b32 v3, 4, {L}
    v_lshlrev_b32 v4, 4, v3
    v_lshl_or_b32 v4, v2, 10, v4
    s_lshl_b32 s61, {sGRP}, 2
    s_add_u32 s64, s61, s60
    s_lshl_b32 s62, s64, 14
    s_cmp_lt_u32 {sJ}, 4
    s_waitcnt lgkmcnt(0)
    s_cselect_b32 s{SWKV}, s{SWKV}, s48
    s_cselect_b32 s{SWKV+1}, s{SWKV+1}, s49
    """)
    for d in range(16):
        if d & 3 == 0 and d: a(f"s_mov_b32 m0, {OACC + 1024*d}\ns_movk_i32 s61, {1024*d}")
        a(f"buffer_load_dwordx4 v1, {srd(SWKV)}, {'s61' if d >= 4 else '0'} offen offset:{1024*(d&3)} lds")
    for s in range(16): a(f"buffer_load_dwordx4 {vr(64+4*s,4)}, v4, {srd(SX)}, s62 offen offset:{64*s}")
    a(f"""
    buffer_load_dword v253, off, {srd(SWS)}, 0 sc1
    s_barrier
    v_lshlrev_b32 v5, 8, v3
    v_lshl_or_b32 v5, v2, 3, v5
    v_add_u32 v5, {OACC}, v5
    v_and_b32 v6, 1, v3
    v_lshlrev_b32 v6, 9, v6
    v_lshl_or_b32 v6, v2, 4, v6
    v_lshrrev_b32 v7, 1, v3
    v_lshl_or_b32 v6, v7, 3, v6
    v_mov_b32 v10, {M_TAG}
    s_lshr_b32 s54, s64, 1
    s_lshl_b32 s54, s54, 10
    s_and_b32 s55, s64, 1
    s_lshl_b32 s55, s55, 8
    s_add_u32 s54, s54, s55
    s_cmp_lt_u32 {sJ}, 4
    s_cselect_b32 s55, 0, {WS_V - WS_K}
    s_cselect_b32 s63, -1, 0
    s_add_u32 s54, s54, s55
    s_add_u32 s54, s54, {WS_K}
    s_lshl_b32 s55, {sGRP}, 3
    s_add_u32 s55, s55, {sJ}
    s_lshl_b32 s55, s55, 7
    s_add_u32 s55, s55, {WS_KVF}
    s_cmp_lt_u32 {sJ}, 4
    s_waitcnt vmcnt(17)
    """)
    stamp(1)
    def kvreads(s): a(f"ds_read_b64_tr_b16 {vr(128+4*s,2)}, v5 offset:{1024*s}\nds_read_b64_tr_b16 {vr(130+4*s,2)}, v5 offset:{1024*s+128}")
    for s in range(6): kvreads(s)
    a("s_cbranch_scc0 L_KVv")
    for swap in range(2):
        for s in range(16):
            if s + 6 < 16: kvreads(s+6)
            a(f"s_waitcnt vmcnt({16-s}) lgkmcnt({min(12, 2*(15-s))})")
            A_, B_ = (64+4*s, 128+4*s) if swap else (128+4*s, 64+4*s)
            a(f"v_mfma_f32_16x16x32_bf16 v[192:195], {vr(A_,4)}, {vr(B_,4)}, {'0' if s == 0 else 'v[192:195]'}")
        if not swap: a("s_branch L_KVd\nL_KVv:")
    a(f"""
    L_KVd:
    s_waitcnt vmcnt(0)
    v_readfirstlane_b32 {sTAG}, v253
    s_nop 3
    s_mul_i32 {sTAG}, {sTAG}, 0x9E3779B1
    s_add_u32 {sTAG}, {sTAG}, 0x7F4A7C15
    v_cvt_pk_bf16_f32 v196, v192, v193
    v_cvt_pk_bf16_f32 v197, v194, v195
    v_mov_b32 v11, {sTAG}
    buffer_store_dwordx2 v[196:197], v6, {srd(SWS)}, s54 offen sc1
    ds_write_b32 v10, v11
    v_mul_f32 v8, v192, v192
    v_fmac_f32 v8, v193, v193
    v_fmac_f32 v8, v194, v194
    v_fmac_f32 v8, v195, v195
    v_mov_b32 v9, v8
    s_waitcnt lgkmcnt(0)
    s_barrier
    v_permlane32_swap_b32 v8, v9
    v_add_f32 v8, v8, v9
    v_mov_b32 v9, v8
    s_nop 1
    v_permlane16_swap_b32 v8, v9
    v_add_f32 v8, v8, v9
    s_nop 1
    v_max_u32_dpp v8, v8, v8 row_ror:8 row_mask:0xf bank_mask:0xf
    s_nop 1
    v_max_u32_dpp v8, v8, v8 row_ror:4 row_mask:0xf bank_mask:0xf
    s_nop 1
    v_max_u32_dpp v8, v8, v8 row_ror:2 row_mask:0xf bank_mask:0xf
    s_nop 1
    v_max_u32_dpp v9, v8, v8 row_ror:1 row_mask:0xf bank_mask:0xf
    s_getreg_b32 s61, hwreg(HW_REG_XCC_ID, 0, 4)
    v_mov_b32 v8, {sTAG}
    v_and_b32 v9, s63, v9
    v_mov_b32 v10, {sTAG}
    v_mov_b32 v11, s61
    s_mov_b64 exec, 1
    s_waitcnt vmcnt(0)
    buffer_store_dwordx4 v[8:11], off, {srd(SWS)}, s55 sc1
    s_mov_b64 exec, -1
    s_setprio 0
    """)
    stamp(2)
    a(f"""
    s_barrier
    s_barrier
    s_barrier
    s_call_b64 s[14:15], L_gsetup
    s_branch L_Gjoin
    """)

    a(f"""
    L_nKV:
    v_lshrrev_b32 v1, 4, {L}
    v_and_b32 v2, 15, {L}
    v_xor_b32 v2, v1, v2
    v_lshlrev_b32 v2, 4, v2
    v_lshl_or_b32 v4, v1, 10, v2
    v_xor_b32 v5, 64, v4
    v_add_u32 v5, 3072, v5
    v_xor_b32 v6, 0x80, v4
    v_add_u32 v6, 6144, v6
    v_xor_b32 v7, 0xc0, v4
    v_add_u32 v7, 9216, v7
    v_lshrrev_b32 v1, 3, {L}
    v_and_b32 v2, 7, {L}
    v_bfe_u32 v3, {L}, 4, 1
    v_lshlrev_b32 v3, 2, v3
    v_xor_b32 v2, v3, v2
    v_lshlrev_b32 v2, 4, v2
    v_lshl_or_b32 v8, v1, 10, v2
    v_add_u32 v9, 7168, v8
    v_add_u32 v10, 14336, v8
    v_add_u32 v11, 21504, v8
    s_lshl_b32 s54, {sGRP}, 16
    s_lshl_b32 s60, {sJ}, 7
    s_cmp_ge_u32 {sW}, 4
    s_waitcnt lgkmcnt(0)
    s_cbranch_scc1 L_G
    s_lshl_b32 s55, {sW}, 14
    s_add_u32 s54, s54, s55
    s_lshl_b32 s55, {sC0}, 8
    s_add_u32 s54, s54, s55
    s_lshl_b32 s55, {sC0}, 2
    s_add_u32 s55, s55, {sW}
    s_lshl_b32 s55, s55, 15
    s_add_u32 s55, s55, s60
    s_lshl_b32 s61, {sW}, 12
    s_add_u32 m0, s61, {X_}
    s_nop 0
    """)
    for q in range(4): a(f"buffer_load_dwordx4 v{4+q}, {srd(SX)}, s54 offen offset:{1024*q} lds")
    a(f"s_add_u32 m0, s61, {W_}\ns_nop 0")
    for q in range(4): a(f"buffer_load_dwordx4 v{8+q}, {srd(SWQ)}, s55 offen offset:{1024*q} lds")
    a("s_barrier")
    stamp(1)
    a(f"""
    s_lshr_b32 s60, {sW}, 1
    s_lshl_b32 s60, s60, 13
    v_and_b32 v1, 31, {L}
    v_lshrrev_b32 v2, 5, {L}
    v_and_b32 v3, 15, {L}
    v_xor_b32 v3, v2, v3
    v_lshlrev_b32 v3, 4, v3
    v_lshl_or_b32 v16, v1, 8, v3
    v_add_u32 v16, s60, v16
    """)
    for k in range(1, 8): a(f"v_xor_b32 v{16+k}, {32*k}, v16")
    def tr_addr(dst, hmul, t0=1, t1=2):
        a(f"""
        v_lshrrev_b32 v{t0}, 5, {L}
        v_bfe_u32 v{t1}, {L}, 2, 2
        v_mad_u32_u24 v{t0}, v{t0}, {hmul}, v{t1}
        v_lshlrev_b32 v{t0}, 7, v{t0}
        v_bfe_u32 v{t1}, {L}, 3, 1
        v_lshl_or_b32 v{t0}, v{t1}, 6, v{t0}
        v_bfe_u32 v{t1}, {L}, 4, 1
        v_lshl_or_b32 v{t0}, v{t1}, 5, v{t0}
        v_and_b32 v{t1}, 3, {L}
        v_lshl_or_b32 v{dst}, v{t1}, 3, v{t0}
        """)
    tr_addr(24, 8)
    a(f"""
    s_and_b32 s60, {sW}, 1
    s_lshl_b32 s60, s60, 6
    v_xor_b32 v24, s60, v24
    v_add_u32 v24, {W_}, v24
    v_and_b32 v1, 11, {L}
    v_cmp_eq_u32 vcc, 0, v1
    v_mov_b32 v2, 0x3f803f80
    v_lshlrev_b32 v250, 4, {L}
    v_cndmask_b32 v68, 0, v2, vcc
    v_mov_b32 v251, {M_QMAX}
    v_mov_b32 v69, v68
    v_lshlrev_b32 v247, 7, {L}
    s_lshl_b32 s60, {sW}, 8
    s_add_u32 s60, s60, {OACC}
    v_lshlrev_b32 v244, 2, {L}
    v_add_u32 v244, s60, v244
    v_add_u32 v246, {QF}, v250
    v_add_u32 v252, {WS_V - WS_K}, v250
    s_lshr_b32 s60, {sW}, 1
    s_lshl_b32 s60, s60, 12
    s_and_b32 s61, {sW}, 1
    s_lshl_b32 s61, s61, 11
    s_add_u32 s60, s60, s61
    v_add_u32 v220, s60, v246
    s_lshl_b32 s60, {sW}, 13
    s_add_u32 s60, s60, {WS_KVF}
    s_lshl_b32 s54, {sW}, 14
    s_add_u32 s54, s54, {WS_K}
    s_and_b32 s55, {sJ}, 3
    s_lshl_b32 s55, s55, 12
    s_mov_b32 s62, {QSCALE}
    s_mov_b32 s63, 0
    s_add_u32 s8, s54, s55
    s_add_u32 s55, s55, 4096
    s_and_b32 s55, s55, 0x3fff
    s_add_u32 s9, s54, s55
    s_add_u32 s55, s55, 4096
    s_and_b32 s55, s55, 0x3fff
    s_add_u32 s10, s54, s55
    s_add_u32 s55, s55, 4096
    s_and_b32 s55, s55, 0x3fff
    s_add_u32 s11, s54, s55
    """)
    for t in range(16):
        for r in (68 + 8*t, 70 + 8*t):
            if r != 68: a(f"v_mov_b64 {vr(r,2)}, v[68:69]")
    def qreads(ks):
        b = 192 + 8*(ks % 3)
        a(f"ds_read_b64_tr_b16 {vr(b,2)}, v24 offset:{2048*ks}")
        a(f"ds_read_b64_tr_b16 {vr(b+2,2)}, v24 offset:{2048*ks+512}")
        a(f"ds_read_b128 {vr(b+4,4)}, v{16+(ks&7)} offset:{16384*(ks>>3)}")
    poll = f"buffer_load_dwordx2 v[248:249], v247, {srd(SWS)}, s60 offen sc1"
    for c in range(4):
        a(("s_waitcnt vmcnt(0)\n" if c == 0 else "") + "s_barrier")
        if c == 0: stamp(2)
        if c == 1: a(f"v_mov_b32 v253, {M_TAG}\nds_read_b32 v253, v253")
        if c == 3: a(poll)
        qreads(8*c); qreads(8*c+1)
        for k in range(8):
            ks = 8*c + k
            if k < 6:
                qreads(ks+2); a("s_waitcnt lgkmcnt(6)")
            else:
                a(f"s_waitcnt lgkmcnt({3*(7-k)})")
            if c == 3 and k == 7: a("s_barrier")
            b = 192 + 8*(ks % 3)
            a(f"v_mfma_f32_32x32x16_bf16 v[224:239], {vr(b,4)}, {vr(b+4,4)}, {'0' if ks == 0 else 'v[224:239]'}")
        if c == 1: a(f"v_readfirstlane_b32 {sTAG}, v253")
    stamp(3)
    a(f"""
    s_branch L_kvchk
    L_kvpoll:
    {poll}
    s_add_u32 s63, s63, 1
    s_cmp_gt_u32 s63, {SPIN_MAX}
    s_cbranch_scc1 L_kvok
    L_kvchk:
    s_waitcnt vmcnt(0)
    v_cmp_ne_u32 vcc, {sTAG}, v248
    s_cbranch_vccnz L_kvpoll
    L_kvok:
    s_setprio 2
    """)
    stamp(5)
    D = int(o.get("D", 5))
    def kvload(t):
        return [f"buffer_load_dwordx4 {vr(4*t,4)}, v250, {srd(SWS)}, s{8+(t>>2)} offen offset:{1024*(t&3)} sc1",
                f"buffer_load_dwordx4 {vr(64+8*t,4)}, v252, {srd(SWS)}, s{8+(t>>2)} offen offset:{1024*(t&3)} sc1"]
    for t in range(D): a("\n".join(kvload(t)))
    a("s_nop 0")
    for r in range(16): a(f"v_mul_f32 v{224+r}, s62, v{224+r}")
    for r in range(8): a(f"v_cvt_pk_bf16_f32 v{192+r}, v{224+2*r}, v{225+2*r}")
    a(f"v_mov_b32 v245, {sTAG}\nds_write_b128 v220, v[192:195]\nds_write_b128 v220, v[196:199] offset:1024")
    a(f"s_cmp_lg_u32 {sW}, 0\ns_cbranch_scc1 L_q0s\nds_write_b32 v251, v245 offset:{M_Q0 - M_QMAX}\nL_q0s:")
    stamp(4)
    a("v_mul_f32 v208, v224, v224\nv_mul_f32 v209, v232, v232")
    for r in range(1, 8): a(f"v_fmac_f32 v208, v{224+r}, v{224+r}\nv_fmac_f32 v209, v{232+r}, v{232+r}")
    a(f"""
    s_mov_b32 s63, 0
    L_q0w:
    ds_read_b32 v210, v251 offset:{M_Q0 - M_QMAX}
    ds_read_b128 v[240:243], v246
    s_add_u32 s63, s63, 1
    s_cmp_gt_u32 s63, {SPIN_MAX}
    s_cbranch_scc1 L_q0x
    s_waitcnt lgkmcnt(0)
    v_cmp_ne_u32 vcc, {sTAG}, v210
    s_cbranch_vccnz L_q0w
    L_q0x:
    s_waitcnt vmcnt({2*D-1})
    v_mfma_f32_32x32x16_bf16 v[192:207], v[0:3], v[240:243], 0
    v_permlane32_swap_b32 v208, v209
    v_max_u32_dpp v249, v249, v249 row_ror:8 row_mask:0xf bank_mask:0xf
    v_add_f32 v254, v208, v209
    v_mov_b32 v253, 1
    v_max_u32_dpp v249, v249, v249 row_ror:4 row_mask:0xf bank_mask:0xf
    v_max_u32_dpp v254, v254, v254 row_ror:8 row_mask:0xf bank_mask:0xf
    s_mov_b32 s64, 0x00010001
    v_max_u32_dpp v249, v249, v249 row_ror:2 row_mask:0xf bank_mask:0xf
    v_max_u32_dpp v254, v254, v254 row_ror:4 row_mask:0xf bank_mask:0xf
    s_mov_b32 s65, 0x00010001
    v_max_u32_dpp v249, v249, v249 row_ror:1 row_mask:0xf bank_mask:0xf
    v_max_u32_dpp v254, v254, v254 row_ror:2 row_mask:0xf bank_mask:0xf
    v_add_u32 v246, 1024, v246
    s_mov_b32 s62, 8
    v_max_u32_dpp v254, v254, v254 row_ror:1 row_mask:0xf bank_mask:0xf
    s_mov_b64 exec, s[64:65]
    ds_max_u32 v251, v254
    ds_max_u32 v251, v249 offset:4
    ds_add_u32 v251, v253 offset:8
    s_mov_b64 exec, -1
    s_mov_b32 s64, 0x24
    """)
    stamp(6)
    if diag: a("s_memrealtime s[86:87]\ns_waitcnt lgkmcnt(0)")
    flush = [f"ds_write2st64_b32 v244, v{224+2*r}, v{225+2*r} offset0:{8*r} offset1:{8*r+4}" for r in range(4)] + ["ds_write2st64_b32 v244, v232, v245 offset0:32 offset1:36", f"v_add_u32 v244, {SLOT}, v244"]
    def tile(t, peel=False):
        first = peel and t == 0
        S = [192, 208]
        cur = S[t & 1]; nxt = S[(t+1) & 1]
        Kn = 4*((t+1) % 16); Vp = 64 + 8*((t-1) % 16) + 4; Vc = 64 + 8*t
        m0 = f"v_mfma_f32_32x32x16_bf16 v[224:239], {vr(Vp,4)}, {vr(nxt+4,4)}, v[224:239]"
        m1 = f"v_mfma_f32_32x32x16_bf16 {vr(nxt,16)}, {vr(Kn,4)}, v[240:243], 0"
        m2 = f"v_mfma_f32_32x32x16_bf16 v[224:239], {vr(Vc,4)}, {vr(cur,4)}, {'0' if t == 0 else 'v[224:239]'}"
        e = lambda i: f"v_exp_f32 v{cur+i}, v{cur+i}"
        c = lambda i: f"v_cvt_pk_bf16_f32 v{cur+i}, v{cur+2*i}, v{cur+2*i+1}"
        cp7 = f"v_cvt_pk_bf16_f32 v{nxt+7}, v{nxt+14}, v{nxt+15}"
        seq = []
        if peel:
            if t + D < 16: seq += kvload(t + D)
            if t == int(o.get("go", 4)): seq.append(f"ds_write_b32 v251, v245 offset:{M_GO - M_QMAX}")
            seq.append(f"s_waitcnt vmcnt({max(2*min(t+D+1, 16) - (2*t+3), 0)})")
            seq += [f"v_permlane16_swap_b32 v{Vc+r}, v{Vc+4+r}" for r in range(4)]
        seq += [e(0)] + ([] if first else [cp7]) + [e(1), e(2)] + ([] if first else [m0]) + [c(0), e(3), e(4), c(1), e(5), e(6)]
        if t == 15: seq.append("s_waitcnt lgkmcnt(0)")
        seq.append(m1)
        if t == 14: seq += ["ds_read_b128 v[240:243], v246", "v_add_u32 v246, 1024, v246"]
        seq += [c(2), e(7), e(8), c(3), e(9), e(10)]
        if t == 0 and not first: seq += flush
        seq += [c(4), m2, e(11), e(12), c(5), e(13), e(14), c(6)]
        if t == 15: seq += ["s_sub_u32 s62, s62, 1"]
        seq += [e(15)]
        a("\n".join(seq))
    for t in range(16): tile(t, peel=True)
    a("s_mov_b32 s63, 0\ns_branch L_chk2\n.p2align 6\nL_top:")
    for t in range(16): tile(t)
    a(f"""
    s_bitcmp1_b32 s64, s62
    s_cbranch_scc1 L_check
    s_cmp_lg_u32 s62, 0
    s_cbranch_scc1 L_top
    v_cvt_pk_bf16_f32 v215, v222, v223
    s_nop 1
    v_mfma_f32_32x32x16_bf16 v[224:239], {vr(64+8*15+4,4)}, v[212:215], v[224:239]
    s_nop 11
    """)
    a("\n".join(flush[:5]) + "\ns_waitcnt lgkmcnt(0)\ns_barrier")
    stamp(8)
    if diag: a("s_memrealtime s[88:89]\ns_waitcnt lgkmcnt(0)")
    diag_out("a")
    a("s_endpgm")
    a(f"""
    L_check:
    s_mov_b32 s63, 0
    s_cmp_eq_u32 s62, 5
    s_cselect_b32 s60, 4, 12
    s_cselect_b32 s61, {OACC + 2*SLOT - X_}, 0
    s_add_u32 s60, s60, {M_CNTG}
    v_mov_b32 v249, s60
    L_xw:
    ds_read_b32 v248, v249
    s_add_u32 s63, s63, 1
    s_cmp_gt_u32 s63, {SPIN_MAX}
    s_cbranch_scc1 L_xw_x
    s_waitcnt lgkmcnt(0)
    v_cmp_ne_u32 vcc, 4, v248
    s_cbranch_vccnz L_xw
    L_xw_x:
    v_subrev_u32 v244, s61, v244
    s_branch L_top
    L_chk2:
    ds_read_b96 v[248:250], v251
    s_add_u32 s63, s63, 1
    s_cmp_gt_u32 s63, {SPIN_MAX}
    s_cbranch_scc1 L_chk3
    s_waitcnt lgkmcnt(0)
    v_cmp_ne_u32 vcc, 16, v250
    s_cbranch_vccnz L_chk2
    L_chk3:
    v_mul_f32 v248, v248, v249
    v_mov_b32 v249, 0x45700000
    """)
    stamp(7)
    a(f"""
    v_cmp_nle_f32 vcc, v248, v249
    s_cbranch_vccz L_top
    """)
    if o.get("force_slow"): a.l[-1] = "    s_nop 0"
    a(f"""
    v_lshlrev_b32 v246, 4, {L}
    v_add_u32 v246, {QF}, v246
    v_and_b32 v247, 31, {L}
    v_lshlrev_b32 v247, 2, v247
    v_add_u32 v247, {M_M}, v247
    v_mov_b32 v251, {M_CNTS}
    s_mov_b32 s62, 8
    L_slow:
    ds_read_b128 v[240:243], v246
    v_add_u32 v246, 1024, v246
    v_mov_b32 v248, 0xff800000
    s_waitcnt lgkmcnt(0)
    """)
    for t in range(16):
        a(f"v_mfma_f32_32x32x16_bf16 v[192:207], {vr(4*t,4)}, v[240:243], 0\ns_nop 11")
        for r in range(8): a(f"v_max3_f32 v248, v248, v{192+2*r}, v{193+2*r}")
    a(f"""
    ds_max_f32 v247, v248
    s_mov_b64 exec, 1
    ds_add_u32 v251, v253
    s_mov_b64 exec, -1
    s_mov_b32 s63, 0
    L_slow2:
    s_sleep 1
    ds_read_b32 v249, v251
    s_add_u32 s63, s63, 1
    s_cmp_gt_u32 s63, {SPIN_MAX}
    s_cbranch_scc1 L_slow3
    s_waitcnt lgkmcnt(0)
    v_cmp_ne_u32 vcc, 4, v249
    s_cbranch_vccnz L_slow2
    L_slow3:
    ds_read_b32 v248, v247
    v_add_u32 v247, 128, v247
    v_add_u32 v251, 4, v251
    s_waitcnt lgkmcnt(0)
    """)
    for t in range(16):
        a(f"v_mfma_f32_32x32x16_bf16 v[192:207], {vr(4*t,4)}, v[240:243], 0\ns_nop 11")
        for r in range(16): a(f"v_sub_f32 v{192+r}, v{192+r}, v248")
        for r in range(16): a(f"v_exp_f32 v{192+r}, v{192+r}")
        a("s_nop 0")
        for r in range(8): a(f"v_cvt_pk_bf16_f32 v{208+r}, v{192+2*r}, v{193+2*r}")
        a("s_nop 1")
        a(f"v_mfma_f32_32x32x16_bf16 v[224:239], {vr(64+8*t,4)}, v[208:211], {'0' if t == 0 else 'v[224:239]'}")
        a(f"v_mfma_f32_32x32x16_bf16 v[224:239], {vr(68+8*t,4)}, v[212:215], v[224:239]")
    a(f"""
    s_cmp_lg_u32 s62, 6
    s_cbranch_scc1 L_slow5
    s_mov_b32 s63, 0
    v_mov_b32 v249, {M_CNTG + 12}
    L_slow4:
    ds_read_b32 v248, v249
    s_add_u32 s63, s63, 1
    s_cmp_gt_u32 s63, {SPIN_MAX}
    s_cbranch_scc1 L_slow4x
    s_waitcnt lgkmcnt(0)
    v_cmp_ne_u32 vcc, 4, v248
    s_cbranch_vccnz L_slow4
    L_slow4x:
    v_subrev_u32 v244, {OACC + 2*SLOT - X_}, v244
    L_slow5:
    """)
    a("s_nop 11")
    a("\n".join(flush))
    a(f"""
    s_sub_u32 s62, s62, 1
    s_cmp_lg_u32 s62, 0
    s_cbranch_scc1 L_slow
    s_waitcnt lgkmcnt(0)
    s_barrier
    """)
    diag_out("s")
    a("s_endpgm")

    a(f"""
    L_G:
    s_cmp_eq_u32 {sW}, 6
    s_cbranch_scc1 L_G6
    s_mov_b32 s64, s60
    s_mov_b32 s65, 1
    s_call_b64 s[14:15], L_gsetup
    s_barrier
    s_call_b64 s[14:15], L_G45
    s_call_b64 s[14:15], L_G45
    s_barrier
    s_call_b64 s[14:15], L_G45
    s_waitcnt vmcnt(32)
    s_barrier
    s_waitcnt vmcnt(16)
    s_barrier
    s_waitcnt vmcnt(0)
    s_barrier
    s_branch L_Gjoin
    L_G45:
    s_add_u32 s55, s65, {sC0}
    s_and_b32 s55, s55, 3
    s_lshl_b32 s61, s65, 14
    s_add_u32 s65, s65, 1
    s_cmp_eq_u32 {sW}, 5
    s_cbranch_scc1 L_G5
    s_lshl_b32 s55, s55, 8
    s_lshl_b32 s60, {sGRP}, 16
    s_add_u32 s55, s55, s60
    """)
    for i in range(4):
        a(f"s_add_u32 m0, s61, {X_ + 4096*i}\ns_nop 0")
        for q in range(4): a(f"buffer_load_dwordx4 v{4+q}, {srd(SX)}, s55 offen offset:{1024*q} lds")
        if i < 3: a("s_add_u32 s55, s55, 16384")
    a(f"""
    s_setpc_b64 s[14:15]
    L_G5:
    s_lshl_b32 s55, s55, 17
    s_add_u32 s55, s55, s64
    """)
    for i in range(4):
        a(f"s_add_u32 m0, s61, {W_ + 4096*i}\ns_nop 0")
        for q in range(4): a(f"buffer_load_dwordx4 v{8+q}, {srd(SWQ)}, s55 offen offset:{1024*q} lds")
        if i < 3: a("s_add_u32 s55, s55, 32768")
    a(f"""
    s_setpc_b64 s[14:15]
    L_G6:
    s_load_dwordx2 s[{SB1}:{SB1+1}], s[0:1], 56
    s_load_dwordx2 s[{SB2}:{SB2+1}], s[0:1], 72
    s_load_dwordx2 s[{SGT}:{SGT+1}], s[0:1], 80
    s_mov_b32 s{SB1+2}, 3584
    s_mov_b32 s{SB1+3}, 0x00020000
    s_mov_b32 s{SB2+2}, 1024
    s_mov_b32 s{SB2+3}, 0x00020000
    s_mov_b32 s{SGT+2}, 1024
    s_mov_b32 s{SGT+3}, 0x00020000
    s_lshl_b32 s61, {sC0}, 4
    v_add_u32 v1, s61, {L}
    v_and_b32 v1, 63, v1
    v_lshlrev_b32 v1, 4, v1
    v_lshlrev_b32 v2, 4, {L}
    s_mul_i32 s61, {sJ}, 448
    s_mov_b32 m0, {M_GATE}
    s_barrier
    s_waitcnt lgkmcnt(0)
    buffer_load_dwordx4 v1, {srd(SGT)}, 0 offen lds
    s_mov_b32 m0, {M_B1}
    s_mov_b64 exec, 0xfffffff
    buffer_load_dwordx4 v2, {srd(SB1)}, s61 offen lds
    s_mov_b32 m0, {M_B2}
    s_mov_b64 exec, 0xff
    buffer_load_dwordx4 v2, {srd(SB2)}, s60 offen lds
    s_mov_b64 exec, -1
    v_mov_b32 v4, 0
    v_mov_b32 v5, 0
    v_mov_b32 v6, 0
    v_mov_b32 v7, 0
    v_add_u32 v2, {MISC}, v2
    v_mov_b32 v8, 0xff800000
    v_mov_b32 v9, v8
    v_mov_b32 v10, v8
    v_mov_b32 v11, v8
    ds_write_b128 v2, v[4:7]
    ds_write_b128 v2, v[8:11] offset:1024
    s_call_b64 s[14:15], L_gsetup
    s_waitcnt lgkmcnt(0)
    s_barrier
    s_barrier
    s_barrier
    s_waitcnt vmcnt(0)
    s_barrier
    L_Gjoin:
    s_sub_u32 {sW}, {sW}, 4
    """)
    gw = sW
    def lds_wait(lbl, addr, off, val, sleep=2):
        a(f"""
        s_mov_b32 s63, 0
        {lbl}:
        ds_read_b32 v178, {addr} offset:{off}
        s_add_u32 s63, s63, 1
        s_cmp_gt_u32 s63, {SPIN_MAX}
        s_cbranch_scc1 {lbl}_x
        s_waitcnt lgkmcnt(0)
        v_cmp_ne_u32 vcc, {val}, v178
        s_cbranch_vccz {lbl}_x
        s_sleep {sleep}
        s_branch {lbl}
        {lbl}_x:
        """)
    a(f"""
    s_barrier
    ds_read_b32 v178, v177 offset:{M_TAG - M_CNTG + 4}
    ds_read_u16 v152, v12
    ds_read_u16 v156, v12 offset:64
    ds_read_u16 v168, v13
    ds_read_u16 v172, v13 offset:64
    s_setprio 3
    s_waitcnt lgkmcnt(0)
    v_readfirstlane_b32 {sTAG}, v178
    s_nop 3
    """)
    lds_wait("L_go", "v177", M_GO - M_CNTG + 4, sTAG, 3)
    a("s_setprio 0")
    stamp(3)
    a(f"s_cmp_eq_u32 {gw}, 3\ns_cbranch_scc1 L_F1w3")
    for k in range(8):
        a(f"s_add_u32 m0, s49, {2048*k}\ns_nop 0\nbuffer_load_dwordx4 v148, {srd(SW1)}, s54 offen lds\nbuffer_load_dwordx4 v149, {srd(SW1)}, s54 offen offset:1024 lds\ns_add_u32 s54, s54, {16*3584}")
    ACC = lambda mt, nt: 32*nt + 16*mt
    def mf(mt, nt, A_, B_, c0=False):
        d = vr(ACC(mt, nt), 16)
        a(f"v_mfma_f32_32x32x16_bf16 {d}, {vr(A_,4)}, {vr(B_,4)}, {'0' if c0 else d}")
    def f1reads(k, w3):
        ab = 120 + 8*(k & 1); bb = 64 + 8*(k & 1); u = k & 7
        r0 = [f"ds_read_b64_tr_b16 {vr(ab,2)}, v144 offset:{2048*u}", f"ds_read_b64_tr_b16 {vr(ab+2,2)}, v144 offset:{2048*u+(256 if w3 else 512)}", f"ds_read_b128 {vr(bb,4)}, v{136+u}"]
        if not w3: r1 = [f"ds_read_b64_tr_b16 {vr(ab+4,2)}, v145 offset:{2048*u}", f"ds_read_b64_tr_b16 {vr(ab+6,2)}, v145 offset:{2048*u+512}"]
        else: r1 = [f"ds_read_b128 {vr(ab+4,4)}, v145 offset:{32*u}"]
        r1.append(f"ds_read_b128 {vr(bb+4,4)}, v{136+u} offset:8192")
        return "\n".join(r0), "\n".join(r1)
    def ffn1(w3):
        nd = 1 if w3 else 2
        lbl = "L_f1b" if w3 else "L_f1a"
        a(f"s_waitcnt vmcnt({7*nd})")
        a("\n".join(f1reads(0, w3)))
        for nt in range(2):
            mf(0, nt, 152, 160, True)
            mf(1, nt, 156, 160, True)
        a(f"s_mov_b32 s62, 4\n{lbl}:")
        a(f"s_sub_u32 s55, {sC0}, s62\ns_add_u32 s55, s55, 1\ns_and_b32 s55, s55, 3\ns_mul_i32 s55, s55, {128*3584}\ns_add_u32 s54, s100, s55")
        a(f"s_cmp_eq_u32 s62, 1\ns_cselect_b32 s{SW1+2}, 0, s{SW1+2}")
        for u in range(8):
            ab = 120 + 8*(u & 1); bb = 64 + 8*(u & 1)
            r0, r1 = f1reads(u+1, w3)
            if u == 7:
                a("s_setprio 3")
                for k in range(8): a(f"v_add_u32 v{136+k}, 0x4000, v{136+k}")
                if w3: a("v_add_u32 v145, 0x100, v145")
                a("v_add_u32 v177, 4, v177\ns_setprio 0")
            a(f"s_waitcnt vmcnt({6*nd}) lgkmcnt(0)")
            mf(0, 0, ab, bb)
            a(r0)
            mf(1, 0, ab+4, bb)
            a(r1)
            a(f"s_add_u32 m0, s49, {2048*u}")
            mf(0, 1, ab, bb+4)
            a(f"buffer_load_dwordx4 v148, {srd(SW1)}, s54 offen lds")
            if u == 7: a("s_mov_b64 exec, 1\nds_add_u32 v177, v167\ns_mov_b64 exec, -1")
            mf(1, 1, ab+4, bb+4)
            if not w3: a(f"buffer_load_dwordx4 v149, {srd(SW1)}, s54 offen offset:1024 lds")
            a(f"s_add_u32 s54, s54, {16*3584}")
        a(f"s_sub_u32 s62, s62, 1\ns_cmp_lg_u32 s62, 0\ns_cbranch_scc1 {lbl}")
    ffn1(False)
    a("s_branch L_F1done\nL_F1w3:")
    for k in range(8):
        a(f"s_add_u32 m0, s49, {2048*k}\ns_nop 0\nbuffer_load_dwordx4 v148, {srd(SW1)}, s54 offen lds\ns_add_u32 s54, s54, {16*3584}")
    a("s_setprio 3\nv_mov_b32 v156, 0\ns_setprio 0")
    ffn1(True)
    a(f"""
    L_F1done:
    s_lshl_b32 s60, {sGRP}, 10
    s_add_u32 s60, s60, {WS_KVF}
    s_mov_b32 s63, 0
    s_getreg_b32 s61, hwreg(HW_REG_XCC_ID, 0, 4)
    s_waitcnt lgkmcnt(0)
    s_setprio 3
    L_xc:
    buffer_load_dwordx2 v[64:65], v180, {srd(SWS)}, s60 offen offset:8 sc1
    s_add_u32 s63, s63, 1
    s_cmp_gt_u32 s63, {SPIN_MAX}
    s_cbranch_scc1 L_xc_x
    s_waitcnt vmcnt(0)
    v_cmp_ne_u32 vcc, {sTAG}, v64
    s_cbranch_vccnz L_xc
    L_xc_x:
    v_cmp_ne_u32 vcc, s61, v65
    s_nop 3
    s_cmp_eq_u64 vcc, 0
    s_cselect_b32 s101, {0 if o.get('nofast') else 1}, 0
    """)
    nst = [0]
    def hstore(ins):
        nst[0] += 1
        a(f"s_cbranch_scc1 L_hs{nst[0]}a\n{ins} sc1\ns_branch L_hs{nst[0]}b\nL_hs{nst[0]}a:\n{ins}\nL_hs{nst[0]}b:")
    stamp(4)
    a(f"""
    s_lshl_b32 s60, {sGRP}, 1
    s_mul_i32 s60, s60, {112*1024}
    s_lshl_b32 s61, s48, 11
    s_add_u32 s60, s60, s61
    s_add_u32 s60, s60, {WS_H}
    s_add_u32 s61, s60, {112*1024}
    s_lshl_b32 s8, {sGRP}, 3
    s_add_u32 s8, s8, {sJ}
    s_lshl_b32 s8, s8, 3
    s_add_u32 s8, s8, {gw}
    s_lshl_b32 s8, s8, 10
    s_add_u32 s8, s8, {WS_O}
    s_add_u32 s9, s8, 4096
    v_mov_b64 v[64:65], -1
    v_mov_b64 v[66:67], -1
    s_cmp_eq_u32 s101, 1
    """)
    hstore(f"buffer_store_dwordx4 v[64:67], v166, {srd(SWS)}, s8 offen")
    hstore(f"buffer_store_dwordx4 v[64:67], v166, {srd(SWS)}, s9 offen")
    def hst(mt, nt):
        b = ACC(mt, nt)
        for r in range(16): a(f"v_max_f32 v{b+r}, 0, v{b+r}")
        for r in range(8): a(f"v_pk_mul_f32 {vr(b+2*r,2)}, {vr(b+2*r,2)}, {vr(b+2*r,2)}")
        for r in range(8): a(f"v_cvt_pk_bf16_f32 v{b+r}, v{b+2*r}, v{b+2*r+1}")
        so = "s61" if nt else "s60"
        a("s_cmp_eq_u32 s101, 1")
        hstore(f"buffer_store_dwordx4 {vr(b,4)}, v166, {srd(SWS)}, {so} offen offset:{2048*mt}")
        hstore(f"buffer_store_dwordx4 {vr(b+4,4)}, v166, {srd(SWS)}, {so} offen offset:{2048*mt+1024}")
    hst(0, 0); hst(0, 1)
    a(f"s_cmp_eq_u32 {gw}, 3\ns_cbranch_scc1 L_gate")
    hst(1, 0); hst(1, 1)
    a(f"""
    s_branch L_gated
    L_gate:
    v_mul_f32 v16, {0x80000000 | LOG2E}, v16
    v_mul_f32 v48, {0x80000000 | LOG2E}, v48
    v_exp_f32 v16, v16
    v_exp_f32 v48, v48
    s_nop 0
    v_add_f32 v16, 1.0, v16
    v_add_f32 v48, 1.0, v48
    v_rcp_f32 v16, v16
    v_rcp_f32 v48, v48
    s_nop 1
    ds_write_b32 v192, v16
    ds_write_b32 v192, v48 offset:128
    L_gated:
    s_mov_b64 exec, 1
    ds_add_u32 v177, v167 offset:4
    s_mov_b64 exec, -1
    """)
    def flag_wait(lbl, vaddr, soff, sleep=2):
        a(f"""
        s_mov_b32 s63, 0
        {lbl}:
        buffer_load_dword v178, {vaddr}, {srd(SWS)}, {soff} offen sc1
        s_add_u32 s63, s63, 1
        s_cmp_gt_u32 s63, {SPIN_MAX}
        s_cbranch_scc1 {lbl}_x
        s_waitcnt vmcnt(0)
        v_cmp_ne_u32 vcc, {sTAG}, v178
        s_cbranch_vccz {lbl}_x
        s_sleep {sleep}
        s_branch {lbl}
        {lbl}_x:
        """)
    a(f"""
    s_mul_i32 s4, {gw}, {448*1024}
    s_lshl_b32 s55, {sJ}, 7
    s_add_u32 s4, s4, s55
    s_lshl_b32 s7, {gw}, 17
    s_add_u32 s7, s7, s55
    s_mul_i32 s5, {sGRP}, {2*112*1024}
    s_mul_i32 s61, {gw}, {28*1024}
    s_add_u32 s5, s5, s61
    s_add_u32 s5, s5, {WS_H}
    s_and_b32 s6, {sGRP}, {3 if o.get('rot2') else 0}
    s_mul_i32 s54, s6, {7*16384}
    s_add_u32 s54, s54, s4
    s_lshl_b32 s10, {sGRP}, 3
    s_add_u32 s61, s10, {sJ}
    s_lshl_b32 s61, s61, 2
    s_add_u32 s61, s61, {gw}
    s_lshl_b32 s61, s61, 7
    s_add_u32 s61, s61, {WS_HF}
    s_lshl_b32 s60, {gw}, 1
    s_add_u32 s10, s10, s60
    s_lshl_b32 s64, s10, 9
    s_add_u32 s64, s64, {WS_HF}
    s_lshl_b32 s10, s10, 13
    s_add_u32 s10, s10, {WS_O}
    s_lshl_b32 s12, {sGRP}, 16
    s_add_u32 s11, s12, {WS_O + 7*1024}
    s_add_u32 s12, s12, s55
    s_add_u32 s9, s12, 0x8000
    s_lshl_b32 s60, {gw}, 13
    s_add_u32 s12, s12, s60
    s_mov_b32 s13, 0
    s_movk_i32 s48, {4*SLOT // 4}
    s_cmp_lt_u32 {gw}, 2
    s_cselect_b32 s48, {(2*SLOT + X_ - OACC) // 4 & 0xffffffff}, s48
    s_lshl_b32 s48, s48, 2
    v_mov_b32 v129, {sTAG}
    s_cmp_eq_u32 {gw}, 0
    s_cselect_b32 s60, -1, 0
    v_and_b32 v160, s60, v160
    s_cmp_eq_u32 s101, 1
    s_mov_b64 exec, 1
    s_waitcnt vmcnt(0)
    """)
    hstore(f"buffer_store_dword v129, off, {srd(SWS)}, s61")
    a("s_mov_b64 exec, -1")
    stamp(5)
    for k in range(7):
        a(f"s_add_u32 m0, s49, {2048*k}\ns_nop 0\nbuffer_load_dwordx4 v150, {srd(SW2)}, s54 offen lds\nbuffer_load_dwordx4 v151, {srd(SW2)}, s54 offen offset:1024 lds\ns_add_u32 s54, s54, 16384")
    a(f"""
    s_add_u32 s60, s7, {7*16384}
    s_add_u32 m0, s49, {2048*7}
    s_nop 0
    buffer_load_dwordx4 v150, {srd(SWO)}, s60 offen lds
    buffer_load_dwordx4 v151, {srd(SWO)}, s60 offen offset:1024 lds
    """)
    lds_wait("L_gs1", "v177", 4, "4")
    a("ds_read_b32 v164, v192\nds_read_b32 v165, v192 offset:128")
    for nt in range(2):
        mf(0, nt, 168, 160, True); mf(1, nt, 172, 160, True)
    flag_wait("L_hw", "v180", "s64")
    a("v_mov_b32 v180, v193")
    stamp(6)
    a(f"""
    s_setprio 0
    s_mul_i32 s60, s6, 7168
    s_add_u32 s60, s60, s5
    s_add_u32 s61, s60, {112*1024}
    """)
    hA = lambda u: f"buffer_load_dwordx4 {vr(64+8*u,4)}, v166, {srd(SH)}, s60 offen sc1\ns_add_u32 s60, s60, 1024"
    hB = lambda u: f"buffer_load_dwordx4 {vr(68+8*u,4)}, v166, {srd(SH)}, s61 offen sc1\ns_add_u32 s61, s61, 1024"
    for u in range(7):
        a(hA(u) + f"\nbuffer_load_dword v178, off, {srd(SW1)}, 0\nbuffer_load_dword v178, off, {srd(SW1)}, 0\n" + hB(u))
    def f2reads(slot, par):
        ab = 120 + 8*par
        return (f"ds_read_b64_tr_b16 {vr(ab,2)}, v146 offset:{2048*slot}\nds_read_b64_tr_b16 {vr(ab+2,2)}, v146 offset:{2048*slot+1024}",
                f"ds_read_b64_tr_b16 {vr(ab+4,2)}, v147 offset:{2048*slot}\nds_read_b64_tr_b16 {vr(ab+6,2)}, v147 offset:{2048*slot+1024}")
    a("\n".join(f2reads(0, 0)))
    a("s_mov_b32 s62, 2\nL_f2:")
    for it in range(2):
        a(f"s_add_u32 s6, s6, 1\ns_and_b32 s6, s6, 3\ns_mul_i32 s54, s6, {7*16384}\ns_add_u32 s54, s54, s4\ns_mul_i32 s60, s6, 7168\ns_add_u32 s60, s60, s5\ns_add_u32 s61, s60, {112*1024}")
        if it == 1: a(f"s_cmp_eq_u32 s62, 1\ns_cselect_b32 s{SW2}, s{SWO}, s{SW2}\ns_cselect_b32 s{SW2+1}, s{SWO+1}, s{SW2+1}\ns_cselect_b32 s{SW2+2}, s{SWO+2}, s{SW2+2}\ns_cselect_b32 s54, s7, s54\ns_cselect_b32 s{SH+2}, 0, s{SH+2}")
        for u in range(7):
            par = (7*it + u) & 1
            ab = 120 + 8*par; bb = 64 + 8*u
            r0, r1 = f2reads((u+1) % 7, par ^ 1)
            a("s_waitcnt vmcnt(21) lgkmcnt(0)")
            mf(0, 0, ab, bb)
            a(r0 + "\n" + r1)
            mf(1, 0, ab+4, bb)
            a(hA(u) + f"\ns_add_u32 m0, s49, {2048*u}")
            mf(0, 1, ab, bb+4)
            a(f"buffer_load_dwordx4 v150, {srd(SW2)}, s54 offen lds\nbuffer_load_dwordx4 v151, {srd(SW2)}, s54 offen offset:1024 lds\ns_add_u32 s54, s54, 16384")
            mf(1, 1, ab+4, bb+4)
            a(hB(u))
    a("s_sub_u32 s62, s62, 1\ns_cmp_lg_u32 s62, 0\ns_cbranch_scc1 L_f2")
    a("s_setprio 3\ns_waitcnt vmcnt(2)")
    stamp(7)
    a("s_call_b64 s[14:15], L_fin")
    a(f"""
    v_sub_f32 v182, 1.0, v164
    v_sub_f32 v184, 1.0, v165
    s_nop 6
    """)
    for r in range(16): a(f"v_pk_mul_f32 {vr(2*r,2)}, {vr(2*r,2)}, v[182:183] op_sel_hi:[1,0]")
    for r in range(16, 32): a(f"v_pk_mul_f32 {vr(2*r,2)}, {vr(2*r,2)}, v[184:185] op_sel_hi:[1,0]")
    def cnt_add(off): a(f"s_mov_b64 exec, 1\nds_add_u32 v177, v167 offset:{off}\ns_mov_b64 exec, -1")
    a("s_waitcnt vmcnt(2) lgkmcnt(0)")
    cnt_add(8)
    WOF = lambda i, mt: 192 + 8*i + 4*mt if (i, mt) != (7, 1) else 136
    for i in range(8):
        for mt in range(2):
            for e in range(2): a(f"ds_read_b64_tr_b16 {vr(WOF(i,mt)+2*e,2)}, v{146+mt} offset:{2048*i+1024*e}")
    lds_wait("L_w1", "v177", 8, "4")
    FA = lambda s_, ct: (120 + 8*s_ + 4*ct) if s_ < 2 else (148 + 8*(s_-2) + 4*ct)
    for s_ in range(4):
        for ct in range(2):
            for e in range(2): a(f"ds_read_b64_tr_b16 {vr(FA(s_,ct)+2*e,2)}, v253 offset:{16384*s_+1024*e+32*ct}")
    cnt_add(12)
    stamp(8)
    def ofrags(lbl, loads, regs, sleep):
        a(f"s_mov_b32 s63, 0\n{lbl}:")
        a("\n".join(loads))
        a(f"s_add_u32 s63, s63, 1\ns_cmp_gt_u32 s63, {SPIN_MAX}\ns_cbranch_scc1 {lbl}_x")
        n = len(loads)
        for i in range(n):
            r = regs[i]
            a(f"s_waitcnt vmcnt({n-1-i})")
            if i == 0: a(f"v_max3_u32 v178, v{r}, v{r+1}, v{r+2}\nv_max_u32 v178, v178, v{r+3}")
            else: a(f"v_max3_u32 v178, v178, v{r}, v{r+1}\nv_max3_u32 v178, v178, v{r+2}, v{r+3}")
        a(f"v_cmp_eq_u32 vcc, -1, v178\ns_cbranch_vccz {lbl}_x")
        if sleep: a(f"s_sleep {sleep}")
        a(f"s_branch {lbl}\n{lbl}_x:\ns_waitcnt vmcnt(0)")
    pair = lambda i, extra: f"buffer_load_dwordx4 {vr(64+4*i,4)}, v166, {srd(SWS)}, {'s60' if i >= 4 else 's10'} offen offset:{1024*(i&3)} sc1"
    a("s_add_u32 s60, s10, 8192")
    ofrags("L_o0", [pair(i, 0) for i in range(8)], [64+4*i for i in range(8)], 4)
    stamp(9)
    a("s_waitcnt lgkmcnt(0)\ns_setprio 0")
    for i in range(8):
        mf(0, 0, WOF(i, 0), 64+4*i); mf(1, 0, WOF(i, 1), 64+4*i)
    a("s_setprio 3")
    lds_wait("L_w2", "v177", 12, "4")
    a("s_nop 4")
    for mt in range(2):
        for i in range(4): a(f"ds_write_b128 v{186+i}, {vr(16*mt+4*i,4)} offset:{128*mt}")
    cnt_add(16)
    a(f"v_add_u32 v176, s48, v176\nv_add_u32 v181, s48, v181\nv_mov_b32 v164, v165\ns_add_u32 s8, s8, 4096\ns_add_u32 s10, s10, 4096\ns_mov_b32 s13, 1")
    a(f"s_cmp_eq_u32 {gw}, 3\ns_cbranch_scc1 L_nf\ns_call_b64 s[14:15], L_fin\nL_nf:")
    stamp(10)
    lds_wait("L_rw", "v177", 16, "4", 1)
    for p in range(4):
        a(f"ds_read_b128 {vr(68+8*p,4)}, v190 offset:{16384*p}\nds_read_b128 {vr(72+8*p,4)}, v191 offset:{16384*p}")
    a("s_waitcnt lgkmcnt(4)")
    for r in range(4): a(f"v_pk_add_f32 {vr(68+2*r,2)}, {vr(68+2*r,2)}, {vr(76+2*r,2)}")
    a("s_waitcnt lgkmcnt(0)")
    for r in range(4): a(f"v_pk_add_f32 {vr(84+2*r,2)}, {vr(84+2*r,2)}, {vr(92+2*r,2)}")
    for r in range(4): a(f"v_pk_add_f32 {vr(68+2*r,2)}, {vr(68+2*r,2)}, {vr(84+2*r,2)}")
    for r in range(4): a(f"v_cvt_pk_bf16_f32 v{104+r}, v{68+2*r}, v{69+2*r}")
    a("s_add_u32 s60, s10, 8192")
    idx = [0, 1, 2, 4, 5, 6]
    ofrags("L_o1", [pair(i, 0) for i in idx], [64+4*i for i in idx], 4)
    stamp(11)
    a("s_setprio 0")
    for i in idx:
        mf(0, 1, WOF(i, 0), 64+4*i); mf(1, 1, WOF(i, 1), 64+4*i)
    a("s_setprio 3\ns_nop 10")
    for mt in range(2):
        for i in range(4): a(f"ds_write_b128 v{186+i}, {vr(32+16*mt+4*i,4)} offset:{8192+128*mt}")
    cnt_add(20)
    lds_wait("L_rw1", "v177", 20, "4", 1)
    for p in range(4):
        a(f"ds_read_b128 {vr(64+8*p,4)}, v183 offset:{16384*p}\nds_read_b128 {vr(68+8*p,4)}, v185 offset:{16384*p}")
    a("s_waitcnt lgkmcnt(4)")
    for r in range(4): a(f"v_pk_add_f32 {vr(64+2*r,2)}, {vr(64+2*r,2)}, {vr(72+2*r,2)}")
    a("s_waitcnt lgkmcnt(0)")
    for r in range(4): a(f"v_pk_add_f32 {vr(80+2*r,2)}, {vr(80+2*r,2)}, {vr(88+2*r,2)}")
    for r in range(4): a(f"v_pk_add_f32 {vr(2*r,2)}, {vr(64+2*r,2)}, {vr(80+2*r,2)}")
    a("s_add_u32 s65, s11, 32768")
    stamp(12)
    a(f"s_barrier\ns_cmp_eq_u32 {gw}, 3\ns_cbranch_scc0 L_nf2\ns_call_b64 s[14:15], L_fw_x\nL_nf2:")
    stamp(13)
    fl = [f"buffer_load_dwordx4 {vr(108+0,4)}, v252, {srd(SWS)}, s11 offen sc1", f"buffer_load_dwordx4 {vr(112,4)}, v254, {srd(SWS)}, s11 offen sc1",
          f"buffer_load_dwordx4 {vr(116,4)}, v252, {srd(SWS)}, s65 offen sc1", f"buffer_load_dwordx4 {vr(140,4)}, v254, {srd(SWS)}, s65 offen sc1"]
    fr = [108, 112, 116, 140]
    ofrags("L_o2", fl, fr, 0)
    stamp(14)
    a(f"buffer_store_dwordx4 v[104:107], v179, {srd(SOUT)}, s12 offen")
    for s_ in range(4):
        for ct in range(2): a(f"v_mfma_f32_16x16x32_bf16 {vr(4*ct,4)}, {vr(FA(s_,ct),4)}, {vr(fr[s_],4)}, {vr(4*ct,4)}")
    a("""
    s_nop 6
    v_cvt_pk_bf16_f32 v8, v0, v1
    v_cvt_pk_bf16_f32 v9, v2, v3
    v_cvt_pk_bf16_f32 v10, v4, v5
    v_cvt_pk_bf16_f32 v11, v6, v7
    s_nop 1
    v_permlane16_swap_b32 v8, v10
    v_permlane16_swap_b32 v9, v11
    """)
    a(f"buffer_store_dwordx4 v[8:11], v180, {srd(SOUT)}, s9 offen")
    stamp(15)
    a("s_branch L_gend")
    a(f"""
    L_gsetup:
    s_load_dwordx2 s[{SW1}:{SW1+1}], s[0:1], 48
    s_load_dwordx2 s[{SWO}:{SWO+1}], s[0:1], 32
    s_load_dwordx2 s[{SW2}:{SW2+1}], s[0:1], 64
    s_load_dwordx2 s[{SOUT}:{SOUT+1}], s[0:1], 88
    s_load_dwordx2 s[{SH}:{SH+1}], s[0:1], 104
    s_mov_b32 s{SW1+2}, 1835008
    s_mov_b32 s{SW1+3}, 0x00020000
    s_mov_b32 s{SWO+2}, 524288
    s_mov_b32 s{SWO+3}, 0x00020000
    s_mov_b32 s{SW2+2}, 1835008
    s_mov_b32 s{SW2+3}, 0x00020000
    s_mov_b32 s{SOUT+2}, 2097152
    s_mov_b32 s{SOUT+3}, 0x00020000
    s_mov_b32 s{SH+2}, {WS_SIZE}
    s_mov_b32 s{SH+3}, 0x00020000
    s_sub_u32 s101, {sW}, 4
    s_lshr_b32 s48, {sJ}, 1
    s_mul_i32 s48, s48, 7
    s_and_b32 s63, {sJ}, 1
    s_lshl_b32 s62, s63, 2
    s_add_u32 s62, s62, s101
    s_cmp_eq_u32 s101, 3
    s_cselect_b32 s62, 3, s62
    s_cselect_b32 s63, s63, 0
    s_add_u32 s48, s48, s62
    s_lshl_b32 s48, s48, 1
    s_add_u32 s48, s48, s63
    s_lshl_b32 s100, s48, 6
    s_mul_i32 s54, {sC0}, {128*3584}
    s_add_u32 s54, s54, s100
    s_lshl_b32 s49, s101, 14
    s_add_u32 s49, s49, {W_}
    v_lshrrev_b32 v14, 3, {L}
    v_and_b32 v15, 7, {L}
    v_bfe_u32 v3, {L}, 4, 1
    v_lshlrev_b32 v3, 2, v3
    v_xor_b32 v2, v3, v15
    v_lshlrev_b32 v2, 4, v2
    v_lshl_or_b32 v150, v14, 10, v2
    v_add_u32 v151, 7168, v150
    v_mul_u32_u24 v148, 3584, v14
    v_add_u32 v148, v148, v2
    v_add_u32 v149, {8*3584-1024}, v148
    v_lshlrev_b32 v180, 7, v15
    v_lshlrev_b32 v2, 1, v15
    v_xor_b32 v2, v14, v2
    v_lshlrev_b32 v2, 4, v2
    v_lshl_or_b32 v190, v14, 8, v2
    s_lshl_b32 s62, s101, 11
    s_add_u32 s62, s62, {W_}
    v_add_u32 v190, s62, v190
    v_xor_b32 v191, 16, v190
    v_lshlrev_b32 v2, 4, v15
    v_lshl_or_b32 v179, v14, 10, v2
    v_and_b32 v1, 31, {L}
    v_lshrrev_b32 v14, 5, {L}
    v_xor_b32 v2, v14, v15
    v_lshlrev_b32 v2, 4, v2
    v_lshl_or_b32 v186, v1, 8, v2
    v_add_u32 v186, s49, v186
    v_xor_b32 v187, 32, v186
    v_xor_b32 v188, 64, v186
    v_xor_b32 v189, 0x60, v186
    s_mul_i32 s62, {sJ}, 7
    s_sub_u32 s62, s48, s62
    s_lshl_b32 s62, s62, 6
    s_add_u32 s62, s62, {M_B1}
    v_lshlrev_b32 v13, 1, v1
    v_add_u32 v12, s62, v13
    v_add_u32 v13, {M_B2}, v13
    v_lshlrev_b32 v192, 2, v1
    v_add_u32 v192, {M_G}, v192
    v_and_b32 v3, 15, {L}
    v_xor_b32 v3, v14, v3
    v_lshlrev_b32 v3, 4, v3
    v_lshl_or_b32 v136, v1, 8, v3
    """)
    for k in range(1, 8): a(f"v_xor_b32 v{136+k}, {32*k}, v136")
    tr_addr(144, 8)
    a("v_add_u32 v144, s49, v144\nv_xor_b32 v145, 64, v144")
    tr_addr(146, 4)
    a("v_add_u32 v146, s49, v146\nv_xor_b32 v147, 64, v146")
    for r in (153, 154, 155, 157, 158, 159, 161, 162, 163, 169, 170, 171, 173, 174, 175): a(f"v_mov_b32 v{r}, 0")
    a(f"""
    v_cmp_gt_u32 vcc, 32, {L}
    v_mov_b32 v1, 0x3f80
    v_lshlrev_b32 v166, 4, {L}
    v_cndmask_b32 v160, 0, v1, vcc
    v_mov_b32 v167, 1
    v_mov_b32 v177, {M_CNTG - 4}
    s_and_b32 s62, s101, 1
    s_lshr_b32 s63, s101, 1
    v_and_b32 v1, 15, {L}
    v_lshl_add_u32 v1, s62, 4, v1
    v_lshrrev_b32 v2, 4, {L}
    v_xor_b32 v3, v2, v15
    v_lshlrev_b32 v3, 4, v3
    v_lshl_or_b32 v3, v1, 8, v3
    s_lshl_b32 s62, s63, 7
    s_add_u32 s62, s62, {W_ + 8192}
    v_add_u32 v183, s62, v3
    v_xor_b32 v185, 64, v183
    ; v252/v254 = (g4>>1)*8192 + 16*(row + 32*(g4&1)) (+16384)
    v_and_b32 v3, 1, v2
    v_lshl_add_u32 v252, v3, 5, v1
    v_lshlrev_b32 v252, 4, v252
    v_lshl_add_u32 v252, v14, 13, v252
    v_add_u32 v254, 0x4000, v252
    v_lshlrev_b32 v193, 10, v1
    v_lshl_or_b32 v193, v3, 5, v193
    v_lshl_or_b32 v193, v14, 4, v193
    s_lshl_b32 s62, s63, 6
    v_add_u32 v193, s62, v193
    ; v253 = W + 2048*(4*(g4>>1)+3) + (4h + r')*128 + 16*((4ch + (c'>>1)) ^ 4*(r'>>1)) + 8*(c'&1)
    v_bfe_u32 v1, {L}, 2, 2
    v_lshl_or_b32 v1, v3, 2, v1
    v_lshlrev_b32 v1, 7, v1
    v_lshl_or_b32 v1, v14, 13, v1
    v_bfe_u32 v2, {L}, 3, 1
    v_xor_b32 v2, s63, v2
    v_lshl_or_b32 v1, v2, 6, v1
    v_and_b32 v2, 3, {L}
    v_lshl_or_b32 v1, v2, 3, v1
    v_add_u32 v253, {W_ + 6144}, v1
    s_mul_i32 s62, s101, {SLOT}
    s_add_u32 s63, s62, {OACC}
    s_sub_u32 s62, s62, {2*SLOT - X_}
    s_cmp_lt_u32 s101, 2
    s_cselect_b32 s62, s63, s62
    v_lshlrev_b32 v181, 2, {L}
    v_add_u32 v181, s62, v181
    s_add_u32 s62, s62, {9216 + 252}
    v_lshl_add_u32 v176, v2, 8, s62
    s_cmp_eq_u32 s101, 3
    s_cbranch_scc0 L_gsx
    v_bfe_u32 v2, {L}, 2, 2
    v_lshl_or_b32 v2, v14, 3, v2
    v_lshlrev_b32 v2, 6, v2
    v_bfe_u32 v3, {L}, 4, 1
    v_lshl_or_b32 v2, v3, 5, v2
    v_and_b32 v3, 3, {L}
    v_lshl_or_b32 v2, v3, 3, v2
    v_add_u32 v144, s49, v2
    v_lshlrev_b32 v145, 4, v14
    v_add_u32 v145, {M_GATE}, v145
    v_lshrrev_b32 v1, 2, {L}
    v_mul_u32_u24 v148, 3584, v1
    v_lshl_add_u32 v148, v3, 4, v148
    L_gsx:
    s_waitcnt lgkmcnt(0)
    s_setpc_b64 s[14:15]
    """)
    a(f"""
    L_fin:
    s_mov_b32 s63, 0
    L_fw:
    ds_read_b32 v64, v176
    s_add_u32 s63, s63, 1
    s_cmp_gt_u32 s63, {SPIN_MAX}
    s_cbranch_scc1 L_fw_x
    s_waitcnt lgkmcnt(0)
    v_cmp_ne_u32 vcc, {sTAG}, v64
    s_cbranch_vccz L_fw_x
    s_sleep 3
    s_branch L_fw
    L_fw_x:
    """)
    a("ds_read2st64_b32 v[96:97], v181 offset0:32 offset1:33\nds_read2st64_b32 v[98:99], v181 offset0:34 offset1:35")
    for w in range(4):
        for r in range(4): a(f"ds_read2st64_b32 {vr(64+8*w+2*r,2)}, v181 offset0:{8*r+w} offset1:{8*r+4+w}")
    a("s_waitcnt lgkmcnt(8)\nv_pk_add_f32 v[96:97], v[96:97], v[98:99]")
    for r in range(4): a(f"v_pk_add_f32 {vr(64+2*r,2)}, {vr(64+2*r,2)}, {vr(72+2*r,2)}")
    a("v_add_f32 v100, v96, v97\ns_waitcnt lgkmcnt(0)")
    for r in range(4): a(f"v_pk_add_f32 {vr(80+2*r,2)}, {vr(80+2*r,2)}, {vr(88+2*r,2)}")
    a("v_rcp_f32 v100, v100")
    for r in range(4): a(f"v_pk_add_f32 {vr(64+2*r,2)}, {vr(64+2*r,2)}, {vr(80+2*r,2)}")
    a(f"""
    v_mul_f32 v100, v100, v164
    s_or_b32 s60, s2, {gw}
    s_or_b32 s60, s60, s13
    """)
    for r in range(4): a(f"v_pk_mul_f32 {vr(64+2*r,2)}, {vr(64+2*r,2)}, v[100:101] op_sel_hi:[1,0]")
    for r in range(4): a(f"v_cvt_pk_bf16_f32 v{64+r}, v{64+2*r}, v{65+2*r}")
    a("s_cmp_eq_u32 s101, 1")
    for r in range(4): a(f"v_min_u32 v{64+r}, -2, v{64+r}")
    hstore(f"buffer_store_dwordx4 v[64:67], v166, {srd(SWS)}, s8 offen")
    a(f"""
    s_cmp_lg_u32 s60, 0
    s_cbranch_scc1 L_noep
    v_mov_b32 v101, {sTAG}
    s_mov_b64 exec, 1
    buffer_store_dword v101, off, {srd(SWS)}, 0 sc1
    s_mov_b64 exec, -1
    L_noep:
    s_nop 0
    s_setpc_b64 s[14:15]
    L_gend:
    """)
    if diag: a(f"s_add_u32 {sW}, {sW}, 4")
    diag_out("g")
    a("L_end:\ns_endpgm")

    hdr = open(os.path.join(os.path.dirname(os.path.abspath(__file__)), "..", "cdna_kernels", NAME + ".s.ref")).read().split("\n")
    i0 = next(i for i, l in enumerate(hdr) if l.startswith("; Override"))
    head = "\n".join(hdr[:i0]) + f"\n; @launch grid=(256,1,1) block=(512,1,1) lds={LDS_BYTES}\n"
    return head + f""".amdgcn_target "amdgcn-amd-amdhsa--gfx950"
.text
.globl {NAME}_kernel
.p2align 8
.type {NAME}_kernel,@function
{NAME}_kernel:
{a.text()}.section .rodata,"a"
.p2align 6
.amdhsa_kernel {NAME}_kernel
  .amdhsa_next_free_vgpr 256
  .amdhsa_next_free_sgpr 102
  .amdhsa_accum_offset 256
  .amdhsa_group_segment_fixed_size 0
  .amdhsa_kernarg_size 112
  .amdhsa_user_sgpr_count 2
  .amdhsa_user_sgpr_kernarg_segment_ptr 1
  .amdhsa_system_sgpr_workgroup_id_x 1
.end_amdhsa_kernel
"""

if __name__ == "__main__":
    out = sys.argv[1] if len(sys.argv) > 1 else os.path.join(os.path.dirname(os.path.abspath(__file__)), "..", "cdna_kernels", NAME + ".s")
    opts = dict(x.split("=") if "=" in x else (x, 1) for x in sys.argv[2:])
    open(out, "w").write(gen(diag=bool(opts.pop("diag", 0)), opts=opts))
```

```python
import sys, os
NAME = "gated_mix__grouped_kv_mqa__dense_activation_squared_relu__prompt"

class Asm:
    def __init__(self): self.l = []
    def __call__(self, s):
        for x in s.strip("\n").split("\n"):
            x = x.strip()
            if not x: continue
            self.l.append(x if x.endswith(":") else "    " + x)
    def text(self): return "\n".join(self.l) + "\n"

def vr(a, n): return f"v[{a}:{a+n-1}]"

X_ = 0; W_ = 65536; S_ = 131072
OACC = S_; SLOT = 10240
QF = S_ + 2*SLOT
MISC = QF + 8192
M_G = MISC
M_QMAX = MISC + 256
M_KMAX = MISC + 260
M_CNTA = MISC + 264
M_CNTG = MISC + 272
M_CNTS = MISC + 320
M_M = MISC + 1024
M_GATE = MISC + 2048
M_TAG = MISC + 3072
M_Q0 = MISC + 3076
M_GO = MISC + 3080
M_B1 = MISC + 3136
M_B2 = MISC + 3584
LDS_BYTES = 163840
WS_EPOCH = 0
WS_KVF = 0x1000
WS_HF = 0x10000
WS_OF = 0x40000
WS_K = 0x80000
WS_V = 0x90000
WS_O = 0x100000
WS_H = 0x400000
WS_DIAG = 0xC00000
WS_SIZE = 0x1000000
SX, SWQ, SWKV, SWO, SW1, SB1, SW2, SB2, SGT, SOUT, SWS, SH = 4, 8, 12, 16, 20, 24, 28, 32, 36, 40, 44, 56
def srd(b): return f"s[{b}:{b+3}]"
sW, sGRP, sJ, sTAG, sC0 = "s50", "s51", "s52", "s53", "s3"
QSCALE = 0x3eb8aa3b
LOG2E = 0x3fb8aa3b
SPIN_MAX = 200000

def gen(diag=False, opts=None):
    o = dict(opts or {})
    a = Asm()
    nstamp = [0]
    rt = o.get("rt") or o.get("enc")
    def stamp(i):
        if diag:
            a(f"{'s_memrealtime' if rt else 's_memtime'} s[{68+2*i}:{69+2*i}]\ns_waitcnt lgkmcnt(0)")
    def diag_out(lbl):
        if diag and o.get("enc"):
            role, st = o["enc"][0], int(o["enc"][1:])
            wv = {"a": int(o.get("wv", 0)), "g": 7}[role]
            if lbl == role:
                a(f"s_cmp_lg_u32 s2, 0\ns_cbranch_scc1 L_encx{lbl}\ns_cmp_lg_u32 {sW}, {wv}\ns_cbranch_scc1 L_encx{lbl}")
                if st < 16: a(f"s_sub_u32 s60, s{68+2*st}, s66\ns_lshl_b32 s60, s60, 4")
                else: a("s_mov_b32 s60, 0")
                a(f"s_add_u32 s60, s60, 5000\nL_enc{lbl}:\ns_sleep 4\ns_memrealtime s[62:63]\ns_waitcnt lgkmcnt(0)\ns_sub_u32 s62, s62, s66\ns_cmp_lt_u32 s62, s60\ns_cbranch_scc1 L_enc{lbl}\nL_encx{lbl}:")
        elif diag and rt:
            idx = {"a": [(1, 1), (2, 2), (4, 3), (5, 4), (6, 5), (7, 6), (8, 7)], "s": [], "g": [(2, 8), (3, 9), (4, 10), (6, 11), (7, 12), (15, 13), (9, 14), (11, 15)]}[lbl]
            a("s_load_dwordx2 s[60:61], s[0:1], 96\ns_mov_b32 s62, 256\ns_mov_b32 s63, 0x00020000\ns_waitcnt vmcnt(0) lgkmcnt(0)\ns_mov_b64 exec, 1")
            a("s_not_b32 s66, s66\nv_mov_b32 v1, s66\nbuffer_atomic_umax v1, off, s[60:63], 0\ns_nop 1")
            for st, d in idx:
                a(f"v_mov_b32 v1, s{68+2*st}\nbuffer_atomic_umax v1, off, s[60:63], 0 offset:{4*d}\ns_nop 1")
            a("s_waitcnt vmcnt(0)")
        elif diag:
            a(f"s_lshl_b32 s60, s2, 3\ns_add_u32 s60, s60, {sW}\ns_lshl_b32 s60, s60, 7\ns_add_u32 s60, s60, {WS_DIAG}")
            a("s_waitcnt vmcnt(0) lgkmcnt(0)\ns_mov_b64 exec, 1")
            for i in range(17):
                a(f"v_mov_b32 v1, s{66+2*i}\nbuffer_store_dword v1, off, {srd(SWS)}, s60 offset:{4*i}\ns_nop 1")
            a("s_waitcnt vmcnt(0)")

    L = "v255"
    if diag: a("s_memrealtime s[66:67]\ns_memtime s[68:69]")
    a(f"""
    s_cmp_ge_u32 s2, 256
    s_cbranch_scc1 L_end
    s_load_dwordx2 s[{SWKV}:{SWKV+1}], s[0:1], 16
    s_load_dwordx2 s[48:49], s[0:1], 24
    s_load_dwordx2 s[{SX}:{SX+1}], s[0:1], 0
    s_load_dwordx2 s[{SWS}:{SWS+1}], s[0:1], 104
    s_load_dwordx2 s[{SWQ}:{SWQ+1}], s[0:1], 8
    s_getpc_b64 s[60:61]
    L_pc:
    s_mov_b32 s62, L_end - L_pc
    s_mov_b32 s63, 0x00020000
    v_lshlrev_b32 v2, 7, v0
    v_lshrrev_b32 v1, 6, v0
    buffer_load_dword v178, v2, s[60:63], 0 offen
    v_and_b32 v255, 63, v0
    v_readfirstlane_b32 {sW}, v1
    s_and_b32 s54, s2, 7
    s_lshr_b32 s55, s2, 3
    s_and_b32 {sJ}, s55, 7
    s_lshr_b32 s55, s55, 3
    s_lshl_b32 {sGRP}, s54, 2
    s_add_u32 {sGRP}, {sGRP}, s55
    s_add_u32 {sC0}, {'s55' if o.get('rot1') else '0'}, {sJ}
    s_and_b32 {sC0}, {sC0}, 3
    s_mov_b32 s{SWKV+2}, 16384
    s_mov_b32 s{SWKV+3}, s63
    s_mov_b32 s{SX+2}, 2097152
    s_mov_b32 s{SX+3}, s63
    s_mov_b32 s{SWS+2}, {WS_SIZE}
    s_mov_b32 s{SWS+3}, s63
    s_mov_b32 s{SWQ+2}, 524288
    s_mov_b32 s{SWQ+3}, s63
    v_lshlrev_b32 v1, 4, {L}
    """)
    if diag:
        for i in range(2, 17): a(f"s_mov_b32 s{66+2*i}, 0")
    a(f"""
    s_cmp_eq_u32 {sW}, 7
    s_cbranch_scc0 L_nKV
    """)
    def get_tag():
        a(f"v_mov_b32 v253, {M_TAG}\nds_read_b32 v253, v253\ns_waitcnt lgkmcnt(0)\nv_readfirstlane_b32 {sTAG}, v253\ns_nop 3")
    a(f"""
    s_setprio 3
    s_mov_b32 m0, {OACC}
    s_and_b32 s60, {sJ}, 3
    v_and_b32 v2, 15, {L}
    v_lshrrev_b32 v3, 4, {L}
    v_lshlrev_b32 v4, 4, v3
    v_lshl_or_b32 v4, v2, 10, v4
    s_lshl_b32 s61, {sGRP}, 2
    s_add_u32 s64, s61, s60
    s_lshl_b32 s62, s64, 14
    s_cmp_lt_u32 {sJ}, 4
    s_waitcnt lgkmcnt(0)
    s_cselect_b32 s{SWKV}, s{SWKV}, s48
    s_cselect_b32 s{SWKV+1}, s{SWKV+1}, s49
    """)
    for d in range(16):
        if d & 3 == 0 and d: a(f"s_mov_b32 m0, {OACC + 1024*d}\ns_movk_i32 s61, {1024*d}")
        a(f"buffer_load_dwordx4 v1, {srd(SWKV)}, {'s61' if d >= 4 else '0'} offen offset:{1024*(d&3)} lds")
    for s in range(16): a(f"buffer_load_dwordx4 {vr(64+4*s,4)}, v4, {srd(SX)}, s62 offen offset:{64*s}")
    a(f"""
    buffer_load_dword v253, off, {srd(SWS)}, 0 sc1
    s_barrier
    v_lshlrev_b32 v5, 8, v3
    v_lshl_or_b32 v5, v2, 3, v5
    v_add_u32 v5, {OACC}, v5
    v_and_b32 v6, 1, v3
    v_lshlrev_b32 v6, 9, v6
    v_lshl_or_b32 v6, v2, 4, v6
    v_lshrrev_b32 v7, 1, v3
    v_lshl_or_b32 v6, v7, 3, v6
    v_mov_b32 v10, {M_TAG}
    s_lshr_b32 s54, s64, 1
    s_lshl_b32 s54, s54, 10
    s_and_b32 s55, s64, 1
    s_lshl_b32 s55, s55, 8
    s_add_u32 s54, s54, s55
    s_cmp_lt_u32 {sJ}, 4
    s_cselect_b32 s55, 0, {WS_V - WS_K}
    s_cselect_b32 s63, -1, 0
    s_add_u32 s54, s54, s55
    s_add_u32 s54, s54, {WS_K}
    s_lshl_b32 s55, {sGRP}, 3
    s_add_u32 s55, s55, {sJ}
    s_lshl_b32 s55, s55, 7
    s_add_u32 s55, s55, {WS_KVF}
    s_cmp_lt_u32 {sJ}, 4
    s_waitcnt vmcnt(17)
    """)
    stamp(1)
    def kvreads(s): a(f"ds_read_b64_tr_b16 {vr(128+4*s,2)}, v5 offset:{1024*s}\nds_read_b64_tr_b16 {vr(130+4*s,2)}, v5 offset:{1024*s+128}")
    for s in range(6): kvreads(s)
    a("s_cbranch_scc0 L_KVv")
    for swap in range(2):
        for s in range(16):
            if s + 6 < 16: kvreads(s+6)
            a(f"s_waitcnt vmcnt({16-s}) lgkmcnt({min(12, 2*(15-s))})")
            A_, B_ = (64+4*s, 128+4*s) if swap else (128+4*s, 64+4*s)
            a(f"v_mfma_f32_16x16x32_bf16 v[192:195], {vr(A_,4)}, {vr(B_,4)}, {'0' if s == 0 else 'v[192:195]'}")
        if not swap: a("s_branch L_KVd\nL_KVv:")
    a(f"""
    L_KVd:
    s_waitcnt vmcnt(0)
    v_readfirstlane_b32 {sTAG}, v253
    s_nop 3
    s_mul_i32 {sTAG}, {sTAG}, 0x9E3779B1
    s_add_u32 {sTAG}, {sTAG}, 0x7F4A7C15
    v_cvt_pk_bf16_f32 v196, v192, v193
    v_cvt_pk_bf16_f32 v197, v194, v195
    v_mov_b32 v11, {sTAG}
    buffer_store_dwordx2 v[196:197], v6, {srd(SWS)}, s54 offen sc1
    ds_write_b32 v10, v11
    v_mul_f32 v8, v192, v192
    v_fmac_f32 v8, v193, v193
    v_fmac_f32 v8, v194, v194
    v_fmac_f32 v8, v195, v195
    v_mov_b32 v9, v8
    s_waitcnt lgkmcnt(0)
    s_barrier
    v_permlane32_swap_b32 v8, v9
    v_add_f32 v8, v8, v9
    v_mov_b32 v9, v8
    s_nop 1
    v_permlane16_swap_b32 v8, v9
    v_add_f32 v8, v8, v9
    s_nop 1
    v_max_u32_dpp v8, v8, v8 row_ror:8 row_mask:0xf bank_mask:0xf
    s_nop 1
    v_max_u32_dpp v8, v8, v8 row_ror:4 row_mask:0xf bank_mask:0xf
    s_nop 1
    v_max_u32_dpp v8, v8, v8 row_ror:2 row_mask:0xf bank_mask:0xf
    s_nop 1
    v_max_u32_dpp v9, v8, v8 row_ror:1 row_mask:0xf bank_mask:0xf
    s_getreg_b32 s61, hwreg(HW_REG_XCC_ID, 0, 4)
    v_mov_b32 v8, {sTAG}
    v_and_b32 v9, s63, v9
    v_mov_b32 v10, {sTAG}
    v_mov_b32 v11, s61
    s_mov_b64 exec, 1
    s_waitcnt vmcnt(0)
    buffer_store_dwordx4 v[8:11], off, {srd(SWS)}, s55 sc1
    s_mov_b64 exec, -1
    s_setprio 0
    """)
    stamp(2)
    a(f"""
    s_barrier
    s_barrier
    s_barrier
    s_call_b64 s[14:15], L_gsetup
    s_branch L_Gjoin
    """)

    a(f"""
    L_nKV:
    v_lshrrev_b32 v1, 4, {L}
    v_and_b32 v2, 15, {L}
    v_xor_b32 v2, v1, v2
    v_lshlrev_b32 v2, 4, v2
    v_lshl_or_b32 v4, v1, 10, v2
    v_xor_b32 v5, 64, v4
    v_add_u32 v5, 3072, v5
    v_xor_b32 v6, 0x80, v4
    v_add_u32 v6, 6144, v6
    v_xor_b32 v7, 0xc0, v4
    v_add_u32 v7, 9216, v7
    v_lshrrev_b32 v1, 3, {L}
    v_and_b32 v2, 7, {L}
    v_bfe_u32 v3, {L}, 4, 1
    v_lshlrev_b32 v3, 2, v3
    v_xor_b32 v2, v3, v2
    v_lshlrev_b32 v2, 4, v2
    v_lshl_or_b32 v8, v1, 10, v2
    v_add_u32 v9, 7168, v8
    v_add_u32 v10, 14336, v8
    v_add_u32 v11, 21504, v8
    s_lshl_b32 s54, {sGRP}, 16
    s_lshl_b32 s60, {sJ}, 7
    s_cmp_ge_u32 {sW}, 4
    s_waitcnt lgkmcnt(0)
    s_cbranch_scc1 L_G
    s_lshl_b32 s55, {sW}, 14
    s_add_u32 s54, s54, s55
    s_lshl_b32 s55, {sC0}, 8
    s_add_u32 s54, s54, s55
    s_lshl_b32 s55, {sC0}, 2
    s_add_u32 s55, s55, {sW}
    s_lshl_b32 s55, s55, 15
    s_add_u32 s55, s55, s60
    s_lshl_b32 s61, {sW}, 12
    s_add_u32 m0, s61, {X_}
    s_nop 0
    """)
    for q in range(4): a(f"buffer_load_dwordx4 v{4+q}, {srd(SX)}, s54 offen offset:{1024*q} lds")
    a(f"s_add_u32 m0, s61, {W_}\ns_nop 0")
    for q in range(4): a(f"buffer_load_dwordx4 v{8+q}, {srd(SWQ)}, s55 offen offset:{1024*q} lds")
    a("s_barrier")
    stamp(1)
    a(f"""
    s_lshr_b32 s60, {sW}, 1
    s_lshl_b32 s60, s60, 13
    v_and_b32 v1, 31, {L}
    v_lshrrev_b32 v2, 5, {L}
    v_and_b32 v3, 15, {L}
    v_xor_b32 v3, v2, v3
    v_lshlrev_b32 v3, 4, v3
    v_lshl_or_b32 v16, v1, 8, v3
    v_add_u32 v16, s60, v16
    """)
    for k in range(1, 8): a(f"v_xor_b32 v{16+k}, {32*k}, v16")
    def tr_addr(dst, hmul, t0=1, t1=2):
        a(f"""
        v_lshrrev_b32 v{t0}, 5, {L}
        v_bfe_u32 v{t1}, {L}, 2, 2
        v_mad_u32_u24 v{t0}, v{t0}, {hmul}, v{t1}
        v_lshlrev_b32 v{t0}, 7, v{t0}
        v_bfe_u32 v{t1}, {L}, 3, 1
        v_lshl_or_b32 v{t0}, v{t1}, 6, v{t0}
        v_bfe_u32 v{t1}, {L}, 4, 1
        v_lshl_or_b32 v{t0}, v{t1}, 5, v{t0}
        v_and_b32 v{t1}, 3, {L}
        v_lshl_or_b32 v{dst}, v{t1}, 3, v{t0}
        """)
    tr_addr(24, 8)
    a(f"""
    s_and_b32 s60, {sW}, 1
    s_lshl_b32 s60, s60, 6
    v_xor_b32 v24, s60, v24
    v_add_u32 v24, {W_}, v24
    v_and_b32 v1, 11, {L}
    v_cmp_eq_u32 vcc, 0, v1
    v_mov_b32 v2, 0x3f803f80
    v_lshlrev_b32 v250, 4, {L}
    v_cndmask_b32 v68, 0, v2, vcc
    v_mov_b32 v251, {M_QMAX}
    v_mov_b32 v69, v68
    v_lshlrev_b32 v247, 7, {L}
    s_lshl_b32 s60, {sW}, 8
    s_add_u32 s60, s60, {OACC}
    v_lshlrev_b32 v244, 2, {L}
    v_add_u32 v244, s60, v244
    v_add_u32 v246, {QF}, v250
    v_add_u32 v252, {WS_V - WS_K}, v250
    s_lshr_b32 s60, {sW}, 1
    s_lshl_b32 s60, s60, 12
    s_and_b32 s61, {sW}, 1
    s_lshl_b32 s61, s61, 11
    s_add_u32 s60, s60, s61
    v_add_u32 v220, s60, v246
    s_lshl_b32 s60, {sW}, 13
    s_add_u32 s60, s60, {WS_KVF}
    s_lshl_b32 s54, {sW}, 14
    s_add_u32 s54, s54, {WS_K}
    s_and_b32 s55, {sJ}, 3
    s_lshl_b32 s55, s55, 12
    s_mov_b32 s62, {QSCALE}
    s_mov_b32 s63, 0
    s_add_u32 s8, s54, s55
    s_add_u32 s55, s55, 4096
    s_and_b32 s55, s55, 0x3fff
    s_add_u32 s9, s54, s55
    s_add_u32 s55, s55, 4096
    s_and_b32 s55, s55, 0x3fff
    s_add_u32 s10, s54, s55
    s_add_u32 s55, s55, 4096
    s_and_b32 s55, s55, 0x3fff
    s_add_u32 s11, s54, s55
    """)
    for t in range(16):
        for r in (68 + 8*t, 70 + 8*t):
            if r != 68: a(f"v_mov_b64 {vr(r,2)}, v[68:69]")
    def qreads(ks):
        b = 192 + 8*(ks % 3)
        a(f"ds_read_b64_tr_b16 {vr(b,2)}, v24 offset:{2048*ks}")
        a(f"ds_read_b64_tr_b16 {vr(b+2,2)}, v24 offset:{2048*ks+512}")
        a(f"ds_read_b128 {vr(b+4,4)}, v{16+(ks&7)} offset:{16384*(ks>>3)}")
    poll = f"buffer_load_dwordx2 v[248:249], v247, {srd(SWS)}, s60 offen sc1"
    for c in range(4):
        a(("s_waitcnt vmcnt(0)\n" if c == 0 else "") + "s_barrier")
        if c == 0: stamp(2)
        if c == 1: a(f"v_mov_b32 v253, {M_TAG}\nds_read_b32 v253, v253")
        if c == 3: a(poll)
        qreads(8*c); qreads(8*c+1)
        for k in range(8):
            ks = 8*c + k
            if k < 6:
                qreads(ks+2); a("s_waitcnt lgkmcnt(6)")
            else:
                a(f"s_waitcnt lgkmcnt({3*(7-k)})")
            if c == 3 and k == 7: a("s_barrier")
            b = 192 + 8*(ks % 3)
            a(f"v_mfma_f32_32x32x16_bf16 v[224:239], {vr(b,4)}, {vr(b+4,4)}, {'0' if ks == 0 else 'v[224:239]'}")
        if c == 1: a(f"v_readfirstlane_b32 {sTAG}, v253")
    stamp(3)
    a(f"""
    s_branch L_kvchk
    L_kvpoll:
    {poll}
    s_add_u32 s63, s63, 1
    s_cmp_gt_u32 s63, {SPIN_MAX}
    s_cbranch_scc1 L_kvok
    L_kvchk:
    s_waitcnt vmcnt(0)
    v_cmp_ne_u32 vcc, {sTAG}, v248
    s_cbranch_vccnz L_kvpoll
    L_kvok:
    s_setprio 2
    """)
    stamp(5)
    D = int(o.get("D", 5))
    def kvload(t):
        return [f"buffer_load_dwordx4 {vr(4*t,4)}, v250, {srd(SWS)}, s{8+(t>>2)} offen offset:{1024*(t&3)} sc1",
                f"buffer_load_dwordx4 {vr(64+8*t,4)}, v252, {srd(SWS)}, s{8+(t>>2)} offen offset:{1024*(t&3)} sc1"]
    for t in range(D): a("\n".join(kvload(t)))
    a("s_nop 0")
    for r in range(16): a(f"v_mul_f32 v{224+r}, s62, v{224+r}")
    for r in range(8): a(f"v_cvt_pk_bf16_f32 v{192+r}, v{224+2*r}, v{225+2*r}")
    a(f"v_mov_b32 v245, {sTAG}\nds_write_b128 v220, v[192:195]\nds_write_b128 v220, v[196:199] offset:1024")
    a(f"s_cmp_lg_u32 {sW}, 0\ns_cbranch_scc1 L_q0s\nds_write_b32 v251, v245 offset:{M_Q0 - M_QMAX}\nL_q0s:")
    stamp(4)
    a("v_mul_f32 v208, v224, v224\nv_mul_f32 v209, v232, v232")
    for r in range(1, 8): a(f"v_fmac_f32 v208, v{224+r}, v{224+r}\nv_fmac_f32 v209, v{232+r}, v{232+r}")
    a(f"""
    s_mov_b32 s63, 0
    L_q0w:
    ds_read_b32 v210, v251 offset:{M_Q0 - M_QMAX}
    ds_read_b128 v[240:243], v246
    s_add_u32 s63, s63, 1
    s_cmp_gt_u32 s63, {SPIN_MAX}
    s_cbranch_scc1 L_q0x
    s_waitcnt lgkmcnt(0)
    v_cmp_ne_u32 vcc, {sTAG}, v210
    s_cbranch_vccnz L_q0w
    L_q0x:
    s_waitcnt vmcnt({2*D-1})
    v_mfma_f32_32x32x16_bf16 v[192:207], v[0:3], v[240:243], 0
    v_permlane32_swap_b32 v208, v209
    v_max_u32_dpp v249, v249, v249 row_ror:8 row_mask:0xf bank_mask:0xf
    v_add_f32 v254, v208, v209
    v_mov_b32 v253, 1
    v_max_u32_dpp v249, v249, v249 row_ror:4 row_mask:0xf bank_mask:0xf
    v_max_u32_dpp v254, v254, v254 row_ror:8 row_mask:0xf bank_mask:0xf
    s_mov_b32 s64, 0x00010001
    v_max_u32_dpp v249, v249, v249 row_ror:2 row_mask:0xf bank_mask:0xf
    v_max_u32_dpp v254, v254, v254 row_ror:4 row_mask:0xf bank_mask:0xf
    s_mov_b32 s65, 0x00010001
    v_max_u32_dpp v249, v249, v249 row_ror:1 row_mask:0xf bank_mask:0xf
    v_max_u32_dpp v254, v254, v254 row_ror:2 row_mask:0xf bank_mask:0xf
    v_add_u32 v246, 1024, v246
    s_mov_b32 s62, 8
    v_max_u32_dpp v254, v254, v254 row_ror:1 row_mask:0xf bank_mask:0xf
    s_mov_b64 exec, s[64:65]
    ds_max_u32 v251, v254
    ds_max_u32 v251, v249 offset:4
    ds_add_u32 v251, v253 offset:8
    s_mov_b64 exec, -1
    s_mov_b32 s64, {0 if o.get('noG') else 0x24}
    """)
    stamp(6)
    if diag: a("s_memrealtime s[86:87]\ns_waitcnt lgkmcnt(0)")
    flush = [f"ds_write2st64_b32 v244, v{224+2*r}, v{225+2*r} offset0:{8*r} offset1:{8*r+4}" for r in range(4)] + ["ds_write2st64_b32 v244, v232, v245 offset0:32 offset1:36", f"v_add_u32 v244, {0 if o.get('noG') else SLOT}, v244"]
    def tile(t, peel=False):
        first = peel and t == 0
        S = [192, 208]
        cur = S[t & 1]; nxt = S[(t+1) & 1]
        Kn = 4*((t+1) % 16); Vp = 64 + 8*((t-1) % 16) + 4; Vc = 64 + 8*t
        m0 = f"v_mfma_f32_32x32x16_bf16 v[224:239], {vr(Vp,4)}, {vr(nxt+4,4)}, v[224:239]"
        m1 = f"v_mfma_f32_32x32x16_bf16 {vr(nxt,16)}, {vr(Kn,4)}, v[240:243], 0"
        m2 = f"v_mfma_f32_32x32x16_bf16 v[224:239], {vr(Vc,4)}, {vr(cur,4)}, {'0' if t == 0 else 'v[224:239]'}"
        e = lambda i: f"v_exp_f32 v{cur+i}, v{cur+i}"
        c = lambda i: f"v_cvt_pk_bf16_f32 v{cur+i}, v{cur+2*i}, v{cur+2*i+1}"
        cp7 = f"v_cvt_pk_bf16_f32 v{nxt+7}, v{nxt+14}, v{nxt+15}"
        seq = []
        if peel:
            if t + D < 16: seq += kvload(t + D)
            if t == int(o.get("go", 0)): seq.append(f"ds_write_b32 v251, v245 offset:{M_GO - M_QMAX}")
            seq.append(f"s_waitcnt vmcnt({max(2*min(t+D+1, 16) - (2*t+3), 0)})")
            seq += [f"v_permlane16_swap_b32 v{Vc+r}, v{Vc+4+r}" for r in range(4)]
        qn = ["ds_read_b128 v[240:243], v246", "v_add_u32 v246, 1024, v246"]
        if o.get("even") or (t == 0 and not first):
            seq += [e(0)] + ([] if first else [cp7]) + [e(1), e(2)] + ([] if first else [m0]) + [c(0), e(3), e(4), c(1), e(5), e(6)]
            if t == 15: seq.append("s_waitcnt lgkmcnt(0)")
            seq.append(m1)
            if t == 14: seq += qn
            seq += [c(2), e(7), e(8), c(3), e(9), e(10)]
            if t == 0 and not first: seq += (flush if not o.get("noflush") else [])
            seq += [c(4), m2, e(11), e(12), c(5), e(13), e(14), c(6)]
        else:
            seq += [e(0)] + ([] if first else [cp7]) + [e(1), e(2), e(3)]
            if t == 15: seq.append("s_waitcnt lgkmcnt(0)")
            seq += [e(4), e(5)] + ([] if first else [m0]) + [e(6), e(7), c(0), c(1), m1, c(2), c(3), e(8), e(9), m2]
            if t == 14: seq += qn
            seq += [e(10), c(4), e(11), e(12), c(5), e(13), e(14), c(6)]
        if t == 15: seq += ["s_sub_u32 s62, s62, 1"]
        seq += [e(15)]
        a("\n".join(seq))
    for t in range(16): tile(t, peel=True)
    a("s_mov_b32 s63, 0\ns_branch L_chk2\n.p2align 6\nL_top:")
    for t in range(16): tile(t)
    if diag and not rt:
        a("s_cmp_lt_u32 s62, 2\ns_cbranch_scc1 L_nst\ns_mov_b32 s90, s92\ns_mov_b32 s92, s94\ns_mov_b32 s94, s96\ns_mov_b32 s96, s98\ns_memtime s[98:99]\ns_waitcnt lgkmcnt(0)\nL_nst:")
    a(f"""
    s_bitcmp1_b32 s64, s62
    s_cbranch_scc1 L_check
    s_cmp_lg_u32 s62, 0
    s_cbranch_scc1 L_top
    v_cvt_pk_bf16_f32 v215, v222, v223
    s_nop 1
    v_mfma_f32_32x32x16_bf16 v[224:239], {vr(64+8*15+4,4)}, v[212:215], v[224:239]
    s_nop 11
    """)
    a("\n".join(flush[:5]) + "\ns_waitcnt lgkmcnt(0)")
    stamp(8)
    if diag: a("s_memrealtime s[88:89]\ns_waitcnt lgkmcnt(0)")
    a("s_barrier")
    diag_out("a")
    a("s_endpgm")
    a(f"""
    L_check:
    s_mov_b32 s63, 0
    s_cmp_eq_u32 s62, 5
    s_cselect_b32 s60, 4, 12
    s_cselect_b32 s61, {OACC + 2*SLOT - X_}, 0
    s_add_u32 s60, s60, {M_CNTG}
    v_mov_b32 v249, s60
    L_xw:
    ds_read_b32 v248, v249
    s_add_u32 s63, s63, 1
    s_cmp_gt_u32 s63, {SPIN_MAX}
    s_cbranch_scc1 L_xw_x
    s_waitcnt lgkmcnt(0)
    v_cmp_ne_u32 vcc, 4, v248
    s_cbranch_vccnz L_xw
    L_xw_x:
    v_subrev_u32 v244, s61, v244
    s_branch L_top
    L_chk2:
    ds_read_b96 v[248:250], v251
    s_add_u32 s63, s63, 1
    s_cmp_gt_u32 s63, {SPIN_MAX}
    s_cbranch_scc1 L_chk3
    s_waitcnt lgkmcnt(0)
    v_cmp_ne_u32 vcc, 16, v250
    s_cbranch_vccnz L_chk2
    L_chk3:
    v_mul_f32 v248, v248, v249
    v_mov_b32 v249, 0x45700000
    """)
    stamp(7)
    a(f"""
    v_cmp_nle_f32 vcc, v248, v249
    s_cbranch_vccz L_top
    """)
    if o.get("force_slow"): a.l[-1] = "    s_nop 0"
    a(f"""
    v_lshlrev_b32 v246, 4, {L}
    v_add_u32 v246, {QF}, v246
    v_and_b32 v247, 31, {L}
    v_lshlrev_b32 v247, 2, v247
    v_add_u32 v247, {M_M}, v247
    v_mov_b32 v251, {M_CNTS}
    s_mov_b32 s62, 8
    L_slow:
    ds_read_b128 v[240:243], v246
    v_add_u32 v246, 1024, v246
    v_mov_b32 v248, 0xff800000
    s_waitcnt lgkmcnt(0)
    """)
    for t in range(16):
        a(f"v_mfma_f32_32x32x16_bf16 v[192:207], {vr(4*t,4)}, v[240:243], 0\ns_nop 11")
        for r in range(8): a(f"v_max3_f32 v248, v248, v{192+2*r}, v{193+2*r}")
    a(f"""
    ds_max_f32 v247, v248
    s_mov_b64 exec, 1
    ds_add_u32 v251, v253
    s_mov_b64 exec, -1
    s_mov_b32 s63, 0
    L_slow2:
    s_sleep 1
    ds_read_b32 v249, v251
    s_add_u32 s63, s63, 1
    s_cmp_gt_u32 s63, {SPIN_MAX}
    s_cbranch_scc1 L_slow3
    s_waitcnt lgkmcnt(0)
    v_cmp_ne_u32 vcc, 4, v249
    s_cbranch_vccnz L_slow2
    L_slow3:
    ds_read_b32 v248, v247
    v_add_u32 v247, 128, v247
    v_add_u32 v251, 4, v251
    s_waitcnt lgkmcnt(0)
    """)
    for t in range(16):
        a(f"v_mfma_f32_32x32x16_bf16 v[192:207], {vr(4*t,4)}, v[240:243], 0\ns_nop 11")
        for r in range(16): a(f"v_sub_f32 v{192+r}, v{192+r}, v248")
        for r in range(16): a(f"v_exp_f32 v{192+r}, v{192+r}")
        a("s_nop 0")
        for r in range(8): a(f"v_cvt_pk_bf16_f32 v{208+r}, v{192+2*r}, v{193+2*r}")
        a("s_nop 1")
        a(f"v_mfma_f32_32x32x16_bf16 v[224:239], {vr(64+8*t,4)}, v[208:211], {'0' if t == 0 else 'v[224:239]'}")
        a(f"v_mfma_f32_32x32x16_bf16 v[224:239], {vr(68+8*t,4)}, v[212:215], v[224:239]")
    a(f"""
    s_cmp_lg_u32 s62, 6
    s_cbranch_scc1 L_slow5
    s_mov_b32 s63, 0
    v_mov_b32 v249, {M_CNTG + 12}
    L_slow4:
    ds_read_b32 v248, v249
    s_add_u32 s63, s63, 1
    s_cmp_gt_u32 s63, {SPIN_MAX}
    s_cbranch_scc1 L_slow4x
    s_waitcnt lgkmcnt(0)
    v_cmp_ne_u32 vcc, 4, v248
    s_cbranch_vccnz L_slow4
    L_slow4x:
    v_subrev_u32 v244, {OACC + 2*SLOT - X_}, v244
    L_slow5:
    """)
    a("s_nop 11")
    a("\n".join(flush))
    a(f"""
    s_sub_u32 s62, s62, 1
    s_cmp_lg_u32 s62, 0
    s_cbranch_scc1 L_slow
    s_waitcnt lgkmcnt(0)
    s_barrier
    """)
    diag_out("s")
    a("s_endpgm")

    a(f"""
    L_G:
    s_cmp_eq_u32 {sW}, 6
    s_cbranch_scc1 L_G6
    s_mov_b32 s64, s60
    s_mov_b32 s65, 1
    s_call_b64 s[14:15], L_gsetup
    s_barrier
    s_call_b64 s[14:15], L_G45
    s_call_b64 s[14:15], L_G45
    s_barrier
    s_call_b64 s[14:15], L_G45
    s_waitcnt vmcnt(32)
    s_barrier
    s_waitcnt vmcnt(16)
    s_barrier
    s_waitcnt vmcnt(0)
    s_barrier
    s_branch L_Gjoin
    L_G45:
    s_add_u32 s55, s65, {sC0}
    s_and_b32 s55, s55, 3
    s_lshl_b32 s61, s65, 14
    s_add_u32 s65, s65, 1
    s_cmp_eq_u32 {sW}, 5
    s_cbranch_scc1 L_G5
    s_lshl_b32 s55, s55, 8
    s_lshl_b32 s60, {sGRP}, 16
    s_add_u32 s55, s55, s60
    """)
    for i in range(4):
        a(f"s_add_u32 m0, s61, {X_ + 4096*i}\ns_nop 0")
        for q in range(4): a(f"buffer_load_dwordx4 v{4+q}, {srd(SX)}, s55 offen offset:{1024*q} lds")
        if i < 3: a("s_add_u32 s55, s55, 16384")
    a(f"""
    s_setpc_b64 s[14:15]
    L_G5:
    s_lshl_b32 s55, s55, 17
    s_add_u32 s55, s55, s64
    """)
    for i in range(4):
        a(f"s_add_u32 m0, s61, {W_ + 4096*i}\ns_nop 0")
        for q in range(4): a(f"buffer_load_dwordx4 v{8+q}, {srd(SWQ)}, s55 offen offset:{1024*q} lds")
        if i < 3: a("s_add_u32 s55, s55, 32768")
    a(f"""
    s_setpc_b64 s[14:15]
    L_G6:
    s_load_dwordx2 s[{SB1}:{SB1+1}], s[0:1], 56
    s_load_dwordx2 s[{SB2}:{SB2+1}], s[0:1], 72
    s_load_dwordx2 s[{SGT}:{SGT+1}], s[0:1], 80
    s_mov_b32 s{SB1+2}, 3584
    s_mov_b32 s{SB1+3}, 0x00020000
    s_mov_b32 s{SB2+2}, 1024
    s_mov_b32 s{SB2+3}, 0x00020000
    s_mov_b32 s{SGT+2}, 1024
    s_mov_b32 s{SGT+3}, 0x00020000
    s_lshl_b32 s61, {sC0}, 4
    v_add_u32 v1, s61, {L}
    v_and_b32 v1, 63, v1
    v_lshlrev_b32 v1, 4, v1
    v_lshlrev_b32 v2, 4, {L}
    s_mul_i32 s61, {sJ}, 448
    s_mov_b32 m0, {M_GATE}
    s_barrier
    s_waitcnt lgkmcnt(0)
    buffer_load_dwordx4 v1, {srd(SGT)}, 0 offen lds
    s_mov_b32 m0, {M_B1}
    s_mov_b64 exec, 0xfffffff
    buffer_load_dwordx4 v2, {srd(SB1)}, s61 offen lds
    s_mov_b32 m0, {M_B2}
    s_mov_b64 exec, 0xff
    buffer_load_dwordx4 v2, {srd(SB2)}, s60 offen lds
    s_mov_b64 exec, -1
    v_mov_b32 v4, 0
    v_mov_b32 v5, 0
    v_mov_b32 v6, 0
    v_mov_b32 v7, 0
    v_add_u32 v2, {MISC}, v2
    v_mov_b32 v8, 0xff800000
    v_mov_b32 v9, v8
    v_mov_b32 v10, v8
    v_mov_b32 v11, v8
    ds_write_b128 v2, v[4:7]
    ds_write_b128 v2, v[8:11] offset:1024
    s_call_b64 s[14:15], L_gsetup
    s_waitcnt lgkmcnt(0)
    s_barrier
    s_barrier
    s_barrier
    s_waitcnt vmcnt(0)
    s_barrier
    L_Gjoin:
    s_sub_u32 {sW}, {sW}, 4
    """)
    gw = sW
    def lds_wait(lbl, addr, off, val, sleep=2):
        a(f"""
        s_mov_b32 s63, 0
        {lbl}:
        ds_read_b32 v178, {addr} offset:{off}
        s_add_u32 s63, s63, 1
        s_cmp_gt_u32 s63, {SPIN_MAX}
        s_cbranch_scc1 {lbl}_x
        s_waitcnt lgkmcnt(0)
        v_cmp_ne_u32 vcc, {val}, v178
        s_cbranch_vccz {lbl}_x
        s_sleep {sleep}
        s_branch {lbl}
        {lbl}_x:
        """)
    a(f"""
    s_barrier
    ds_read_b32 v178, v177 offset:{M_TAG - M_CNTG + 4}
    ds_read_u16 v152, v12
    ds_read_u16 v156, v12 offset:64
    ds_read_u16 v168, v13
    ds_read_u16 v172, v13 offset:64
    s_setprio 3
    s_waitcnt lgkmcnt(0)
    v_readfirstlane_b32 {sTAG}, v178
    s_nop 3
    """)
    if o.get("noG"): a("s_barrier\ns_branch L_gend")
    if int(o.get("go", 0)) >= 0: lds_wait("L_go", "v177", M_GO - M_CNTG + 4, sTAG, 3)
    a(f"s_setprio 0\ns_lshl_b32 s64, {sGRP}, 10\ns_add_u32 s64, s64, {WS_KVF}")
    stamp(3)
    a(f"s_cmp_eq_u32 {gw}, 3\ns_cbranch_scc1 L_F1w3")
    for k in range(8):
        a(f"s_add_u32 m0, s49, {2048*k}\ns_nop 0\nbuffer_load_dwordx4 v148, {srd(SW1)}, s54 offen lds\nbuffer_load_dwordx4 v149, {srd(SW1)}, s54 offen offset:1024 lds\ns_add_u32 s54, s54, {16*3584}")
    ACC = lambda mt, nt: 32*nt + 16*mt
    def mf(mt, nt, A_, B_, c0=False):
        d = vr(ACC(mt, nt), 16)
        a(f"v_mfma_f32_32x32x16_bf16 {d}, {vr(A_,4)}, {vr(B_,4)}, {'0' if c0 else d}")
    def f1reads(k, w3):
        ab = 120 + 8*(k & 1); bb = 64 + 8*(k & 1); u = k & 7
        r0 = [f"ds_read_b64_tr_b16 {vr(ab,2)}, v144 offset:{2048*u}", f"ds_read_b64_tr_b16 {vr(ab+2,2)}, v144 offset:{2048*u+(256 if w3 else 512)}", f"ds_read_b128 {vr(bb,4)}, v{136+u}"]
        if not w3: r1 = [f"ds_read_b64_tr_b16 {vr(ab+4,2)}, v145 offset:{2048*u}", f"ds_read_b64_tr_b16 {vr(ab+6,2)}, v145 offset:{2048*u+512}"]
        else: r1 = [f"ds_read_b128 {vr(ab+4,4)}, v145 offset:{32*u}"]
        r1.append(f"ds_read_b128 {vr(bb+4,4)}, v{136+u} offset:8192")
        return "\n".join(r0), "\n".join(r1)
    xcload = f"buffer_load_dwordx2 v[194:195], v180, {srd(SWS)}, s64 offen offset:8 sc1"
    def ffn1(w3):
        nd = 1 if w3 else 2
        lbl = "L_f1b" if w3 else "L_f1a"
        a(f"s_waitcnt vmcnt({7*nd})")
        a("\n".join(f1reads(0, w3)))
        for nt in range(2):
            mf(0, nt, 152, 160, True)
            mf(1, nt, 156, 160, True)
        a(f"s_mov_b32 s62, 4\n{lbl}:")
        a(f"s_sub_u32 s55, {sC0}, s62\ns_add_u32 s55, s55, 1\ns_and_b32 s55, s55, 3\ns_mul_i32 s55, s55, {128*3584}\ns_add_u32 s54, s100, s55")
        a(f"s_cmp_lg_u32 s62, 2\ns_cbranch_scc1 {lbl}_n\n{xcload}\n{lbl}_n:")
        a(f"s_cmp_eq_u32 s62, 1\ns_cselect_b32 s{SW1+2}, 0, s{SW1+2}")
        for u in range(8):
            ab = 120 + 8*(u & 1); bb = 64 + 8*(u & 1)
            r0, r1 = f1reads(u+1, w3)
            if u == 7:
                a("s_setprio 3")
                for k in range(8): a(f"v_add_u32 v{136+k}, 0x4000, v{136+k}")
                if w3: a("v_add_u32 v145, 0x100, v145")
                a("v_add_u32 v177, 4, v177\ns_setprio 0")
            a(f"s_waitcnt vmcnt({6*nd}) lgkmcnt(0)")
            mf(0, 0, ab, bb)
            a(r0)
            mf(1, 0, ab+4, bb)
            a(r1)
            a(f"s_add_u32 m0, s49, {2048*u}")
            mf(0, 1, ab, bb+4)
            a(f"buffer_load_dwordx4 v148, {srd(SW1)}, s54 offen lds")
            if u == 7: a("s_mov_b64 exec, 1\nds_add_u32 v177, v167\ns_mov_b64 exec, -1")
            mf(1, 1, ab+4, bb+4)
            if not w3: a(f"buffer_load_dwordx4 v149, {srd(SW1)}, s54 offen offset:1024 lds")
            a(f"s_add_u32 s54, s54, {16*3584}")
        a(f"s_sub_u32 s62, s62, 1\ns_cmp_lg_u32 s62, 0\ns_cbranch_scc1 {lbl}")
    ffn1(False)
    a("s_branch L_F1done\nL_F1w3:")
    for k in range(8):
        a(f"s_add_u32 m0, s49, {2048*k}\ns_nop 0\nbuffer_load_dwordx4 v148, {srd(SW1)}, s54 offen lds\ns_add_u32 s54, s54, {16*3584}")
    a("s_setprio 3\nv_mov_b32 v156, 0\ns_setprio 0")
    ffn1(True)
    a(f"""
    L_F1done:
    s_mov_b32 s63, 0
    s_getreg_b32 s61, hwreg(HW_REG_XCC_ID, 0, 4)
    s_waitcnt vmcnt(8) lgkmcnt(0)
    s_setprio 3
    s_branch L_xc_c
    L_xc:
    {xcload}
    s_add_u32 s63, s63, 1
    s_cmp_gt_u32 s63, {SPIN_MAX}
    s_cbranch_scc1 L_xc_x
    s_waitcnt vmcnt(0)
    L_xc_c:
    v_cmp_ne_u32 vcc, {sTAG}, v194
    s_cbranch_vccnz L_xc
    L_xc_x:
    v_cmp_ne_u32 vcc, s61, v195
    s_nop 3
    s_cmp_eq_u64 vcc, 0
    s_cselect_b32 s101, {0 if o.get('nofast') else 1}, 0
    """)
    nst = [0]
    def hstore(ins):
        nst[0] += 1
        a(f"s_cbranch_scc1 L_hs{nst[0]}a\n{ins} sc1\ns_branch L_hs{nst[0]}b\nL_hs{nst[0]}a:\n{ins}\nL_hs{nst[0]}b:")
    stamp(4)
    a(f"""
    s_lshl_b32 s60, {sGRP}, 1
    s_mul_i32 s60, s60, {112*1024}
    s_lshl_b32 s61, s48, 11
    s_add_u32 s60, s60, s61
    s_add_u32 s60, s60, {WS_H}
    s_add_u32 s61, s60, {112*1024}
    s_lshl_b32 s8, {sGRP}, 3
    s_add_u32 s8, s8, {sJ}
    s_lshl_b32 s8, s8, 3
    s_add_u32 s8, s8, {gw}
    s_lshl_b32 s8, s8, 10
    s_add_u32 s8, s8, {WS_O}
    s_add_u32 s9, s8, 4096
    v_mov_b64 v[64:65], -1
    v_mov_b64 v[66:67], -1
    s_cmp_eq_u32 s101, 1
    """)
    hstore(f"buffer_store_dwordx4 v[64:67], v166, {srd(SWS)}, s8 offen")
    hstore(f"buffer_store_dwordx4 v[64:67], v166, {srd(SWS)}, s9 offen")
    def hst(mt, nt):
        b = ACC(mt, nt)
        for r in range(16): a(f"v_max_f32 v{b+r}, 0, v{b+r}")
        for r in range(8): a(f"v_pk_mul_f32 {vr(b+2*r,2)}, {vr(b+2*r,2)}, {vr(b+2*r,2)}")
        for r in range(8): a(f"v_cvt_pk_bf16_f32 v{b+r}, v{b+2*r}, v{b+2*r+1}")
        so = "s61" if nt else "s60"
        a("s_cmp_eq_u32 s101, 1")
        hstore(f"buffer_store_dwordx4 {vr(b,4)}, v166, {srd(SWS)}, {so} offen offset:{2048*mt}")
        hstore(f"buffer_store_dwordx4 {vr(b+4,4)}, v166, {srd(SWS)}, {so} offen offset:{2048*mt+1024}")
    hst(0, 0); hst(0, 1)
    a(f"s_cmp_eq_u32 {gw}, 3\ns_cbranch_scc1 L_gate")
    hst(1, 0); hst(1, 1)
    a(f"""
    s_branch L_gated
    L_gate:
    v_mul_f32 v16, {0x80000000 | LOG2E}, v16
    v_mul_f32 v48, {0x80000000 | LOG2E}, v48
    v_exp_f32 v16, v16
    v_exp_f32 v48, v48
    s_nop 0
    v_add_f32 v16, 1.0, v16
    v_add_f32 v48, 1.0, v48
    v_rcp_f32 v16, v16
    v_rcp_f32 v48, v48
    s_nop 1
    ds_write_b32 v192, v16
    ds_write_b32 v192, v48 offset:128
    L_gated:
    s_mov_b64 exec, 1
    ds_add_u32 v177, v167 offset:4
    s_mov_b64 exec, -1
    """)
    def fin(B, sfx, first):
        a(f"""
        s_mov_b32 s63, 0
        L_fw{sfx}:
        ds_read_b32 v{B}, v176
        s_add_u32 s63, s63, 1
        s_cmp_gt_u32 s63, {SPIN_MAX}
        s_cbranch_scc1 L_fw{sfx}_x
        s_waitcnt lgkmcnt(0)
        v_cmp_ne_u32 vcc, {sTAG}, v{B}
        s_cbranch_vccz L_fw{sfx}_x
        s_sleep 3
        s_branch L_fw{sfx}
        L_fw{sfx}_x:
        ds_read2st64_b32 {vr(B+32,2)}, v181 offset0:32 offset1:33
        ds_read2st64_b32 {vr(B+34,2)}, v181 offset0:34 offset1:35
        """)
        for w in range(4):
            for r in range(4): a(f"ds_read2st64_b32 {vr(B+8*w+2*r,2)}, v181 offset0:{8*r+w} offset1:{8*r+4+w}")
        a(f"s_cmp_eq_u32 s101, 1\ns_waitcnt lgkmcnt(8)\nv_pk_add_f32 {vr(B+32,2)}, {vr(B+32,2)}, {vr(B+34,2)}")
        for r in range(4): a(f"v_pk_add_f32 {vr(B+2*r,2)}, {vr(B+2*r,2)}, {vr(B+8+2*r,2)}")
        a(f"v_add_f32 v{B+32}, v{B+32}, v{B+33}\ns_waitcnt lgkmcnt(0)")
        for r in range(4): a(f"v_pk_add_f32 {vr(B+16+2*r,2)}, {vr(B+16+2*r,2)}, {vr(B+24+2*r,2)}")
        a(f"v_rcp_f32 v{B+32}, v{B+32}")
        for r in range(4): a(f"v_pk_add_f32 {vr(B+2*r,2)}, {vr(B+2*r,2)}, {vr(B+16+2*r,2)}")
        a(f"v_mul_f32 v{B+32}, v{B+32}, v164")
        for r in range(4): a(f"v_pk_mul_f32 {vr(B+2*r,2)}, {vr(B+2*r,2)}, {vr(B+32,2)} op_sel_hi:[1,0]")
        for r in range(4): a(f"v_cvt_pk_bf16_f32 v{B+r}, v{B+2*r}, v{B+2*r+1}")
        for r in range(4): a(f"v_min_u32 v{B+r}, -2, v{B+r}")
        hstore(f"buffer_store_dwordx4 {vr(B,4)}, v166, {srd(SWS)}, {'s8' if first else 's4'} offen")
        if first:
            a(f"""
            s_or_b32 s55, s2, {gw}
            s_cbranch_scc1 L_noep
            v_mov_b32 v{B+33}, {sTAG}
            s_mov_b64 exec, 1
            buffer_store_dword v{B+33}, off, {srd(SWS)}, 0 sc1
            s_mov_b64 exec, -1
            L_noep:
            """)
        else: a("s_nop 0")
    def flag_wait(lbl, vaddr, soff, sleep=2):
        a(f"""
        s_mov_b32 s63, 0
        {lbl}:
        buffer_load_dword v178, {vaddr}, {srd(SWS)}, {soff} offen sc1
        s_add_u32 s63, s63, 1
        s_cmp_gt_u32 s63, {SPIN_MAX}
        s_cbranch_scc1 {lbl}_x
        s_waitcnt vmcnt(0)
        v_cmp_ne_u32 vcc, {sTAG}, v178
        s_cbranch_vccz {lbl}_x
        s_sleep {sleep}
        s_branch {lbl}
        {lbl}_x:
        """)
    a(f"""
    s_mul_i32 s4, {gw}, {448*1024}
    s_lshl_b32 s55, {sJ}, 7
    s_add_u32 s4, s4, s55
    s_lshl_b32 s7, {gw}, 17
    s_add_u32 s7, s7, s55
    s_mul_i32 s5, {sGRP}, {2*112*1024}
    s_mul_i32 s61, {gw}, {28*1024}
    s_add_u32 s5, s5, s61
    s_add_u32 s5, s5, {WS_H}
    s_and_b32 s6, {sGRP}, {3 if o.get('rot2') else 0}
    s_mul_i32 s54, s6, {7*16384}
    s_add_u32 s54, s54, s4
    s_lshl_b32 s10, {sGRP}, 3
    s_add_u32 s61, s10, {sJ}
    s_lshl_b32 s61, s61, 2
    s_add_u32 s61, s61, {gw}
    s_lshl_b32 s61, s61, 7
    s_add_u32 s61, s61, {WS_HF}
    s_lshl_b32 s60, {gw}, 1
    s_add_u32 s10, s10, s60
    s_lshl_b32 s64, s10, 9
    s_add_u32 s64, s64, {WS_HF}
    s_lshl_b32 s10, s10, 13
    s_add_u32 s10, s10, {WS_O}
    s_lshl_b32 s12, {sGRP}, 16
    s_add_u32 s11, s12, {WS_O + 7*1024}
    s_add_u32 s12, s12, s55
    s_add_u32 s13, s12, 0x8000
    s_lshl_b32 s60, {gw}, 13
    s_add_u32 s12, s12, s60
    s_movk_i32 s48, {4*SLOT // 4}
    s_cmp_lt_u32 {gw}, 2
    s_cselect_b32 s48, {(2*SLOT + X_ - OACC) // 4 & 0xffffffff}, s48
    s_lshl_b32 s48, s48, 2
    v_mov_b32 v129, {sTAG}
    s_cmp_eq_u32 {gw}, 0
    s_cselect_b32 s60, -1, 0
    v_and_b32 v160, s60, v160
    s_cmp_eq_u32 s101, 1
    s_mov_b64 exec, 1
    s_waitcnt vmcnt(0)
    """)
    hstore(f"buffer_store_dword v129, off, {srd(SWS)}, s61")
    a("s_mov_b64 exec, -1")
    stamp(5)
    for k in range(7):
        a(f"s_add_u32 m0, s49, {2048*k}\ns_nop 0\nbuffer_load_dwordx4 v150, {srd(SW2)}, s54 offen lds\nbuffer_load_dwordx4 v151, {srd(SW2)}, s54 offen offset:1024 lds\ns_add_u32 s54, s54, 16384")
    a(f"""
    s_add_u32 s60, s7, {7*16384}
    s_add_u32 m0, s49, {2048*7}
    s_nop 0
    buffer_load_dwordx4 v150, {srd(SWO)}, s60 offen lds
    buffer_load_dwordx4 v151, {srd(SWO)}, s60 offen offset:1024 lds
    """)
    lds_wait("L_gs1", "v177", 4, "4")
    a("ds_read_b32 v164, v192\nds_read_b32 v165, v192 offset:128")
    for nt in range(2):
        mf(0, nt, 168, 160, True); mf(1, nt, 172, 160, True)
    flag_wait("L_hw", "v180", "s64")
    a(f"v_mov_b32 v180, v193\nv_subrev_u32 v168, {OACC - X_}, v190\nv_subrev_u32 v169, {OACC - X_}, v191")
    stamp(6)
    a(f"""
    s_setprio 0
    s_mul_i32 s60, s6, 7168
    s_add_u32 s60, s60, s5
    s_add_u32 s61, s60, {112*1024}
    """)
    hA = lambda u: f"buffer_load_dwordx4 {vr(64+8*u,4)}, v166, {srd(SH)}, s60 offen sc1\ns_add_u32 s60, s60, 1024"
    hB = lambda u: f"buffer_load_dwordx4 {vr(68+8*u,4)}, v166, {srd(SH)}, s61 offen sc1\ns_add_u32 s61, s61, 1024"
    for u in range(7):
        a(hA(u) + f"\nbuffer_load_dword v178, off, {srd(SW1)}, 0\nbuffer_load_dword v178, off, {srd(SW1)}, 0\n" + hB(u))
    def f2reads(slot, par):
        ab = 120 + 8*par
        return (f"ds_read_b64_tr_b16 {vr(ab,2)}, v146 offset:{2048*slot}\nds_read_b64_tr_b16 {vr(ab+2,2)}, v146 offset:{2048*slot+1024}",
                f"ds_read_b64_tr_b16 {vr(ab+4,2)}, v147 offset:{2048*slot}\nds_read_b64_tr_b16 {vr(ab+6,2)}, v147 offset:{2048*slot+1024}")
    a("\n".join(f2reads(0, 0)))
    a("s_add_u32 s65, s10, 8192\ns_mov_b32 s62, 2\nL_f2:")
    for it in range(2):
        a(f"s_add_u32 s6, s6, 1\ns_and_b32 s6, s6, 3\ns_mul_i32 s54, s6, {7*16384}\ns_add_u32 s54, s54, s4\ns_mul_i32 s60, s6, 7168\ns_add_u32 s60, s60, s5\ns_add_u32 s61, s60, {112*1024}")
        if it == 1: a(f"s_cmp_eq_u32 s62, 1\ns_cselect_b32 s{SW2}, s{SWO}, s{SW2}\ns_cselect_b32 s{SW2+1}, s{SWO+1}, s{SW2+1}\ns_cselect_b32 s{SW2+2}, s{SWO+2}, s{SW2+2}\ns_cselect_b32 s54, s7, s54\ns_cselect_b32 s60, s10, s60\ns_cselect_b32 s61, s65, s61")
        for u in range(7):
            par = (7*it + u) & 1
            ab = 120 + 8*par; bb = 64 + 8*u
            r0, r1 = f2reads((u+1) % 7, par ^ 1)
            a("s_waitcnt vmcnt(21) lgkmcnt(0)")
            mf(0, 0, ab, bb)
            a(r0 + "\n" + r1)
            mf(1, 0, ab+4, bb)
            a(hA(u) + f"\ns_add_u32 m0, s49, {2048*u}")
            mf(0, 1, ab, bb+4)
            a(f"buffer_load_dwordx4 v150, {srd(SW2)}, s54 offen lds\nbuffer_load_dwordx4 v151, {srd(SW2)}, s54 offen offset:1024 lds\ns_add_u32 s54, s54, 16384")
            mf(1, 1, ab+4, bb+4)
            a(hB(u))
    a("s_sub_u32 s62, s62, 1\ns_cmp_eq_u32 s62, 0\ns_cbranch_scc1 L_f2x")
    a("s_setprio 3")
    fin(196, "m", True)
    a("s_setprio 0\ns_branch L_f2\nL_f2x:\ns_setprio 3")
    stamp(7)
    def cnt_add(off): a(f"s_mov_b64 exec, 1\nds_add_u32 v177, v167 offset:{off}\ns_mov_b64 exec, -1")
    a("v_sub_f32 v182, 1.0, v164\nv_sub_f32 v184, 1.0, v165\nv_mov_b32 v164, v165\ns_waitcnt vmcnt(1) lgkmcnt(0)")
    cnt_add(8)
    WOF = lambda i, mt: 192 + 8*i + 4*mt if (i, mt) != (7, 1) else 136
    for i in range(8):
        for mt in range(2):
            for e in range(2): a(f"ds_read_b64_tr_b16 {vr(WOF(i,mt)+2*e,2)}, v{146+mt} offset:{2048*i+1024*e}")
    for r in range(16): a(f"v_pk_mul_f32 {vr(2*r,2)}, {vr(2*r,2)}, v[182:183] op_sel_hi:[1,0]")
    for r in range(16, 32): a(f"v_pk_mul_f32 {vr(2*r,2)}, {vr(2*r,2)}, v[184:185] op_sel_hi:[1,0]")
    OF = lambda jj, sl: 64 + 8*sl + 4*jj
    def oload(jj, sl): return f"buffer_load_dwordx4 {vr(OF(jj, sl),4)}, v166, {srd(SWS)}, {('s10', 's65', 's8', 's9')[jj + 2*(sl >> 2)]} offen offset:{1024*(sl&3)} sc1"
    def ofrags(lbl, loads, regs, sleep, pre=False):
        n = len(loads)
        a("s_mov_b32 s63, 0")
        if pre: a(f"s_branch {lbl}_c")
        a(f"{lbl}:")
        a("\n".join(loads))
        a(f"s_add_u32 s63, s63, 1\ns_cmp_gt_u32 s63, {SPIN_MAX}\ns_cbranch_scc1 {lbl}_x\n{lbl}_c:")
        for i in range(n):
            r = regs[i]
            a(f"s_waitcnt vmcnt({n-1-i})")
            if i == 0: a(f"v_max3_u32 v178, v{r}, v{r+1}, v{r+2}\nv_max_u32 v178, v178, v{r+3}")
            else: a(f"v_max3_u32 v178, v178, v{r}, v{r+1}\nv_max3_u32 v178, v178, v{r+2}, v{r+3}")
        a(f"v_cmp_eq_u32 vcc, -1, v178\ns_cbranch_vccz {lbl}_x")
        if sleep: a(f"s_sleep {sleep}")
        a(f"s_branch {lbl}\n{lbl}_x:\ns_waitcnt vmcnt(0)")
    def wo_stage(lbl, nt, sls, sleep, pre):
        ks = [(jj, sl) for sl in sls for jj in range(2)]
        ofrags(lbl, [oload(*k) for k in ks], [OF(*k) for k in ks], sleep, pre)
        a("s_waitcnt lgkmcnt(0)\ns_setprio 0")
        for jj, sl in ks:
            i = 4*jj + (sl & 3)
            mf(0, nt, WOF(i, 0), OF(jj, sl)); mf(1, nt, WOF(i, 1), OF(jj, sl))
        a("s_setprio 3")
    stamp(8)
    wo_stage("L_o0", 0, range(4), 4, True)
    stamp(9)
    a(f"s_add_u32 s4, s8, 4096\ns_add_u32 s8, s10, 4096\ns_add_u32 s9, s65, 4096\nv_add_u32 v176, s48, v176\nv_add_u32 v181, s48, v181")
    a(f"s_mul_i32 s5, {gw}, {SLOT}\ns_cmp_lt_u32 {gw}, 2\ns_cselect_b32 s6, {OACC + 2*SLOT - X_}, 0\ns_add_u32 s5, s5, s6\ns_sub_u32 s5, s49, s5\ns_add_u32 s5, s5, {8192 + 2*SLOT - X_}")
    for mt in range(2):
        for i in range(4): a(f"ds_write_b128 v{186+i}, {vr(16*mt+4*i,4)} offset:{128*mt}")
    cnt_add(16)
    lds_wait("L_w1", "v177", 8, "4")
    FA = lambda s_, ct: (120 + 8*s_ + 4*ct) if s_ < 2 else (148 + 8*(s_-2) + 4*ct)
    for s_ in range(4):
        for ct in range(2):
            for e in range(2): a(f"ds_read_b64_tr_b16 {vr(FA(s_,ct)+2*e,2)}, v253 offset:{16384*s_+1024*e+32*ct}")
    cnt_add(12)
    a(f"s_cmp_lt_u32 {gw}, 2\ns_cbranch_scc0 L_nf\ns_call_b64 s[14:15], L_fin\nL_nf:")
    lds_wait("L_rw", "v177", 16, "4", 1)
    for p in range(4):
        a(f"ds_read_b128 {vr(8*p,4)}, v{190 if p < 2 else 168} offset:{SLOT*(p&1)}\nds_read_b128 {vr(4+8*p,4)}, v{191 if p < 2 else 169} offset:{SLOT*(p&1)}")
    for i in range(4): a(f"v_add_u32 v{186+i}, s5, v{186+i}")
    a("s_waitcnt lgkmcnt(4)")
    for r in range(4): a(f"v_pk_add_f32 {vr(2*r,2)}, {vr(2*r,2)}, {vr(8+2*r,2)}")
    a("s_waitcnt lgkmcnt(0)")
    for r in range(4): a(f"v_pk_add_f32 {vr(16+2*r,2)}, {vr(16+2*r,2)}, {vr(24+2*r,2)}")
    for r in range(4): a(f"v_pk_add_f32 {vr(2*r,2)}, {vr(2*r,2)}, {vr(16+2*r,2)}")
    for r in range(4): a(f"v_cvt_pk_bf16_f32 v{172+r}, v{2*r}, v{2*r+1}")
    stamp(10)
    wo_stage("L_o1", 1, (4, 5), 4, False)
    a(f"s_cmp_eq_u32 {gw}, 2\ns_cbranch_scc0 L_nf1\ns_call_b64 s[14:15], L_fin\nL_nf1:")
    stamp(11)
    wo_stage("L_o1b", 1, (6,), 4, False)
    lds_wait("L_w2", "v177", 12, "4")
    a("s_nop 2")
    for mt in range(2):
        for i in range(4): a(f"ds_write_b128 v{186+i}, {vr(32+16*mt+4*i,4)} offset:{128*mt}")
    cnt_add(20)
    lds_wait("L_rw1", "v177", 20, "4", 1)
    for p in range(4):
        a(f"ds_read_b128 {vr(64+8*p,4)}, v183 offset:{16384*p}\nds_read_b128 {vr(68+8*p,4)}, v185 offset:{16384*p}")
    a("s_waitcnt lgkmcnt(4)")
    for r in range(4): a(f"v_pk_add_f32 {vr(64+2*r,2)}, {vr(64+2*r,2)}, {vr(72+2*r,2)}")
    a("s_waitcnt lgkmcnt(0)")
    for r in range(4): a(f"v_pk_add_f32 {vr(80+2*r,2)}, {vr(80+2*r,2)}, {vr(88+2*r,2)}")
    for r in range(4): a(f"v_pk_add_f32 {vr(2*r,2)}, {vr(64+2*r,2)}, {vr(80+2*r,2)}")
    a("s_add_u32 s65, s11, 32768")
    stamp(12)
    a(f"s_barrier\ns_cmp_eq_u32 {gw}, 3\ns_cbranch_scc0 L_nf2\ns_call_b64 s[14:15], L_fwf_x\nL_nf2:")
    stamp(13)
    fl = [f"buffer_load_dwordx4 {vr(108+0,4)}, v252, {srd(SWS)}, s11 offen sc1", f"buffer_load_dwordx4 {vr(112,4)}, v254, {srd(SWS)}, s11 offen sc1",
          f"buffer_load_dwordx4 {vr(116,4)}, v252, {srd(SWS)}, s65 offen sc1", f"buffer_load_dwordx4 {vr(140,4)}, v254, {srd(SWS)}, s65 offen sc1"]
    fr = [108, 112, 116, 140]
    ofrags("L_o2", fl, fr, 0)
    stamp(14)
    a(f"buffer_store_dwordx4 v[172:175], v179, {srd(SOUT)}, s12 offen")
    for s_ in range(4):
        for ct in range(2): a(f"v_mfma_f32_16x16x32_bf16 {vr(4*ct,4)}, {vr(FA(s_,ct),4)}, {vr(fr[s_],4)}, {vr(4*ct,4)}")
    a("""
    s_nop 6
    v_cvt_pk_bf16_f32 v8, v0, v1
    v_cvt_pk_bf16_f32 v9, v2, v3
    v_cvt_pk_bf16_f32 v10, v4, v5
    v_cvt_pk_bf16_f32 v11, v6, v7
    s_nop 1
    v_permlane16_swap_b32 v8, v10
    v_permlane16_swap_b32 v9, v11
    """)
    a(f"buffer_store_dwordx4 v[8:11], v180, {srd(SOUT)}, s13 offen")
    stamp(15)
    a("s_branch L_gend")
    a(f"""
    L_gsetup:
    s_load_dwordx2 s[{SW1}:{SW1+1}], s[0:1], 48
    s_load_dwordx2 s[{SWO}:{SWO+1}], s[0:1], 32
    s_load_dwordx2 s[{SW2}:{SW2+1}], s[0:1], 64
    s_load_dwordx2 s[{SOUT}:{SOUT+1}], s[0:1], 88
    s_load_dwordx2 s[{SH}:{SH+1}], s[0:1], 104
    s_mov_b32 s{SW1+2}, 1835008
    s_mov_b32 s{SW1+3}, 0x00020000
    s_mov_b32 s{SWO+2}, 524288
    s_mov_b32 s{SWO+3}, 0x00020000
    s_mov_b32 s{SW2+2}, 1835008
    s_mov_b32 s{SW2+3}, 0x00020000
    s_mov_b32 s{SOUT+2}, 2097152
    s_mov_b32 s{SOUT+3}, 0x00020000
    s_mov_b32 s{SH+2}, {WS_SIZE}
    s_mov_b32 s{SH+3}, 0x00020000
    s_sub_u32 s101, {sW}, 4
    s_lshr_b32 s48, {sJ}, 1
    s_mul_i32 s48, s48, 7
    s_and_b32 s63, {sJ}, 1
    s_lshl_b32 s62, s63, 2
    s_add_u32 s62, s62, s101
    s_cmp_eq_u32 s101, 3
    s_cselect_b32 s62, 3, s62
    s_cselect_b32 s63, s63, 0
    s_add_u32 s48, s48, s62
    s_lshl_b32 s48, s48, 1
    s_add_u32 s48, s48, s63
    s_lshl_b32 s100, s48, 6
    s_mul_i32 s54, {sC0}, {128*3584}
    s_add_u32 s54, s54, s100
    s_lshl_b32 s49, s101, 14
    s_add_u32 s49, s49, {W_}
    v_lshrrev_b32 v14, 3, {L}
    v_and_b32 v15, 7, {L}
    v_bfe_u32 v3, {L}, 4, 1
    v_lshlrev_b32 v3, 2, v3
    v_xor_b32 v2, v3, v15
    v_lshlrev_b32 v2, 4, v2
    v_lshl_or_b32 v150, v14, 10, v2
    v_add_u32 v151, 7168, v150
    v_mul_u32_u24 v148, 3584, v14
    v_add_u32 v148, v148, v2
    v_add_u32 v149, {8*3584-1024}, v148
    v_lshlrev_b32 v180, 7, v15
    v_lshlrev_b32 v2, 1, v15
    v_xor_b32 v2, v14, v2
    v_lshlrev_b32 v2, 4, v2
    v_lshl_or_b32 v190, v14, 8, v2
    s_lshl_b32 s62, s101, 11
    s_add_u32 s62, s62, {OACC}
    v_add_u32 v190, s62, v190
    v_xor_b32 v191, 16, v190
    v_lshlrev_b32 v2, 4, v15
    v_lshl_or_b32 v179, v14, 10, v2
    v_and_b32 v1, 31, {L}
    v_lshrrev_b32 v14, 5, {L}
    v_xor_b32 v2, v14, v15
    v_lshlrev_b32 v2, 4, v2
    v_lshl_or_b32 v186, v1, 8, v2
    s_mul_i32 s62, {sJ}, 7
    s_sub_u32 s62, s48, s62
    s_lshl_b32 s62, s62, 6
    s_add_u32 s62, s62, {M_B1}
    v_lshlrev_b32 v13, 1, v1
    v_add_u32 v12, s62, v13
    v_add_u32 v13, {M_B2}, v13
    v_lshlrev_b32 v192, 2, v1
    v_add_u32 v192, {M_G}, v192
    v_and_b32 v3, 15, {L}
    v_xor_b32 v3, v14, v3
    v_lshlrev_b32 v3, 4, v3
    v_lshl_or_b32 v136, v1, 8, v3
    """)
    for k in range(1, 8): a(f"v_xor_b32 v{136+k}, {32*k}, v136")
    tr_addr(144, 8)
    a("v_add_u32 v144, s49, v144\nv_xor_b32 v145, 64, v144")
    tr_addr(146, 4)
    a("v_add_u32 v146, s49, v146\nv_xor_b32 v147, 64, v146")
    for r in (153, 154, 155, 157, 158, 159, 161, 162, 163, 169, 170, 171, 173, 174, 175): a(f"v_mov_b32 v{r}, 0")
    a(f"""
    v_cmp_gt_u32 vcc, 32, {L}
    v_mov_b32 v1, 0x3f80
    v_lshlrev_b32 v166, 4, {L}
    v_cndmask_b32 v160, 0, v1, vcc
    v_mov_b32 v167, 1
    v_mov_b32 v177, {M_CNTG - 4}
    s_and_b32 s62, s101, 1
    s_lshr_b32 s63, s101, 1
    v_and_b32 v1, 15, {L}
    v_lshl_add_u32 v1, s62, 4, v1
    v_lshrrev_b32 v2, 4, {L}
    v_xor_b32 v3, v2, v15
    v_lshlrev_b32 v3, 4, v3
    v_lshl_or_b32 v3, v1, 8, v3
    s_lshl_b32 s62, s63, 7
    s_add_u32 s62, s62, {W_ + 8192}
    v_add_u32 v183, s62, v3
    v_xor_b32 v185, 64, v183
    ; v252/v254 = (g4>>1)*8192 + 16*(row + 32*(g4&1)) (+16384)
    v_and_b32 v3, 1, v2
    v_lshl_add_u32 v252, v3, 5, v1
    v_lshlrev_b32 v252, 4, v252
    v_lshl_add_u32 v252, v14, 13, v252
    v_add_u32 v254, 0x4000, v252
    v_lshlrev_b32 v193, 10, v1
    v_lshl_or_b32 v193, v3, 5, v193
    v_lshl_or_b32 v193, v14, 4, v193
    s_lshl_b32 s62, s63, 6
    v_add_u32 v193, s62, v193
    ; v253 = W + 2048*(4*(g4>>1)+3) + (4h + r')*128 + 16*((4ch + (c'>>1)) ^ 4*(r'>>1)) + 8*(c'&1)
    v_bfe_u32 v1, {L}, 2, 2
    v_lshl_or_b32 v1, v3, 2, v1
    v_lshlrev_b32 v1, 7, v1
    v_lshl_or_b32 v1, v14, 13, v1
    v_bfe_u32 v2, {L}, 3, 1
    v_xor_b32 v2, s63, v2
    v_lshl_or_b32 v1, v2, 6, v1
    v_and_b32 v2, 3, {L}
    v_lshl_or_b32 v1, v2, 3, v1
    v_add_u32 v253, {W_ + 6144}, v1
    s_mul_i32 s62, s101, {SLOT}
    s_add_u32 s63, s62, {OACC}
    s_sub_u32 s62, s62, {2*SLOT - X_}
    s_cmp_lt_u32 s101, 2
    s_cselect_b32 s62, s63, s62
    v_lshlrev_b32 v181, 2, {L}
    v_add_u32 v181, s62, v181
    v_add_u32 v186, s62, v186
    v_xor_b32 v187, 32, v186
    v_xor_b32 v188, 64, v186
    v_xor_b32 v189, 0x60, v186
    s_add_u32 s62, s62, {9216 + 252}
    v_lshl_add_u32 v176, v2, 8, s62
    s_cmp_eq_u32 s101, 3
    s_cbranch_scc0 L_gsx
    v_bfe_u32 v2, {L}, 2, 2
    v_lshl_or_b32 v2, v14, 3, v2
    v_lshlrev_b32 v2, 6, v2
    v_bfe_u32 v3, {L}, 4, 1
    v_lshl_or_b32 v2, v3, 5, v2
    v_and_b32 v3, 3, {L}
    v_lshl_or_b32 v2, v3, 3, v2
    v_add_u32 v144, s49, v2
    v_lshlrev_b32 v145, 4, v14
    v_add_u32 v145, {M_GATE}, v145
    v_lshrrev_b32 v1, 2, {L}
    v_mul_u32_u24 v148, 3584, v1
    v_lshl_add_u32 v148, v3, 4, v148
    L_gsx:
    s_waitcnt lgkmcnt(0)
    s_setpc_b64 s[14:15]
    """)
    a("L_fin:")
    fin(64, "f", False)
    a("s_setpc_b64 s[14:15]\nL_gend:")
    if diag: a(f"s_add_u32 {sW}, {sW}, 4")
    diag_out("g")
    a("L_end:\ns_endpgm")

    hdr = open(os.path.join(os.path.dirname(os.path.abspath(__file__)), "..", "cdna_kernels", NAME + ".s.ref")).read().split("\n")
    i0 = next(i for i, l in enumerate(hdr) if l.startswith("; Override"))
    head = "\n".join(hdr[:i0]) + f"\n; @launch grid=(256,1,1) block=(512,1,1) lds={LDS_BYTES}\n"
    return head + f""".amdgcn_target "amdgcn-amd-amdhsa--gfx950"
.text
.globl {NAME}_kernel
.p2align 8
.type {NAME}_kernel,@function
{NAME}_kernel:
{a.text()}.section .rodata,"a"
.p2align 6
.amdhsa_kernel {NAME}_kernel
  .amdhsa_next_free_vgpr 256
  .amdhsa_next_free_sgpr 102
  .amdhsa_accum_offset 256
  .amdhsa_group_segment_fixed_size 0
  .amdhsa_kernarg_size 112
  .amdhsa_user_sgpr_count 2
  .amdhsa_user_sgpr_kernarg_segment_ptr 1
  .amdhsa_system_sgpr_workgroup_id_x 1
.end_amdhsa_kernel
"""

if __name__ == "__main__":
    out = sys.argv[1] if len(sys.argv) > 1 else os.path.join(os.path.dirname(os.path.abspath(__file__)), "..", "cdna_kernels", NAME + ".s")
    opts = dict(x.split("=") if "=" in x else (x, 1) for x in sys.argv[2:])
    open(out, "w").write(gen(diag=bool(opts.pop("diag", 0)), opts=opts))
```

```python
import sys, os
NAME = "gated_mix__grouped_kv_mqa__dense_activation_squared_relu__prompt"

class Asm:
    def __init__(self): self.l = []
    def __call__(self, s):
        for x in s.strip("\n").split("\n"):
            x = x.strip()
            if not x: continue
            self.l.append(x if x.endswith(":") else "    " + x)
    def text(self): return "\n".join(self.l) + "\n"

def vr(a, n): return f"v[{a}:{a+n-1}]"

X_ = 0; W_ = 65536; S_ = 131072
OACC = S_; SLOT = 10240
QF = S_ + 2*SLOT
MISC = QF + 8192
M_G = MISC
M_QMAX = MISC + 256
M_KMAX = MISC + 260
M_CNTA = MISC + 264
M_CNTG = MISC + 272
M_CNTS = MISC + 320
M_M = MISC + 1024
M_GATE = MISC + 2048
M_TAG = MISC + 3072
M_Q0 = MISC + 3076
M_GO = MISC + 3080
M_B1 = MISC + 3136
M_B2 = MISC + 3584
LDS_BYTES = 163840
WS_EPOCH = 0
WS_KVF = 0x1000
WS_HF = 0x10000
WS_OF = 0x40000
WS_K = 0x80000
WS_V = 0x90000
WS_O = 0x100000
WS_H = 0x400000
WS_DIAG = 0xC00000
WS_SIZE = 0x1000000
SX, SWQ, SWKV, SWO, SW1, SB1, SW2, SB2, SGT, SOUT, SWS, SH = 4, 8, 12, 16, 20, 24, 28, 32, 36, 40, 44, 56
def srd(b): return f"s[{b}:{b+3}]"
sW, sGRP, sJ, sTAG, sC0 = "s50", "s51", "s52", "s53", "s3"
QSCALE = 0x3eb8aa3b
LOG2E = 0x3fb8aa3b
SPIN_MAX = 200000

def gen(diag=False, opts=None):
    o = dict(opts or {})
    a = Asm()
    nstamp = [0]
    rt = o.get("rt") or o.get("enc")
    def stamp(i):
        if diag:
            a(f"{'s_memrealtime' if rt else 's_memtime'} s[{68+2*i}:{69+2*i}]\ns_waitcnt lgkmcnt(0)")
    def diag_out(lbl):
        if diag and o.get("enc"):
            role, st = o["enc"][0], int(o["enc"][1:])
            wv = {"a": int(o.get("wv", 0)), "g": 7}[role]
            if lbl == role:
                a(f"s_cmp_lg_u32 s2, 0\ns_cbranch_scc1 L_encx{lbl}\ns_cmp_lg_u32 {sW}, {wv}\ns_cbranch_scc1 L_encx{lbl}")
                if st < 16: a(f"s_sub_u32 s60, s{68+2*st}, s66\ns_lshl_b32 s60, s60, 4")
                else: a("s_mov_b32 s60, 0")
                a(f"s_add_u32 s60, s60, 5000\nL_enc{lbl}:\ns_sleep 4\ns_memrealtime s[62:63]\ns_waitcnt lgkmcnt(0)\ns_sub_u32 s62, s62, s66\ns_cmp_lt_u32 s62, s60\ns_cbranch_scc1 L_enc{lbl}\nL_encx{lbl}:")
        elif diag and rt:
            idx = {"a": [(1, 1), (2, 2), (4, 3), (5, 4), (6, 5), (7, 6), (8, 7)], "s": [], "g": [(2, 8), (3, 9), (4, 10), (6, 11), (7, 12), (15, 13), (9, 14), (11, 15)]}[lbl]
            a("s_load_dwordx2 s[60:61], s[0:1], 96\ns_mov_b32 s62, 256\ns_mov_b32 s63, 0x00020000\ns_waitcnt vmcnt(0) lgkmcnt(0)\ns_mov_b64 exec, 1")
            a("s_not_b32 s66, s66\nv_mov_b32 v1, s66\nbuffer_atomic_umax v1, off, s[60:63], 0\ns_nop 1")
            for st, d in idx:
                a(f"v_mov_b32 v1, s{68+2*st}\nbuffer_atomic_umax v1, off, s[60:63], 0 offset:{4*d}\ns_nop 1")
            a("s_waitcnt vmcnt(0)")
        elif diag:
            a(f"s_lshl_b32 s60, s2, 3\ns_add_u32 s60, s60, {sW}\ns_lshl_b32 s60, s60, 7\ns_add_u32 s60, s60, {WS_DIAG}")
            a("s_waitcnt vmcnt(0) lgkmcnt(0)\ns_mov_b64 exec, 1")
            for i in range(17):
                a(f"v_mov_b32 v1, s{66+2*i}\nbuffer_store_dword v1, off, {srd(SWS)}, s60 offset:{4*i}\ns_nop 1")
            a("s_waitcnt vmcnt(0)")

    L = "v255"
    if diag: a("s_memrealtime s[66:67]\ns_memtime s[68:69]")
    a(f"""
    s_cmp_ge_u32 s2, 256
    s_cbranch_scc1 L_end
    s_load_dwordx2 s[{SWKV}:{SWKV+1}], s[0:1], 16
    s_load_dwordx2 s[48:49], s[0:1], 24
    s_load_dwordx2 s[{SX}:{SX+1}], s[0:1], 0
    s_load_dwordx2 s[{SWS}:{SWS+1}], s[0:1], 104
    s_load_dwordx2 s[{SWQ}:{SWQ+1}], s[0:1], 8
    s_load_dwordx2 s[{SW2}:{SW2+1}], s[0:1], 48
    s_getpc_b64 s[60:61]
    L_pc:
    s_mov_b32 s62, L_end - L_pc
    s_mov_b32 s63, 0x00020000
    v_lshlrev_b32 v2, 7, v0
    v_lshrrev_b32 v1, 6, v0
    buffer_load_dword v178, v2, s[60:63], 0 offen
    v_and_b32 v255, 63, v0
    v_readfirstlane_b32 {sW}, v1
    s_and_b32 s54, s2, 7
    s_lshr_b32 s55, s2, 3
    s_and_b32 {sJ}, s55, 7
    s_lshr_b32 s55, s55, 3
    s_lshl_b32 {sGRP}, s54, 2
    s_add_u32 {sGRP}, {sGRP}, s55
    s_add_u32 {sC0}, {'s55' if o.get('rot1') else '0' if o.get('rot0') else 's54'}, {sJ}
    s_and_b32 {sC0}, {sC0}, 3
    s_mov_b32 s{SWKV+2}, 16384
    s_mov_b32 s{SWKV+3}, s63
    s_mov_b32 s{SX+2}, 2097152
    s_mov_b32 s{SX+3}, s63
    s_mov_b32 s{SWS+2}, {WS_SIZE}
    s_mov_b32 s{SWS+3}, s63
    s_mov_b32 s{SWQ+2}, 524288
    s_mov_b32 s{SWQ+3}, s63
    v_lshlrev_b32 v1, 4, {L}
    """)
    if diag:
        for i in range(2, 17): a(f"s_mov_b32 s{66+2*i}, 0")
    a(f"""
    s_cmp_eq_u32 {sW}, 7
    s_cbranch_scc0 L_nKV
    """)
    def get_tag():
        a(f"v_mov_b32 v253, {M_TAG}\nds_read_b32 v253, v253\ns_waitcnt lgkmcnt(0)\nv_readfirstlane_b32 {sTAG}, v253\ns_nop 3")
    a(f"""
    s_setprio 3
    s_mov_b32 m0, {OACC}
    s_and_b32 s60, {sJ}, 3
    v_and_b32 v2, 15, {L}
    v_lshrrev_b32 v3, 4, {L}
    v_lshlrev_b32 v4, 4, v3
    v_lshl_or_b32 v4, v2, 10, v4
    s_lshl_b32 s61, {sGRP}, 2
    s_add_u32 s64, s61, s60
    s_lshl_b32 s62, s64, 14
    s_cmp_lt_u32 {sJ}, 4
    s_waitcnt lgkmcnt(0)
    s_cselect_b32 s{SWKV}, s{SWKV}, s48
    s_cselect_b32 s{SWKV+1}, s{SWKV+1}, s49
    """)
    for d in range(16):
        if d & 3 == 0 and d: a(f"s_mov_b32 m0, {OACC + 1024*d}\ns_movk_i32 s61, {1024*d}")
        a(f"buffer_load_dwordx4 v1, {srd(SWKV)}, {'s61' if d >= 4 else '0'} offen offset:{1024*(d&3)} lds")
    for s in range(16): a(f"buffer_load_dwordx4 {vr(64+4*s,4)}, v4, {srd(SX)}, s62 offen offset:{64*s}")
    a(f"""
    buffer_load_dword v253, off, {srd(SWS)}, 0 sc1
    s_barrier
    v_lshlrev_b32 v5, 8, v3
    v_lshl_or_b32 v5, v2, 3, v5
    v_add_u32 v5, {OACC}, v5
    v_and_b32 v6, 1, v3
    v_lshlrev_b32 v6, 9, v6
    v_lshl_or_b32 v6, v2, 4, v6
    v_lshrrev_b32 v7, 1, v3
    v_lshl_or_b32 v6, v7, 3, v6
    v_mov_b32 v10, {M_TAG}
    s_lshr_b32 s54, s64, 1
    s_lshl_b32 s54, s54, 10
    s_and_b32 s55, s64, 1
    s_lshl_b32 s55, s55, 8
    s_add_u32 s54, s54, s55
    s_cmp_lt_u32 {sJ}, 4
    s_cselect_b32 s55, 0, {WS_V - WS_K}
    s_cselect_b32 s63, -1, 0
    s_add_u32 s54, s54, s55
    s_add_u32 s54, s54, {WS_K}
    s_lshl_b32 s55, {sGRP}, 3
    s_add_u32 s55, s55, {sJ}
    s_lshl_b32 s55, s55, 7
    s_add_u32 s55, s55, {WS_KVF}
    s_cmp_lt_u32 {sJ}, 4
    s_waitcnt vmcnt(17)
    """)
    stamp(1)
    def kvreads(s): a(f"ds_read_b64_tr_b16 {vr(128+4*s,2)}, v5 offset:{1024*s}\nds_read_b64_tr_b16 {vr(130+4*s,2)}, v5 offset:{1024*s+128}")
    for s in range(6): kvreads(s)
    a("s_cbranch_scc0 L_KVv")
    for swap in range(2):
        for s in range(16):
            if s + 6 < 16: kvreads(s+6)
            a(f"s_waitcnt vmcnt({16-s}) lgkmcnt({min(12, 2*(15-s))})")
            A_, B_ = (64+4*s, 128+4*s) if swap else (128+4*s, 64+4*s)
            a(f"v_mfma_f32_16x16x32_bf16 v[192:195], {vr(A_,4)}, {vr(B_,4)}, {'0' if s == 0 else 'v[192:195]'}")
        if not swap: a("s_branch L_KVd\nL_KVv:")
    a(f"""
    L_KVd:
    s_waitcnt vmcnt(0)
    v_readfirstlane_b32 {sTAG}, v253
    s_nop 3
    s_mul_i32 {sTAG}, {sTAG}, 0x9E3779B1
    s_add_u32 {sTAG}, {sTAG}, 0x7F4A7C15
    v_cvt_pk_bf16_f32 v196, v192, v193
    v_cvt_pk_bf16_f32 v197, v194, v195
    v_mov_b32 v11, {sTAG}
    buffer_store_dwordx2 v[196:197], v6, {srd(SWS)}, s54 offen sc1
    ds_write_b32 v10, v11
    v_mul_f32 v8, v192, v192
    v_fmac_f32 v8, v193, v193
    v_fmac_f32 v8, v194, v194
    v_fmac_f32 v8, v195, v195
    v_mov_b32 v9, v8
    s_waitcnt lgkmcnt(0)
    s_barrier
    v_permlane32_swap_b32 v8, v9
    v_add_f32 v8, v8, v9
    v_mov_b32 v9, v8
    s_nop 1
    v_permlane16_swap_b32 v8, v9
    v_add_f32 v8, v8, v9
    s_nop 1
    v_max_u32_dpp v8, v8, v8 row_ror:8 row_mask:0xf bank_mask:0xf
    s_nop 1
    v_max_u32_dpp v8, v8, v8 row_ror:4 row_mask:0xf bank_mask:0xf
    s_nop 1
    v_max_u32_dpp v8, v8, v8 row_ror:2 row_mask:0xf bank_mask:0xf
    s_nop 1
    v_max_u32_dpp v9, v8, v8 row_ror:1 row_mask:0xf bank_mask:0xf
    s_getreg_b32 s61, hwreg(HW_REG_XCC_ID, 0, 4)
    v_mov_b32 v8, {sTAG}
    v_and_b32 v9, s63, v9
    v_mov_b32 v10, {sTAG}
    v_mov_b32 v11, s61
    s_mov_b64 exec, 1
    s_waitcnt vmcnt(0)
    buffer_store_dwordx4 v[8:11], off, {srd(SWS)}, s55 sc1
    s_mov_b64 exec, -1
    s_setprio 0
    """)
    stamp(2)
    a(f"""
    s_barrier
    s_barrier
    s_barrier
    s_call_b64 s[14:15], L_gsetup
    s_branch L_Gjoin
    """)

    a(f"""
    L_nKV:
    v_lshrrev_b32 v1, 4, {L}
    v_and_b32 v2, 15, {L}
    v_xor_b32 v2, v1, v2
    v_lshlrev_b32 v2, 4, v2
    v_lshl_or_b32 v4, v1, 10, v2
    v_xor_b32 v5, 64, v4
    v_add_u32 v5, 3072, v5
    v_xor_b32 v6, 0x80, v4
    v_add_u32 v6, 6144, v6
    v_xor_b32 v7, 0xc0, v4
    v_add_u32 v7, 9216, v7
    v_lshrrev_b32 v1, 3, {L}
    v_and_b32 v2, 7, {L}
    v_bfe_u32 v3, {L}, 4, 1
    v_lshlrev_b32 v3, 2, v3
    v_xor_b32 v2, v3, v2
    v_lshlrev_b32 v2, 4, v2
    v_lshl_or_b32 v8, v1, 10, v2
    v_add_u32 v9, 7168, v8
    v_add_u32 v10, 14336, v8
    v_add_u32 v11, 21504, v8
    s_lshl_b32 s54, {sGRP}, 16
    s_lshl_b32 s60, {sJ}, 7
    s_cmp_ge_u32 {sW}, 4
    s_waitcnt lgkmcnt(0)
    s_cbranch_scc1 L_G
    s_lshl_b32 s55, {sW}, 14
    s_add_u32 s54, s54, s55
    s_lshl_b32 s55, {sC0}, 8
    s_add_u32 s54, s54, s55
    s_lshl_b32 s55, {sC0}, 2
    s_add_u32 s55, s55, {sW}
    s_lshl_b32 s55, s55, 15
    s_add_u32 s55, s55, s60
    s_lshl_b32 s61, {sW}, 12
    s_add_u32 m0, s61, {X_}
    s_nop 0
    """)
    for q in range(4): a(f"buffer_load_dwordx4 v{4+q}, {srd(SX)}, s54 offen offset:{1024*q} lds")
    a(f"s_add_u32 m0, s61, {W_}\ns_nop 0")
    for q in range(4): a(f"buffer_load_dwordx4 v{8+q}, {srd(SWQ)}, s55 offen offset:{1024*q} lds")
    a("s_barrier")
    def w1touch(first, n):
        if o.get("nopf"): return
        a(f"s_mul_i32 s60, s2, 7168\ns_add_u32 s60, s60, {first}\ns_add_u32 s{SW2}, s{SW2}, s60\ns_addc_u32 s{SW2+1}, s{SW2+1}, 0")
        for i in range(n): a(f"s_load_dword s{SW2+2}, s[{SW2}:{SW2+1}], {64*i}")
    stamp(1)
    a(f"s_mul_i32 s61, {sW}, 896")
    w1touch("s61", 14)
    a(f"""
    s_lshr_b32 s60, {sW}, 1
    s_lshl_b32 s60, s60, 13
    v_and_b32 v1, 31, {L}
    v_lshrrev_b32 v2, 5, {L}
    v_and_b32 v3, 15, {L}
    v_xor_b32 v3, v2, v3
    v_lshlrev_b32 v3, 4, v3
    v_lshl_or_b32 v16, v1, 8, v3
    v_add_u32 v16, s60, v16
    """)
    for k in range(1, 8): a(f"v_xor_b32 v{16+k}, {32*k}, v16")
    def tr_addr(dst, hmul, t0=1, t1=2):
        a(f"""
        v_lshrrev_b32 v{t0}, 5, {L}
        v_bfe_u32 v{t1}, {L}, 2, 2
        v_mad_u32_u24 v{t0}, v{t0}, {hmul}, v{t1}
        v_lshlrev_b32 v{t0}, 7, v{t0}
        v_bfe_u32 v{t1}, {L}, 3, 1
        v_lshl_or_b32 v{t0}, v{t1}, 6, v{t0}
        v_bfe_u32 v{t1}, {L}, 4, 1
        v_lshl_or_b32 v{t0}, v{t1}, 5, v{t0}
        v_and_b32 v{t1}, 3, {L}
        v_lshl_or_b32 v{dst}, v{t1}, 3, v{t0}
        """)
    tr_addr(24, 8)
    a(f"""
    s_and_b32 s60, {sW}, 1
    s_lshl_b32 s60, s60, 6
    v_xor_b32 v24, s60, v24
    v_add_u32 v24, {W_}, v24
    v_and_b32 v1, 11, {L}
    v_cmp_eq_u32 vcc, 0, v1
    v_mov_b32 v2, 0x3f803f80
    v_lshlrev_b32 v250, 4, {L}
    v_cndmask_b32 v68, 0, v2, vcc
    v_mov_b32 v251, {M_QMAX}
    v_mov_b32 v69, v68
    v_lshlrev_b32 v247, 7, {L}
    s_lshl_b32 s60, {sW}, 8
    s_add_u32 s60, s60, {OACC}
    v_lshlrev_b32 v244, 2, {L}
    v_add_u32 v244, s60, v244
    v_add_u32 v246, {QF}, v250
    v_add_u32 v252, {WS_V - WS_K}, v250
    s_lshr_b32 s60, {sW}, 1
    s_lshl_b32 s60, s60, 12
    s_and_b32 s61, {sW}, 1
    s_lshl_b32 s61, s61, 11
    s_add_u32 s60, s60, s61
    v_add_u32 v220, s60, v246
    s_lshl_b32 s60, {sW}, 13
    s_add_u32 s60, s60, {WS_KVF}
    s_lshl_b32 s54, {sW}, 14
    s_add_u32 s54, s54, {WS_K}
    s_and_b32 s55, {sJ}, 3
    s_lshl_b32 s55, s55, 12
    s_mov_b32 s62, {QSCALE}
    s_mov_b32 s63, 0
    s_add_u32 s8, s54, s55
    s_add_u32 s55, s55, 4096
    s_and_b32 s55, s55, 0x3fff
    s_add_u32 s9, s54, s55
    s_add_u32 s55, s55, 4096
    s_and_b32 s55, s55, 0x3fff
    s_add_u32 s10, s54, s55
    s_add_u32 s55, s55, 4096
    s_and_b32 s55, s55, 0x3fff
    s_add_u32 s11, s54, s55
    """)
    for t in range(16):
        for r in (68 + 8*t, 70 + 8*t):
            if r != 68: a(f"v_mov_b64 {vr(r,2)}, v[68:69]")
    def qreads(ks):
        b = 192 + 8*(ks % 3)
        a(f"ds_read_b64_tr_b16 {vr(b,2)}, v24 offset:{2048*ks}")
        a(f"ds_read_b64_tr_b16 {vr(b+2,2)}, v24 offset:{2048*ks+512}")
        a(f"ds_read_b128 {vr(b+4,4)}, v{16+(ks&7)} offset:{16384*(ks>>3)}")
    poll = f"buffer_load_dwordx2 v[248:249], v247, {srd(SWS)}, s60 offen sc1"
    for c in range(4):
        a(("s_waitcnt vmcnt(0) lgkmcnt(0)\n" if c == 0 else "") + "s_barrier")
        if c == 0: stamp(2)
        if c == 1: a(f"v_mov_b32 v253, {M_TAG}\nds_read_b32 v253, v253")
        if c == 3: a(poll)
        qreads(8*c); qreads(8*c+1)
        for k in range(8):
            ks = 8*c + k
            if k < 6:
                qreads(ks+2); a("s_waitcnt lgkmcnt(6)")
            else:
                a(f"s_waitcnt lgkmcnt({3*(7-k)})")
            if c == 3 and k == 7: a("s_barrier")
            b = 192 + 8*(ks % 3)
            a(f"v_mfma_f32_32x32x16_bf16 v[224:239], {vr(b,4)}, {vr(b+4,4)}, {'0' if ks == 0 else 'v[224:239]'}")
        if c == 1: a(f"v_readfirstlane_b32 {sTAG}, v253")
    stamp(3)
    a(f"""
    s_branch L_kvchk
    L_kvpoll:
    {poll}
    s_add_u32 s63, s63, 1
    s_cmp_gt_u32 s63, {SPIN_MAX}
    s_cbranch_scc1 L_kvok
    L_kvchk:
    s_waitcnt vmcnt(0)
    v_cmp_ne_u32 vcc, {sTAG}, v248
    s_cbranch_vccnz L_kvpoll
    L_kvok:
    s_setprio 2
    """)
    stamp(5)
    D = int(o.get("D", 5))
    def kvload(t):
        return [f"buffer_load_dwordx4 {vr(4*t,4)}, v250, {srd(SWS)}, s{8+(t>>2)} offen offset:{1024*(t&3)} sc1",
                f"buffer_load_dwordx4 {vr(64+8*t,4)}, v252, {srd(SWS)}, s{8+(t>>2)} offen offset:{1024*(t&3)} sc1"]
    for t in range(D): a("\n".join(kvload(t)))
    a("s_nop 0")
    for r in range(16): a(f"v_mul_f32 v{224+r}, s62, v{224+r}")
    for r in range(8): a(f"v_cvt_pk_bf16_f32 v{192+r}, v{224+2*r}, v{225+2*r}")
    a(f"v_mov_b32 v245, {sTAG}\nds_write_b128 v220, v[192:195]\nds_write_b128 v220, v[196:199] offset:1024")
    a(f"s_cmp_lg_u32 {sW}, 0\ns_cbranch_scc1 L_q0s\nds_write_b32 v251, v245 offset:{M_Q0 - M_QMAX}\nL_q0s:")
    stamp(4)
    a("v_mul_f32 v208, v224, v224\nv_mul_f32 v209, v232, v232")
    for r in range(1, 8): a(f"v_fmac_f32 v208, v{224+r}, v{224+r}\nv_fmac_f32 v209, v{232+r}, v{232+r}")
    a(f"""
    s_mov_b32 s63, 0
    L_q0w:
    ds_read_b32 v210, v251 offset:{M_Q0 - M_QMAX}
    ds_read_b128 v[240:243], v246
    s_add_u32 s63, s63, 1
    s_cmp_gt_u32 s63, {SPIN_MAX}
    s_cbranch_scc1 L_q0x
    s_waitcnt lgkmcnt(0)
    v_cmp_ne_u32 vcc, {sTAG}, v210
    s_cbranch_vccnz L_q0w
    L_q0x:
    s_waitcnt vmcnt({2*D-1})
    v_mfma_f32_32x32x16_bf16 v[192:207], v[0:3], v[240:243], 0
    v_permlane32_swap_b32 v208, v209
    v_max_u32_dpp v249, v249, v249 row_ror:8 row_mask:0xf bank_mask:0xf
    v_add_f32 v254, v208, v209
    v_mov_b32 v253, 1
    v_max_u32_dpp v249, v249, v249 row_ror:4 row_mask:0xf bank_mask:0xf
    v_max_u32_dpp v254, v254, v254 row_ror:8 row_mask:0xf bank_mask:0xf
    s_mov_b32 s64, 0x00010001
    v_max_u32_dpp v249, v249, v249 row_ror:2 row_mask:0xf bank_mask:0xf
    v_max_u32_dpp v254, v254, v254 row_ror:4 row_mask:0xf bank_mask:0xf
    s_mov_b32 s65, 0x00010001
    v_max_u32_dpp v249, v249, v249 row_ror:1 row_mask:0xf bank_mask:0xf
    v_max_u32_dpp v254, v254, v254 row_ror:2 row_mask:0xf bank_mask:0xf
    v_add_u32 v246, 1024, v246
    s_mov_b32 s62, 8
    v_max_u32_dpp v254, v254, v254 row_ror:1 row_mask:0xf bank_mask:0xf
    s_mov_b64 exec, s[64:65]
    ds_max_u32 v251, v254
    ds_max_u32 v251, v249 offset:4
    ds_add_u32 v251, v253 offset:8
    s_mov_b64 exec, -1
    s_mov_b32 s64, {0 if o.get('noG') else 0x24}
    """)
    stamp(6)
    if diag: a("s_memrealtime s[86:87]\ns_waitcnt lgkmcnt(0)")
    flush = [f"ds_write2st64_b32 v244, v{224+2*r}, v{225+2*r} offset0:{8*r} offset1:{8*r+4}" for r in range(4)] + ["ds_write2st64_b32 v244, v232, v245 offset0:32 offset1:36", f"v_add_u32 v244, {0 if o.get('noG') else SLOT}, v244"]
    def tile(t, peel=False):
        first = peel and t == 0
        S = [192, 208]
        cur = S[t & 1]; nxt = S[(t+1) & 1]
        Kn = 4*((t+1) % 16); Vp = 64 + 8*((t-1) % 16) + 4; Vc = 64 + 8*t
        m0 = f"v_mfma_f32_32x32x16_bf16 v[224:239], {vr(Vp,4)}, {vr(nxt+4,4)}, v[224:239]"
        m1 = f"v_mfma_f32_32x32x16_bf16 {vr(nxt,16)}, {vr(Kn,4)}, v[240:243], 0"
        m2 = f"v_mfma_f32_32x32x16_bf16 v[224:239], {vr(Vc,4)}, {vr(cur,4)}, {'0' if t == 0 else 'v[224:239]'}"
        e = lambda i: f"v_exp_f32 v{cur+i}, v{cur+i}"
        c = lambda i: f"v_cvt_pk_bf16_f32 v{cur+i}, v{cur+2*i}, v{cur+2*i+1}"
        cp7 = f"v_cvt_pk_bf16_f32 v{nxt+7}, v{nxt+14}, v{nxt+15}"
        seq = []
        if peel:
            if t + D < 16: seq += kvload(t + D)
            if t == int(o.get("go", 0)): seq.append(f"ds_write_b32 v251, v245 offset:{M_GO - M_QMAX}")
            seq.append(f"s_waitcnt vmcnt({max(2*min(t+D+1, 16) - (2*t+3), 0)})")
            seq += [f"v_permlane16_swap_b32 v{Vc+r}, v{Vc+4+r}" for r in range(4)]
        qn = ["ds_read_b128 v[240:243], v246", "v_add_u32 v246, 1024, v246"]
        if o.get("even") or (t == 0 and not first):
            seq += [e(0)] + ([] if first else [cp7]) + [e(1), e(2)] + ([] if first else [m0]) + [c(0), e(3), e(4), c(1), e(5), e(6)]
            if t == 15: seq.append("s_waitcnt lgkmcnt(0)")
            seq.append(m1)
            if t == 14: seq += qn
            seq += [c(2), e(7), e(8), c(3), e(9), e(10)]
            if t == 0 and not first: seq += (flush if not o.get("noflush") else [])
            seq += [c(4), m2, e(11), e(12), c(5), e(13), e(14), c(6)]
        else:
            seq += [e(0)] + ([] if first else [cp7]) + [e(1), e(2), e(3)]
            if t == 15: seq.append("s_waitcnt lgkmcnt(0)")
            seq += [e(4), e(5)] + ([] if first else [m0]) + [e(6), e(7), c(0), c(1), m1, c(2), c(3), e(8), e(9), m2]
            if t == 14: seq += qn
            seq += [e(10), c(4), e(11), e(12), c(5), e(13), e(14), c(6)]
        if t == 15: seq += ["s_sub_u32 s62, s62, 1"]
        seq += [e(15)]
        a("\n".join(seq))
    for t in range(16): tile(t, peel=True)
    a("s_mov_b32 s63, 0\ns_branch L_chk2\n.p2align 6\nL_top:")
    for t in range(16): tile(t)
    if diag and not rt:
        a("s_cmp_lt_u32 s62, 2\ns_cbranch_scc1 L_nst\ns_mov_b32 s90, s92\ns_mov_b32 s92, s94\ns_mov_b32 s94, s96\ns_mov_b32 s96, s98\ns_memtime s[98:99]\ns_waitcnt lgkmcnt(0)\nL_nst:")
    a(f"""
    s_bitcmp1_b32 s64, s62
    s_cbranch_scc1 L_check
    s_cmp_lg_u32 s62, 0
    s_cbranch_scc1 L_top
    v_cvt_pk_bf16_f32 v215, v222, v223
    s_nop 1
    v_mfma_f32_32x32x16_bf16 v[224:239], {vr(64+8*15+4,4)}, v[212:215], v[224:239]
    s_nop 11
    """)
    a("\n".join(flush[:5]) + "\ns_waitcnt lgkmcnt(0)")
    stamp(8)
    if diag: a("s_memrealtime s[88:89]\ns_waitcnt lgkmcnt(0)")
    a("s_barrier")
    diag_out("a")
    a("s_endpgm")
    a(f"""
    L_check:
    s_mov_b32 s63, 0
    s_cmp_eq_u32 s62, 5
    s_cselect_b32 s60, 4, 12
    s_cselect_b32 s61, {OACC + 2*SLOT - X_}, 0
    s_add_u32 s60, s60, {M_CNTG}
    v_mov_b32 v249, s60
    L_xw:
    ds_read_b32 v248, v249
    s_add_u32 s63, s63, 1
    s_cmp_gt_u32 s63, {SPIN_MAX}
    s_cbranch_scc1 L_xw_x
    s_waitcnt lgkmcnt(0)
    v_cmp_ne_u32 vcc, 4, v248
    s_cbranch_vccnz L_xw
    L_xw_x:
    v_subrev_u32 v244, s61, v244
    s_branch L_top
    L_chk2:
    ds_read_b96 v[248:250], v251
    s_add_u32 s63, s63, 1
    s_cmp_gt_u32 s63, {SPIN_MAX}
    s_cbranch_scc1 L_chk3
    s_waitcnt lgkmcnt(0)
    v_cmp_ne_u32 vcc, 16, v250
    s_cbranch_vccnz L_chk2
    L_chk3:
    v_mul_f32 v248, v248, v249
    v_mov_b32 v249, 0x45700000
    """)
    stamp(7)
    a(f"""
    v_cmp_nle_f32 vcc, v248, v249
    s_cbranch_vccz L_top
    """)
    if o.get("force_slow"): a.l[-1] = "    s_nop 0"
    a(f"""
    v_lshlrev_b32 v246, 4, {L}
    v_add_u32 v246, {QF}, v246
    v_and_b32 v247, 31, {L}
    v_lshlrev_b32 v247, 2, v247
    v_add_u32 v247, {M_M}, v247
    v_mov_b32 v251, {M_CNTS}
    s_mov_b32 s62, 8
    L_slow:
    ds_read_b128 v[240:243], v246
    v_add_u32 v246, 1024, v246
    v_mov_b32 v248, 0xff800000
    s_waitcnt lgkmcnt(0)
    """)
    for t in range(16):
        a(f"v_mfma_f32_32x32x16_bf16 v[192:207], {vr(4*t,4)}, v[240:243], 0\ns_nop 11")
        for r in range(8): a(f"v_max3_f32 v248, v248, v{192+2*r}, v{193+2*r}")
    a(f"""
    ds_max_f32 v247, v248
    s_mov_b64 exec, 1
    ds_add_u32 v251, v253
    s_mov_b64 exec, -1
    s_mov_b32 s63, 0
    L_slow2:
    s_sleep 1
    ds_read_b32 v249, v251
    s_add_u32 s63, s63, 1
    s_cmp_gt_u32 s63, {SPIN_MAX}
    s_cbranch_scc1 L_slow3
    s_waitcnt lgkmcnt(0)
    v_cmp_ne_u32 vcc, 4, v249
    s_cbranch_vccnz L_slow2
    L_slow3:
    ds_read_b32 v248, v247
    v_add_u32 v247, 128, v247
    v_add_u32 v251, 4, v251
    s_waitcnt lgkmcnt(0)
    """)
    for t in range(16):
        a(f"v_mfma_f32_32x32x16_bf16 v[192:207], {vr(4*t,4)}, v[240:243], 0\ns_nop 11")
        for r in range(16): a(f"v_sub_f32 v{192+r}, v{192+r}, v248")
        for r in range(16): a(f"v_exp_f32 v{192+r}, v{192+r}")
        a("s_nop 0")
        for r in range(8): a(f"v_cvt_pk_bf16_f32 v{208+r}, v{192+2*r}, v{193+2*r}")
        a("s_nop 1")
        a(f"v_mfma_f32_32x32x16_bf16 v[224:239], {vr(64+8*t,4)}, v[208:211], {'0' if t == 0 else 'v[224:239]'}")
        a(f"v_mfma_f32_32x32x16_bf16 v[224:239], {vr(68+8*t,4)}, v[212:215], v[224:239]")
    a(f"""
    s_cmp_lg_u32 s62, 6
    s_cbranch_scc1 L_slow5
    s_mov_b32 s63, 0
    v_mov_b32 v249, {M_CNTG + 12}
    L_slow4:
    ds_read_b32 v248, v249
    s_add_u32 s63, s63, 1
    s_cmp_gt_u32 s63, {SPIN_MAX}
    s_cbranch_scc1 L_slow4x
    s_waitcnt lgkmcnt(0)
    v_cmp_ne_u32 vcc, 4, v248
    s_cbranch_vccnz L_slow4
    L_slow4x:
    v_subrev_u32 v244, {OACC + 2*SLOT - X_}, v244
    L_slow5:
    """)
    a("s_nop 11")
    a("\n".join(flush))
    a(f"""
    s_sub_u32 s62, s62, 1
    s_cmp_lg_u32 s62, 0
    s_cbranch_scc1 L_slow
    s_waitcnt lgkmcnt(0)
    s_barrier
    """)
    diag_out("s")
    a("s_endpgm")

    a(f"""
    L_G:
    s_cmp_eq_u32 {sW}, 6
    s_cbranch_scc1 L_G6
    s_mov_b32 s64, s60
    s_mov_b32 s65, 1
    s_call_b64 s[14:15], L_gsetup
    s_barrier
    s_call_b64 s[14:15], L_G45
    s_call_b64 s[14:15], L_G45
    s_barrier
    s_call_b64 s[14:15], L_G45
    s_waitcnt vmcnt(32)
    s_barrier
    s_waitcnt vmcnt(16)
    s_barrier
    s_waitcnt vmcnt(0)
    s_barrier
    s_branch L_Gjoin
    L_G45:
    s_add_u32 s55, s65, {sC0}
    s_and_b32 s55, s55, 3
    s_lshl_b32 s61, s65, 14
    s_add_u32 s65, s65, 1
    s_cmp_eq_u32 {sW}, 5
    s_cbranch_scc1 L_G5
    s_lshl_b32 s55, s55, 8
    s_lshl_b32 s60, {sGRP}, 16
    s_add_u32 s55, s55, s60
    """)
    for i in range(4):
        a(f"s_add_u32 m0, s61, {X_ + 4096*i}\ns_nop 0")
        for q in range(4): a(f"buffer_load_dwordx4 v{4+q}, {srd(SX)}, s55 offen offset:{1024*q} lds")
        if i < 3: a("s_add_u32 s55, s55, 16384")
    a(f"""
    s_setpc_b64 s[14:15]
    L_G5:
    s_lshl_b32 s55, s55, 17
    s_add_u32 s55, s55, s64
    """)
    for i in range(4):
        a(f"s_add_u32 m0, s61, {W_ + 4096*i}\ns_nop 0")
        for q in range(4): a(f"buffer_load_dwordx4 v{8+q}, {srd(SWQ)}, s55 offen offset:{1024*q} lds")
        if i < 3: a("s_add_u32 s55, s55, 32768")
    a(f"""
    s_setpc_b64 s[14:15]
    L_G6:
    s_load_dwordx2 s[{SB1}:{SB1+1}], s[0:1], 56
    s_load_dwordx2 s[{SB2}:{SB2+1}], s[0:1], 72
    s_load_dwordx2 s[{SGT}:{SGT+1}], s[0:1], 80
    s_mul_i32 s61, s2, 7168
    s_add_u32 s61, s61, 3584
    s_add_u32 s64, s{SW2}, s61
    s_addc_u32 s65, s{SW2+1}, 0
    s_mov_b32 s{SB1+2}, 3584
    s_mov_b32 s{SB1+3}, 0x00020000
    s_mov_b32 s{SB2+2}, 1024
    s_mov_b32 s{SB2+3}, 0x00020000
    s_mov_b32 s{SGT+2}, 1024
    s_mov_b32 s{SGT+3}, 0x00020000
    v_mov_b32 v4, 0
    v_mov_b32 v5, 0
    v_mov_b32 v6, 0
    v_mov_b32 v7, 0
    v_lshlrev_b32 v16, 4, {L}
    v_add_u32 v2, {MISC}, v16
    v_mov_b32 v8, 0xff800000
    v_mov_b32 v9, v8
    v_mov_b32 v10, v8
    v_mov_b32 v11, v8
    ds_write_b128 v2, v[4:7]
    ds_write_b128 v2, v[8:11] offset:1024
    s_call_b64 s[14:15], L_gsetup
    s_lshl_b32 s61, {sC0}, 4
    v_add_u32 v1, s61, {L}
    v_and_b32 v1, 63, v1
    v_lshlrev_b32 v1, 4, v1
    s_mul_i32 s61, {sJ}, 448
    s_mov_b32 m0, {M_GATE}
    """)
    def g6touch(i0, i1):
        if not o.get("nopf"):
            for i in range(i0, i1): a(f"s_load_dword s62, s[64:65], {64*i}")
    g6touch(0, 14)
    a(f"""
    s_barrier
    buffer_load_dwordx4 v1, {srd(SGT)}, 0 offen lds
    s_mov_b32 m0, {M_B1}
    s_mov_b64 exec, 0xfffffff
    buffer_load_dwordx4 v16, {srd(SB1)}, s61 offen lds
    s_mov_b32 m0, {M_B2}
    s_mov_b64 exec, 0xff
    buffer_load_dwordx4 v16, {srd(SB2)}, s60 offen lds
    s_mov_b64 exec, -1
    """)
    g6touch(14, 42)
    a("s_barrier")
    g6touch(42, 56)
    a(f"""
    s_barrier
    s_barrier
    s_waitcnt vmcnt(0) lgkmcnt(0)
    s_barrier
    L_Gjoin:
    s_sub_u32 {sW}, {sW}, 4
    """)
    gw = sW
    def lds_wait(lbl, addr, off, val, sleep=2):
        a(f"""
        s_mov_b32 s63, 0
        {lbl}:
        ds_read_b32 v178, {addr} offset:{off}
        s_add_u32 s63, s63, 1
        s_cmp_gt_u32 s63, {SPIN_MAX}
        s_cbranch_scc1 {lbl}_x
        s_waitcnt lgkmcnt(0)
        v_cmp_ne_u32 vcc, {val}, v178
        s_cbranch_vccz {lbl}_x
        s_sleep {sleep}
        s_branch {lbl}
        {lbl}_x:
        """)
    a(f"""
    s_barrier
    ds_read_b32 v178, v177 offset:{M_TAG - M_CNTG}
    ds_read_u16 v152, v12
    ds_read_u16 v156, v12 offset:64
    ds_read_u16 v168, v13
    ds_read_u16 v172, v13 offset:64
    s_setprio 3
    s_waitcnt lgkmcnt(0)
    v_readfirstlane_b32 {sTAG}, v178
    s_nop 3
    """)
    if o.get("noG"): a("s_barrier\ns_branch L_gend")
    if int(o.get("go", 0)) >= 0: lds_wait("L_go", "v177", M_GO - M_CNTG, sTAG, 3)
    a(f"""
    s_setprio 0
    s_lshl_b32 s64, {sGRP}, 10
    s_add_u32 s64, s64, {WS_KVF}
    s_mul_i32 s4, {gw}, {448*1024}
    s_lshl_b32 s55, {sJ}, 7
    s_add_u32 s4, s4, s55
    s_lshl_b32 s7, {gw}, 17
    s_add_u32 s7, s7, s55
    s_mul_i32 s5, {sGRP}, {2*112*1024}
    s_add_u32 s5, s5, {WS_H}
    s_lshl_b32 s24, s48, 11
    s_add_u32 s24, s24, s5
    s_add_u32 s25, s24, {112*1024}
    s_mul_i32 s61, {gw}, {28*1024}
    s_add_u32 s5, s5, s61
    s_and_b32 s6, {sGRP}, {3 if o.get('rot2') else 0}
    s_lshl_b32 s10, {sGRP}, 3
    s_add_u32 s8, s10, {sJ}
    s_lshl_b32 s26, s8, 2
    s_add_u32 s26, s26, {gw}
    s_lshl_b32 s26, s26, 7
    s_add_u32 s26, s26, {WS_HF}
    s_lshl_b32 s8, s8, 3
    s_add_u32 s8, s8, {gw}
    s_lshl_b32 s8, s8, 10
    s_add_u32 s8, s8, {WS_O}
    s_add_u32 s9, s8, 4096
    s_lshl_b32 s60, {gw}, 1
    s_add_u32 s10, s10, s60
    s_lshl_b32 s27, s10, 9
    s_add_u32 s27, s27, {WS_HF}
    s_lshl_b32 s10, s10, 13
    s_add_u32 s10, s10, {WS_O}
    s_add_u32 s65, s10, 8192
    s_lshl_b32 s33, {sGRP}, 16
    s_add_u32 s11, s33, {WS_O + 7*1024}
    s_add_u32 s33, s33, s55
    s_add_u32 s34, s33, 0x8000
    s_lshl_b32 s60, {gw}, 13
    s_add_u32 s33, s33, s60
    s_movk_i32 s32, {4*SLOT // 4}
    s_cmp_lt_u32 {gw}, 2
    s_cselect_b32 s32, {(2*SLOT + X_ - OACC) // 4 & 0xffffffff}, s32
    s_lshl_b32 s32, s32, 2
    """)
    stamp(3)
    a(f"s_cmp_eq_u32 {gw}, 3\ns_cbranch_scc1 L_F1w3")
    ACC = lambda mt, nt: 32*nt + 16*mt
    def mf(mt, nt, A_, B_, c0=False):
        d = vr(ACC(mt, nt), 16)
        a(f"v_mfma_f32_32x32x16_bf16 {d}, {vr(A_,4)}, {vr(B_,4)}, {'0' if c0 else d}")
    class VM:
        def __init__(s_): s_.ops = []
        def op(s_, ins, tag=None): a(ins); s_.ops.append(tag)
        def n(s_, *tags): return len(s_.ops) - 1 - max(i for i, t in enumerate(s_.ops) if t in tags)
    xcload = f"buffer_load_dwordx2 v[194:195], v180, {srd(SWS)}, s64 offen offset:8 sc1"
    def f1reads(k, w3):
        ab = 120 + 8*(k & 1); bb = 64 + 8*(k & 1); u = k & 7; xo = 16384*(k >> 3)
        r0 = [f"ds_read_b64_tr_b16 {vr(ab,2)}, v144 offset:{2048*u}", f"ds_read_b64_tr_b16 {vr(ab+2,2)}, v144 offset:{2048*u+(256 if w3 else 512)}", f"ds_read_b128 {vr(bb,4)}, v{136+u} offset:{xo}"]
        if not w3: r1 = [f"ds_read_b64_tr_b16 {vr(ab+4,2)}, v145 offset:{2048*u}", f"ds_read_b64_tr_b16 {vr(ab+6,2)}, v145 offset:{2048*u+512}"]
        else: r1 = [f"ds_read_b128 {vr(ab+4,4)}, v145 offset:{32*k}"]
        r1.append(f"ds_read_b128 {vr(bb+4,4)}, v{136+u} offset:{xo+8192}")
        return "\n".join(r0), "\n".join(r1)
    def ffn1(w3):
        vm = VM()
        def dma(k, half):
            if k < 32:
                if half == 0: vm.op(f"buffer_load_dwordx4 v148, {srd(SW1)}, s54 offen lds", k)
                elif not w3: vm.op(f"buffer_load_dwordx4 v149, {srd(SW1)}, s54 offen offset:1024 lds", k)
            else:
                vm.op(f"buffer_load_dwordx4 v{150+half}, {srd(SW2 if k < 39 else SWO)}, s54 offen offset:{1024*half} lds", k)
        def adv(k):
            if k < 32 and k & 7: a(f"s_add_u32 s54, s54, {16*3584}")
            elif k < 32: a(f"s_add_u32 s55, {sC0}, {k >> 3}\ns_and_b32 s55, s55, 3\ns_mul_i32 s55, s55, {128*3584}\ns_add_u32 s54, s100, s55")
            elif k == 32: a(f"s_mul_i32 s54, s6, {7*16384}\ns_add_u32 s54, s54, s4")
            elif k < 39: a("s_add_u32 s54, s54, 16384")
            elif k == 39: a(f"s_add_u32 s54, s7, {7*16384}")
        for k in range(8):
            a(f"s_add_u32 m0, s49, {2048*k}\ns_nop 0")
            dma(k, 0); dma(k, 1); adv(k+1)
        if w3: a("s_setprio 3\nv_mov_b32 v156, 0\ns_setprio 0")
        a(f"s_waitcnt vmcnt({vm.n(0)})")
        a("\n".join(f1reads(0, w3)))
        for nt in range(2):
            mf(0, nt, 152, 160, True)
            mf(1, nt, 156, 160, True)
        for k in range(32):
            u = k & 7
            ab = 120 + 8*(k & 1); bb = 64 + 8*(k & 1)
            if k == 12:
                for so in ("s8", "s9"): vm.op(f"buffer_store_dwordx4 v[200:203], v166, {srd(SWS)}, {so} offen sc1")
                vm.op(xcload, "xc")
                if not w3 and not o.get("nopf"):
                    a(f"""
                    s_cmp_eq_u32 {gw}, 0
                    s_cbranch_scc0 L_f1m
                    s_mul_i32 s60, s2, 7168
                    s_mov_b64 exec, s[12:13]
                    buffer_load_dword v178, v196, {srd(SW2)}, s60 offen
                    s_mov_b64 exec, 0xffff
                    s_lshl_b32 s60, s2, 11
                    buffer_load_dword v178, v196, {srd(SWO)}, s60 offen
                    s_mov_b64 exec, -1
                    L_f1m:
                    """)
                if o.get("hpre"):
                    for so in ("s24", "s25"):
                        for q in range(2 if w3 else 4): vm.op(f"buffer_load_dwordx4 v[204:207], v166, {srd(SWS)}, {so} offen offset:{1024*q}")
            a(f"s_waitcnt vmcnt({vm.n(k+1) if k < 31 else 63}) lgkmcnt(0)")
            r0, r1 = f1reads(k+1, w3) if k < 31 else ("", "")
            mf(0, 0, ab, bb)
            a(r0)
            mf(1, 0, ab+4, bb)
            a(r1)
            a(f"s_add_u32 m0, s49, {2048*u}")
            mf(0, 1, ab, bb+4)
            dma(k+8, 0)
            if u == 7: a(f"s_mov_b64 exec, 1\nds_add_u32 v177, v167 offset:{4*(k >> 3)}\ns_mov_b64 exec, -1")
            mf(1, 1, ab+4, bb+4)
            dma(k+8, 1); adv(k+9)
        a(f"s_waitcnt vmcnt({vm.n('xc')})")
    ffn1(False)
    a("s_branch L_F1done\nL_F1w3:")
    ffn1(True)
    a(f"""
    L_F1done:
    s_mov_b32 s63, 0
    s_getreg_b32 s61, hwreg(HW_REG_XCC_ID, 0, 4)
    s_setprio 3
    s_branch L_xc_c
    L_xc:
    {xcload}
    s_add_u32 s63, s63, 1
    s_cmp_gt_u32 s63, {SPIN_MAX}
    s_cbranch_scc1 L_xc_x
    s_waitcnt vmcnt(0)
    L_xc_c:
    v_cmp_ne_u32 vcc, {sTAG}, v194
    s_cbranch_vccnz L_xc
    L_xc_x:
    v_cmp_ne_u32 vcc, s61, v195
    s_nop 3
    s_cmp_eq_u64 vcc, 0
    s_cselect_b32 s101, {0 if o.get('nofast') else 1}, 0
    """)
    nst = [0]
    def hstore(ins):
        nst[0] += 1
        a(f"s_cbranch_scc1 L_hs{nst[0]}a\n{ins} sc1\ns_branch L_hs{nst[0]}b\nL_hs{nst[0]}a:\n{ins}\nL_hs{nst[0]}b:")
    stamp(4)
    def hst(mt, nt):
        b = ACC(mt, nt)
        for r in range(16): a(f"v_max_f32 v{b+r}, 0, v{b+r}")
        for r in range(8): a(f"v_pk_mul_f32 {vr(b+2*r,2)}, {vr(b+2*r,2)}, {vr(b+2*r,2)}")
        for r in range(8): a(f"v_cvt_pk_bf16_f32 v{b+r}, v{b+2*r}, v{b+2*r+1}")
        so = "s25" if nt else "s24"
        st = hstore if o.get("hpre") else (lambda ins: a(ins + " sc1"))
        a("s_cmp_eq_u32 s101, 1")
        st(f"buffer_store_dwordx4 {vr(b,4)}, v166, {srd(SWS)}, {so} offen offset:{2048*mt}")
        st(f"buffer_store_dwordx4 {vr(b+4,4)}, v166, {srd(SWS)}, {so} offen offset:{2048*mt+1024}")
    hst(0, 0); hst(0, 1)
    a(f"s_cmp_eq_u32 {gw}, 3\ns_cbranch_scc1 L_gate")
    hst(1, 0); hst(1, 1)
    a(f"""
    s_branch L_gated
    L_gate:
    v_mul_f32 v16, {0x80000000 | LOG2E}, v16
    v_mul_f32 v48, {0x80000000 | LOG2E}, v48
    v_exp_f32 v16, v16
    v_exp_f32 v48, v48
    s_nop 0
    v_add_f32 v16, 1.0, v16
    v_add_f32 v48, 1.0, v48
    v_rcp_f32 v16, v16
    v_rcp_f32 v48, v48
    s_nop 1
    ds_write_b32 v192, v16
    ds_write_b32 v192, v48 offset:128
    L_gated:
    s_mov_b64 exec, 1
    ds_add_u32 v177, v167 offset:16
    s_mov_b64 exec, -1
    """)
    def fin(B, sfx, first):
        a(f"""
        s_mov_b32 s63, 0
        L_fw{sfx}:
        ds_read_b32 v{B}, v176
        s_add_u32 s63, s63, 1
        s_cmp_gt_u32 s63, {SPIN_MAX}
        s_cbranch_scc1 L_fw{sfx}_x
        s_waitcnt lgkmcnt(0)
        v_cmp_ne_u32 vcc, {sTAG}, v{B}
        s_cbranch_vccz L_fw{sfx}_x
        s_sleep 3
        s_branch L_fw{sfx}
        L_fw{sfx}_x:
        ds_read2st64_b32 {vr(B+32,2)}, v181 offset0:32 offset1:33
        ds_read2st64_b32 {vr(B+34,2)}, v181 offset0:34 offset1:35
        """)
        for w in range(4):
            for r in range(4): a(f"ds_read2st64_b32 {vr(B+8*w+2*r,2)}, v181 offset0:{8*r+w} offset1:{8*r+4+w}")
        a(f"s_cmp_eq_u32 s101, 1\ns_waitcnt lgkmcnt(8)\nv_pk_add_f32 {vr(B+32,2)}, {vr(B+32,2)}, {vr(B+34,2)}")
        for r in range(4): a(f"v_pk_add_f32 {vr(B+2*r,2)}, {vr(B+2*r,2)}, {vr(B+8+2*r,2)}")
        a(f"v_add_f32 v{B+32}, v{B+32}, v{B+33}\ns_waitcnt lgkmcnt(0)")
        for r in range(4): a(f"v_pk_add_f32 {vr(B+16+2*r,2)}, {vr(B+16+2*r,2)}, {vr(B+24+2*r,2)}")
        a(f"v_rcp_f32 v{B+32}, v{B+32}")
        for r in range(4): a(f"v_pk_add_f32 {vr(B+2*r,2)}, {vr(B+2*r,2)}, {vr(B+16+2*r,2)}")
        a(f"v_mul_f32 v{B+32}, v{B+32}, v164")
        for r in range(4): a(f"v_pk_mul_f32 {vr(B+2*r,2)}, {vr(B+2*r,2)}, {vr(B+32,2)} op_sel_hi:[1,0]")
        for r in range(4): a(f"v_cvt_pk_bf16_f32 v{B+r}, v{B+2*r}, v{B+2*r+1}")
        for r in range(4): a(f"v_min_u32 v{B+r}, -2, v{B+r}")
        hstore(f"buffer_store_dwordx4 {vr(B,4)}, v166, {srd(SWS)}, {'s8' if first else 's4'} offen")
        if first:
            a(f"""
            s_or_b32 s55, s2, {gw}
            s_cbranch_scc1 L_noep
            v_mov_b32 v{B+33}, {sTAG}
            s_mov_b64 exec, 1
            buffer_store_dword v{B+33}, off, {srd(SWS)}, 0 sc1
            s_mov_b64 exec, -1
            L_noep:
            """)
        else: a("s_nop 0")
    def flag_wait(lbl, vaddr, soff, sleep=2):
        a(f"""
        s_mov_b32 s63, 0
        {lbl}:
        buffer_load_dword v178, {vaddr}, {srd(SWS)}, {soff} offen sc1
        s_add_u32 s63, s63, 1
        s_cmp_gt_u32 s63, {SPIN_MAX}
        s_cbranch_scc1 {lbl}_x
        s_waitcnt vmcnt(0)
        v_cmp_ne_u32 vcc, {sTAG}, v178
        s_cbranch_vccz {lbl}_x
        s_sleep {sleep}
        s_branch {lbl}
        {lbl}_x:
        """)
    a(f"""
    v_mov_b32 v129, {sTAG}
    s_cmp_eq_u32 {gw}, 0
    s_cselect_b32 s60, -1, 0
    v_and_b32 v160, s60, v160
    s_cmp_eq_u32 s101, 1
    s_mov_b64 exec, 1
    s_waitcnt vmcnt(0)
    """)
    hstore(f"buffer_store_dword v129, off, {srd(SWS)}, s26")
    a("s_mov_b64 exec, -1")
    stamp(5)
    lds_wait("L_gs1", "v177", 16, "4")
    a("ds_read_b32 v164, v192\nds_read_b32 v165, v192 offset:128")
    for nt in range(2):
        mf(0, nt, 168, 160, True); mf(1, nt, 172, 160, True)
    flag_wait("L_hw", "v180", "s27")
    a(f"v_mov_b32 v180, v193\nv_subrev_u32 v168, {OACC - X_}, v190\nv_subrev_u32 v169, {OACC - X_}, v191")
    stamp(6)
    a(f"""
    s_setprio 0
    s_mul_i32 s60, s6, 7168
    s_add_u32 s60, s60, s5
    s_add_u32 s61, s60, {112*1024}
    """)
    vm = VM()
    def hA(k): vm.op(f"buffer_load_dwordx4 {vr(64+8*(k%7),4)}, v166, {srd(SWS)}, s60 offen sc1", ("h", k)); a("s_add_u32 s60, s60, 1024")
    def hB(k): vm.op(f"buffer_load_dwordx4 {vr(68+8*(k%7),4)}, v166, {srd(SWS)}, s61 offen sc1", ("h", k)); a("s_add_u32 s61, s61, 1024")
    for k in range(7): hA(k); hB(k)
    def f2reads(k):
        ab = 120 + 8*(k & 1); slot = k % 7
        return (f"ds_read_b64_tr_b16 {vr(ab,2)}, v146 offset:{2048*slot}\nds_read_b64_tr_b16 {vr(ab+2,2)}, v146 offset:{2048*slot+1024}\n"
                f"ds_read_b64_tr_b16 {vr(ab+4,2)}, v147 offset:{2048*slot}\nds_read_b64_tr_b16 {vr(ab+6,2)}, v147 offset:{2048*slot+1024}")
    a(f2reads(0))
    for k in range(28):
        u = k % 7
        if u == 0 and k < 21: a(f"s_add_u32 s6, s6, 1\ns_and_b32 s6, s6, 3\ns_mul_i32 s54, s6, {7*16384}\ns_add_u32 s54, s54, s4\ns_mul_i32 s60, s6, 7168\ns_add_u32 s60, s60, s5\ns_add_u32 s61, s60, {112*1024}")
        if k == 21: a("s_mov_b32 s54, s7\ns_mov_b32 s60, s10\ns_mov_b32 s61, s65")
        if k == int(o.get("fink", 16)):
            a("s_setprio 3")
            fin(196, "m", True)
            a("s_setprio 0")
        ab = 120 + 8*(k & 1); bb = 64 + 8*u
        need = [("h", k)] + ([("w", k+1)] if 7 <= k+1 < 28 else [])
        a(f"s_waitcnt vmcnt({vm.n(*need)}) lgkmcnt(0)")
        mf(0, 0, ab, bb)
        if k < 27: a(f2reads(k+1))
        mf(1, 0, ab+4, bb)
        if k < 25: hA(k+7)
        a(f"s_add_u32 m0, s49, {2048*u}")
        mf(0, 1, ab, bb+4)
        sr = srd(SW2 if k < 21 else SWO)
        vm.op(f"buffer_load_dwordx4 v150, {sr}, s54 offen lds", ("w", k+7))
        vm.op(f"buffer_load_dwordx4 v151, {sr}, s54 offen offset:1024 lds", ("w", k+7))
        a("s_add_u32 s54, s54, 16384")
        mf(1, 1, ab+4, bb+4)
        if k < 25: hB(k+7)
    a("s_setprio 3")
    stamp(7)
    def cnt_add(off): a(f"s_mov_b64 exec, 1\nds_add_u32 v177, v167 offset:{off}\ns_mov_b64 exec, -1")
    a("v_sub_f32 v182, 1.0, v164\nv_sub_f32 v184, 1.0, v165\nv_mov_b32 v164, v165\ns_waitcnt vmcnt(0) lgkmcnt(0)")
    cnt_add(20)
    WOF = lambda i, mt: 192 + 8*i + 4*mt if (i, mt) != (7, 1) else 136
    for i in range(8):
        for mt in range(2):
            for e in range(2): a(f"ds_read_b64_tr_b16 {vr(WOF(i,mt)+2*e,2)}, v{146+mt} offset:{2048*i+1024*e}")
    for r in range(16): a(f"v_pk_mul_f32 {vr(2*r,2)}, {vr(2*r,2)}, v[182:183] op_sel_hi:[1,0]")
    for r in range(16, 32): a(f"v_pk_mul_f32 {vr(2*r,2)}, {vr(2*r,2)}, v[184:185] op_sel_hi:[1,0]")
    OF = lambda jj, sl: 64 + 8*sl + 4*jj
    def oload(jj, sl): return f"buffer_load_dwordx4 {vr(OF(jj, sl),4)}, v166, {srd(SWS)}, {('s10', 's65', 's8', 's9')[jj + 2*(sl >> 2)]} offen offset:{1024*(sl&3)} sc1"
    def ofrags(lbl, loads, regs, sleep, pre=False):
        n = len(loads)
        a("s_mov_b32 s63, 0")
        if pre: a(f"s_branch {lbl}_c")
        a(f"{lbl}:")
        a("\n".join(loads))
        a(f"s_add_u32 s63, s63, 1\ns_cmp_gt_u32 s63, {SPIN_MAX}\ns_cbranch_scc1 {lbl}_x\n{lbl}_c:")
        for i in range(n):
            r = regs[i]
            a(f"s_waitcnt vmcnt({n-1-i})")
            if i == 0: a(f"v_max3_u32 v178, v{r}, v{r+1}, v{r+2}\nv_max_u32 v178, v178, v{r+3}")
            else: a(f"v_max3_u32 v178, v178, v{r}, v{r+1}\nv_max3_u32 v178, v178, v{r+2}, v{r+3}")
        a(f"v_cmp_eq_u32 vcc, -1, v178\ns_cbranch_vccz {lbl}_x")
        if sleep: a(f"s_sleep {sleep}")
        a(f"s_branch {lbl}\n{lbl}_x:\ns_waitcnt vmcnt(0)")
    def wo_stage(lbl, nt, sls, sleep, pre):
        ks = [(jj, sl) for sl in sls for jj in range(2)]
        ofrags(lbl, [oload(*k) for k in ks], [OF(*k) for k in ks], sleep, pre)
        a("s_waitcnt lgkmcnt(0)\ns_setprio 0")
        for jj, sl in ks:
            i = 4*jj + (sl & 3)
            mf(0, nt, WOF(i, 0), OF(jj, sl)); mf(1, nt, WOF(i, 1), OF(jj, sl))
        a("s_setprio 3")
    stamp(8)
    wo_stage("L_o0", 0, range(4), 4, True)
    stamp(9)
    a(f"s_add_u32 s4, s8, 4096\ns_add_u32 s8, s10, 4096\ns_add_u32 s9, s65, 4096\nv_add_u32 v176, s32, v176\nv_add_u32 v181, s32, v181")
    a(f"s_mul_i32 s5, {gw}, {SLOT}\ns_cmp_lt_u32 {gw}, 2\ns_cselect_b32 s6, {OACC + 2*SLOT - X_}, 0\ns_add_u32 s5, s5, s6\ns_sub_u32 s5, s49, s5\ns_add_u32 s5, s5, {8192 + 2*SLOT - X_}")
    for mt in range(2):
        for i in range(4): a(f"ds_write_b128 v{186+i}, {vr(16*mt+4*i,4)} offset:{128*mt}")
    cnt_add(28)
    lds_wait("L_w1", "v177", 20, "4")
    FA = lambda s_, ct: (120 + 8*s_ + 4*ct) if s_ < 2 else (148 + 8*(s_-2) + 4*ct)
    for s_ in range(4):
        for ct in range(2):
            for e in range(2): a(f"ds_read_b64_tr_b16 {vr(FA(s_,ct)+2*e,2)}, v253 offset:{16384*s_+1024*e+32*ct}")
    cnt_add(24)
    a(f"s_cmp_lt_u32 {gw}, 2\ns_cbranch_scc0 L_nf\ns_call_b64 s[14:15], L_fin\nL_nf:")
    lds_wait("L_rw", "v177", 28, "4", 1)
    for p in range(4):
        a(f"ds_read_b128 {vr(8*p,4)}, v{190 if p < 2 else 168} offset:{SLOT*(p&1)}\nds_read_b128 {vr(4+8*p,4)}, v{191 if p < 2 else 169} offset:{SLOT*(p&1)}")
    for i in range(4): a(f"v_add_u32 v{186+i}, s5, v{186+i}")
    a("s_waitcnt lgkmcnt(4)")
    for r in range(4): a(f"v_pk_add_f32 {vr(2*r,2)}, {vr(2*r,2)}, {vr(8+2*r,2)}")
    a("s_waitcnt lgkmcnt(0)")
    for r in range(4): a(f"v_pk_add_f32 {vr(16+2*r,2)}, {vr(16+2*r,2)}, {vr(24+2*r,2)}")
    for r in range(4): a(f"v_pk_add_f32 {vr(2*r,2)}, {vr(2*r,2)}, {vr(16+2*r,2)}")
    for r in range(4): a(f"v_cvt_pk_bf16_f32 v{172+r}, v{2*r}, v{2*r+1}")
    stamp(10)
    wo_stage("L_o1", 1, (4, 5), 4, False)
    a(f"s_cmp_eq_u32 {gw}, 2\ns_cbranch_scc0 L_nf1\ns_call_b64 s[14:15], L_fin\nL_nf1:")
    stamp(11)
    wo_stage("L_o1b", 1, (6,), 4, False)
    a("s_add_u32 s65, s11, 32768")
    fl = [f"buffer_load_dwordx4 {vr(108+0,4)}, v252, {srd(SWS)}, s11 offen sc1", f"buffer_load_dwordx4 {vr(104,4)}, v254, {srd(SWS)}, s11 offen sc1",
          f"buffer_load_dwordx4 {vr(100,4)}, v252, {srd(SWS)}, s65 offen sc1", f"buffer_load_dwordx4 {vr(140,4)}, v254, {srd(SWS)}, s65 offen sc1"]
    fr = [108, 104, 100, 140]
    if not o.get("nowarm"): a("\n".join(fl))
    lds_wait("L_w2", "v177", 24, "4")
    a("s_nop 2")
    for mt in range(2):
        for i in range(4): a(f"ds_write_b128 v{186+i}, {vr(32+16*mt+4*i,4)} offset:{128*mt}")
    cnt_add(32)
    lds_wait("L_rw1", "v177", 32, "4", 1)
    for p in range(4):
        a(f"ds_read_b128 {vr(64+8*p,4)}, v183 offset:{16384*p}\nds_read_b128 {vr(68+8*p,4)}, v185 offset:{16384*p}")
    a("s_waitcnt lgkmcnt(4)")
    for r in range(4): a(f"v_pk_add_f32 {vr(64+2*r,2)}, {vr(64+2*r,2)}, {vr(72+2*r,2)}")
    a("s_waitcnt lgkmcnt(0)")
    for r in range(4): a(f"v_pk_add_f32 {vr(80+2*r,2)}, {vr(80+2*r,2)}, {vr(88+2*r,2)}")
    for r in range(4): a(f"v_pk_add_f32 {vr(2*r,2)}, {vr(64+2*r,2)}, {vr(80+2*r,2)}")
    stamp(12)
    a(f"s_barrier\ns_cmp_eq_u32 {gw}, 3\ns_cbranch_scc0 L_nf2\ns_call_b64 s[14:15], L_fwf_x\nL_nf2:")
    stamp(13)
    ofrags("L_o2", fl, fr, 0)
    stamp(14)
    a(f"buffer_store_dwordx4 v[172:175], v179, {srd(SOUT)}, s33 offen")
    for s_ in range(4):
        for ct in range(2): a(f"v_mfma_f32_16x16x32_bf16 {vr(4*ct,4)}, {vr(FA(s_,ct),4)}, {vr(fr[s_],4)}, {vr(4*ct,4)}")
    a("""
    s_nop 6
    v_cvt_pk_bf16_f32 v8, v0, v1
    v_cvt_pk_bf16_f32 v9, v2, v3
    v_cvt_pk_bf16_f32 v10, v4, v5
    v_cvt_pk_bf16_f32 v11, v6, v7
    s_nop 1
    v_permlane16_swap_b32 v8, v10
    v_permlane16_swap_b32 v9, v11
    """)
    a(f"buffer_store_dwordx4 v[8:11], v180, {srd(SOUT)}, s34 offen")
    stamp(15)
    a("s_branch L_gend")
    a(f"""
    L_gsetup:
    s_load_dwordx2 s[{SW1}:{SW1+1}], s[0:1], 48
    s_load_dwordx2 s[{SWO}:{SWO+1}], s[0:1], 32
    s_load_dwordx2 s[{SW2}:{SW2+1}], s[0:1], 64
    s_load_dwordx2 s[{SOUT}:{SOUT+1}], s[0:1], 88
    s_load_dwordx2 s[{SH}:{SH+1}], s[0:1], 104
    s_mov_b32 s{SW1+2}, 1835008
    s_mov_b32 s{SW1+3}, 0x00020000
    s_mov_b32 s{SWO+2}, 524288
    s_mov_b32 s{SWO+3}, 0x00020000
    s_mov_b32 s{SW2+2}, 1835008
    s_mov_b32 s{SW2+3}, 0x00020000
    s_mov_b32 s{SOUT+2}, 2097152
    s_mov_b32 s{SOUT+3}, 0x00020000
    s_mov_b32 s{SH+2}, {WS_SIZE}
    s_mov_b32 s{SH+3}, 0x00020000
    s_sub_u32 s101, {sW}, 4
    s_lshr_b32 s48, {sJ}, 1
    s_mul_i32 s48, s48, 7
    s_and_b32 s63, {sJ}, 1
    s_lshl_b32 s62, s63, 2
    s_add_u32 s62, s62, s101
    s_cmp_eq_u32 s101, 3
    s_cselect_b32 s62, 3, s62
    s_cselect_b32 s63, s63, 0
    s_add_u32 s48, s48, s62
    s_lshl_b32 s48, s48, 1
    s_add_u32 s48, s48, s63
    s_lshl_b32 s100, s48, 6
    s_mul_i32 s54, {sC0}, {128*3584}
    s_add_u32 s54, s54, s100
    s_lshl_b32 s49, s101, 14
    s_add_u32 s49, s49, {W_}
    v_lshrrev_b32 v14, 3, {L}
    v_and_b32 v15, 7, {L}
    v_bfe_u32 v3, {L}, 4, 1
    v_lshlrev_b32 v3, 2, v3
    v_xor_b32 v2, v3, v15
    v_lshlrev_b32 v2, 4, v2
    v_lshl_or_b32 v150, v14, 10, v2
    v_add_u32 v151, 7168, v150
    v_mul_u32_u24 v148, 3584, v14
    v_add_u32 v148, v148, v2
    v_add_u32 v149, {8*3584-1024}, v148
    v_lshlrev_b32 v180, 7, v15
    v_lshlrev_b32 v2, 1, v15
    v_xor_b32 v2, v14, v2
    v_lshlrev_b32 v2, 4, v2
    v_lshl_or_b32 v190, v14, 8, v2
    s_lshl_b32 s62, s101, 11
    s_add_u32 s62, s62, {OACC}
    v_add_u32 v190, s62, v190
    v_xor_b32 v191, 16, v190
    v_lshlrev_b32 v2, 4, v15
    v_lshl_or_b32 v179, v14, 10, v2
    v_and_b32 v1, 31, {L}
    v_lshrrev_b32 v14, 5, {L}
    v_xor_b32 v2, v14, v15
    v_lshlrev_b32 v2, 4, v2
    v_lshl_or_b32 v186, v1, 8, v2
    s_mul_i32 s62, {sJ}, 7
    s_sub_u32 s62, s48, s62
    s_lshl_b32 s62, s62, 6
    s_add_u32 s62, s62, {M_B1}
    v_lshlrev_b32 v13, 1, v1
    v_add_u32 v12, s62, v13
    v_add_u32 v13, {M_B2}, v13
    v_lshlrev_b32 v192, 2, v1
    v_add_u32 v192, {M_G}, v192
    v_and_b32 v3, 15, {L}
    v_xor_b32 v3, v14, v3
    v_lshlrev_b32 v3, 4, v3
    v_lshl_or_b32 v136, v1, 8, v3
    """)
    for k in range(1, 8): a(f"v_xor_b32 v{136+k}, {32*k}, v136")
    tr_addr(144, 8)
    a("v_add_u32 v144, s49, v144\nv_xor_b32 v145, 64, v144")
    tr_addr(146, 4)
    a("v_add_u32 v146, s49, v146\nv_xor_b32 v147, 64, v146")
    for r in (153, 154, 155, 157, 158, 159, 161, 162, 163, 169, 170, 171, 173, 174, 175): a(f"v_mov_b32 v{r}, 0")
    a(f"""
    v_cmp_gt_u32 vcc, 32, {L}
    v_mov_b32 v1, 0x3f80
    v_lshlrev_b32 v166, 4, {L}
    v_cndmask_b32 v160, 0, v1, vcc
    v_mov_b32 v167, 1
    v_mov_b32 v177, {M_CNTG}
    v_mov_b64 v[200:201], -1
    v_mov_b64 v[202:203], -1
    s_and_b32 s62, s101, 1
    s_lshr_b32 s63, s101, 1
    v_and_b32 v1, 15, {L}
    v_lshl_add_u32 v1, s62, 4, v1
    v_lshrrev_b32 v2, 4, {L}
    v_xor_b32 v3, v2, v15
    v_lshlrev_b32 v3, 4, v3
    v_lshl_or_b32 v3, v1, 8, v3
    s_lshl_b32 s62, s63, 7
    s_add_u32 s62, s62, {W_ + 8192}
    v_add_u32 v183, s62, v3
    v_xor_b32 v185, 64, v183
    ; v252/v254 = (g4>>1)*8192 + 16*(row + 32*(g4&1)) (+16384)
    v_and_b32 v3, 1, v2
    v_lshl_add_u32 v252, v3, 5, v1
    v_lshlrev_b32 v252, 4, v252
    v_lshl_add_u32 v252, v14, 13, v252
    v_add_u32 v254, 0x4000, v252
    v_lshlrev_b32 v193, 10, v1
    v_lshl_or_b32 v193, v3, 5, v193
    v_lshl_or_b32 v193, v14, 4, v193
    s_lshl_b32 s62, s63, 6
    v_add_u32 v193, s62, v193
    ; v253 = W + 2048*(4*(g4>>1)+3) + (4h + r')*128 + 16*((4ch + (c'>>1)) ^ 4*(r'>>1)) + 8*(c'&1)
    v_bfe_u32 v1, {L}, 2, 2
    v_lshl_or_b32 v1, v3, 2, v1
    v_lshlrev_b32 v1, 7, v1
    v_lshl_or_b32 v1, v14, 13, v1
    v_bfe_u32 v2, {L}, 3, 1
    v_xor_b32 v2, s63, v2
    v_lshl_or_b32 v1, v2, 6, v1
    v_and_b32 v2, 3, {L}
    v_lshl_or_b32 v1, v2, 3, v1
    v_add_u32 v253, {W_ + 6144}, v1
    v_lshlrev_b32 v196, 7, {L}
    s_mov_b32 s12, -1
    s_mov_b32 s13, 0xffffff
    s_mul_i32 s62, s101, {SLOT}
    s_add_u32 s63, s62, {OACC}
    s_sub_u32 s62, s62, {2*SLOT - X_}
    s_cmp_lt_u32 s101, 2
    s_cselect_b32 s62, s63, s62
    v_lshlrev_b32 v181, 2, {L}
    v_add_u32 v181, s62, v181
    v_add_u32 v186, s62, v186
    v_xor_b32 v187, 32, v186
    v_xor_b32 v188, 64, v186
    v_xor_b32 v189, 0x60, v186
    s_add_u32 s62, s62, {9216 + 252}
    v_lshl_add_u32 v176, v2, 8, s62
    s_cmp_eq_u32 s101, 3
    s_cbranch_scc0 L_gsx
    v_bfe_u32 v2, {L}, 2, 2
    v_lshl_or_b32 v2, v14, 3, v2
    v_lshlrev_b32 v2, 6, v2
    v_bfe_u32 v3, {L}, 4, 1
    v_lshl_or_b32 v2, v3, 5, v2
    v_and_b32 v3, 3, {L}
    v_lshl_or_b32 v2, v3, 3, v2
    v_add_u32 v144, s49, v2
    v_lshlrev_b32 v145, 4, v14
    v_add_u32 v145, {M_GATE}, v145
    v_lshrrev_b32 v1, 2, {L}
    v_mul_u32_u24 v148, 3584, v1
    v_lshl_add_u32 v148, v3, 4, v148
    L_gsx:
    s_waitcnt lgkmcnt(0)
    s_setpc_b64 s[14:15]
    """)
    a("L_fin:")
    fin(64, "f", False)
    a("s_setpc_b64 s[14:15]\nL_gend:")
    if diag: a(f"s_add_u32 {sW}, {sW}, 4")
    diag_out("g")
    a("L_end:\ns_endpgm")

    hdr = open(os.path.join(os.path.dirname(os.path.abspath(__file__)), "..", "cdna_kernels", NAME + ".s.ref")).read().split("\n")
    i0 = next(i for i, l in enumerate(hdr) if l.startswith("; Override"))
    head = "\n".join(hdr[:i0]) + f"\n; @launch grid=(256,1,1) block=(512,1,1) lds={LDS_BYTES}\n"
    return head + f""".amdgcn_target "amdgcn-amd-amdhsa--gfx950"
.text
.globl {NAME}_kernel
.p2align 8
.type {NAME}_kernel,@function
{NAME}_kernel:
{a.text()}.section .rodata,"a"
.p2align 6
.amdhsa_kernel {NAME}_kernel
  .amdhsa_next_free_vgpr 256
  .amdhsa_next_free_sgpr 102
  .amdhsa_accum_offset 256
  .amdhsa_group_segment_fixed_size 0
  .amdhsa_kernarg_size 112
  .amdhsa_user_sgpr_count 2
  .amdhsa_user_sgpr_kernarg_segment_ptr 1
  .amdhsa_system_sgpr_workgroup_id_x 1
.end_amdhsa_kernel
"""

if __name__ == "__main__":
    out = sys.argv[1] if len(sys.argv) > 1 else os.path.join(os.path.dirname(os.path.abspath(__file__)), "..", "cdna_kernels", NAME + ".s")
    opts = dict(x.split("=") if "=" in x else (x, 1) for x in sys.argv[2:])
    open(out, "w").write(gen(diag=bool(opts.pop("diag", 0)), opts=opts))
```

```python
import sys, os
NAME = "gated_mix__grouped_kv_mqa__dense_activation_squared_relu__prompt"

class Asm:
    def __init__(self): self.l = []
    def __call__(self, s):
        for x in s.strip("\n").split("\n"):
            x = x.strip()
            if not x: continue
            self.l.append(x if x.endswith(":") else "    " + x)
    def text(self): return "\n".join(self.l) + "\n"

def vr(a, n): return f"v[{a}:{a+n-1}]"

X_ = 0; W_ = 65536; S_ = 131072
OACC = S_; SLOT = 10240
QF = S_ + 2*SLOT
MISC = QF + 8192
M_G = MISC
M_QMAX = MISC + 256
M_KMAX = MISC + 260
M_CNTA = MISC + 264
M_CNTG = MISC + 272
M_CNTS = MISC + 320
M_M = MISC + 1024
M_GATE = MISC + 2048
M_TAG = MISC + 3072
M_Q0 = MISC + 3076
M_GO = MISC + 3080
M_B1 = MISC + 3136
M_B2 = MISC + 3584
LDS_BYTES = 163840
WS_EPOCH = 0
WS_KVF = 0x1000
WS_HF = 0x10000
WS_OF = 0x40000
WS_K = 0x80000
WS_V = 0x90000
WS_O = 0x100000
WS_H = 0x400000
WS_DIAG = 0xC00000
WS_SIZE = 0x1000000
SX, SWQ, SWKV, SWO, SW1, SB1, SW2, SB2, SGT, SOUT, SWS, SH = 4, 8, 12, 16, 20, 24, 28, 32, 36, 40, 44, 56
def srd(b): return f"s[{b}:{b+3}]"
sW, sGRP, sJ, sTAG, sC0 = "s50", "s51", "s52", "s53", "s3"
QSCALE = 0x3eb8aa3b
LOG2E = 0x3fb8aa3b
SPIN_MAX = 200000

def gen(diag=False, opts=None):
    o = dict(opts or {})
    a = Asm()
    nstamp = [0]
    rt = o.get("rt") or o.get("enc")
    def hstamp(i):
        if diag and o.get("hd"): a(f"s_memtime s[{68+2*i}:{69+2*i}]")
    def stamp(i):
        if diag and not (o.get("hd") and i > 8):
            a(f"{'s_memrealtime' if rt else 's_memtime'} s[{68+2*i}:{69+2*i}]")
    def diag_out(lbl):
        if diag and o.get("enc"):
            role, st = o["enc"][0], int(o["enc"][1:])
            wv = {"a": int(o.get("wv", 0)), "g": 7}[role]
            if lbl == role:
                a(f"s_cmp_lg_u32 s2, 0\ns_cbranch_scc1 L_encx{lbl}\ns_cmp_lg_u32 {sW}, {wv}\ns_cbranch_scc1 L_encx{lbl}\ns_waitcnt lgkmcnt(0)")
                if st < 16: a(f"s_sub_u32 s60, s{68+2*st}, s66\ns_lshl_b32 s60, s60, 4")
                else: a("s_mov_b32 s60, 0")
                a(f"s_add_u32 s60, s60, 5000\nL_enc{lbl}:\ns_sleep 4\ns_memrealtime s[62:63]\ns_waitcnt lgkmcnt(0)\ns_sub_u32 s62, s62, s66\ns_cmp_lt_u32 s62, s60\ns_cbranch_scc1 L_enc{lbl}\nL_encx{lbl}:")
        elif diag and rt:
            idx = {"a": [(1, 1), (2, 2), (4, 3), (5, 4), (6, 5), (7, 6), (8, 7)], "s": [], "g": [(2, 8), (3, 9), (4, 10), (6, 11), (7, 12), (15, 13), (9, 14), (11, 15)]}[lbl]
            a("s_load_dwordx2 s[60:61], s[0:1], 96\ns_mov_b32 s62, 256\ns_mov_b32 s63, 0x00020000\ns_waitcnt vmcnt(0) lgkmcnt(0)\ns_mov_b64 exec, 1")
            a("s_not_b32 s66, s66\nv_mov_b32 v1, s66\nbuffer_atomic_umax v1, off, s[60:63], 0\ns_nop 1")
            for st, d in idx:
                a(f"v_mov_b32 v1, s{68+2*st}\nbuffer_atomic_umax v1, off, s[60:63], 0 offset:{4*d}\ns_nop 1")
            a("s_waitcnt vmcnt(0)")
        elif diag:
            a(f"s_lshl_b32 s60, s2, 3\ns_add_u32 s60, s60, {sW}\ns_lshl_b32 s60, s60, 7\ns_add_u32 s60, s60, {WS_DIAG}")
            a("s_waitcnt vmcnt(0) lgkmcnt(0)\ns_mov_b64 exec, 1")
            for i in range(17):
                a(f"v_mov_b32 v1, s{66+2*i}\nbuffer_store_dword v1, off, {srd(SWS)}, s60 offset:{4*i}\ns_nop 1")
            a("s_waitcnt vmcnt(0)")

    L = "v255"
    if diag: a("s_memrealtime s[66:67]\ns_memtime s[68:69]")
    a(f"""
    s_cmp_ge_u32 s2, 256
    s_cbranch_scc1 L_end
    s_load_dwordx4 s[{SWKV}:{SWKV+3}], s[0:1], 16
    s_load_dwordx2 s[{SX}:{SX+1}], s[0:1], 0
    s_load_dwordx2 s[{SWQ}:{SWQ+1}], s[0:1], 8
    s_load_dwordx2 s[{SWS}:{SWS+1}], s[0:1], 104
    s_getpc_b64 s[60:61]
    s_movk_i32 s62, {int(o.get('pf0', 6144))}
    s_mov_b32 s63, 0x00020000
    v_lshlrev_b32 v2, 7, v0
    v_lshrrev_b32 v1, 6, v0
    buffer_load_dword v178, v2, s[60:63], 0 offen
    v_and_b32 v255, 63, v0
    v_readfirstlane_b32 {sW}, v1
    s_and_b32 s54, s2, 7
    s_bfe_u32 {sJ}, s2, 0x30003
    s_lshr_b32 s55, s2, 6
    s_lshl2_add_u32 {sGRP}, s54, s55
    s_mov_b32 s{SX+2}, 2097152
    s_mov_b32 s{SX+3}, s63
    s_add_u32 {sC0}, s54, {sJ}
    s_and_b32 {sC0}, {sC0}, 3
    s_and_b32 s60, {sJ}, 3
    v_lshrrev_b32 v3, 4, {L}
    v_and_b32 v2, 15, {L}
    v_xor_b32 v12, v3, v2
    v_lshlrev_b32 v12, 4, v12
    v_lshl_or_b32 v4, v3, 10, v12
    v_xor_b32 v5, 64, v4
    v_add_u32 v5, 3072, v5
    v_xor_b32 v6, 0x80, v4
    v_add_u32 v6, 6144, v6
    v_xor_b32 v7, 0xc0, v4
    v_add_u32 v7, 9216, v7
    v_lshlrev_b32 v1, 4, {L}
    """)
    if diag:
        for i in range(2, 17): a(f"s_mov_b32 s{66+2*i}, 0")
    a(f"""
    s_cmp_eq_u32 {sW}, 7
    s_cbranch_scc0 L_nKV
    """)
    a(f"""
    s_setprio 3
    s_lshl2_add_u32 s64, {sGRP}, s60
    s_lshl_b32 s62, s64, 14
    s_lshl_b32 s65, s60, 12
    s_mov_b32 s61, {sC0}
    s_cmp_lt_u32 {sJ}, 4
    s_waitcnt lgkmcnt(0)
    s_cselect_b32 s{SWKV}, s{SWKV}, s{SWKV+2}
    s_cselect_b32 s{SWKV+1}, s{SWKV+1}, s{SWKV+3}
    s_movk_i32 s{SWKV+2}, 16384
    s_mov_b32 s{SWKV+3}, 0x00020000
    """)
    hstamp(9)
    for i in range(4):
        a(f"s_mov_b32 m0, {OACC + 4096*i}\ns_lshl_b32 s55, s61, 12")
        for q in range(4): a(f"buffer_load_dwordx4 v1, {srd(SWKV)}, s55 offen offset:{1024*q} lds")
        a(f"s_lshl_b32 s55, s61, 8\ns_add_u32 m0, s65, {X_ + 16384*i}\ns_add_u32 s55, s55, s62")
        for q in range(4): a(f"buffer_load_dwordx4 v{4+q}, {srd(SX)}, s55 offen offset:{1024*q} lds")
        if i < 3: a("s_add_u32 s61, s61, 1\ns_and_b32 s61, s61, 3")
    hstamp(11)
    a(f"""
    s_barrier
    s_load_dword {sTAG}, s[{SWS}:{SWS+1}], 0
    s_lshl3_add_u32 s57, {sGRP}, {sJ}
    s_lshl_b32 s57, s57, 5
    s_add_u32 s57, s57, {WS_KVF}
    s_load_dword s56, s[{SWS}:{SWS+1}], s57
    s_mov_b32 s{SWS+2}, {WS_SIZE}
    s_mov_b32 s{SWS+3}, 0x00020000
    v_lshlrev_b32 v5, 8, v3
    v_lshl_or_b32 v5, v2, 3, v5
    v_add_u32 v5, {OACC}, v5
    v_lshl_or_b32 v12, v2, 8, v12
    v_add_u32 v12, s65, v12
    v_xor_b32 v13, 64, v12
    v_xor_b32 v14, 0x80, v12
    v_xor_b32 v15, 0xc0, v12
    v_and_b32 v6, 1, v3
    v_lshlrev_b32 v6, 9, v6
    v_lshl_or_b32 v6, v2, 4, v6
    v_lshrrev_b32 v7, 1, v3
    v_lshl_or_b32 v6, v7, 3, v6
    v_mov_b32 v10, {M_TAG}
    s_lshr_b32 s54, s64, 1
    s_lshl_b32 s54, s54, 10
    s_and_b32 s55, s64, 1
    s_lshl_b32 s55, s55, 8
    s_add_u32 s54, s54, s55
    s_cmp_lt_u32 {sJ}, 4
    s_cselect_b32 s55, 0, {WS_V - WS_K}
    s_cselect_b32 s63, -1, 0
    s_add_u32 s54, s54, s55
    s_add_u32 s54, s54, {WS_K}
    s_cmp_lt_u32 {sJ}, 4
    """)
    def kvreads(s):
        if s & 3 == 0: a(f"s_waitcnt vmcnt({24 - 2*s})")
        if s == 0: stamp(1)
        a(f"ds_read_b64_tr_b16 {vr(128+4*s,2)}, v5 offset:{1024*s}\nds_read_b64_tr_b16 {vr(130+4*s,2)}, v5 offset:{1024*s+128}")
        a(f"ds_read_b128 {vr(64+4*s,4)}, v{12+(s&3)} offset:{16384*(s>>2)}")
    for s in range(4): kvreads(s)
    a("s_cbranch_scc0 L_KVv")
    for swap in range(2):
        for s in range(16):
            if s + 4 < 16: kvreads(s+4)
            a(f"s_waitcnt lgkmcnt({min(12, 3*(15-s))})")
            A_, B_ = (64+4*s, 128+4*s) if swap else (128+4*s, 64+4*s)
            a(f"v_mfma_f32_16x16x32_bf16 v[192:195], {vr(A_,4)}, {vr(B_,4)}, {'0' if s == 0 else 'v[192:195]'}")
        if not swap: a("s_branch L_KVd\nL_KVv:")
    a(f"""
    L_KVd:
    s_mul_i32 {sTAG}, {sTAG}, 0x9E3779B1
    s_add_u32 {sTAG}, {sTAG}, 0x7F4A7C15
    v_mov_b32 v11, {sTAG}
    ds_write_b32 v10, v11
    s_nop 3
    """)
    hstamp(12)
    a(f"""
    v_cvt_pk_bf16_f32 v196, v192, v193
    v_cvt_pk_bf16_f32 v197, v194, v195
    buffer_store_dwordx2 v[196:197], v6, {srd(SWS)}, s54 offen sc1
    v_mul_f32 v8, v192, v192
    v_fmac_f32 v8, v193, v193
    v_fmac_f32 v8, v194, v194
    v_fmac_f32 v8, v195, v195
    v_mov_b32 v9, v8
    s_waitcnt lgkmcnt(0)
    """)
    hstamp(13)
    a(f"""
    s_barrier
    v_permlane32_swap_b32 v8, v9
    v_add_f32 v8, v8, v9
    v_mov_b32 v9, v8
    s_nop 1
    v_permlane16_swap_b32 v8, v9
    v_add_f32 v8, v8, v9
    s_nop 1
    v_max_u32_dpp v8, v8, v8 row_ror:8 row_mask:0xf bank_mask:0xf
    s_nop 1
    v_max_u32_dpp v8, v8, v8 row_ror:4 row_mask:0xf bank_mask:0xf
    s_nop 1
    v_max_u32_dpp v8, v8, v8 row_ror:2 row_mask:0xf bank_mask:0xf
    s_nop 1
    v_max_u32_dpp v9, v8, v8 row_ror:1 row_mask:0xf bank_mask:0xf
    s_getreg_b32 s61, hwreg(HW_REG_XCC_ID, 0, 4)
    v_mov_b32 v8, {sTAG}
    v_and_b32 v9, s63, v9
    v_mov_b32 v10, {sTAG}
    v_mov_b32 v11, s61
    {"s_barrier" if o.get("b2") else ""}
    s_mov_b64 exec, 1
    s_waitcnt vmcnt(0)
    buffer_store_dwordx4 v[8:11], off, {srd(SWS)}, s57 sc1
    s_mov_b64 exec, -1
    s_setprio 0
    """)
    stamp(2)
    a(f"""
    {"" if o.get("b2") else "s_barrier"}
    s_barrier
    s_barrier
    s_barrier
    s_call_b64 s[14:15], L_gsetup
    s_branch L_Gjoin
    """)

    a(f"""
    L_nKV:
    s_load_dwordx2 s[{SW2}:{SW2+1}], s[0:1], 48
    s_mov_b32 s{SWS+2}, {WS_SIZE}
    s_mov_b32 s{SWS+3}, s63
    s_cmp_lt_u32 {sW}, 4
    s_cbranch_scc1 L_A1
    s_cmp_eq_u32 {sW}, 5
    s_cbranch_scc1 L_G5
    s_cmp_eq_u32 {sW}, 6
    s_cbranch_scc1 L_G6
    """)
    def loader(n, chunk):
        a("s_waitcnt lgkmcnt(0)\ns_barrier")
        pre = int(o.get("lpre", 2))
        for i in range(pre): chunk(i)
        a(f"s_waitcnt vmcnt({(pre-1)*n})\ns_barrier")
        for i in range(pre, 4): chunk(i)
        a(f"s_waitcnt vmcnt({2*n})\ns_barrier\ns_waitcnt vmcnt({n})\ns_barrier\ns_waitcnt vmcnt(0)\ns_barrier\ns_barrier")
        a("s_call_b64 s[14:15], L_gsetup\ns_branch L_Gjoin")
    a(f"s_lshl_b32 s54, {sGRP}, 16")
    for r in range(3): a(f"s_add_u32 s{61+r}, s60, {r+1}\ns_and_b32 s{61+r}, s{61+r}, 3\ns_lshl_b32 s{16+r}, s{61+r}, 14\ns_add_u32 s{16+r}, s{16+r}, s54\ns_lshl_b32 s{61+r}, s{61+r}, 12")
    def xchunk(i):
        a(f"s_add_u32 s55, {sC0}, {i}\ns_and_b32 s55, s55, 3\ns_lshl_b32 s55, s55, 8")
        for r in range(3):
            a(f"s_add_u32 m0, s{61+r}, {X_ + 16384*i}\ns_add_u32 s60, s{16+r}, s55")
            for q in range(4): a(f"buffer_load_dwordx4 v{4+q}, {srd(SX)}, s60 offen offset:{1024*q} lds")
    loader(12, xchunk)
    a(f"""
    L_G5:
    s_mov_b32 s{SWQ+2}, 524288
    s_mov_b32 s{SWQ+3}, s63
    v_lshrrev_b32 v1, 3, {L}
    v_and_b32 v2, 7, {L}
    v_bfe_u32 v3, {L}, 4, 1
    v_lshlrev_b32 v3, 2, v3
    v_xor_b32 v2, v3, v2
    v_lshlrev_b32 v2, 4, v2
    v_lshl_or_b32 v8, v1, 10, v2
    v_add_u32 v9, 7168, v8
    v_add_u32 v10, 14336, v8
    v_add_u32 v11, 21504, v8
    s_lshl_b32 s64, {sJ}, 7
    """)
    def wchunk(i):
        a(f"s_add_u32 s55, {sC0}, {i}\ns_and_b32 s55, s55, 3\ns_lshl_b32 s55, s55, 17\ns_add_u32 s55, s55, s64")
        for r in range(4):
            a(f"s_mov_b32 m0, {W_ + 16384*i + 4096*r}\n" + ("s_add_u32 s55, s55, 32768" if r else "s_nop 0"))
            for q in range(4): a(f"buffer_load_dwordx4 v{8+q}, {srd(SWQ)}, s55 offen offset:{1024*q} lds")
    loader(16, wchunk)
    a(f"""
    L_G6:
    s_load_dwordx2 s[{SB1}:{SB1+1}], s[0:1], 56
    s_load_dwordx2 s[{SB2}:{SB2+1}], s[0:1], 72
    s_load_dwordx2 s[{SGT}:{SGT+1}], s[0:1], 80
    s_lshl_b32 s60, {sJ}, 7
    s_waitcnt lgkmcnt(0)
    s_barrier
    s_mul_i32 s61, s2, 7168
    s_add_u32 s61, s61, 3584
    s_add_u32 s64, s{SW2}, s61
    s_addc_u32 s65, s{SW2+1}, 0
    s_mov_b32 s{SB1+2}, 3584
    s_mov_b32 s{SB1+3}, 0x00020000
    s_mov_b32 s{SB2+2}, 1024
    s_mov_b32 s{SB2+3}, 0x00020000
    s_mov_b32 s{SGT+2}, 1024
    s_mov_b32 s{SGT+3}, 0x00020000
    v_mov_b32 v4, 0
    v_mov_b32 v5, 0
    v_mov_b32 v6, 0
    v_mov_b32 v7, 0
    v_lshlrev_b32 v16, 4, {L}
    v_add_u32 v2, {MISC}, v16
    v_mov_b32 v8, 0xff800000
    v_mov_b32 v9, v8
    v_mov_b32 v10, v8
    v_mov_b32 v11, v8
    ds_write_b128 v2, v[4:7]
    ds_write_b128 v2, v[8:11] offset:1024
    s_lshl_b32 s61, {sC0}, 4
    v_add_u32 v1, s61, {L}
    v_and_b32 v1, 63, v1
    v_lshlrev_b32 v1, 4, v1
    s_mul_i32 s61, {sJ}, 448
    s_mov_b32 m0, {M_GATE}
    s_waitcnt lgkmcnt(0)
    """)
    def g6touch(i0, i1):
        if not o.get("nopf"):
            for i in range(i0, i1): a(f"s_load_dword s56, s[64:65], {64*i}")
    g6touch(0, 14)
    a(f"""
    buffer_load_dwordx4 v1, {srd(SGT)}, 0 offen lds
    s_mov_b32 m0, {M_B1}
    s_mov_b64 exec, 0xfffffff
    buffer_load_dwordx4 v16, {srd(SB1)}, s61 offen lds
    s_mov_b32 m0, {M_B2}
    s_mov_b64 exec, 0xff
    buffer_load_dwordx4 v16, {srd(SB2)}, s60 offen lds
    s_mov_b64 exec, -1
    """)
    g6touch(14, 28)
    a("s_barrier")
    g6touch(28, 42)
    a("s_barrier")
    g6touch(42, 56)
    a(f"""
    s_barrier
    s_waitcnt vmcnt(0)
    s_barrier
    s_barrier
    s_call_b64 s[14:15], L_gsetup
    s_branch L_Gjoin
    L_A1:
    s_waitcnt lgkmcnt(0)
    s_barrier
    """)
    def codetouch(lbl):
        a(f"""
        s_getpc_b64 s[16:17]
        {lbl}:
        s_mov_b32 s18, L_end - {lbl}
        s_mov_b32 s19, 0x00020000
        s_lshr_b32 s57, s2, 3
        s_lshl2_add_u32 s57, s57, {sW}
        s_mul_i32 s57, s57, 384
        """)
        for i in range(6): a(f"s_buffer_load_dword s56, s[16:19], s57 offset:{64*i}")
    codetouch("L_pc")
    def w1touch(first, n):
        if o.get("nopf"): return
        a(f"s_mul_i32 s60, s2, 7168\ns_add_u32 s60, s60, {first}\ns_add_u32 s{SW2}, s{SW2}, s60\ns_addc_u32 s{SW2+1}, s{SW2+1}, 0")
        for i in range(n): a(f"s_load_dword s56, s[{SW2}:{SW2+1}], {64*i}")
    stamp(1)
    a(f"s_mul_i32 s61, {sW}, 896")
    w1touch("s61", 14)
    a(f"""
    s_lshr_b32 s60, {sW}, 1
    s_lshl_b32 s60, s60, 13
    v_and_b32 v1, 31, {L}
    v_lshrrev_b32 v2, 5, {L}
    v_and_b32 v3, 15, {L}
    v_xor_b32 v3, v2, v3
    v_lshlrev_b32 v3, 4, v3
    v_lshl_or_b32 v16, v1, 8, v3
    v_add_u32 v16, s60, v16
    """)
    for k in range(1, 8): a(f"v_xor_b32 v{16+k}, {32*k}, v16")
    def tr_addr(dst, hmul, t0=1, t1=2):
        a(f"""
        v_lshrrev_b32 v{t0}, 5, {L}
        v_bfe_u32 v{t1}, {L}, 2, 2
        v_mad_u32_u24 v{t0}, v{t0}, {hmul}, v{t1}
        v_lshlrev_b32 v{t0}, 7, v{t0}
        v_bfe_u32 v{t1}, {L}, 3, 1
        v_lshl_or_b32 v{t0}, v{t1}, 6, v{t0}
        v_bfe_u32 v{t1}, {L}, 4, 1
        v_lshl_or_b32 v{t0}, v{t1}, 5, v{t0}
        v_and_b32 v{t1}, 3, {L}
        v_lshl_or_b32 v{dst}, v{t1}, 3, v{t0}
        """)
    tr_addr(24, 8)
    a(f"""
    s_and_b32 s60, {sW}, 1
    s_lshl_b32 s60, s60, 6
    v_xor_b32 v24, s60, v24
    v_add_u32 v24, {W_}, v24
    v_and_b32 v1, 11, {L}
    v_cmp_eq_u32 vcc, 0, v1
    v_mov_b32 v2, 0x3f803f80
    v_lshlrev_b32 v250, 4, {L}
    v_cndmask_b32 v68, 0, v2, vcc
    v_mov_b32 v251, {M_QMAX}
    v_mov_b32 v69, v68
    v_lshlrev_b32 v247, 5, {L}
    s_lshl_b32 s60, {sW}, 8
    s_add_u32 s60, s60, {OACC}
    v_lshlrev_b32 v244, 2, {L}
    v_add_u32 v244, s60, v244
    v_add_u32 v246, {QF}, v250
    v_add_u32 v252, {WS_V - WS_K}, v250
    s_lshr_b32 s60, {sW}, 1
    s_lshl_b32 s60, s60, 12
    s_and_b32 s61, {sW}, 1
    s_lshl_b32 s61, s61, 11
    s_add_u32 s60, s60, s61
    v_add_u32 v220, s60, v246
    s_lshl_b32 s60, {sW}, 11
    s_add_u32 s60, s60, {WS_KVF}
    s_lshl_b32 s54, {sW}, 14
    s_add_u32 s54, s54, {WS_K}
    s_and_b32 s55, {sJ}, 3
    s_lshl_b32 s55, s55, 12
    s_mov_b32 s62, {QSCALE}
    s_mov_b32 s63, 0
    s_add_u32 s8, s54, s55
    s_add_u32 s55, s55, 4096
    s_and_b32 s55, s55, 0x3fff
    s_add_u32 s9, s54, s55
    s_add_u32 s55, s55, 4096
    s_and_b32 s55, s55, 0x3fff
    s_add_u32 s10, s54, s55
    s_add_u32 s55, s55, 4096
    s_and_b32 s55, s55, 0x3fff
    s_add_u32 s11, s54, s55
    """)
    for t in range(16):
        for r in (68 + 8*t, 70 + 8*t):
            if r != 68: a(f"v_mov_b64 {vr(r,2)}, v[68:69]")
    def qreads(ks):
        b = 192 + 8*(ks % 3)
        a(f"ds_read_b64_tr_b16 {vr(b,2)}, v24 offset:{2048*ks}")
        a(f"ds_read_b64_tr_b16 {vr(b+2,2)}, v24 offset:{2048*ks+512}")
        a(f"ds_read_b128 {vr(b+4,4)}, v{16+(ks&7)} offset:{16384*(ks>>3)}")
    poll = f"buffer_load_dwordx2 v[248:249], v247, {srd(SWS)}, s60 offen sc1"
    for c in range(4):
        a(("s_waitcnt vmcnt(0) lgkmcnt(0)\n" if c == 0 else "") + "s_barrier")
        if c == 0: stamp(2)
        if c > 0: hstamp(12 + c)
        if c == 1: a(f"v_mov_b32 v253, {M_TAG}\nds_read_b32 v253, v253")
        if c == 3 and not o.get("latepoll"): a(poll)
        qreads(8*c); qreads(8*c+1)
        for k in range(8):
            ks = 8*c + k
            if k < 6:
                qreads(ks+2); a("s_waitcnt lgkmcnt(6)")
            else:
                a(f"s_waitcnt lgkmcnt({3*(7-k)})")
            if c == 3 and k == 7: a("s_barrier")
            b = 192 + 8*(ks % 3)
            a(f"v_mfma_f32_32x32x16_bf16 v[224:239], {vr(b,4)}, {vr(b+4,4)}, {'0' if ks == 0 else 'v[224:239]'}")
        if c == 1: a(f"v_readfirstlane_b32 {sTAG}, v253")
    stamp(3)
    a(f"""
    {"" if o.get("latepoll") else "s_branch L_kvchk"}
    L_kvpoll:
    {poll}
    s_add_u32 s63, s63, 1
    s_cmp_gt_u32 s63, {SPIN_MAX}
    s_cbranch_scc1 L_kvok
    L_kvchk:
    s_waitcnt vmcnt(0)
    v_cmp_ne_u32 vcc, {sTAG}, v248
    s_cbranch_vccnz L_kvpoll
    L_kvok:
    s_setprio 2
    """)
    stamp(5)
    D = int(o.get("D", 5))
    def kvload(t):
        return [f"buffer_load_dwordx4 {vr(4*t,4)}, v250, {srd(SWS)}, s{8+(t>>2)} offen offset:{1024*(t&3)} sc1",
                f"buffer_load_dwordx4 {vr(64+8*t,4)}, v252, {srd(SWS)}, s{8+(t>>2)} offen offset:{1024*(t&3)} sc1"]
    for t in range(D): a("\n".join(kvload(t)))
    a("s_nop 0")
    for r in range(16): a(f"v_mul_f32 v{224+r}, s62, v{224+r}")
    for r in range(8): a(f"v_cvt_pk_bf16_f32 v{192+r}, v{224+2*r}, v{225+2*r}")
    a(f"v_mov_b32 v245, {sTAG}\nds_write_b128 v220, v[192:195]\nds_write_b128 v220, v[196:199] offset:1024")
    a(f"s_cmp_lg_u32 {sW}, 0\ns_cbranch_scc1 L_q0s\nds_write_b32 v251, v245 offset:{M_Q0 - M_QMAX}\nL_q0s:")
    stamp(4)
    a("v_mul_f32 v208, v224, v224\nv_mul_f32 v209, v232, v232")
    for r in range(1, 8): a(f"v_fmac_f32 v208, v{224+r}, v{224+r}\nv_fmac_f32 v209, v{232+r}, v{232+r}")
    a(f"""
    s_mov_b32 s63, 0
    L_q0w:
    ds_read_b32 v210, v251 offset:{M_Q0 - M_QMAX}
    ds_read_b128 v[240:243], v246
    s_add_u32 s63, s63, 1
    s_cmp_gt_u32 s63, {SPIN_MAX}
    s_cbranch_scc1 L_q0x
    s_waitcnt lgkmcnt(0)
    v_cmp_ne_u32 vcc, {sTAG}, v210
    s_cbranch_vccnz L_q0w
    L_q0x:
    s_waitcnt vmcnt({2*D-1})
    v_mfma_f32_32x32x16_bf16 v[192:207], v[0:3], v[240:243], 0
    v_permlane32_swap_b32 v208, v209
    v_max_u32_dpp v249, v249, v249 row_ror:8 row_mask:0xf bank_mask:0xf
    v_add_f32 v254, v208, v209
    v_mov_b32 v253, 1
    v_max_u32_dpp v249, v249, v249 row_ror:4 row_mask:0xf bank_mask:0xf
    v_max_u32_dpp v254, v254, v254 row_ror:8 row_mask:0xf bank_mask:0xf
    s_mov_b32 s64, 0x00010001
    v_max_u32_dpp v249, v249, v249 row_ror:2 row_mask:0xf bank_mask:0xf
    v_max_u32_dpp v254, v254, v254 row_ror:4 row_mask:0xf bank_mask:0xf
    s_mov_b32 s65, 0x00010001
    v_max_u32_dpp v249, v249, v249 row_ror:1 row_mask:0xf bank_mask:0xf
    v_max_u32_dpp v254, v254, v254 row_ror:2 row_mask:0xf bank_mask:0xf
    v_add_u32 v246, 1024, v246
    s_mov_b32 s62, 8
    v_max_u32_dpp v254, v254, v254 row_ror:1 row_mask:0xf bank_mask:0xf
    s_mov_b64 exec, s[64:65]
    ds_max_u32 v251, v254
    ds_max_u32 v251, v249 offset:4
    ds_add_u32 v251, v253 offset:8
    s_mov_b64 exec, -1
    s_mov_b32 s64, {0 if o.get('noG') else 0x24}
    """)
    stamp(6)
    if diag: a("s_memrealtime s[86:87]")
    flush = [f"ds_write2st64_b32 v244, v{224+2*r}, v{225+2*r} offset0:{8*r} offset1:{8*r+4}" for r in range(4)] + ["ds_write2st64_b32 v244, v232, v245 offset0:32 offset1:36", f"v_add_u32 v244, {0 if o.get('noG') else SLOT}, v244"]
    def tile(t, peel=False):
        first = peel and t == 0
        S = [192, 208]
        cur = S[t & 1]; nxt = S[(t+1) & 1]
        Kn = 4*((t+1) % 16); Vp = 64 + 8*((t-1) % 16) + 4; Vc = 64 + 8*t
        m0 = f"v_mfma_f32_32x32x16_bf16 v[224:239], {vr(Vp,4)}, {vr(nxt+4,4)}, v[224:239]"
        m1 = f"v_mfma_f32_32x32x16_bf16 {vr(nxt,16)}, {vr(Kn,4)}, v[240:243], 0"
        m2 = f"v_mfma_f32_32x32x16_bf16 v[224:239], {vr(Vc,4)}, {vr(cur,4)}, {'0' if t == 0 else 'v[224:239]'}"
        e = lambda i: f"v_exp_f32 v{cur+i}, v{cur+i}"
        c = lambda i: f"v_cvt_pk_bf16_f32 v{cur+i}, v{cur+2*i}, v{cur+2*i+1}"
        cp7 = f"v_cvt_pk_bf16_f32 v{nxt+7}, v{nxt+14}, v{nxt+15}"
        seq = []
        if peel:
            if t + D < 16: seq += kvload(t + D)
            if t == int(o.get("go", 0)): seq.append(f"ds_write_b32 v251, v245 offset:{M_GO - M_QMAX}")
            seq.append(f"s_waitcnt vmcnt({max(2*min(t+D+1, 16) - (2*t+3), 0)})")
            seq += [f"v_permlane16_swap_b32 v{Vc+r}, v{Vc+4+r}" for r in range(4)]
        qn = ["ds_read_b128 v[240:243], v246", "v_add_u32 v246, 1024, v246"]
        if o.get("even") or (t == 0 and not first):
            seq += [e(0)] + ([] if first else [cp7]) + [e(1), e(2)] + ([] if first else [m0]) + [c(0), e(3), e(4), c(1), e(5), e(6)]
            if t == 15: seq.append("s_waitcnt lgkmcnt(0)")
            seq.append(m1)
            if t == 14: seq += qn
            seq += [c(2), e(7), e(8), c(3), e(9), e(10)]
            if t == 0 and not first: seq += (flush if not o.get("noflush") else [])
            seq += [c(4), m2, e(11), e(12), c(5), e(13), e(14), c(6)]
        else:
            seq += [e(0)] + ([] if first else [cp7]) + [e(1), e(2), e(3)]
            if t == 15: seq.append("s_waitcnt lgkmcnt(0)")
            seq += [e(4), e(5)] + ([] if first else [m0]) + [e(6), e(7), c(0), c(1), m1, c(2), c(3), e(8), e(9), m2]
            if t == 14: seq += qn
            seq += [e(10), c(4), e(11), e(12), c(5), e(13), e(14), c(6)]
        if t == 15: seq += ["s_sub_u32 s62, s62, 1"]
        seq += [e(15)]
        a("\n".join(seq))
    for t in range(16): tile(t, peel=True)
    a("s_mov_b32 s63, 0\ns_branch L_chk2\n.p2align 6\nL_top:")
    for t in range(16): tile(t)
    if diag and not rt and not o.get("hd"):
        a("s_cmp_lt_u32 s62, 2\ns_cbranch_scc1 L_nst\ns_mov_b32 s90, s92\ns_mov_b32 s92, s94\ns_mov_b32 s94, s96\ns_mov_b32 s96, s98\ns_memtime s[98:99]\ns_waitcnt lgkmcnt(0)\nL_nst:")
    a(f"""
    s_bitcmp1_b32 s64, s62
    s_cbranch_scc1 L_check
    s_cmp_lg_u32 s62, 0
    s_cbranch_scc1 L_top
    v_cvt_pk_bf16_f32 v215, v222, v223
    s_nop 1
    v_mfma_f32_32x32x16_bf16 v[224:239], {vr(64+8*15+4,4)}, v[212:215], v[224:239]
    s_nop 11
    """)
    a("\n".join(flush[:5]) + "\ns_waitcnt lgkmcnt(0)")
    stamp(8)
    if diag: a("s_memrealtime s[88:89]")
    a("s_barrier")
    diag_out("a")
    a("s_endpgm")
    a(f"""
    L_check:
    s_mov_b32 s63, 0
    s_cmp_eq_u32 s62, 5
    s_cselect_b32 s60, 4, 12
    s_cselect_b32 s61, {OACC + 2*SLOT - X_}, 0
    s_add_u32 s60, s60, {M_CNTG}
    v_mov_b32 v249, s60
    L_xw:
    ds_read_b32 v248, v249
    s_add_u32 s63, s63, 1
    s_cmp_gt_u32 s63, {SPIN_MAX}
    s_cbranch_scc1 L_xw_x
    s_waitcnt lgkmcnt(0)
    v_cmp_ne_u32 vcc, 4, v248
    s_cbranch_vccnz L_xw
    L_xw_x:
    v_subrev_u32 v244, s61, v244
    s_branch L_top
    L_chk2:
    ds_read_b96 v[248:250], v251
    s_add_u32 s63, s63, 1
    s_cmp_gt_u32 s63, {SPIN_MAX}
    s_cbranch_scc1 L_chk3
    s_waitcnt lgkmcnt(0)
    v_cmp_ne_u32 vcc, 16, v250
    s_cbranch_vccnz L_chk2
    L_chk3:
    v_mul_f32 v248, v248, v249
    v_mov_b32 v249, 0x45700000
    """)
    stamp(7)
    a(f"""
    v_cmp_nle_f32 vcc, v248, v249
    s_cbranch_vccz L_top
    """)
    if o.get("force_slow"): a.l[-1] = "    s_nop 0"
    a(f"""
    v_lshlrev_b32 v246, 4, {L}
    v_add_u32 v246, {QF}, v246
    v_and_b32 v247, 31, {L}
    v_lshlrev_b32 v247, 2, v247
    v_add_u32 v247, {M_M}, v247
    v_mov_b32 v251, {M_CNTS}
    s_mov_b32 s62, 8
    L_slow:
    ds_read_b128 v[240:243], v246
    v_add_u32 v246, 1024, v246
    v_mov_b32 v248, 0xff800000
    s_waitcnt lgkmcnt(0)
    """)
    for t in range(16):
        a(f"v_mfma_f32_32x32x16_bf16 v[192:207], {vr(4*t,4)}, v[240:243], 0\ns_nop 11")
        for r in range(8): a(f"v_max3_f32 v248, v248, v{192+2*r}, v{193+2*r}")
    a(f"""
    ds_max_f32 v247, v248
    s_mov_b64 exec, 1
    ds_add_u32 v251, v253
    s_mov_b64 exec, -1
    s_mov_b32 s63, 0
    L_slow2:
    s_sleep 1
    ds_read_b32 v249, v251
    s_add_u32 s63, s63, 1
    s_cmp_gt_u32 s63, {SPIN_MAX}
    s_cbranch_scc1 L_slow3
    s_waitcnt lgkmcnt(0)
    v_cmp_ne_u32 vcc, 4, v249
    s_cbranch_vccnz L_slow2
    L_slow3:
    ds_read_b32 v248, v247
    v_add_u32 v247, 128, v247
    v_add_u32 v251, 4, v251
    s_waitcnt lgkmcnt(0)
    """)
    for t in range(16):
        a(f"v_mfma_f32_32x32x16_bf16 v[192:207], {vr(4*t,4)}, v[240:243], 0\ns_nop 11")
        for r in range(16): a(f"v_sub_f32 v{192+r}, v{192+r}, v248")
        for r in range(16): a(f"v_exp_f32 v{192+r}, v{192+r}")
        a("s_nop 0")
        for r in range(8): a(f"v_cvt_pk_bf16_f32 v{208+r}, v{192+2*r}, v{193+2*r}")
        a("s_nop 1")
        a(f"v_mfma_f32_32x32x16_bf16 v[224:239], {vr(64+8*t,4)}, v[208:211], {'0' if t == 0 else 'v[224:239]'}")
        a(f"v_mfma_f32_32x32x16_bf16 v[224:239], {vr(68+8*t,4)}, v[212:215], v[224:239]")
    a(f"""
    s_cmp_lg_u32 s62, 6
    s_cbranch_scc1 L_slow5
    s_mov_b32 s63, 0
    v_mov_b32 v249, {M_CNTG + 12}
    L_slow4:
    ds_read_b32 v248, v249
    s_add_u32 s63, s63, 1
    s_cmp_gt_u32 s63, {SPIN_MAX}
    s_cbranch_scc1 L_slow4x
    s_waitcnt lgkmcnt(0)
    v_cmp_ne_u32 vcc, 4, v248
    s_cbranch_vccnz L_slow4
    L_slow4x:
    v_subrev_u32 v244, {OACC + 2*SLOT - X_}, v244
    L_slow5:
    """)
    a("s_nop 11")
    a("\n".join(flush))
    a(f"""
    s_sub_u32 s62, s62, 1
    s_cmp_lg_u32 s62, 0
    s_cbranch_scc1 L_slow
    s_waitcnt lgkmcnt(0)
    s_barrier
    """)
    diag_out("s")
    a("s_endpgm")

    a(f"""
    L_Gjoin:
    s_sub_u32 {sW}, {sW}, 4
    """)
    gw = sW
    def lds_wait(lbl, addr, off, val, sleep=2):
        a(f"""
        s_mov_b32 s63, 0
        {lbl}:
        ds_read_b32 v178, {addr} offset:{off}
        s_add_u32 s63, s63, 1
        s_cmp_gt_u32 s63, {SPIN_MAX}
        s_cbranch_scc1 {lbl}_x
        s_waitcnt lgkmcnt(0)
        v_cmp_ne_u32 vcc, {val}, v178
        s_cbranch_vccz {lbl}_x
        s_sleep {sleep}
        s_branch {lbl}
        {lbl}_x:
        """)
    a(f"""
    ds_read_b32 v178, v177 offset:{M_TAG - M_CNTG}
    ds_read_u16 v152, v12
    ds_read_u16 v156, v12 offset:64
    ds_read_u16 v168, v13
    ds_read_u16 v172, v13 offset:64
    s_setprio 3
    s_waitcnt lgkmcnt(0)
    v_readfirstlane_b32 {sTAG}, v178
    s_nop 3
    """)
    if o.get("noG"): a("s_barrier\ns_branch L_gend")
    if int(o.get("go", 0)) >= 0: lds_wait("L_go", "v177", M_GO - M_CNTG, sTAG, 3)
    a(f"""
    s_setprio 0
    s_lshl_b32 s64, {sGRP}, 8
    s_add_u32 s64, s64, {WS_KVF}
    s_mul_i32 s4, {gw}, {448*1024}
    s_lshl_b32 s55, {sJ}, 7
    s_add_u32 s4, s4, s55
    s_lshl_b32 s7, {gw}, 17
    s_add_u32 s7, s7, s55
    s_mul_i32 s5, {sGRP}, {2*112*1024}
    s_add_u32 s5, s5, {WS_H}
    s_lshl_b32 s24, s48, 11
    s_add_u32 s24, s24, s5
    s_add_u32 s25, s24, {112*1024}
    s_mul_i32 s61, {gw}, {28*1024}
    s_add_u32 s5, s5, s61
    s_and_b32 s6, {sGRP}, {3 if o.get('rot2') else 0}
    s_lshl_b32 s10, {sGRP}, 3
    s_add_u32 s8, s10, {sJ}
    s_lshl_b32 s26, s8, 2
    s_add_u32 s26, s26, {gw}
    s_lshl_b32 s26, s26, 5
    s_add_u32 s26, s26, {WS_HF}
    s_lshl_b32 s8, s8, 3
    s_add_u32 s8, s8, {gw}
    s_lshl_b32 s8, s8, 10
    s_add_u32 s8, s8, {WS_O}
    s_add_u32 s9, s8, 4096
    s_lshl_b32 s60, {gw}, 1
    s_add_u32 s10, s10, s60
    s_lshl_b32 s27, s10, 7
    s_add_u32 s27, s27, {WS_HF}
    s_lshl_b32 s10, s10, 13
    s_add_u32 s10, s10, {WS_O}
    s_add_u32 s65, s10, 8192
    s_lshl_b32 s33, {sGRP}, 16
    s_add_u32 s11, s33, {WS_O + 7*1024}
    s_add_u32 s33, s33, s55
    s_add_u32 s34, s33, 0x8000
    s_lshl_b32 s60, {gw}, 13
    s_add_u32 s33, s33, s60
    s_movk_i32 s32, {4*SLOT // 4}
    s_cmp_lt_u32 {gw}, 2
    s_cselect_b32 s32, {(2*SLOT + X_ - OACC) // 4 & 0xffffffff}, s32
    s_lshl_b32 s32, s32, 2
    """)
    stamp(3)
    a(f"s_cmp_eq_u32 {gw}, 3\ns_cbranch_scc1 L_F1w3")
    ACC = lambda mt, nt: 32*nt + 16*mt
    def mf(mt, nt, A_, B_, c0=False):
        d = vr(ACC(mt, nt), 16)
        a(f"v_mfma_f32_32x32x16_bf16 {d}, {vr(A_,4)}, {vr(B_,4)}, {'0' if c0 else d}")
    class VM:
        def __init__(s_): s_.ops = []
        def op(s_, ins, tag=None): a(ins); s_.ops.append(tag)
        def n(s_, *tags): return len(s_.ops) - 1 - max(i for i, t in enumerate(s_.ops) if t in tags)
    xcload = f"buffer_load_dwordx2 v[194:195], v180, {srd(SWS)}, s64 offen offset:8 sc1"
    def f1reads(k, w3):
        ab = 120 + 8*(k & 1); bb = 64 + 8*(k & 1); u = k & 7; xo = 16384*(k >> 3)
        r0 = [f"ds_read_b64_tr_b16 {vr(ab,2)}, v144 offset:{2048*u}", f"ds_read_b64_tr_b16 {vr(ab+2,2)}, v144 offset:{2048*u+(256 if w3 else 512)}", f"ds_read_b128 {vr(bb,4)}, v{136+u} offset:{xo}"]
        if not w3: r1 = [f"ds_read_b64_tr_b16 {vr(ab+4,2)}, v145 offset:{2048*u}", f"ds_read_b64_tr_b16 {vr(ab+6,2)}, v145 offset:{2048*u+512}"]
        else: r1 = [f"ds_read_b128 {vr(ab+4,4)}, v145 offset:{32*k}"]
        r1.append(f"ds_read_b128 {vr(bb+4,4)}, v{136+u} offset:{xo+8192}")
        return "\n".join(r0), "\n".join(r1)
    def ffn1(w3):
        vm = VM()
        def dma(k, half):
            if k < 32:
                if half == 0: vm.op(f"buffer_load_dwordx4 v148, {srd(SW1)}, s54 offen lds", k)
                elif not w3: vm.op(f"buffer_load_dwordx4 v149, {srd(SW1)}, s54 offen offset:1024 lds", k)
            else:
                vm.op(f"buffer_load_dwordx4 v{150+half}, {srd(SW2 if k < 39 else SWO)}, s54 offen offset:{1024*half} lds", k)
        def adv(k):
            if k < 32 and k & 7: a(f"s_add_u32 s54, s54, {16*3584}")
            elif k < 32: a(f"s_add_u32 s55, {sC0}, {k >> 3}\ns_and_b32 s55, s55, 3\ns_mul_i32 s55, s55, {128*3584}\ns_add_u32 s54, s100, s55")
            elif k == 32: a(f"s_mul_i32 s54, s6, {7*16384}\ns_add_u32 s54, s54, s4")
            elif k < 39: a("s_add_u32 s54, s54, 16384")
            elif k == 39: a(f"s_add_u32 s54, s7, {7*16384}")
        for k in range(8):
            a(f"s_add_u32 m0, s49, {2048*k}\ns_nop 0")
            dma(k, 0); dma(k, 1); adv(k+1)
        if w3: a("s_setprio 3\nv_mov_b32 v156, 0\ns_setprio 0")
        a(f"s_waitcnt vmcnt({vm.n(0)})")
        a("\n".join(f1reads(0, w3)))
        for nt in range(2):
            mf(0, nt, 152, 160, True)
            mf(1, nt, 156, 160, True)
        for k in range(32):
            u = k & 7
            ab = 120 + 8*(k & 1); bb = 64 + 8*(k & 1)
            if k == 12:
                for so in ("s8", "s9"): vm.op(f"buffer_store_dwordx4 v[200:203], v166, {srd(SWS)}, {so} offen sc1")
                vm.op(f"buffer_load_dword v178, v180, {srd(SWS)}, s27 offen sc1")
                vm.op(xcload, "xc")
                if not w3 and not o.get("nopf"):
                    a(f"""
                    s_cmp_eq_u32 {gw}, 0
                    s_cbranch_scc0 L_f1m
                    s_mul_i32 s60, s2, 7168
                    s_mov_b64 exec, s[12:13]
                    buffer_load_dword v178, v196, {srd(SW2)}, s60 offen
                    s_mov_b64 exec, 0xffff
                    s_lshl_b32 s60, s2, 11
                    buffer_load_dword v178, v196, {srd(SWO)}, s60 offen
                    s_mov_b64 exec, -1
                    L_f1m:
                    """)
                if o.get("hpre"):
                    for so in ("s24", "s25"):
                        for q in range(2 if w3 else 4): vm.op(f"buffer_load_dwordx4 v[204:207], v166, {srd(SWS)}, {so} offen offset:{1024*q}")
            a(f"s_waitcnt vmcnt({vm.n(k+1) if k < 31 else 63}) lgkmcnt(0)")
            r0, r1 = f1reads(k+1, w3) if k < 31 else ("", "")
            mf(0, 0, ab, bb)
            a(r0)
            mf(1, 0, ab+4, bb)
            a(r1)
            a(f"s_add_u32 m0, s49, {2048*u}")
            mf(0, 1, ab, bb+4)
            dma(k+8, 0)
            if u == 7: a(f"s_mov_b64 exec, 1\nds_add_u32 v177, v167 offset:{4*(k >> 3)}\ns_mov_b64 exec, -1")
            mf(1, 1, ab+4, bb+4)
            dma(k+8, 1); adv(k+9)
        a(f"s_waitcnt vmcnt({vm.n('xc')})")
    ffn1(False)
    a("s_branch L_F1done\nL_F1w3:")
    ffn1(True)
    a(f"""
    L_F1done:
    s_mov_b32 s63, 0
    s_getreg_b32 s61, hwreg(HW_REG_XCC_ID, 0, 4)
    s_setprio 3
    s_branch L_xc_c
    L_xc:
    {xcload}
    s_add_u32 s63, s63, 1
    s_cmp_gt_u32 s63, {SPIN_MAX}
    s_cbranch_scc1 L_xc_x
    s_waitcnt vmcnt(0)
    L_xc_c:
    v_cmp_ne_u32 vcc, {sTAG}, v194
    s_cbranch_vccnz L_xc
    L_xc_x:
    v_cmp_ne_u32 vcc, s61, v195
    s_nop 3
    s_cmp_eq_u64 vcc, 0
    s_cselect_b32 s101, {0 if o.get('nofast') else 1}, 0
    """)
    nst = [0]
    def hstore(ins):
        nst[0] += 1
        a(f"s_cbranch_scc1 L_hs{nst[0]}a\n{ins} sc1\ns_branch L_hs{nst[0]}b\nL_hs{nst[0]}a:\n{ins}\nL_hs{nst[0]}b:")
    stamp(4)
    def hst(mt, nt):
        b = ACC(mt, nt)
        for r in range(16): a(f"v_max_f32 v{b+r}, 0, v{b+r}")
        for r in range(8): a(f"v_pk_mul_f32 {vr(b+2*r,2)}, {vr(b+2*r,2)}, {vr(b+2*r,2)}")
        for r in range(8): a(f"v_cvt_pk_bf16_f32 v{b+r}, v{b+2*r}, v{b+2*r+1}")
        so = "s25" if nt else "s24"
        st = hstore if o.get("hpre") else (lambda ins: a(ins + " sc1"))
        a("s_cmp_eq_u32 s101, 1")
        st(f"buffer_store_dwordx4 {vr(b,4)}, v166, {srd(SWS)}, {so} offen offset:{2048*mt}")
        st(f"buffer_store_dwordx4 {vr(b+4,4)}, v166, {srd(SWS)}, {so} offen offset:{2048*mt+1024}")
    hst(0, 0); hst(0, 1)
    a(f"s_cmp_eq_u32 {gw}, 3\ns_cbranch_scc1 L_gate")
    hst(1, 0); hst(1, 1)
    a(f"""
    s_branch L_gated
    L_gate:
    v_mul_f32 v16, {0x80000000 | LOG2E}, v16
    v_mul_f32 v48, {0x80000000 | LOG2E}, v48
    v_exp_f32 v16, v16
    v_exp_f32 v48, v48
    s_nop 0
    v_add_f32 v16, 1.0, v16
    v_add_f32 v48, 1.0, v48
    v_rcp_f32 v16, v16
    v_rcp_f32 v48, v48
    s_nop 1
    ds_write_b32 v192, v16
    ds_write_b32 v192, v48 offset:128
    L_gated:
    s_mov_b64 exec, 1
    ds_add_u32 v177, v167 offset:16
    s_mov_b64 exec, -1
    """)
    def fin(B, sfx, first):
        a(f"""
        s_mov_b32 s63, 0
        L_fw{sfx}:
        ds_read_b32 v{B}, v176
        s_add_u32 s63, s63, 1
        s_cmp_gt_u32 s63, {SPIN_MAX}
        s_cbranch_scc1 L_fw{sfx}_x
        s_waitcnt lgkmcnt(0)
        v_cmp_ne_u32 vcc, {sTAG}, v{B}
        s_cbranch_vccz L_fw{sfx}_x
        s_sleep 3
        s_branch L_fw{sfx}
        L_fw{sfx}_x:
        ds_read2st64_b32 {vr(B+32,2)}, v181 offset0:32 offset1:33
        ds_read2st64_b32 {vr(B+34,2)}, v181 offset0:34 offset1:35
        """)
        for w in range(4):
            for r in range(4): a(f"ds_read2st64_b32 {vr(B+8*w+2*r,2)}, v181 offset0:{8*r+w} offset1:{8*r+4+w}")
        a(f"s_cmp_eq_u32 s101, 1\ns_waitcnt lgkmcnt(8)\nv_pk_add_f32 {vr(B+32,2)}, {vr(B+32,2)}, {vr(B+34,2)}")
        for r in range(4): a(f"v_pk_add_f32 {vr(B+2*r,2)}, {vr(B+2*r,2)}, {vr(B+8+2*r,2)}")
        a(f"v_add_f32 v{B+32}, v{B+32}, v{B+33}\ns_waitcnt lgkmcnt(0)")
        for r in range(4): a(f"v_pk_add_f32 {vr(B+16+2*r,2)}, {vr(B+16+2*r,2)}, {vr(B+24+2*r,2)}")
        a(f"v_rcp_f32 v{B+32}, v{B+32}")
        for r in range(4): a(f"v_pk_add_f32 {vr(B+2*r,2)}, {vr(B+2*r,2)}, {vr(B+16+2*r,2)}")
        a(f"v_mul_f32 v{B+32}, v{B+32}, v164")
        for r in range(4): a(f"v_pk_mul_f32 {vr(B+2*r,2)}, {vr(B+2*r,2)}, {vr(B+32,2)} op_sel_hi:[1,0]")
        for r in range(4): a(f"v_cvt_pk_bf16_f32 v{B+r}, v{B+2*r}, v{B+2*r+1}")
        for r in range(4): a(f"v_min_u32 v{B+r}, -2, v{B+r}")
        hstore(f"buffer_store_dwordx4 {vr(B,4)}, v166, {srd(SWS)}, {'s8' if first else 's4'} offen")
        if first:
            a(f"""
            s_or_b32 s55, s2, {gw}
            s_cbranch_scc1 L_noep
            v_mov_b32 v{B+33}, {sTAG}
            s_mov_b64 exec, 1
            buffer_store_dword v{B+33}, off, {srd(SWS)}, 0 sc1
            s_mov_b64 exec, -1
            L_noep:
            """)
        else: a("s_nop 0")
    def flag_wait(lbl, vaddr, soff, sleep=2):
        a(f"""
        s_mov_b32 s63, 0
        {lbl}:
        buffer_load_dword v178, {vaddr}, {srd(SWS)}, {soff} offen sc1
        s_add_u32 s63, s63, 1
        s_cmp_gt_u32 s63, {SPIN_MAX}
        s_cbranch_scc1 {lbl}_x
        s_waitcnt vmcnt(0)
        v_cmp_ne_u32 vcc, {sTAG}, v178
        s_cbranch_vccz {lbl}_x
        s_sleep {sleep}
        s_branch {lbl}
        {lbl}_x:
        """)
    a(f"""
    v_mov_b32 v129, {sTAG}
    s_cmp_eq_u32 {gw}, 0
    s_cselect_b32 s60, -1, 0
    v_and_b32 v160, s60, v160
    s_cmp_eq_u32 s101, 1
    s_mov_b64 exec, 1
    s_waitcnt vmcnt(0)
    """)
    hstore(f"buffer_store_dword v129, off, {srd(SWS)}, s26")
    a("s_mov_b64 exec, -1")
    stamp(5)
    lds_wait("L_gs1", "v177", 16, "4")
    a("ds_read_b32 v164, v192\nds_read_b32 v165, v192 offset:128")
    for nt in range(2):
        mf(0, nt, 168, 160, True); mf(1, nt, 172, 160, True)
    flag_wait("L_hw", "v180", "s27")
    a(f"v_mov_b32 v180, v193\nv_subrev_u32 v168, {OACC - X_}, v190\nv_subrev_u32 v169, {OACC - X_}, v191")
    stamp(6)
    a(f"""
    s_setprio 0
    s_mul_i32 s60, s6, 7168
    s_add_u32 s60, s60, s5
    s_add_u32 s61, s60, {112*1024}
    """)
    vm = VM()
    def hA(k): vm.op(f"buffer_load_dwordx4 {vr(64+8*(k%7),4)}, v166, {srd(SWS)}, s60 offen sc1", ("h", k)); a("s_add_u32 s60, s60, 1024")
    def hB(k): vm.op(f"buffer_load_dwordx4 {vr(68+8*(k%7),4)}, v166, {srd(SWS)}, s61 offen sc1", ("h", k)); a("s_add_u32 s61, s61, 1024")
    for k in range(7): hA(k); hB(k)
    def f2reads(k):
        ab = 120 + 8*(k & 1); slot = k % 7
        return (f"ds_read_b64_tr_b16 {vr(ab,2)}, v146 offset:{2048*slot}\nds_read_b64_tr_b16 {vr(ab+2,2)}, v146 offset:{2048*slot+1024}\n"
                f"ds_read_b64_tr_b16 {vr(ab+4,2)}, v147 offset:{2048*slot}\nds_read_b64_tr_b16 {vr(ab+6,2)}, v147 offset:{2048*slot+1024}")
    a(f2reads(0))
    for k in range(28):
        u = k % 7
        if u == 0 and k < 21: a(f"s_add_u32 s6, s6, 1\ns_and_b32 s6, s6, 3\ns_mul_i32 s54, s6, {7*16384}\ns_add_u32 s54, s54, s4\ns_mul_i32 s60, s6, 7168\ns_add_u32 s60, s60, s5\ns_add_u32 s61, s60, {112*1024}")
        if k == 21: a("s_mov_b32 s54, s7\ns_mov_b32 s60, s10\ns_mov_b32 s61, s65")
        if k == int(o.get("fink", 16)):
            a("s_setprio 3")
            fin(196, "m", True)
            a("s_setprio 0")
        ab = 120 + 8*(k & 1); bb = 64 + 8*u
        need = [("h", k)] + ([("w", k+1)] if 7 <= k+1 < 28 else [])
        a(f"s_waitcnt vmcnt({vm.n(*need)}) lgkmcnt(0)")
        mf(0, 0, ab, bb)
        if k < 27: a(f2reads(k+1))
        mf(1, 0, ab+4, bb)
        if k < 25: hA(k+7)
        a(f"s_add_u32 m0, s49, {2048*u}")
        mf(0, 1, ab, bb+4)
        sr = srd(SW2 if k < 21 else SWO)
        vm.op(f"buffer_load_dwordx4 v150, {sr}, s54 offen lds", ("w", k+7))
        vm.op(f"buffer_load_dwordx4 v151, {sr}, s54 offen offset:1024 lds", ("w", k+7))
        a("s_add_u32 s54, s54, 16384")
        mf(1, 1, ab+4, bb+4)
        if k < 25: hB(k+7)
    a("s_setprio 3")
    stamp(7)
    def cnt_add(off): a(f"s_mov_b64 exec, 1\nds_add_u32 v177, v167 offset:{off}\ns_mov_b64 exec, -1")
    a("v_sub_f32 v182, 1.0, v164\nv_sub_f32 v184, 1.0, v165\nv_mov_b32 v164, v165\ns_waitcnt vmcnt(0) lgkmcnt(0)")
    cnt_add(20)
    WOF = lambda i, mt: 192 + 8*i + 4*mt if (i, mt) != (7, 1) else 136
    for i in range(8):
        for mt in range(2):
            for e in range(2): a(f"ds_read_b64_tr_b16 {vr(WOF(i,mt)+2*e,2)}, v{146+mt} offset:{2048*i+1024*e}")
    for r in range(16): a(f"v_pk_mul_f32 {vr(2*r,2)}, {vr(2*r,2)}, v[182:183] op_sel_hi:[1,0]")
    for r in range(16, 32): a(f"v_pk_mul_f32 {vr(2*r,2)}, {vr(2*r,2)}, v[184:185] op_sel_hi:[1,0]")
    OF = lambda jj, sl: 64 + 8*sl + 4*jj
    def oload(jj, sl): return f"buffer_load_dwordx4 {vr(OF(jj, sl),4)}, v166, {srd(SWS)}, {('s10', 's65', 's8', 's9')[jj + 2*(sl >> 2)]} offen offset:{1024*(sl&3)} sc1"
    def ofrags(lbl, loads, regs, sleep, pre=False):
        n = len(loads)
        a("s_mov_b32 s63, 0")
        if pre: a(f"s_branch {lbl}_c")
        a(f"{lbl}:")
        a("\n".join(loads))
        a(f"s_add_u32 s63, s63, 1\ns_cmp_gt_u32 s63, {SPIN_MAX}\ns_cbranch_scc1 {lbl}_x\n{lbl}_c:")
        for i in range(n):
            r = regs[i]
            a(f"s_waitcnt vmcnt({n-1-i})")
            if i == 0: a(f"v_max3_u32 v178, v{r}, v{r+1}, v{r+2}\nv_max_u32 v178, v178, v{r+3}")
            else: a(f"v_max3_u32 v178, v178, v{r}, v{r+1}\nv_max3_u32 v178, v178, v{r+2}, v{r+3}")
        a(f"v_cmp_eq_u32 vcc, -1, v178\ns_cbranch_vccz {lbl}_x")
        if sleep: a(f"s_sleep {sleep}")
        a(f"s_branch {lbl}\n{lbl}_x:\ns_waitcnt vmcnt(0)")
    def wo_stage(lbl, nt, sls, sleep, pre):
        ks = [(jj, sl) for sl in sls for jj in range(2)]
        ofrags(lbl, [oload(*k) for k in ks], [OF(*k) for k in ks], sleep, pre)
        a("s_waitcnt lgkmcnt(0)\ns_setprio 0")
        for jj, sl in ks:
            i = 4*jj + (sl & 3)
            mf(0, nt, WOF(i, 0), OF(jj, sl)); mf(1, nt, WOF(i, 1), OF(jj, sl))
        a("s_setprio 3")
    stamp(8)
    wo_stage("L_o0", 0, range(4), 4, True)
    stamp(9)
    a(f"s_add_u32 s4, s8, 4096\ns_add_u32 s8, s10, 4096\ns_add_u32 s9, s65, 4096\nv_add_u32 v176, s32, v176\nv_add_u32 v181, s32, v181")
    a(f"s_mul_i32 s5, {gw}, {SLOT}\ns_cmp_lt_u32 {gw}, 2\ns_cselect_b32 s6, {OACC + 2*SLOT - X_}, 0\ns_add_u32 s5, s5, s6\ns_sub_u32 s5, s49, s5\ns_add_u32 s5, s5, {8192 + 2*SLOT - X_}")
    for mt in range(2):
        for i in range(4): a(f"ds_write_b128 v{186+i}, {vr(16*mt+4*i,4)} offset:{128*mt}")
    cnt_add(28)
    lds_wait("L_w1", "v177", 20, "4")
    FA = lambda s_, ct: (120 + 8*s_ + 4*ct) if s_ < 2 else (148 + 8*(s_-2) + 4*ct)
    for s_ in range(4):
        for ct in range(2):
            for e in range(2): a(f"ds_read_b64_tr_b16 {vr(FA(s_,ct)+2*e,2)}, v253 offset:{16384*s_+1024*e+32*ct}")
    cnt_add(24)
    a(f"s_cmp_lt_u32 {gw}, 2\ns_cbranch_scc0 L_nf\ns_call_b64 s[14:15], L_fin\nL_nf:")
    lds_wait("L_rw", "v177", 28, "4", 1)
    for p in range(4):
        a(f"ds_read_b128 {vr(8*p,4)}, v{190 if p < 2 else 168} offset:{SLOT*(p&1)}\nds_read_b128 {vr(4+8*p,4)}, v{191 if p < 2 else 169} offset:{SLOT*(p&1)}")
    for i in range(4): a(f"v_add_u32 v{186+i}, s5, v{186+i}")
    a("s_waitcnt lgkmcnt(4)")
    for r in range(4): a(f"v_pk_add_f32 {vr(2*r,2)}, {vr(2*r,2)}, {vr(8+2*r,2)}")
    a("s_waitcnt lgkmcnt(0)")
    for r in range(4): a(f"v_pk_add_f32 {vr(16+2*r,2)}, {vr(16+2*r,2)}, {vr(24+2*r,2)}")
    for r in range(4): a(f"v_pk_add_f32 {vr(2*r,2)}, {vr(2*r,2)}, {vr(16+2*r,2)}")
    for r in range(4): a(f"v_cvt_pk_bf16_f32 v{172+r}, v{2*r}, v{2*r+1}")
    stamp(10)
    wo_stage("L_o1", 1, (4, 5), 4, False)
    a(f"s_cmp_eq_u32 {gw}, 2\ns_cbranch_scc0 L_nf1\ns_call_b64 s[14:15], L_fin\nL_nf1:")
    stamp(11)
    wo_stage("L_o1b", 1, (6,), 4, False)
    a("s_add_u32 s65, s11, 32768")
    fl = [f"buffer_load_dwordx4 {vr(108+0,4)}, v252, {srd(SWS)}, s11 offen sc1", f"buffer_load_dwordx4 {vr(104,4)}, v254, {srd(SWS)}, s11 offen sc1",
          f"buffer_load_dwordx4 {vr(100,4)}, v252, {srd(SWS)}, s65 offen sc1", f"buffer_load_dwordx4 {vr(140,4)}, v254, {srd(SWS)}, s65 offen sc1"]
    fr = [108, 104, 100, 140]
    if not o.get("nowarm"): a("\n".join(fl))
    lds_wait("L_w2", "v177", 24, "4")
    a("s_nop 2")
    for mt in range(2):
        for i in range(4): a(f"ds_write_b128 v{186+i}, {vr(32+16*mt+4*i,4)} offset:{128*mt}")
    cnt_add(32)
    lds_wait("L_rw1", "v177", 32, "4", 1)
    for p in range(4):
        a(f"ds_read_b128 {vr(64+8*p,4)}, v183 offset:{16384*p}\nds_read_b128 {vr(68+8*p,4)}, v185 offset:{16384*p}")
    a("s_waitcnt lgkmcnt(4)")
    for r in range(4): a(f"v_pk_add_f32 {vr(64+2*r,2)}, {vr(64+2*r,2)}, {vr(72+2*r,2)}")
    a("s_waitcnt lgkmcnt(0)")
    for r in range(4): a(f"v_pk_add_f32 {vr(80+2*r,2)}, {vr(80+2*r,2)}, {vr(88+2*r,2)}")
    for r in range(4): a(f"v_pk_add_f32 {vr(2*r,2)}, {vr(64+2*r,2)}, {vr(80+2*r,2)}")
    stamp(12)
    a(f"s_barrier\ns_cmp_eq_u32 {gw}, 3\ns_cbranch_scc0 L_nf2\ns_call_b64 s[14:15], L_fwf_x\nL_nf2:")
    stamp(13)
    ofrags("L_o2", fl, fr, 0)
    stamp(14)
    a(f"buffer_store_dwordx4 v[172:175], v179, {srd(SOUT)}, s33 offen")
    for s_ in range(4):
        for ct in range(2): a(f"v_mfma_f32_16x16x32_bf16 {vr(4*ct,4)}, {vr(FA(s_,ct),4)}, {vr(fr[s_],4)}, {vr(4*ct,4)}")
    a("""
    s_nop 6
    v_cvt_pk_bf16_f32 v8, v0, v1
    v_cvt_pk_bf16_f32 v9, v2, v3
    v_cvt_pk_bf16_f32 v10, v4, v5
    v_cvt_pk_bf16_f32 v11, v6, v7
    s_nop 1
    v_permlane16_swap_b32 v8, v10
    v_permlane16_swap_b32 v9, v11
    """)
    a(f"buffer_store_dwordx4 v[8:11], v180, {srd(SOUT)}, s34 offen")
    stamp(15)
    a("s_branch L_gend")
    a(f"""
    L_gsetup:
    s_load_dwordx2 s[{SW1}:{SW1+1}], s[0:1], 48
    s_load_dwordx2 s[{SWO}:{SWO+1}], s[0:1], 32
    s_load_dwordx2 s[{SW2}:{SW2+1}], s[0:1], 64
    s_load_dwordx2 s[{SOUT}:{SOUT+1}], s[0:1], 88
    s_mov_b32 s{SW1+2}, 1835008
    s_mov_b32 s{SW1+3}, 0x00020000
    s_mov_b32 s{SWO+2}, 524288
    s_mov_b32 s{SWO+3}, 0x00020000
    s_mov_b32 s{SW2+2}, 1835008
    s_mov_b32 s{SW2+3}, 0x00020000
    s_mov_b32 s{SOUT+2}, 2097152
    s_mov_b32 s{SOUT+3}, 0x00020000
    s_sub_u32 s101, {sW}, 4
    s_lshr_b32 s48, {sJ}, 1
    s_mul_i32 s48, s48, 7
    s_and_b32 s63, {sJ}, 1
    s_lshl_b32 s62, s63, 2
    s_add_u32 s62, s62, s101
    s_cmp_eq_u32 s101, 3
    s_cselect_b32 s62, 3, s62
    s_cselect_b32 s63, s63, 0
    s_add_u32 s48, s48, s62
    s_lshl_b32 s48, s48, 1
    s_add_u32 s48, s48, s63
    s_lshl_b32 s100, s48, 6
    s_mul_i32 s54, {sC0}, {128*3584}
    s_add_u32 s54, s54, s100
    s_lshl_b32 s49, s101, 14
    s_add_u32 s49, s49, {W_}
    v_lshrrev_b32 v14, 3, {L}
    v_and_b32 v15, 7, {L}
    v_bfe_u32 v3, {L}, 4, 1
    v_lshlrev_b32 v3, 2, v3
    v_xor_b32 v2, v3, v15
    v_lshlrev_b32 v2, 4, v2
    v_lshl_or_b32 v150, v14, 10, v2
    v_add_u32 v151, 7168, v150
    v_mul_u32_u24 v148, 3584, v14
    v_add_u32 v148, v148, v2
    v_add_u32 v149, {8*3584-1024}, v148
    v_lshlrev_b32 v180, 5, v15
    v_lshlrev_b32 v2, 1, v15
    v_xor_b32 v2, v14, v2
    v_lshlrev_b32 v2, 4, v2
    v_lshl_or_b32 v190, v14, 8, v2
    s_lshl_b32 s62, s101, 11
    s_add_u32 s62, s62, {OACC}
    v_add_u32 v190, s62, v190
    v_xor_b32 v191, 16, v190
    v_lshlrev_b32 v2, 4, v15
    v_lshl_or_b32 v179, v14, 10, v2
    v_and_b32 v1, 31, {L}
    v_lshrrev_b32 v14, 5, {L}
    v_xor_b32 v2, v14, v15
    v_lshlrev_b32 v2, 4, v2
    v_lshl_or_b32 v186, v1, 8, v2
    s_mul_i32 s62, {sJ}, 7
    s_sub_u32 s62, s48, s62
    s_lshl_b32 s62, s62, 6
    s_add_u32 s62, s62, {M_B1}
    v_lshlrev_b32 v13, 1, v1
    v_add_u32 v12, s62, v13
    v_add_u32 v13, {M_B2}, v13
    v_lshlrev_b32 v192, 2, v1
    v_add_u32 v192, {M_G}, v192
    v_and_b32 v3, 15, {L}
    v_xor_b32 v3, v14, v3
    v_lshlrev_b32 v3, 4, v3
    v_lshl_or_b32 v136, v1, 8, v3
    """)
    for k in range(1, 8): a(f"v_xor_b32 v{136+k}, {32*k}, v136")
    tr_addr(144, 8)
    a("v_add_u32 v144, s49, v144\nv_xor_b32 v145, 64, v144")
    tr_addr(146, 4)
    a("v_add_u32 v146, s49, v146\nv_xor_b32 v147, 64, v146")
    for r in (153, 154, 155, 157, 158, 159, 161, 162, 163, 169, 170, 171, 173, 174, 175): a(f"v_mov_b32 v{r}, 0")
    a(f"""
    v_cmp_gt_u32 vcc, 32, {L}
    v_mov_b32 v1, 0x3f80
    v_lshlrev_b32 v166, 4, {L}
    v_cndmask_b32 v160, 0, v1, vcc
    v_mov_b32 v167, 1
    v_mov_b32 v177, {M_CNTG}
    v_mov_b64 v[200:201], -1
    v_mov_b64 v[202:203], -1
    s_and_b32 s62, s101, 1
    s_lshr_b32 s63, s101, 1
    v_and_b32 v1, 15, {L}
    v_lshl_add_u32 v1, s62, 4, v1
    v_lshrrev_b32 v2, 4, {L}
    v_xor_b32 v3, v2, v15
    v_lshlrev_b32 v3, 4, v3
    v_lshl_or_b32 v3, v1, 8, v3
    s_lshl_b32 s62, s63, 7
    s_add_u32 s62, s62, {W_ + 8192}
    v_add_u32 v183, s62, v3
    v_xor_b32 v185, 64, v183
    ; v252/v254 = (g4>>1)*8192 + 16*(row + 32*(g4&1)) (+16384)
    v_and_b32 v3, 1, v2
    v_lshl_add_u32 v252, v3, 5, v1
    v_lshlrev_b32 v252, 4, v252
    v_lshl_add_u32 v252, v14, 13, v252
    v_add_u32 v254, 0x4000, v252
    v_lshlrev_b32 v193, 10, v1
    v_lshl_or_b32 v193, v3, 5, v193
    v_lshl_or_b32 v193, v14, 4, v193
    s_lshl_b32 s62, s63, 6
    v_add_u32 v193, s62, v193
    ; v253 = W + 2048*(4*(g4>>1)+3) + (4h + r')*128 + 16*((4ch + (c'>>1)) ^ 4*(r'>>1)) + 8*(c'&1)
    v_bfe_u32 v1, {L}, 2, 2
    v_lshl_or_b32 v1, v3, 2, v1
    v_lshlrev_b32 v1, 7, v1
    v_lshl_or_b32 v1, v14, 13, v1
    v_bfe_u32 v2, {L}, 3, 1
    v_xor_b32 v2, s63, v2
    v_lshl_or_b32 v1, v2, 6, v1
    v_and_b32 v2, 3, {L}
    v_lshl_or_b32 v1, v2, 3, v1
    v_add_u32 v253, {W_ + 6144}, v1
    v_lshlrev_b32 v196, 7, {L}
    s_mov_b32 s12, -1
    s_mov_b32 s13, 0xffffff
    s_mul_i32 s62, s101, {SLOT}
    s_add_u32 s63, s62, {OACC}
    s_sub_u32 s62, s62, {2*SLOT - X_}
    s_cmp_lt_u32 s101, 2
    s_cselect_b32 s62, s63, s62
    v_lshlrev_b32 v181, 2, {L}
    v_add_u32 v181, s62, v181
    v_add_u32 v186, s62, v186
    v_xor_b32 v187, 32, v186
    v_xor_b32 v188, 64, v186
    v_xor_b32 v189, 0x60, v186
    s_add_u32 s62, s62, {9216 + 252}
    v_lshl_add_u32 v176, v2, 8, s62
    s_cmp_eq_u32 s101, 3
    s_cbranch_scc0 L_gsx
    v_bfe_u32 v2, {L}, 2, 2
    v_lshl_or_b32 v2, v14, 3, v2
    v_lshlrev_b32 v2, 6, v2
    v_bfe_u32 v3, {L}, 4, 1
    v_lshl_or_b32 v2, v3, 5, v2
    v_and_b32 v3, 3, {L}
    v_lshl_or_b32 v2, v3, 3, v2
    v_add_u32 v144, s49, v2
    v_lshlrev_b32 v145, 4, v14
    v_add_u32 v145, {M_GATE}, v145
    v_lshrrev_b32 v1, 2, {L}
    v_mul_u32_u24 v148, 3584, v1
    v_lshl_add_u32 v148, v3, 4, v148
    L_gsx:
    s_waitcnt lgkmcnt(0)
    s_setpc_b64 s[14:15]
    """)
    a("L_fin:")
    fin(64, "f", False)
    a("s_setpc_b64 s[14:15]\nL_gend:")
    if diag: a(f"s_add_u32 {sW}, {sW}, 4")
    diag_out("g")
    a("L_end:\ns_endpgm")

    hdr = open(os.path.join(os.path.dirname(os.path.abspath(__file__)), "..", "cdna_kernels", NAME + ".s.ref")).read().split("\n")
    i0 = next(i for i, l in enumerate(hdr) if l.startswith("; Override"))
    head = "\n".join(hdr[:i0]) + f"\n; @launch grid=(256,1,1) block=(512,1,1) lds={LDS_BYTES}\n"
    return head + f""".amdgcn_target "amdgcn-amd-amdhsa--gfx950"
.text
.globl {NAME}_kernel
.p2align 8
.type {NAME}_kernel,@function
{NAME}_kernel:
{a.text()}.section .rodata,"a"
.p2align 6
.amdhsa_kernel {NAME}_kernel
  .amdhsa_next_free_vgpr 256
  .amdhsa_next_free_sgpr 102
  .amdhsa_accum_offset 256
  .amdhsa_group_segment_fixed_size 0
  .amdhsa_kernarg_size 112
  .amdhsa_user_sgpr_count 2
  .amdhsa_user_sgpr_kernarg_segment_ptr 1
  .amdhsa_system_sgpr_workgroup_id_x 1
.end_amdhsa_kernel
"""

if __name__ == "__main__":
    out = sys.argv[1] if len(sys.argv) > 1 else os.path.join(os.path.dirname(os.path.abspath(__file__)), "..", "cdna_kernels", NAME + ".s")
    opts = dict(x.split("=") if "=" in x else (x, 1) for x in sys.argv[2:])
    open(out, "w").write(gen(diag=bool(opts.pop("diag", 0)), opts=opts))
```

```python
import sys, os
NAME = "gated_mix__grouped_kv_mqa__dense_activation_squared_relu__prompt"

class Asm:
    def __init__(self): self.l = []
    def __call__(self, s):
        for x in s.strip("\n").split("\n"):
            x = x.strip()
            if not x: continue
            self.l.append(x if x.endswith(":") else "    " + x)
    def text(self): return "\n".join(self.l) + "\n"

def vr(a, n): return f"v[{a}:{a+n-1}]"

X_ = 0; W_ = 65536; S_ = 131072
OACC = S_; SLOT = 10240
QF = S_ + 2*SLOT
MISC = QF + 8192
M_G = MISC
M_QMAX = MISC + 256
M_KMAX = MISC + 260
M_CNTA = MISC + 264
M_CNTG = MISC + 272
M_CNTS = MISC + 320
M_M = MISC + 1024
M_GATE = MISC + 2048
M_TAG = MISC + 3072
M_Q0 = MISC + 3076
M_GO = MISC + 3080
M_B1 = MISC + 3136
M_B2 = MISC + 3584
LDS_BYTES = 163840
WS_EPOCH = 0
WS_KVF = 0x1000
WS_HF = 0x10000
WS_OF = 0x40000
WS_K = 0x80000
WS_V = 0x90000
WS_O = 0x100000
WS_H = 0x400000
WS_DIAG = 0xC00000
WS_SIZE = 0x1000000
SX, SWQ, SWKV, SWO, SW1, SB1, SW2, SB2, SGT, SOUT, SWS, SH = 4, 8, 12, 16, 20, 24, 28, 32, 36, 40, 44, 56
def srd(b): return f"s[{b}:{b+3}]"
sW, sGRP, sJ, sTAG, sC0 = "s50", "s51", "s52", "s53", "s3"
QSCALE = 0x3eb8aa3b
LOG2E = 0x3fb8aa3b
SPIN_MAX = 200000

def gen(diag=False, opts=None):
    o = dict(opts or {})
    a = Asm()
    nstamp = [0]
    rt = o.get("rt") or o.get("enc")
    def hstamp(i):
        if diag and o.get("hd"): a(f"s_memtime s[{68+2*i}:{69+2*i}]")
    def stamp(i):
        if diag and not (o.get("hd") and i > 8):
            a(f"{'s_memrealtime' if rt else 's_memtime'} s[{68+2*i}:{69+2*i}]")
    def diag_out(lbl):
        if diag and o.get("enc"):
            role, st = o["enc"][0], int(o["enc"][1:])
            wv = {"a": int(o.get("wv", 0)), "g": 7}[role]
            if lbl == role:
                a(f"s_cmp_lg_u32 s2, 0\ns_cbranch_scc1 L_encx{lbl}\ns_cmp_lg_u32 {sW}, {wv}\ns_cbranch_scc1 L_encx{lbl}\ns_waitcnt lgkmcnt(0)")
                if st < 16: a(f"s_sub_u32 s60, s{68+2*st}, s66\ns_lshl_b32 s60, s60, 4")
                else: a("s_mov_b32 s60, 0")
                a(f"s_add_u32 s60, s60, 5000\nL_enc{lbl}:\ns_sleep 4\ns_memrealtime s[62:63]\ns_waitcnt lgkmcnt(0)\ns_sub_u32 s62, s62, s66\ns_cmp_lt_u32 s62, s60\ns_cbranch_scc1 L_enc{lbl}\nL_encx{lbl}:")
        elif diag and rt:
            idx = {"a": [(1, 1), (2, 2), (4, 3), (5, 4), (6, 5), (7, 6), (8, 7)], "s": [], "g": [(2, 8), (3, 9), (4, 10), (6, 11), (7, 12), (15, 13), (9, 14), (11, 15)]}[lbl]
            a("s_load_dwordx2 s[60:61], s[0:1], 96\ns_mov_b32 s62, 256\ns_mov_b32 s63, 0x00020000\ns_waitcnt vmcnt(0) lgkmcnt(0)\ns_mov_b64 exec, 1")
            a("s_not_b32 s66, s66\nv_mov_b32 v1, s66\nbuffer_atomic_umax v1, off, s[60:63], 0\ns_nop 1")
            for st, d in idx:
                a(f"v_mov_b32 v1, s{68+2*st}\nbuffer_atomic_umax v1, off, s[60:63], 0 offset:{4*d}\ns_nop 1")
            a("s_waitcnt vmcnt(0)")
        elif diag:
            a(f"s_lshl_b32 s60, s2, 3\ns_add_u32 s60, s60, {sW}\ns_lshl_b32 s60, s60, 7\ns_add_u32 s60, s60, {WS_DIAG}")
            a("s_waitcnt vmcnt(0) lgkmcnt(0)\ns_mov_b64 exec, 1")
            for i in range(17):
                a(f"v_mov_b32 v1, s{66+2*i}\nbuffer_store_dword v1, off, {srd(SWS)}, s60 offset:{4*i}\ns_nop 1")
            a("s_waitcnt vmcnt(0)")

    L = "v255"
    if diag: a("s_memrealtime s[66:67]\ns_memtime s[68:69]")
    a(f"""
    s_cmp_ge_u32 s2, 256
    s_cbranch_scc1 L_end
    s_load_dwordx4 s[{SWKV}:{SWKV+3}], s[0:1], 16
    s_load_dwordx2 s[{SX}:{SX+1}], s[0:1], 0
    s_load_dwordx2 s[{SWQ}:{SWQ+1}], s[0:1], 8
    s_load_dwordx2 s[{SWS}:{SWS+1}], s[0:1], 104
    s_getpc_b64 s[60:61]
    s_movk_i32 s62, {int(o.get('pf0', 6144))}
    s_mov_b32 s63, 0x00020000
    v_lshlrev_b32 v2, 7, v0
    v_lshrrev_b32 v1, 6, v0
    buffer_load_dword v185, v2, s[60:63], 0 offen
    v_and_b32 v255, 63, v0
    v_readfirstlane_b32 {sW}, v1
    s_and_b32 s54, s2, 7
    s_bfe_u32 {sJ}, s2, 0x30003
    s_lshr_b32 s55, s2, 6
    s_lshl2_add_u32 {sGRP}, s54, s55
    s_mov_b32 s{SX+2}, 2097152
    s_mov_b32 s{SX+3}, s63
    s_add_u32 {sC0}, s54, {sJ}
    s_and_b32 {sC0}, {sC0}, 3
    s_and_b32 s60, {sJ}, 3
    v_lshrrev_b32 v3, 4, {L}
    v_and_b32 v2, 15, {L}
    v_xor_b32 v12, v3, v2
    v_lshlrev_b32 v12, 4, v12
    v_lshl_or_b32 v4, v3, 10, v12
    v_xor_b32 v5, 64, v4
    v_add_u32 v5, 3072, v5
    v_xor_b32 v6, 0x80, v4
    v_add_u32 v6, 6144, v6
    v_xor_b32 v7, 0xc0, v4
    v_add_u32 v7, 9216, v7
    v_lshlrev_b32 v1, 4, {L}
    """)
    if diag:
        for i in range(2, 17): a(f"s_mov_b32 s{66+2*i}, 0")
    a(f"""
    s_cmp_eq_u32 {sW}, 7
    s_cbranch_scc0 L_nKV
    """)
    a(f"""
    s_setprio 3
    s_lshl2_add_u32 s64, {sGRP}, s60
    s_lshl_b32 s62, s64, 14
    s_lshl_b32 s65, s60, 12
    s_mov_b32 s61, {sC0}
    s_cmp_lt_u32 {sJ}, 4
    s_waitcnt lgkmcnt(0)
    s_cselect_b32 s{SWKV}, s{SWKV}, s{SWKV+2}
    s_cselect_b32 s{SWKV+1}, s{SWKV+1}, s{SWKV+3}
    s_movk_i32 s{SWKV+2}, 16384
    s_mov_b32 s{SWKV+3}, 0x00020000
    """)
    hstamp(9)
    for i in range(4):
        a(f"s_mov_b32 m0, {OACC + 4096*i}\ns_lshl_b32 s55, s61, 12")
        for q in range(4): a(f"buffer_load_dwordx4 v1, {srd(SWKV)}, s55 offen offset:{1024*q} lds")
        a(f"s_lshl_b32 s55, s61, 8\ns_add_u32 m0, s65, {X_ + 16384*i}\ns_add_u32 s55, s55, s62")
        for q in range(4): a(f"buffer_load_dwordx4 v{4+q}, {srd(SX)}, s55 offen offset:{1024*q} lds")
        if i < 3: a("s_add_u32 s61, s61, 1\ns_and_b32 s61, s61, 3")
    hstamp(11)
    a(f"""
    s_barrier
    s_load_dword {sTAG}, s[{SWS}:{SWS+1}], 0
    s_lshl3_add_u32 s57, {sGRP}, {sJ}
    s_lshl_b32 s57, s57, 5
    s_add_u32 s57, s57, {WS_KVF}
    s_load_dword s56, s[{SWS}:{SWS+1}], s57
    s_mov_b32 s{SWS+2}, {WS_SIZE}
    s_mov_b32 s{SWS+3}, 0x00020000
    v_lshlrev_b32 v5, 8, v3
    v_lshl_or_b32 v5, v2, 3, v5
    v_add_u32 v5, {OACC}, v5
    v_lshl_or_b32 v12, v2, 8, v12
    v_add_u32 v12, s65, v12
    v_xor_b32 v13, 64, v12
    v_xor_b32 v14, 0x80, v12
    v_xor_b32 v15, 0xc0, v12
    v_and_b32 v6, 1, v3
    v_lshlrev_b32 v6, 9, v6
    v_lshl_or_b32 v6, v2, 4, v6
    v_lshrrev_b32 v7, 1, v3
    v_lshl_or_b32 v6, v7, 3, v6
    v_mov_b32 v10, {M_TAG}
    s_lshr_b32 s54, s64, 1
    s_lshl_b32 s54, s54, 10
    s_and_b32 s55, s64, 1
    s_lshl_b32 s55, s55, 8
    s_add_u32 s54, s54, s55
    s_cmp_lt_u32 {sJ}, 4
    s_cselect_b32 s55, 0, {WS_V - WS_K}
    s_cselect_b32 s63, -1, 0
    s_add_u32 s54, s54, s55
    s_add_u32 s54, s54, {WS_K}
    s_cmp_lt_u32 {sJ}, 4
    """)
    def kvreads(s):
        if s & 3 == 0: a(f"s_waitcnt vmcnt({24 - 2*s})")
        if s == 0: stamp(1)
        a(f"ds_read_b64_tr_b16 {vr(128+4*s,2)}, v5 offset:{1024*s}\nds_read_b64_tr_b16 {vr(130+4*s,2)}, v5 offset:{1024*s+128}")
        a(f"ds_read_b128 {vr(64+4*s,4)}, v{12+(s&3)} offset:{16384*(s>>2)}")
    for s in range(4): kvreads(s)
    a("s_cbranch_scc0 L_KVv")
    for swap in range(2):
        for s in range(16):
            if s + 4 < 16: kvreads(s+4)
            a(f"s_waitcnt lgkmcnt({min(12, 3*(15-s))})")
            A_, B_ = (64+4*s, 128+4*s) if swap else (128+4*s, 64+4*s)
            a(f"v_mfma_f32_16x16x32_bf16 v[192:195], {vr(A_,4)}, {vr(B_,4)}, {'0' if s == 0 else 'v[192:195]'}")
        if not swap: a("s_branch L_KVd\nL_KVv:")
    a(f"""
    L_KVd:
    s_mul_i32 {sTAG}, {sTAG}, 0x9E3779B1
    s_add_u32 {sTAG}, {sTAG}, 0x7F4A7C15
    v_mov_b32 v11, {sTAG}
    ds_write_b32 v10, v11
    s_nop 3
    """)
    hstamp(12)
    a(f"""
    v_cvt_pk_bf16_f32 v196, v192, v193
    v_cvt_pk_bf16_f32 v197, v194, v195
    buffer_store_dwordx2 v[196:197], v6, {srd(SWS)}, s54 offen sc1
    v_mul_f32 v8, v192, v192
    v_fmac_f32 v8, v193, v193
    v_fmac_f32 v8, v194, v194
    v_fmac_f32 v8, v195, v195
    v_mov_b32 v9, v8
    s_waitcnt lgkmcnt(0)
    """)
    hstamp(13)
    a(f"""
    s_barrier
    v_permlane32_swap_b32 v8, v9
    v_add_f32 v8, v8, v9
    v_mov_b32 v9, v8
    s_nop 1
    v_permlane16_swap_b32 v8, v9
    v_add_f32 v8, v8, v9
    s_nop 1
    v_max_u32_dpp v8, v8, v8 row_ror:8 row_mask:0xf bank_mask:0xf
    s_nop 1
    v_max_u32_dpp v8, v8, v8 row_ror:4 row_mask:0xf bank_mask:0xf
    s_nop 1
    v_max_u32_dpp v8, v8, v8 row_ror:2 row_mask:0xf bank_mask:0xf
    s_nop 1
    v_max_u32_dpp v9, v8, v8 row_ror:1 row_mask:0xf bank_mask:0xf
    s_getreg_b32 s61, hwreg(HW_REG_XCC_ID, 0, 4)
    v_mov_b32 v8, {sTAG}
    v_and_b32 v9, s63, v9
    v_mov_b32 v10, {sTAG}
    v_mov_b32 v11, s61
    {"s_barrier" if o.get("b2") else ""}
    s_mov_b64 exec, 1
    s_waitcnt vmcnt(0)
    buffer_store_dwordx4 v[8:11], off, {srd(SWS)}, s57 sc1
    s_mov_b64 exec, -1
    s_setprio 0
    """)
    stamp(2)
    a(f"""
    {"" if o.get("b2") else "s_barrier"}
    s_barrier
    s_barrier
    s_barrier
    s_call_b64 s[14:15], L_gsetup
    s_branch L_Gjoin
    """)

    a(f"""
    L_nKV:
    s_load_dwordx2 s[{SW2}:{SW2+1}], s[0:1], 48
    s_mov_b32 s{SWS+2}, {WS_SIZE}
    s_mov_b32 s{SWS+3}, s63
    s_cmp_lt_u32 {sW}, 4
    s_cbranch_scc1 L_A1
    s_cmp_eq_u32 {sW}, 5
    s_cbranch_scc1 L_G5
    s_cmp_eq_u32 {sW}, 6
    s_cbranch_scc1 L_G6
    """)
    def loader(n, chunk):
        a("s_waitcnt lgkmcnt(0)\ns_barrier")
        pre = int(o.get("lpre", 2))
        for i in range(pre): chunk(i)
        a(f"s_waitcnt vmcnt({(pre-1)*n})\ns_barrier")
        for i in range(pre, 4): chunk(i)
        a(f"s_waitcnt vmcnt({2*n})\ns_barrier\ns_waitcnt vmcnt({n})\ns_barrier\ns_waitcnt vmcnt(0)\ns_barrier\ns_barrier")
        a("s_call_b64 s[14:15], L_gsetup\ns_branch L_Gjoin")
    a(f"s_lshl_b32 s54, {sGRP}, 16")
    for r in range(3): a(f"s_add_u32 s{61+r}, s60, {r+1}\ns_and_b32 s{61+r}, s{61+r}, 3\ns_lshl_b32 s{16+r}, s{61+r}, 14\ns_add_u32 s{16+r}, s{16+r}, s54\ns_lshl_b32 s{61+r}, s{61+r}, 12")
    def xchunk(i):
        a(f"s_add_u32 s55, {sC0}, {i}\ns_and_b32 s55, s55, 3\ns_lshl_b32 s55, s55, 8")
        for r in range(3):
            a(f"s_add_u32 m0, s{61+r}, {X_ + 16384*i}\ns_add_u32 s60, s{16+r}, s55")
            for q in range(4): a(f"buffer_load_dwordx4 v{4+q}, {srd(SX)}, s60 offen offset:{1024*q} lds")
    loader(12, xchunk)
    a(f"""
    L_G5:
    s_mov_b32 s{SWQ+2}, 524288
    s_mov_b32 s{SWQ+3}, s63
    v_lshrrev_b32 v1, 3, {L}
    v_and_b32 v2, 7, {L}
    v_bfe_u32 v3, {L}, 4, 1
    v_lshlrev_b32 v3, 2, v3
    v_xor_b32 v2, v3, v2
    v_lshlrev_b32 v2, 4, v2
    v_lshl_or_b32 v8, v1, 10, v2
    v_add_u32 v9, 7168, v8
    v_add_u32 v10, 14336, v8
    v_add_u32 v11, 21504, v8
    s_lshl_b32 s64, {sJ}, 7
    """)
    def wchunk(i):
        a(f"s_add_u32 s55, {sC0}, {i}\ns_and_b32 s55, s55, 3\ns_lshl_b32 s55, s55, 17\ns_add_u32 s55, s55, s64")
        for r in range(4):
            a(f"s_mov_b32 m0, {W_ + 16384*i + 4096*r}\n" + ("s_add_u32 s55, s55, 32768" if r else "s_nop 0"))
            for q in range(4): a(f"buffer_load_dwordx4 v{8+q}, {srd(SWQ)}, s55 offen offset:{1024*q} lds")
    loader(16, wchunk)
    a(f"""
    L_G6:
    s_load_dwordx2 s[{SB1}:{SB1+1}], s[0:1], 56
    s_load_dwordx2 s[{SB2}:{SB2+1}], s[0:1], 72
    s_load_dwordx2 s[{SGT}:{SGT+1}], s[0:1], 80
    s_lshl_b32 s60, {sJ}, 7
    s_waitcnt lgkmcnt(0)
    s_barrier
    s_mul_i32 s61, s2, 7168
    s_add_u32 s61, s61, 3584
    s_add_u32 s64, s{SW2}, s61
    s_addc_u32 s65, s{SW2+1}, 0
    s_mov_b32 s{SB1+2}, 3584
    s_mov_b32 s{SB1+3}, 0x00020000
    s_mov_b32 s{SB2+2}, 1024
    s_mov_b32 s{SB2+3}, 0x00020000
    s_mov_b32 s{SGT+2}, 1024
    s_mov_b32 s{SGT+3}, 0x00020000
    v_mov_b32 v4, 0
    v_mov_b32 v5, 0
    v_mov_b32 v6, 0
    v_mov_b32 v7, 0
    v_lshlrev_b32 v16, 4, {L}
    v_add_u32 v2, {MISC}, v16
    v_mov_b32 v8, 0xff800000
    v_mov_b32 v9, v8
    v_mov_b32 v10, v8
    v_mov_b32 v11, v8
    ds_write_b128 v2, v[4:7]
    ds_write_b128 v2, v[8:11] offset:1024
    s_lshl_b32 s61, {sC0}, 4
    v_add_u32 v1, s61, {L}
    v_and_b32 v1, 63, v1
    v_lshlrev_b32 v1, 4, v1
    s_mul_i32 s61, {sJ}, 448
    s_mov_b32 m0, {M_GATE}
    s_waitcnt lgkmcnt(0)
    """)
    def g6touch(i0, i1):
        if not o.get("nopf"):
            for i in range(i0, i1): a(f"s_load_dword s56, s[64:65], {64*i}")
    g6touch(0, 14)
    a(f"""
    buffer_load_dwordx4 v1, {srd(SGT)}, 0 offen lds
    s_mov_b32 m0, {M_B1}
    s_mov_b64 exec, 0xfffffff
    buffer_load_dwordx4 v16, {srd(SB1)}, s61 offen lds
    s_mov_b32 m0, {M_B2}
    s_mov_b64 exec, 0xff
    buffer_load_dwordx4 v16, {srd(SB2)}, s60 offen lds
    s_mov_b64 exec, -1
    """)
    g6touch(14, 28)
    a("s_barrier")
    g6touch(28, 42)
    a("s_barrier")
    g6touch(42, 56)
    a(f"""
    s_barrier
    s_waitcnt vmcnt(0)
    s_barrier
    s_barrier
    s_call_b64 s[14:15], L_gsetup
    s_branch L_Gjoin
    L_A1:
    s_waitcnt lgkmcnt(0)
    s_barrier
    """)
    def codetouch(lbl):
        a(f"""
        s_getpc_b64 s[16:17]
        {lbl}:
        s_mov_b32 s18, L_end - {lbl}
        s_mov_b32 s19, 0x00020000
        s_lshr_b32 s57, s2, 3
        s_lshl2_add_u32 s57, s57, {sW}
        s_mul_i32 s57, s57, 384
        """)
        for i in range(6): a(f"s_buffer_load_dword s56, s[16:19], s57 offset:{64*i}")
    codetouch("L_pc")
    def w1touch(first, n):
        if o.get("nopf"): return
        a(f"s_mul_i32 s60, s2, 7168\ns_add_u32 s60, s60, {first}\ns_add_u32 s{SW2}, s{SW2}, s60\ns_addc_u32 s{SW2+1}, s{SW2+1}, 0")
        for i in range(n): a(f"s_load_dword s56, s[{SW2}:{SW2+1}], {64*i}")
    stamp(1)
    a(f"s_mul_i32 s61, {sW}, 896")
    w1touch("s61", 14)
    a(f"""
    s_lshr_b32 s60, {sW}, 1
    s_lshl_b32 s60, s60, 13
    v_and_b32 v1, 31, {L}
    v_lshrrev_b32 v2, 5, {L}
    v_and_b32 v3, 15, {L}
    v_xor_b32 v3, v2, v3
    v_lshlrev_b32 v3, 4, v3
    v_lshl_or_b32 v168, v1, 8, v3
    v_add_u32 v168, s60, v168
    s_mov_b64 s[12:13], s[{SWS}:{SWS+1}]
    s_mov_b32 s15, 0x00020000
    """)
    XA = [168, 169, 170, 171, 176, 177, 178, 179]
    for k in range(1, 8): a(f"v_xor_b32 v{XA[k]}, {32*k}, v168")
    def tr_addr(dst, hmul, t0=1, t1=2):
        a(f"""
        v_lshrrev_b32 v{t0}, 5, {L}
        v_bfe_u32 v{t1}, {L}, 2, 2
        v_mad_u32_u24 v{t0}, v{t0}, {hmul}, v{t1}
        v_lshlrev_b32 v{t0}, 7, v{t0}
        v_bfe_u32 v{t1}, {L}, 3, 1
        v_lshl_or_b32 v{t0}, v{t1}, 6, v{t0}
        v_bfe_u32 v{t1}, {L}, 4, 1
        v_lshl_or_b32 v{t0}, v{t1}, 5, v{t0}
        v_and_b32 v{t1}, 3, {L}
        v_lshl_or_b32 v{dst}, v{t1}, 3, v{t0}
        """)
    tr_addr(184, 8)
    a(f"""
    s_and_b32 s60, {sW}, 1
    s_lshl_b32 s60, s60, 6
    v_xor_b32 v184, s60, v184
    v_add_u32 v184, {W_}, v184
    v_and_b32 v1, 11, {L}
    v_cmp_eq_u32 vcc, 0, v1
    v_mov_b32 v2, 0x3f803f80
    v_lshlrev_b32 v250, 4, {L}
    v_cndmask_b32 v68, 0, v2, vcc
    v_mov_b32 v251, {M_QMAX}
    v_mov_b32 v69, v68
    v_lshlrev_b32 v247, 5, {L}
    s_lshl_b32 s60, {sW}, 8
    s_add_u32 s60, s60, {OACC}
    v_lshlrev_b32 v244, 2, {L}
    v_add_u32 v244, s60, v244
    v_add_u32 v246, {QF}, v250
    v_add_u32 v252, {WS_V - WS_K}, v250
    s_lshr_b32 s60, {sW}, 1
    s_lshl_b32 s60, s60, 12
    s_and_b32 s61, {sW}, 1
    s_lshl_b32 s61, s61, 11
    s_add_u32 s60, s60, s61
    v_add_u32 v220, s60, v246
    s_lshl_b32 s60, {sW}, 11
    s_add_u32 s60, s60, {WS_KVF}
    s_lshl_b32 s54, {sW}, 14
    s_add_u32 s54, s54, {WS_K}
    s_and_b32 s55, {sJ}, 3
    s_lshl_b32 s55, s55, 12
    s_mov_b32 s62, {QSCALE}
    s_mov_b32 s63, 0
    s_add_u32 s8, s54, s55
    s_add_u32 s55, s55, 4096
    s_and_b32 s55, s55, 0x3fff
    s_add_u32 s9, s54, s55
    s_add_u32 s55, s55, 4096
    s_and_b32 s55, s55, 0x3fff
    s_add_u32 s10, s54, s55
    s_add_u32 s55, s55, 4096
    s_and_b32 s55, s55, 0x3fff
    s_add_u32 s11, s54, s55
    """)
    for t in range(16):
        for r in (68 + 8*t, 70 + 8*t):
            if r != 68: a(f"v_mov_b64 {vr(r,2)}, v[68:69]")
    def qreads(ks):
        b = 192 + 8*(ks % 3)
        a(f"ds_read_b64_tr_b16 {vr(b,2)}, v184 offset:{2048*ks}")
        a(f"ds_read_b64_tr_b16 {vr(b+2,2)}, v184 offset:{2048*ks+512}")
        a(f"ds_read_b128 {vr(b+4,4)}, v{XA[ks&7]} offset:{16384*(ks>>3)}")
    poll = f"buffer_load_dwordx2 v[248:249], v247, {srd(SWS)}, s60 offen sc1"
    D = int(o.get("D", 5))
    early = not o.get("noearly")
    def kvload(t):
        return [f"buffer_load_dwordx4 {vr(4*t,4)}, v250, s[12:15], s{8+(t>>2)} offen offset:{1024*(t&3)} sc1",
                f"buffer_load_dwordx4 {vr(64+8*t,4)}, v252, s[12:15], s{8+(t>>2)} offen offset:{1024*(t&3)} sc1"]
    first = [x for t in range(D) for x in kvload(t)]
    for c in range(4):
        a(("s_waitcnt vmcnt(0) lgkmcnt(0)\n" if c == 0 else "") + "s_barrier")
        if c == 0: stamp(2)
        if c > 0: hstamp(12 + c)
        if c == 1: a(f"v_mov_b32 v253, {M_TAG}\nds_read_b32 v253, v253")
        if c == (2 if early else 3): a(poll)
        qreads(8*c); qreads(8*c+1)
        if c == 3 and early:
            a(f"s_waitcnt vmcnt(0)\nv_cmp_ne_u32 vcc, {sTAG}, v248\ns_nop 3\ns_cmp_eq_u64 vcc, 0\ns_cselect_b32 s14, {WS_SIZE}, 0")
        for k in range(8):
            ks = 8*c + k
            if k < 6:
                qreads(ks+2); a("s_waitcnt lgkmcnt(6)")
            else:
                a(f"s_waitcnt lgkmcnt({3*(7-k)})")
            if c == 3 and k == 7: a("s_barrier")
            b = 192 + 8*(ks % 3)
            a(f"v_mfma_f32_32x32x16_bf16 v[224:239], {vr(b,4)}, {vr(b+4,4)}, {'0' if ks == 0 else 'v[224:239]'}")
            if c == 3 and early: a("\n".join(first[k:k+1] if k < 7 else first[7:]))
        if c == 1: a(f"v_readfirstlane_b32 {sTAG}, v253")
    stamp(3)
    a(f"""
    s_setprio 2
    {"s_cmp_lg_u32 s14, 0" if early else ""}
    {"s_cbranch_scc1 L_kvgo" if early else "s_branch L_kvchk"}
    L_kvpoll:
    {poll}
    s_add_u32 s63, s63, 1
    s_cmp_gt_u32 s63, {SPIN_MAX}
    s_cbranch_scc1 L_kvok
    L_kvchk:
    s_waitcnt vmcnt(0)
    v_cmp_ne_u32 vcc, {sTAG}, v248
    s_cbranch_vccnz L_kvpoll
    L_kvok:
    s_mov_b32 s14, {WS_SIZE}
    """)
    a("\n".join(first))
    a("L_kvgo:\ns_nop 6")
    stamp(5)
    for r in range(16): a(f"v_mul_f32 v{224+r}, s62, v{224+r}")
    for r in range(8): a(f"v_cvt_pk_bf16_f32 v{192+r}, v{224+2*r}, v{225+2*r}")
    a(f"v_mov_b32 v245, {sTAG}\nds_write_b128 v220, v[192:195]\nds_write_b128 v220, v[196:199] offset:1024")
    a(f"s_cmp_lg_u32 {sW}, 0\ns_cbranch_scc1 L_q0s\nds_write_b32 v251, v245 offset:{M_Q0 - M_QMAX}\nL_q0s:")
    stamp(4)
    a("v_mul_f32 v208, v224, v224\nv_mul_f32 v209, v232, v232")
    for r in range(1, 8): a(f"v_fmac_f32 v208, v{224+r}, v{224+r}\nv_fmac_f32 v209, v{232+r}, v{232+r}")
    a(f"""
    s_mov_b32 s63, 0
    L_q0w:
    ds_read_b32 v210, v251 offset:{M_Q0 - M_QMAX}
    ds_read_b128 v[240:243], v246
    s_add_u32 s63, s63, 1
    s_cmp_gt_u32 s63, {SPIN_MAX}
    s_cbranch_scc1 L_q0x
    s_waitcnt lgkmcnt(0)
    v_cmp_ne_u32 vcc, {sTAG}, v210
    s_cbranch_vccnz L_q0w
    L_q0x:
    s_waitcnt vmcnt({2*D-1})
    v_mfma_f32_32x32x16_bf16 v[192:207], v[0:3], v[240:243], 0
    v_permlane32_swap_b32 v208, v209
    v_max_u32_dpp v249, v249, v249 row_ror:8 row_mask:0xf bank_mask:0xf
    v_add_f32 v254, v208, v209
    v_mov_b32 v253, 1
    v_max_u32_dpp v249, v249, v249 row_ror:4 row_mask:0xf bank_mask:0xf
    v_max_u32_dpp v254, v254, v254 row_ror:8 row_mask:0xf bank_mask:0xf
    s_mov_b32 s64, 0x00010001
    v_max_u32_dpp v249, v249, v249 row_ror:2 row_mask:0xf bank_mask:0xf
    v_max_u32_dpp v254, v254, v254 row_ror:4 row_mask:0xf bank_mask:0xf
    s_mov_b32 s65, 0x00010001
    v_max_u32_dpp v249, v249, v249 row_ror:1 row_mask:0xf bank_mask:0xf
    v_max_u32_dpp v254, v254, v254 row_ror:2 row_mask:0xf bank_mask:0xf
    v_add_u32 v246, 1024, v246
    s_mov_b32 s62, 8
    v_max_u32_dpp v254, v254, v254 row_ror:1 row_mask:0xf bank_mask:0xf
    s_mov_b64 exec, s[64:65]
    ds_max_u32 v251, v254
    ds_max_u32 v251, v249 offset:4
    ds_add_u32 v251, v253 offset:8
    s_mov_b64 exec, -1
    s_mov_b32 s64, {0 if o.get('noG') else 0x24}
    """)
    stamp(6)
    if diag: a("s_memrealtime s[86:87]")
    flush = [f"ds_write2st64_b32 v244, v{224+2*r}, v{225+2*r} offset0:{8*r} offset1:{8*r+4}" for r in range(4)] + ["ds_write2st64_b32 v244, v232, v245 offset0:32 offset1:36", f"v_add_u32 v244, {0 if o.get('noG') else SLOT}, v244"]
    def tile(t, peel=False):
        first = peel and t == 0
        S = [192, 208]
        cur = S[t & 1]; nxt = S[(t+1) & 1]
        Kn = 4*((t+1) % 16); Vp = 64 + 8*((t-1) % 16) + 4; Vc = 64 + 8*t
        m0 = f"v_mfma_f32_32x32x16_bf16 v[224:239], {vr(Vp,4)}, {vr(nxt+4,4)}, v[224:239]"
        m1 = f"v_mfma_f32_32x32x16_bf16 {vr(nxt,16)}, {vr(Kn,4)}, v[240:243], 0"
        m2 = f"v_mfma_f32_32x32x16_bf16 v[224:239], {vr(Vc,4)}, {vr(cur,4)}, {'0' if t == 0 else 'v[224:239]'}"
        e = lambda i: f"v_exp_f32 v{cur+i}, v{cur+i}"
        c = lambda i: f"v_cvt_pk_bf16_f32 v{cur+i}, v{cur+2*i}, v{cur+2*i+1}"
        cp7 = f"v_cvt_pk_bf16_f32 v{nxt+7}, v{nxt+14}, v{nxt+15}"
        seq = []
        if peel:
            if t + D < 16: seq += kvload(t + D)
            if t == int(o.get("go", 0)): seq.append(f"ds_write_b32 v251, v245 offset:{M_GO - M_QMAX}")
            seq.append(f"s_waitcnt vmcnt({max(2*min(t+D+1, 16) - (2*t+3), 0)})")
            seq += [f"v_permlane16_swap_b32 v{Vc+r}, v{Vc+4+r}" for r in range(4)]
        qn = ["ds_read_b128 v[240:243], v246", "v_add_u32 v246, 1024, v246"]
        if o.get("even") or (t == 0 and not first):
            seq += [e(0)] + ([] if first else [cp7]) + [e(1), e(2)] + ([] if first else [m0]) + [c(0), e(3), e(4), c(1), e(5), e(6)]
            if t == 15: seq.append("s_waitcnt lgkmcnt(0)")
            seq.append(m1)
            if t == 14: seq += qn
            seq += [c(2), e(7), e(8), c(3), e(9), e(10)]
            if t == 0 and not first: seq += (flush if not o.get("noflush") else [])
            seq += [c(4), m2, e(11), e(12), c(5), e(13), e(14), c(6)]
        else:
            seq += [e(0)] + ([] if first else [cp7]) + [e(1), e(2), e(3)]
            if t == 15: seq.append("s_waitcnt lgkmcnt(0)")
            seq += [e(4), e(5)] + ([] if first else [m0]) + [e(6), e(7), c(0), c(1), m1, c(2), c(3), e(8), e(9), m2]
            if t == 14: seq += qn
            seq += [e(10), c(4), e(11), e(12), c(5), e(13), e(14), c(6)]
        if t == 15: seq += ["s_sub_u32 s62, s62, 1"]
        seq += [e(15)]
        a("\n".join(seq))
    for t in range(16): tile(t, peel=True)
    a("s_mov_b32 s63, 0\ns_branch L_chk2\n.p2align 6\nL_top:")
    for t in range(16): tile(t)
    if diag and not rt and not o.get("hd"):
        a("s_cmp_lt_u32 s62, 2\ns_cbranch_scc1 L_nst\ns_mov_b32 s90, s92\ns_mov_b32 s92, s94\ns_mov_b32 s94, s96\ns_mov_b32 s96, s98\ns_memtime s[98:99]\ns_waitcnt lgkmcnt(0)\nL_nst:")
    a(f"""
    s_bitcmp1_b32 s64, s62
    s_cbranch_scc1 L_check
    s_cmp_lg_u32 s62, 0
    s_cbranch_scc1 L_top
    v_cvt_pk_bf16_f32 v215, v222, v223
    s_nop 1
    v_mfma_f32_32x32x16_bf16 v[224:239], {vr(64+8*15+4,4)}, v[212:215], v[224:239]
    s_nop 11
    """)
    a("\n".join(flush[:5]) + "\ns_waitcnt lgkmcnt(0)")
    stamp(8)
    if diag: a("s_memrealtime s[88:89]")
    a("s_barrier")
    diag_out("a")
    a("s_endpgm")
    a(f"""
    L_check:
    s_mov_b32 s63, 0
    s_cmp_eq_u32 s62, 5
    s_cselect_b32 s60, 4, 12
    s_cselect_b32 s61, {OACC + 2*SLOT - X_}, 0
    s_add_u32 s60, s60, {M_CNTG}
    v_mov_b32 v249, s60
    L_xw:
    ds_read_b32 v248, v249
    s_add_u32 s63, s63, 1
    s_cmp_gt_u32 s63, {SPIN_MAX}
    s_cbranch_scc1 L_xw_x
    s_waitcnt lgkmcnt(0)
    v_cmp_ne_u32 vcc, 4, v248
    s_cbranch_vccnz L_xw
    L_xw_x:
    v_subrev_u32 v244, s61, v244
    s_branch L_top
    L_chk2:
    ds_read_b96 v[248:250], v251
    s_add_u32 s63, s63, 1
    s_cmp_gt_u32 s63, {SPIN_MAX}
    s_cbranch_scc1 L_chk3
    s_waitcnt lgkmcnt(0)
    v_cmp_ne_u32 vcc, 16, v250
    s_cbranch_vccnz L_chk2
    L_chk3:
    v_mul_f32 v248, v248, v249
    v_mov_b32 v249, 0x45700000
    """)
    stamp(7)
    a(f"""
    v_cmp_nle_f32 vcc, v248, v249
    s_cbranch_vccz L_top
    """)
    if o.get("force_slow"): a.l[-1] = "    s_nop 0"
    a(f"""
    v_lshlrev_b32 v246, 4, {L}
    v_add_u32 v246, {QF}, v246
    v_and_b32 v247, 31, {L}
    v_lshlrev_b32 v247, 2, v247
    v_add_u32 v247, {M_M}, v247
    v_mov_b32 v251, {M_CNTS}
    s_mov_b32 s62, 8
    L_slow:
    ds_read_b128 v[240:243], v246
    v_add_u32 v246, 1024, v246
    v_mov_b32 v248, 0xff800000
    s_waitcnt lgkmcnt(0)
    """)
    for t in range(16):
        a(f"v_mfma_f32_32x32x16_bf16 v[192:207], {vr(4*t,4)}, v[240:243], 0\ns_nop 11")
        for r in range(8): a(f"v_max3_f32 v248, v248, v{192+2*r}, v{193+2*r}")
    a(f"""
    ds_max_f32 v247, v248
    s_mov_b64 exec, 1
    ds_add_u32 v251, v253
    s_mov_b64 exec, -1
    s_mov_b32 s63, 0
    L_slow2:
    s_sleep 1
    ds_read_b32 v249, v251
    s_add_u32 s63, s63, 1
    s_cmp_gt_u32 s63, {SPIN_MAX}
    s_cbranch_scc1 L_slow3
    s_waitcnt lgkmcnt(0)
    v_cmp_ne_u32 vcc, 4, v249
    s_cbranch_vccnz L_slow2
    L_slow3:
    ds_read_b32 v248, v247
    v_add_u32 v247, 128, v247
    v_add_u32 v251, 4, v251
    s_waitcnt lgkmcnt(0)
    """)
    for t in range(16):
        a(f"v_mfma_f32_32x32x16_bf16 v[192:207], {vr(4*t,4)}, v[240:243], 0\ns_nop 11")
        for r in range(16): a(f"v_sub_f32 v{192+r}, v{192+r}, v248")
        for r in range(16): a(f"v_exp_f32 v{192+r}, v{192+r}")
        a("s_nop 0")
        for r in range(8): a(f"v_cvt_pk_bf16_f32 v{208+r}, v{192+2*r}, v{193+2*r}")
        a("s_nop 1")
        a(f"v_mfma_f32_32x32x16_bf16 v[224:239], {vr(64+8*t,4)}, v[208:211], {'0' if t == 0 else 'v[224:239]'}")
        a(f"v_mfma_f32_32x32x16_bf16 v[224:239], {vr(68+8*t,4)}, v[212:215], v[224:239]")
    a(f"""
    s_cmp_lg_u32 s62, 6
    s_cbranch_scc1 L_slow5
    s_mov_b32 s63, 0
    v_mov_b32 v249, {M_CNTG + 12}
    L_slow4:
    ds_read_b32 v248, v249
    s_add_u32 s63, s63, 1
    s_cmp_gt_u32 s63, {SPIN_MAX}
    s_cbranch_scc1 L_slow4x
    s_waitcnt lgkmcnt(0)
    v_cmp_ne_u32 vcc, 4, v248
    s_cbranch_vccnz L_slow4
    L_slow4x:
    v_subrev_u32 v244, {OACC + 2*SLOT - X_}, v244
    L_slow5:
    """)
    a("s_nop 11")
    a("\n".join(flush))
    a(f"""
    s_sub_u32 s62, s62, 1
    s_cmp_lg_u32 s62, 0
    s_cbranch_scc1 L_slow
    s_waitcnt lgkmcnt(0)
    s_barrier
    """)
    diag_out("s")
    a("s_endpgm")

    a(f"""
    L_Gjoin:
    s_sub_u32 {sW}, {sW}, 4
    """)
    gw = sW
    def lds_wait(lbl, addr, off, val, sleep=2):
        a(f"""
        s_mov_b32 s63, 0
        {lbl}:
        ds_read_b32 v178, {addr} offset:{off}
        s_add_u32 s63, s63, 1
        s_cmp_gt_u32 s63, {SPIN_MAX}
        s_cbranch_scc1 {lbl}_x
        s_waitcnt lgkmcnt(0)
        v_cmp_ne_u32 vcc, {val}, v178
        s_cbranch_vccz {lbl}_x
        s_sleep {sleep}
        s_branch {lbl}
        {lbl}_x:
        """)
    a(f"""
    ds_read_b32 v178, v177 offset:{M_TAG - M_CNTG}
    ds_read_u16 v152, v12
    ds_read_u16 v156, v12 offset:64
    ds_read_u16 v168, v13
    ds_read_u16 v172, v13 offset:64
    s_setprio 3
    s_waitcnt lgkmcnt(0)
    v_readfirstlane_b32 {sTAG}, v178
    s_nop 3
    """)
    if o.get("noG"): a("s_barrier\ns_branch L_gend")
    if int(o.get("go", 0)) >= 0: lds_wait("L_go", "v177", M_GO - M_CNTG, sTAG, 3)
    a(f"""
    s_setprio 0
    s_lshl_b32 s64, {sGRP}, 8
    s_add_u32 s64, s64, {WS_KVF}
    s_mul_i32 s4, {gw}, {448*1024}
    s_lshl_b32 s55, {sJ}, 7
    s_add_u32 s4, s4, s55
    s_lshl_b32 s7, {gw}, 17
    s_add_u32 s7, s7, s55
    s_mul_i32 s5, {sGRP}, {2*112*1024}
    s_add_u32 s5, s5, {WS_H}
    s_lshl_b32 s24, s48, 11
    s_add_u32 s24, s24, s5
    s_add_u32 s25, s24, {112*1024}
    s_mul_i32 s61, {gw}, {28*1024}
    s_add_u32 s5, s5, s61
    s_and_b32 s6, {sGRP}, {3 if o.get('rot2') else 0}
    s_lshl_b32 s10, {sGRP}, 3
    s_add_u32 s8, s10, {sJ}
    s_lshl_b32 s26, s8, 2
    s_add_u32 s26, s26, {gw}
    s_lshl_b32 s26, s26, 5
    s_add_u32 s26, s26, {WS_HF}
    s_lshl_b32 s8, s8, 3
    s_add_u32 s8, s8, {gw}
    s_lshl_b32 s8, s8, 10
    s_add_u32 s8, s8, {WS_O}
    s_add_u32 s9, s8, 4096
    s_lshl_b32 s60, {gw}, 1
    s_add_u32 s10, s10, s60
    s_lshl_b32 s27, s10, 7
    s_add_u32 s27, s27, {WS_HF}
    s_lshl_b32 s10, s10, 13
    s_add_u32 s10, s10, {WS_O}
    s_add_u32 s65, s10, 8192
    s_lshl_b32 s33, {sGRP}, 16
    s_add_u32 s11, s33, {WS_O + 7*1024}
    s_add_u32 s33, s33, s55
    s_add_u32 s34, s33, 0x8000
    s_lshl_b32 s60, {gw}, 13
    s_add_u32 s33, s33, s60
    s_movk_i32 s32, {4*SLOT // 4}
    s_cmp_lt_u32 {gw}, 2
    s_cselect_b32 s32, {(2*SLOT + X_ - OACC) // 4 & 0xffffffff}, s32
    s_lshl_b32 s32, s32, 2
    """)
    stamp(3)
    a(f"s_cmp_eq_u32 {gw}, 3\ns_cbranch_scc1 L_F1w3")
    ACC = lambda mt, nt: 32*nt + 16*mt
    def mf(mt, nt, A_, B_, c0=False):
        d = vr(ACC(mt, nt), 16)
        a(f"v_mfma_f32_32x32x16_bf16 {d}, {vr(A_,4)}, {vr(B_,4)}, {'0' if c0 else d}")
    class VM:
        def __init__(s_): s_.ops = []
        def op(s_, ins, tag=None): a(ins); s_.ops.append(tag)
        def n(s_, *tags): return len(s_.ops) - 1 - max(i for i, t in enumerate(s_.ops) if t in tags)
    xcload = f"buffer_load_dwordx2 v[194:195], v180, {srd(SWS)}, s64 offen offset:8 sc1"
    def f1reads(k, w3):
        ab = 120 + 8*(k & 1); bb = 64 + 8*(k & 1); u = k & 7; xo = 16384*(k >> 3)
        r0 = [f"ds_read_b64_tr_b16 {vr(ab,2)}, v144 offset:{2048*u}", f"ds_read_b64_tr_b16 {vr(ab+2,2)}, v144 offset:{2048*u+(256 if w3 else 512)}", f"ds_read_b128 {vr(bb,4)}, v{136+u} offset:{xo}"]
        if not w3: r1 = [f"ds_read_b64_tr_b16 {vr(ab+4,2)}, v145 offset:{2048*u}", f"ds_read_b64_tr_b16 {vr(ab+6,2)}, v145 offset:{2048*u+512}"]
        else: r1 = [f"ds_read_b128 {vr(ab+4,4)}, v145 offset:{32*k}"]
        r1.append(f"ds_read_b128 {vr(bb+4,4)}, v{136+u} offset:{xo+8192}")
        return "\n".join(r0), "\n".join(r1)
    def ffn1(w3):
        vm = VM()
        def dma(k, half):
            if k < 32:
                if half == 0: vm.op(f"buffer_load_dwordx4 v148, {srd(SW1)}, s54 offen lds", k)
                elif not w3: vm.op(f"buffer_load_dwordx4 v149, {srd(SW1)}, s54 offen offset:1024 lds", k)
            else:
                vm.op(f"buffer_load_dwordx4 v{150+half}, {srd(SW2 if k < 39 else SWO)}, s54 offen offset:{1024*half} lds", k)
        def adv(k):
            if k < 32 and k & 7: a(f"s_add_u32 s54, s54, {16*3584}")
            elif k < 32: a(f"s_add_u32 s55, {sC0}, {k >> 3}\ns_and_b32 s55, s55, 3\ns_mul_i32 s55, s55, {128*3584}\ns_add_u32 s54, s100, s55")
            elif k == 32: a(f"s_mul_i32 s54, s6, {7*16384}\ns_add_u32 s54, s54, s4")
            elif k < 39: a("s_add_u32 s54, s54, 16384")
            elif k == 39: a(f"s_add_u32 s54, s7, {7*16384}")
        for k in range(8):
            a(f"s_add_u32 m0, s49, {2048*k}\ns_nop 0")
            dma(k, 0); dma(k, 1); adv(k+1)
        if w3: a("s_setprio 3\nv_mov_b32 v156, 0\ns_setprio 0")
        a(f"s_waitcnt vmcnt({vm.n(0)})")
        a("\n".join(f1reads(0, w3)))
        for nt in range(2):
            mf(0, nt, 152, 160, True)
            mf(1, nt, 156, 160, True)
        for k in range(32):
            u = k & 7
            ab = 120 + 8*(k & 1); bb = 64 + 8*(k & 1)
            if k == 12:
                for so in ("s8", "s9"): vm.op(f"buffer_store_dwordx4 v[200:203], v166, {srd(SWS)}, {so} offen sc1")
                vm.op(f"buffer_load_dword v178, v180, {srd(SWS)}, s27 offen sc1")
                vm.op(xcload, "xc")
                if not w3 and not o.get("nopf"):
                    a(f"""
                    s_cmp_eq_u32 {gw}, 0
                    s_cbranch_scc0 L_f1m
                    s_mul_i32 s60, s2, 7168
                    s_mov_b64 exec, s[12:13]
                    buffer_load_dword v178, v196, {srd(SW2)}, s60 offen
                    s_mov_b64 exec, 0xffff
                    s_lshl_b32 s60, s2, 11
                    buffer_load_dword v178, v196, {srd(SWO)}, s60 offen
                    s_mov_b64 exec, -1
                    L_f1m:
                    """)
                if o.get("hpre"):
                    for so in ("s24", "s25"):
                        for q in range(2 if w3 else 4): vm.op(f"buffer_load_dwordx4 v[204:207], v166, {srd(SWS)}, {so} offen offset:{1024*q}")
            a(f"s_waitcnt vmcnt({vm.n(k+1) if k < 31 else 63}) lgkmcnt(0)")
            r0, r1 = f1reads(k+1, w3) if k < 31 else ("", "")
            mf(0, 0, ab, bb)
            a(r0)
            mf(1, 0, ab+4, bb)
            a(r1)
            a(f"s_add_u32 m0, s49, {2048*u}")
            mf(0, 1, ab, bb+4)
            dma(k+8, 0)
            if u == 7: a(f"s_mov_b64 exec, 1\nds_add_u32 v177, v167 offset:{4*(k >> 3)}\ns_mov_b64 exec, -1")
            mf(1, 1, ab+4, bb+4)
            dma(k+8, 1); adv(k+9)
        a(f"s_waitcnt vmcnt({vm.n('xc')})")
    ffn1(False)
    a("s_branch L_F1done\nL_F1w3:")
    ffn1(True)
    a(f"""
    L_F1done:
    s_mov_b32 s63, 0
    s_getreg_b32 s61, hwreg(HW_REG_XCC_ID, 0, 4)
    s_setprio 3
    s_branch L_xc_c
    L_xc:
    {xcload}
    s_add_u32 s63, s63, 1
    s_cmp_gt_u32 s63, {SPIN_MAX}
    s_cbranch_scc1 L_xc_x
    s_waitcnt vmcnt(0)
    L_xc_c:
    v_cmp_ne_u32 vcc, {sTAG}, v194
    s_cbranch_vccnz L_xc
    L_xc_x:
    v_cmp_ne_u32 vcc, s61, v195
    s_nop 3
    s_cmp_eq_u64 vcc, 0
    s_cselect_b32 s101, {0 if o.get('nofast') else 1}, 0
    """)
    nst = [0]
    def hstore(ins):
        nst[0] += 1
        a(f"s_cbranch_scc1 L_hs{nst[0]}a\n{ins} sc1\ns_branch L_hs{nst[0]}b\nL_hs{nst[0]}a:\n{ins}\nL_hs{nst[0]}b:")
    stamp(4)
    def hst(mt, nt):
        b = ACC(mt, nt)
        for r in range(16): a(f"v_max_f32 v{b+r}, 0, v{b+r}")
        for r in range(8): a(f"v_pk_mul_f32 {vr(b+2*r,2)}, {vr(b+2*r,2)}, {vr(b+2*r,2)}")
        for r in range(8): a(f"v_cvt_pk_bf16_f32 v{b+r}, v{b+2*r}, v{b+2*r+1}")
        so = "s25" if nt else "s24"
        st = hstore if o.get("hpre") else (lambda ins: a(ins + " sc1"))
        a("s_cmp_eq_u32 s101, 1")
        st(f"buffer_store_dwordx4 {vr(b,4)}, v166, {srd(SWS)}, {so} offen offset:{2048*mt}")
        st(f"buffer_store_dwordx4 {vr(b+4,4)}, v166, {srd(SWS)}, {so} offen offset:{2048*mt+1024}")
    hst(0, 0); hst(0, 1)
    a(f"s_cmp_eq_u32 {gw}, 3\ns_cbranch_scc1 L_gate")
    hst(1, 0); hst(1, 1)
    a(f"""
    s_branch L_gated
    L_gate:
    v_mul_f32 v16, {0x80000000 | LOG2E}, v16
    v_mul_f32 v48, {0x80000000 | LOG2E}, v48
    v_exp_f32 v16, v16
    v_exp_f32 v48, v48
    s_nop 0
    v_add_f32 v16, 1.0, v16
    v_add_f32 v48, 1.0, v48
    v_rcp_f32 v16, v16
    v_rcp_f32 v48, v48
    s_nop 1
    ds_write_b32 v192, v16
    ds_write_b32 v192, v48 offset:128
    L_gated:
    s_mov_b64 exec, 1
    ds_add_u32 v177, v167 offset:16
    s_mov_b64 exec, -1
    """)
    def fin(B, sfx, first):
        a(f"""
        s_mov_b32 s63, 0
        L_fw{sfx}:
        ds_read_b32 v{B}, v176
        s_add_u32 s63, s63, 1
        s_cmp_gt_u32 s63, {SPIN_MAX}
        s_cbranch_scc1 L_fw{sfx}_x
        s_waitcnt lgkmcnt(0)
        v_cmp_ne_u32 vcc, {sTAG}, v{B}
        s_cbranch_vccz L_fw{sfx}_x
        s_sleep 3
        s_branch L_fw{sfx}
        L_fw{sfx}_x:
        ds_read2st64_b32 {vr(B+32,2)}, v181 offset0:32 offset1:33
        ds_read2st64_b32 {vr(B+34,2)}, v181 offset0:34 offset1:35
        """)
        for w in range(4):
            for r in range(4): a(f"ds_read2st64_b32 {vr(B+8*w+2*r,2)}, v181 offset0:{8*r+w} offset1:{8*r+4+w}")
        a(f"s_cmp_eq_u32 s101, 1\ns_waitcnt lgkmcnt(8)\nv_pk_add_f32 {vr(B+32,2)}, {vr(B+32,2)}, {vr(B+34,2)}")
        for r in range(4): a(f"v_pk_add_f32 {vr(B+2*r,2)}, {vr(B+2*r,2)}, {vr(B+8+2*r,2)}")
        a(f"v_add_f32 v{B+32}, v{B+32}, v{B+33}\ns_waitcnt lgkmcnt(0)")
        for r in range(4): a(f"v_pk_add_f32 {vr(B+16+2*r,2)}, {vr(B+16+2*r,2)}, {vr(B+24+2*r,2)}")
        a(f"v_rcp_f32 v{B+32}, v{B+32}")
        for r in range(4): a(f"v_pk_add_f32 {vr(B+2*r,2)}, {vr(B+2*r,2)}, {vr(B+16+2*r,2)}")
        a(f"v_mul_f32 v{B+32}, v{B+32}, v164")
        for r in range(4): a(f"v_pk_mul_f32 {vr(B+2*r,2)}, {vr(B+2*r,2)}, {vr(B+32,2)} op_sel_hi:[1,0]")
        for r in range(4): a(f"v_cvt_pk_bf16_f32 v{B+r}, v{B+2*r}, v{B+2*r+1}")
        for r in range(4): a(f"v_min_u32 v{B+r}, -2, v{B+r}")
        hstore(f"buffer_store_dwordx4 {vr(B,4)}, v166, {srd(SWS)}, {'s8' if first else 's4'} offen")
        if first:
            a(f"""
            s_or_b32 s55, s2, {gw}
            s_cbranch_scc1 L_noep
            v_mov_b32 v{B+33}, {sTAG}
            s_mov_b64 exec, 1
            buffer_store_dword v{B+33}, off, {srd(SWS)}, 0 sc1
            s_mov_b64 exec, -1
            L_noep:
            """)
        else: a("s_nop 0")
    def flag_wait(lbl, vaddr, soff, sleep=2):
        a(f"""
        s_mov_b32 s63, 0
        {lbl}:
        buffer_load_dword v178, {vaddr}, {srd(SWS)}, {soff} offen sc1
        s_add_u32 s63, s63, 1
        s_cmp_gt_u32 s63, {SPIN_MAX}
        s_cbranch_scc1 {lbl}_x
        s_waitcnt vmcnt(0)
        v_cmp_ne_u32 vcc, {sTAG}, v178
        s_cbranch_vccz {lbl}_x
        s_sleep {sleep}
        s_branch {lbl}
        {lbl}_x:
        """)
    a(f"""
    v_mov_b32 v129, {sTAG}
    s_cmp_eq_u32 {gw}, 0
    s_cselect_b32 s60, -1, 0
    v_and_b32 v160, s60, v160
    s_cmp_eq_u32 s101, 1
    s_mov_b64 exec, 1
    s_waitcnt vmcnt(0)
    """)
    hstore(f"buffer_store_dword v129, off, {srd(SWS)}, s26")
    a("s_mov_b64 exec, -1")
    stamp(5)
    lds_wait("L_gs1", "v177", 16, "4")
    a("ds_read_b32 v164, v192\nds_read_b32 v165, v192 offset:128")
    for nt in range(2):
        mf(0, nt, 168, 160, True); mf(1, nt, 172, 160, True)
    flag_wait("L_hw", "v180", "s27")
    a(f"v_mov_b32 v180, v193\nv_subrev_u32 v168, {OACC - X_}, v190\nv_subrev_u32 v169, {OACC - X_}, v191")
    stamp(6)
    a(f"""
    s_setprio 0
    s_mul_i32 s60, s6, 7168
    s_add_u32 s60, s60, s5
    s_add_u32 s61, s60, {112*1024}
    """)
    vm = VM()
    def hA(k): vm.op(f"buffer_load_dwordx4 {vr(64+8*(k%7),4)}, v166, {srd(SWS)}, s60 offen sc1", ("h", k)); a("s_add_u32 s60, s60, 1024")
    def hB(k): vm.op(f"buffer_load_dwordx4 {vr(68+8*(k%7),4)}, v166, {srd(SWS)}, s61 offen sc1", ("h", k)); a("s_add_u32 s61, s61, 1024")
    for k in range(7): hA(k); hB(k)
    def f2reads(k):
        ab = 120 + 8*(k & 1); slot = k % 7
        return (f"ds_read_b64_tr_b16 {vr(ab,2)}, v146 offset:{2048*slot}\nds_read_b64_tr_b16 {vr(ab+2,2)}, v146 offset:{2048*slot+1024}\n"
                f"ds_read_b64_tr_b16 {vr(ab+4,2)}, v147 offset:{2048*slot}\nds_read_b64_tr_b16 {vr(ab+6,2)}, v147 offset:{2048*slot+1024}")
    a(f2reads(0))
    for k in range(28):
        u = k % 7
        if u == 0 and k < 21: a(f"s_add_u32 s6, s6, 1\ns_and_b32 s6, s6, 3\ns_mul_i32 s54, s6, {7*16384}\ns_add_u32 s54, s54, s4\ns_mul_i32 s60, s6, 7168\ns_add_u32 s60, s60, s5\ns_add_u32 s61, s60, {112*1024}")
        if k == 21: a("s_mov_b32 s54, s7\ns_mov_b32 s60, s10\ns_mov_b32 s61, s65")
        if k == int(o.get("fink", 16)):
            a("s_setprio 3")
            fin(196, "m", True)
            a("s_setprio 0")
        ab = 120 + 8*(k & 1); bb = 64 + 8*u
        need = [("h", k)] + ([("w", k+1)] if 7 <= k+1 < 28 else [])
        a(f"s_waitcnt vmcnt({vm.n(*need)}) lgkmcnt(0)")
        mf(0, 0, ab, bb)
        if k < 27: a(f2reads(k+1))
        mf(1, 0, ab+4, bb)
        if k < 25: hA(k+7)
        a(f"s_add_u32 m0, s49, {2048*u}")
        mf(0, 1, ab, bb+4)
        sr = srd(SW2 if k < 21 else SWO)
        vm.op(f"buffer_load_dwordx4 v150, {sr}, s54 offen lds", ("w", k+7))
        vm.op(f"buffer_load_dwordx4 v151, {sr}, s54 offen offset:1024 lds", ("w", k+7))
        a("s_add_u32 s54, s54, 16384")
        mf(1, 1, ab+4, bb+4)
        if k < 25: hB(k+7)
    a("s_setprio 3")
    stamp(7)
    def cnt_add(off): a(f"s_mov_b64 exec, 1\nds_add_u32 v177, v167 offset:{off}\ns_mov_b64 exec, -1")
    a("v_sub_f32 v182, 1.0, v164\nv_sub_f32 v184, 1.0, v165\nv_mov_b32 v164, v165\ns_waitcnt vmcnt(0) lgkmcnt(0)")
    cnt_add(20)
    WOF = lambda i, mt: 192 + 8*i + 4*mt if (i, mt) != (7, 1) else 136
    for i in range(8):
        for mt in range(2):
            for e in range(2): a(f"ds_read_b64_tr_b16 {vr(WOF(i,mt)+2*e,2)}, v{146+mt} offset:{2048*i+1024*e}")
    for r in range(16): a(f"v_pk_mul_f32 {vr(2*r,2)}, {vr(2*r,2)}, v[182:183] op_sel_hi:[1,0]")
    for r in range(16, 32): a(f"v_pk_mul_f32 {vr(2*r,2)}, {vr(2*r,2)}, v[184:185] op_sel_hi:[1,0]")
    OF = lambda jj, sl: 64 + 8*sl + 4*jj
    def oload(jj, sl): return f"buffer_load_dwordx4 {vr(OF(jj, sl),4)}, v166, {srd(SWS)}, {('s10', 's65', 's8', 's9')[jj + 2*(sl >> 2)]} offen offset:{1024*(sl&3)} sc1"
    def ofrags(lbl, loads, regs, sleep, pre=False):
        n = len(loads)
        a("s_mov_b32 s63, 0")
        if pre: a(f"s_branch {lbl}_c")
        a(f"{lbl}:")
        a("\n".join(loads))
        a(f"s_add_u32 s63, s63, 1\ns_cmp_gt_u32 s63, {SPIN_MAX}\ns_cbranch_scc1 {lbl}_x\n{lbl}_c:")
        for i in range(n):
            r = regs[i]
            a(f"s_waitcnt vmcnt({n-1-i})")
            if i == 0: a(f"v_max3_u32 v178, v{r}, v{r+1}, v{r+2}\nv_max_u32 v178, v178, v{r+3}")
            else: a(f"v_max3_u32 v178, v178, v{r}, v{r+1}\nv_max3_u32 v178, v178, v{r+2}, v{r+3}")
        a(f"v_cmp_eq_u32 vcc, -1, v178\ns_cbranch_vccz {lbl}_x")
        if sleep: a(f"s_sleep {sleep}")
        a(f"s_branch {lbl}\n{lbl}_x:\ns_waitcnt vmcnt(0)")
    def wo_stage(lbl, nt, sls, sleep, pre):
        ks = [(jj, sl) for sl in sls for jj in range(2)]
        ofrags(lbl, [oload(*k) for k in ks], [OF(*k) for k in ks], sleep, pre)
        a("s_waitcnt lgkmcnt(0)\ns_setprio 0")
        for jj, sl in ks:
            i = 4*jj + (sl & 3)
            mf(0, nt, WOF(i, 0), OF(jj, sl)); mf(1, nt, WOF(i, 1), OF(jj, sl))
        a("s_setprio 3")
    stamp(8)
    wo_stage("L_o0", 0, range(4), 4, True)
    stamp(9)
    a(f"s_add_u32 s4, s8, 4096\ns_add_u32 s8, s10, 4096\ns_add_u32 s9, s65, 4096\nv_add_u32 v176, s32, v176\nv_add_u32 v181, s32, v181")
    a(f"s_mul_i32 s5, {gw}, {SLOT}\ns_cmp_lt_u32 {gw}, 2\ns_cselect_b32 s6, {OACC + 2*SLOT - X_}, 0\ns_add_u32 s5, s5, s6\ns_sub_u32 s5, s49, s5\ns_add_u32 s5, s5, {8192 + 2*SLOT - X_}")
    for mt in range(2):
        for i in range(4): a(f"ds_write_b128 v{186+i}, {vr(16*mt+4*i,4)} offset:{128*mt}")
    cnt_add(28)
    lds_wait("L_w1", "v177", 20, "4")
    FA = lambda s_, ct: (120 + 8*s_ + 4*ct) if s_ < 2 else (148 + 8*(s_-2) + 4*ct)
    for s_ in range(4):
        for ct in range(2):
            for e in range(2): a(f"ds_read_b64_tr_b16 {vr(FA(s_,ct)+2*e,2)}, v253 offset:{16384*s_+1024*e+32*ct}")
    cnt_add(24)
    a(f"s_cmp_lt_u32 {gw}, 2\ns_cbranch_scc0 L_nf\ns_call_b64 s[14:15], L_fin\nL_nf:")
    lds_wait("L_rw", "v177", 28, "4", 1)
    for p in range(4):
        a(f"ds_read_b128 {vr(8*p,4)}, v{190 if p < 2 else 168} offset:{SLOT*(p&1)}\nds_read_b128 {vr(4+8*p,4)}, v{191 if p < 2 else 169} offset:{SLOT*(p&1)}")
    for i in range(4): a(f"v_add_u32 v{186+i}, s5, v{186+i}")
    a("s_waitcnt lgkmcnt(4)")
    for r in range(4): a(f"v_pk_add_f32 {vr(2*r,2)}, {vr(2*r,2)}, {vr(8+2*r,2)}")
    a("s_waitcnt lgkmcnt(0)")
    for r in range(4): a(f"v_pk_add_f32 {vr(16+2*r,2)}, {vr(16+2*r,2)}, {vr(24+2*r,2)}")
    for r in range(4): a(f"v_pk_add_f32 {vr(2*r,2)}, {vr(2*r,2)}, {vr(16+2*r,2)}")
    for r in range(4): a(f"v_cvt_pk_bf16_f32 v{172+r}, v{2*r}, v{2*r+1}")
    stamp(10)
    wo_stage("L_o1", 1, (4, 5), 4, False)
    a(f"s_cmp_eq_u32 {gw}, 2\ns_cbranch_scc0 L_nf1\ns_call_b64 s[14:15], L_fin\nL_nf1:")
    stamp(11)
    wo_stage("L_o1b", 1, (6,), 4, False)
    a("s_add_u32 s65, s11, 32768")
    fl = [f"buffer_load_dwordx4 {vr(108+0,4)}, v252, {srd(SWS)}, s11 offen sc1", f"buffer_load_dwordx4 {vr(104,4)}, v254, {srd(SWS)}, s11 offen sc1",
          f"buffer_load_dwordx4 {vr(100,4)}, v252, {srd(SWS)}, s65 offen sc1", f"buffer_load_dwordx4 {vr(140,4)}, v254, {srd(SWS)}, s65 offen sc1"]
    fr = [108, 104, 100, 140]
    if not o.get("nowarm"): a("\n".join(fl))
    lds_wait("L_w2", "v177", 24, "4")
    a("s_nop 2")
    for mt in range(2):
        for i in range(4): a(f"ds_write_b128 v{186+i}, {vr(32+16*mt+4*i,4)} offset:{128*mt}")
    cnt_add(32)
    lds_wait("L_rw1", "v177", 32, "4", 1)
    for p in range(4):
        a(f"ds_read_b128 {vr(64+8*p,4)}, v183 offset:{16384*p}\nds_read_b128 {vr(68+8*p,4)}, v185 offset:{16384*p}")
    a("s_waitcnt lgkmcnt(4)")
    for r in range(4): a(f"v_pk_add_f32 {vr(64+2*r,2)}, {vr(64+2*r,2)}, {vr(72+2*r,2)}")
    a("s_waitcnt lgkmcnt(0)")
    for r in range(4): a(f"v_pk_add_f32 {vr(80+2*r,2)}, {vr(80+2*r,2)}, {vr(88+2*r,2)}")
    for r in range(4): a(f"v_pk_add_f32 {vr(2*r,2)}, {vr(64+2*r,2)}, {vr(80+2*r,2)}")
    stamp(12)
    a(f"s_barrier\ns_cmp_eq_u32 {gw}, 3\ns_cbranch_scc0 L_nf2\ns_call_b64 s[14:15], L_fwf_x\nL_nf2:")
    stamp(13)
    ofrags("L_o2", fl, fr, 0)
    stamp(14)
    a(f"buffer_store_dwordx4 v[172:175], v179, {srd(SOUT)}, s33 offen")
    for s_ in range(4):
        for ct in range(2): a(f"v_mfma_f32_16x16x32_bf16 {vr(4*ct,4)}, {vr(FA(s_,ct),4)}, {vr(fr[s_],4)}, {vr(4*ct,4)}")
    a("""
    s_nop 6
    v_cvt_pk_bf16_f32 v8, v0, v1
    v_cvt_pk_bf16_f32 v9, v2, v3
    v_cvt_pk_bf16_f32 v10, v4, v5
    v_cvt_pk_bf16_f32 v11, v6, v7
    s_nop 1
    v_permlane16_swap_b32 v8, v10
    v_permlane16_swap_b32 v9, v11
    """)
    a(f"buffer_store_dwordx4 v[8:11], v180, {srd(SOUT)}, s34 offen")
    stamp(15)
    a("s_branch L_gend")
    a(f"""
    L_gsetup:
    s_load_dwordx2 s[{SW1}:{SW1+1}], s[0:1], 48
    s_load_dwordx2 s[{SWO}:{SWO+1}], s[0:1], 32
    s_load_dwordx2 s[{SW2}:{SW2+1}], s[0:1], 64
    s_load_dwordx2 s[{SOUT}:{SOUT+1}], s[0:1], 88
    s_mov_b32 s{SW1+2}, 1835008
    s_mov_b32 s{SW1+3}, 0x00020000
    s_mov_b32 s{SWO+2}, 524288
    s_mov_b32 s{SWO+3}, 0x00020000
    s_mov_b32 s{SW2+2}, 1835008
    s_mov_b32 s{SW2+3}, 0x00020000
    s_mov_b32 s{SOUT+2}, 2097152
    s_mov_b32 s{SOUT+3}, 0x00020000
    s_sub_u32 s101, {sW}, 4
    s_lshr_b32 s48, {sJ}, 1
    s_mul_i32 s48, s48, 7
    s_and_b32 s63, {sJ}, 1
    s_lshl_b32 s62, s63, 2
    s_add_u32 s62, s62, s101
    s_cmp_eq_u32 s101, 3
    s_cselect_b32 s62, 3, s62
    s_cselect_b32 s63, s63, 0
    s_add_u32 s48, s48, s62
    s_lshl_b32 s48, s48, 1
    s_add_u32 s48, s48, s63
    s_lshl_b32 s100, s48, 6
    s_mul_i32 s54, {sC0}, {128*3584}
    s_add_u32 s54, s54, s100
    s_lshl_b32 s49, s101, 14
    s_add_u32 s49, s49, {W_}
    v_lshrrev_b32 v14, 3, {L}
    v_and_b32 v15, 7, {L}
    v_bfe_u32 v3, {L}, 4, 1
    v_lshlrev_b32 v3, 2, v3
    v_xor_b32 v2, v3, v15
    v_lshlrev_b32 v2, 4, v2
    v_lshl_or_b32 v150, v14, 10, v2
    v_add_u32 v151, 7168, v150
    v_mul_u32_u24 v148, 3584, v14
    v_add_u32 v148, v148, v2
    v_add_u32 v149, {8*3584-1024}, v148
    v_lshlrev_b32 v180, 5, v15
    v_lshlrev_b32 v2, 1, v15
    v_xor_b32 v2, v14, v2
    v_lshlrev_b32 v2, 4, v2
    v_lshl_or_b32 v190, v14, 8, v2
    s_lshl_b32 s62, s101, 11
    s_add_u32 s62, s62, {OACC}
    v_add_u32 v190, s62, v190
    v_xor_b32 v191, 16, v190
    v_lshlrev_b32 v2, 4, v15
    v_lshl_or_b32 v179, v14, 10, v2
    v_and_b32 v1, 31, {L}
    v_lshrrev_b32 v14, 5, {L}
    v_xor_b32 v2, v14, v15
    v_lshlrev_b32 v2, 4, v2
    v_lshl_or_b32 v186, v1, 8, v2
    s_mul_i32 s62, {sJ}, 7
    s_sub_u32 s62, s48, s62
    s_lshl_b32 s62, s62, 6
    s_add_u32 s62, s62, {M_B1}
    v_lshlrev_b32 v13, 1, v1
    v_add_u32 v12, s62, v13
    v_add_u32 v13, {M_B2}, v13
    v_lshlrev_b32 v192, 2, v1
    v_add_u32 v192, {M_G}, v192
    v_and_b32 v3, 15, {L}
    v_xor_b32 v3, v14, v3
    v_lshlrev_b32 v3, 4, v3
    v_lshl_or_b32 v136, v1, 8, v3
    """)
    for k in range(1, 8): a(f"v_xor_b32 v{136+k}, {32*k}, v136")
    tr_addr(144, 8)
    a("v_add_u32 v144, s49, v144\nv_xor_b32 v145, 64, v144")
    tr_addr(146, 4)
    a("v_add_u32 v146, s49, v146\nv_xor_b32 v147, 64, v146")
    for r in (153, 154, 155, 157, 158, 159, 161, 162, 163, 169, 170, 171, 173, 174, 175): a(f"v_mov_b32 v{r}, 0")
    a(f"""
    v_cmp_gt_u32 vcc, 32, {L}
    v_mov_b32 v1, 0x3f80
    v_lshlrev_b32 v166, 4, {L}
    v_cndmask_b32 v160, 0, v1, vcc
    v_mov_b32 v167, 1
    v_mov_b32 v177, {M_CNTG}
    v_mov_b64 v[200:201], -1
    v_mov_b64 v[202:203], -1
    s_and_b32 s62, s101, 1
    s_lshr_b32 s63, s101, 1
    v_and_b32 v1, 15, {L}
    v_lshl_add_u32 v1, s62, 4, v1
    v_lshrrev_b32 v2, 4, {L}
    v_xor_b32 v3, v2, v15
    v_lshlrev_b32 v3, 4, v3
    v_lshl_or_b32 v3, v1, 8, v3
    s_lshl_b32 s62, s63, 7
    s_add_u32 s62, s62, {W_ + 8192}
    v_add_u32 v183, s62, v3
    v_xor_b32 v185, 64, v183
    ; v252/v254 = (g4>>1)*8192 + 16*(row + 32*(g4&1)) (+16384)
    v_and_b32 v3, 1, v2
    v_lshl_add_u32 v252, v3, 5, v1
    v_lshlrev_b32 v252, 4, v252
    v_lshl_add_u32 v252, v14, 13, v252
    v_add_u32 v254, 0x4000, v252
    v_lshlrev_b32 v193, 10, v1
    v_lshl_or_b32 v193, v3, 5, v193
    v_lshl_or_b32 v193, v14, 4, v193
    s_lshl_b32 s62, s63, 6
    v_add_u32 v193, s62, v193
    ; v253 = W + 2048*(4*(g4>>1)+3) + (4h + r')*128 + 16*((4ch + (c'>>1)) ^ 4*(r'>>1)) + 8*(c'&1)
    v_bfe_u32 v1, {L}, 2, 2
    v_lshl_or_b32 v1, v3, 2, v1
    v_lshlrev_b32 v1, 7, v1
    v_lshl_or_b32 v1, v14, 13, v1
    v_bfe_u32 v2, {L}, 3, 1
    v_xor_b32 v2, s63, v2
    v_lshl_or_b32 v1, v2, 6, v1
    v_and_b32 v2, 3, {L}
    v_lshl_or_b32 v1, v2, 3, v1
    v_add_u32 v253, {W_ + 6144}, v1
    v_lshlrev_b32 v196, 7, {L}
    s_mov_b32 s12, -1
    s_mov_b32 s13, 0xffffff
    s_mul_i32 s62, s101, {SLOT}
    s_add_u32 s63, s62, {OACC}
    s_sub_u32 s62, s62, {2*SLOT - X_}
    s_cmp_lt_u32 s101, 2
    s_cselect_b32 s62, s63, s62
    v_lshlrev_b32 v181, 2, {L}
    v_add_u32 v181, s62, v181
    v_add_u32 v186, s62, v186
    v_xor_b32 v187, 32, v186
    v_xor_b32 v188, 64, v186
    v_xor_b32 v189, 0x60, v186
    s_add_u32 s62, s62, {9216 + 252}
    v_lshl_add_u32 v176, v2, 8, s62
    s_cmp_eq_u32 s101, 3
    s_cbranch_scc0 L_gsx
    v_bfe_u32 v2, {L}, 2, 2
    v_lshl_or_b32 v2, v14, 3, v2
    v_lshlrev_b32 v2, 6, v2
    v_bfe_u32 v3, {L}, 4, 1
    v_lshl_or_b32 v2, v3, 5, v2
    v_and_b32 v3, 3, {L}
    v_lshl_or_b32 v2, v3, 3, v2
    v_add_u32 v144, s49, v2
    v_lshlrev_b32 v145, 4, v14
    v_add_u32 v145, {M_GATE}, v145
    v_lshrrev_b32 v1, 2, {L}
    v_mul_u32_u24 v148, 3584, v1
    v_lshl_add_u32 v148, v3, 4, v148
    L_gsx:
    s_waitcnt lgkmcnt(0)
    s_setpc_b64 s[14:15]
    """)
    a("L_fin:")
    fin(64, "f", False)
    a("s_setpc_b64 s[14:15]\nL_gend:")
    if diag: a(f"s_add_u32 {sW}, {sW}, 4")
    diag_out("g")
    a("L_end:\ns_endpgm")

    hdr = open(os.path.join(os.path.dirname(os.path.abspath(__file__)), "..", "cdna_kernels", NAME + ".s.ref")).read().split("\n")
    i0 = next(i for i, l in enumerate(hdr) if l.startswith("; Override"))
    head = "\n".join(hdr[:i0]) + f"\n; @launch grid=(256,1,1) block=(512,1,1) lds={LDS_BYTES}\n"
    return head + f""".amdgcn_target "amdgcn-amd-amdhsa--gfx950"
.text
.globl {NAME}_kernel
.p2align 8
.type {NAME}_kernel,@function
{NAME}_kernel:
{a.text()}.section .rodata,"a"
.p2align 6
.amdhsa_kernel {NAME}_kernel
  .amdhsa_next_free_vgpr 256
  .amdhsa_next_free_sgpr 102
  .amdhsa_accum_offset 256
  .amdhsa_group_segment_fixed_size 0
  .amdhsa_kernarg_size 112
  .amdhsa_user_sgpr_count 2
  .amdhsa_user_sgpr_kernarg_segment_ptr 1
  .amdhsa_system_sgpr_workgroup_id_x 1
.end_amdhsa_kernel
"""

if __name__ == "__main__":
    out = sys.argv[1] if len(sys.argv) > 1 else os.path.join(os.path.dirname(os.path.abspath(__file__)), "..", "cdna_kernels", NAME + ".s")
    opts = dict(x.split("=") if "=" in x else (x, 1) for x in sys.argv[2:])
    open(out, "w").write(gen(diag=bool(opts.pop("diag", 0)), opts=opts))
```

```python
import sys, os
NAME = "gated_mix__grouped_kv_mqa__dense_activation_squared_relu__prompt"

class Asm:
    def __init__(self): self.l = []
    def __call__(self, s):
        for x in s.strip("\n").split("\n"):
            x = x.strip()
            if not x: continue
            self.l.append(x if x.endswith(":") else "    " + x)
    def text(self): return "\n".join(self.l) + "\n"

def vr(a, n): return f"v[{a}:{a+n-1}]"

X_ = 0; W_ = 65536; S_ = 131072
OACC = S_; SLOT = 10240
QF = S_ + 2*SLOT
MISC = QF + 8192
M_G = MISC
M_QMAX = MISC + 256
M_KMAX = MISC + 260
M_CNTA = MISC + 264
M_CNTG = MISC + 272
M_CNTS = MISC + 320
M_M = MISC + 1024
M_GATE = MISC + 2048
M_TAG = MISC + 3072
M_Q0 = MISC + 3076
M_GO = MISC + 3080
M_B1 = MISC + 3136
M_B2 = MISC + 3584
LDS_BYTES = 163840
WS_EPOCH = 0
WS_KVF = 0x1000
WS_HF = 0x10000
WS_OF = 0x40000
WS_K = 0x80000
WS_V = 0x90000
WS_O = 0x100000
WS_H = 0x400000
WS_DIAG = 0xC00000
WS_SIZE = 0x1000000
SX, SWQ, SWKV, SWO, SW1, SB1, SW2, SB2, SGT, SOUT, SWS, SH = 4, 8, 12, 16, 20, 24, 28, 32, 36, 40, 44, 56
def srd(b): return f"s[{b}:{b+3}]"
sW, sGRP, sJ, sTAG, sC0 = "s50", "s51", "s52", "s53", "s3"
QSCALE = 0x3eb8aa3b
LOG2E = 0x3fb8aa3b
SPIN_MAX = 200000

def gen(diag=False, opts=None):
    o = dict(opts or {})
    a = Asm()
    nstamp = [0]
    rt = o.get("rt") or o.get("enc")
    def hstamp(i):
        if diag and o.get("hd"): a(f"s_memtime s[{68+2*i}:{69+2*i}]")
    def stamp(i):
        if diag and not (o.get("hd") and i > 8):
            a(f"{'s_memrealtime' if rt else 's_memtime'} s[{68+2*i}:{69+2*i}]")
    def diag_out(lbl):
        if diag and o.get("enc"):
            role, st = o["enc"][0], int(o["enc"][1:])
            wv = {"a": int(o.get("wv", 0)), "g": 7}[role]
            if lbl == role:
                a(f"s_cmp_lg_u32 s2, 0\ns_cbranch_scc1 L_encx{lbl}\ns_cmp_lg_u32 {sW}, {wv}\ns_cbranch_scc1 L_encx{lbl}\ns_waitcnt lgkmcnt(0)")
                if st < 16: a(f"s_sub_u32 s60, s{68+2*st}, s66\ns_lshl_b32 s60, s60, 4")
                else: a("s_mov_b32 s60, 0")
                a(f"s_add_u32 s60, s60, 5000\nL_enc{lbl}:\ns_sleep 4\ns_memrealtime s[62:63]\ns_waitcnt lgkmcnt(0)\ns_sub_u32 s62, s62, s66\ns_cmp_lt_u32 s62, s60\ns_cbranch_scc1 L_enc{lbl}\nL_encx{lbl}:")
        elif diag and rt:
            idx = {"a": [(1, 1), (2, 2), (4, 3), (5, 4), (6, 5), (7, 6), (8, 7)], "s": [], "g": [(2, 8), (3, 9), (4, 10), (6, 11), (7, 12), (15, 13), (9, 14), (11, 15)]}[lbl]
            a("s_load_dwordx2 s[60:61], s[0:1], 96\ns_mov_b32 s62, 256\ns_mov_b32 s63, 0x00020000\ns_waitcnt vmcnt(0) lgkmcnt(0)\ns_mov_b64 exec, 1")
            a("s_not_b32 s66, s66\nv_mov_b32 v1, s66\nbuffer_atomic_umax v1, off, s[60:63], 0\ns_nop 1")
            for st, d in idx:
                a(f"v_mov_b32 v1, s{68+2*st}\nbuffer_atomic_umax v1, off, s[60:63], 0 offset:{4*d}\ns_nop 1")
            a("s_waitcnt vmcnt(0)")
        elif diag:
            a(f"s_lshl_b32 s60, s2, 3\ns_add_u32 s60, s60, {sW}\ns_lshl_b32 s60, s60, 7\ns_add_u32 s60, s60, {WS_DIAG}")
            a("s_waitcnt vmcnt(0) lgkmcnt(0)\ns_mov_b64 exec, 1")
            for i in range(17):
                a(f"v_mov_b32 v1, s{66+2*i}\nbuffer_store_dword v1, off, {srd(SWS)}, s60 offset:{4*i}\ns_nop 1")
            a("s_waitcnt vmcnt(0)")

    L = "v255"
    if diag: a("s_memrealtime s[66:67]\ns_memtime s[68:69]")
    a(f"""
    s_cmp_ge_u32 s2, 256
    s_cbranch_scc1 L_end
    s_load_dwordx4 s[{SWKV}:{SWKV+3}], s[0:1], 16
    s_load_dwordx2 s[{SX}:{SX+1}], s[0:1], 0
    s_load_dwordx2 s[{SWQ}:{SWQ+1}], s[0:1], 8
    s_load_dwordx2 s[{SWS}:{SWS+1}], s[0:1], 104
    s_getpc_b64 s[60:61]
    s_movk_i32 s62, {int(o.get('pf0', 6144))}
    s_mov_b32 s63, 0x00020000
    v_lshlrev_b32 v2, 7, v0
    v_lshrrev_b32 v1, 6, v0
    buffer_load_dword v185, v2, s[60:63], 0 offen
    v_and_b32 v255, 63, v0
    v_readfirstlane_b32 {sW}, v1
    s_and_b32 s54, s2, 7
    s_bfe_u32 {sJ}, s2, 0x30003
    s_lshr_b32 s55, s2, 6
    s_lshl2_add_u32 {sGRP}, s54, s55
    s_mov_b32 s{SX+2}, 2097152
    s_mov_b32 s{SX+3}, s63
    s_add_u32 {sC0}, s54, {sJ}
    s_and_b32 {sC0}, {sC0}, 3
    s_and_b32 s60, {sJ}, 3
    v_lshrrev_b32 v3, 4, {L}
    v_and_b32 v2, 15, {L}
    v_xor_b32 v12, v3, v2
    v_lshlrev_b32 v12, 4, v12
    v_lshl_or_b32 v4, v3, 10, v12
    v_xor_b32 v5, 64, v4
    v_add_u32 v5, 3072, v5
    v_xor_b32 v6, 0x80, v4
    v_add_u32 v6, 6144, v6
    v_xor_b32 v7, 0xc0, v4
    v_add_u32 v7, 9216, v7
    v_lshlrev_b32 v1, 4, {L}
    """)
    if diag:
        for i in range(2, 17): a(f"s_mov_b32 s{66+2*i}, 0")
    a(f"""
    s_cmp_eq_u32 {sW}, 7
    s_cbranch_scc0 L_nKV
    """)
    a(f"""
    s_setprio 3
    s_lshl2_add_u32 s64, {sGRP}, s60
    s_lshl_b32 s62, s64, 14
    s_lshl_b32 s65, s60, 12
    s_mov_b32 s61, {sC0}
    s_cmp_lt_u32 {sJ}, 4
    s_waitcnt lgkmcnt(0)
    s_cselect_b32 s{SWKV}, s{SWKV}, s{SWKV+2}
    s_cselect_b32 s{SWKV+1}, s{SWKV+1}, s{SWKV+3}
    s_movk_i32 s{SWKV+2}, 16384
    s_mov_b32 s{SWKV+3}, 0x00020000
    """)
    hstamp(9)
    for i in range(4):
        a(f"s_mov_b32 m0, {OACC + 4096*i}\ns_lshl_b32 s55, s61, 12")
        for q in range(4): a(f"buffer_load_dwordx4 v1, {srd(SWKV)}, s55 offen offset:{1024*q} lds")
        a(f"s_lshl_b32 s55, s61, 8\ns_add_u32 m0, s65, {X_ + 16384*i}\ns_add_u32 s55, s55, s62")
        for q in range(4): a(f"buffer_load_dwordx4 v{4+q}, {srd(SX)}, s55 offen offset:{1024*q} lds")
        if i < 3: a("s_add_u32 s61, s61, 1\ns_and_b32 s61, s61, 3")
    hstamp(11)
    a(f"""
    s_barrier
    s_load_dword {sTAG}, s[{SWS}:{SWS+1}], 0
    s_lshl3_add_u32 s57, {sGRP}, {sJ}
    s_lshl_b32 s57, s57, 5
    s_add_u32 s57, s57, {WS_KVF}
    s_load_dword s56, s[{SWS}:{SWS+1}], s57
    s_mov_b32 s{SWS+2}, {WS_SIZE}
    s_mov_b32 s{SWS+3}, 0x00020000
    v_lshlrev_b32 v5, 8, v3
    v_lshl_or_b32 v5, v2, 3, v5
    v_add_u32 v5, {OACC}, v5
    v_lshl_or_b32 v12, v2, 8, v12
    v_add_u32 v12, s65, v12
    v_xor_b32 v13, 64, v12
    v_xor_b32 v14, 0x80, v12
    v_xor_b32 v15, 0xc0, v12
    v_and_b32 v6, 1, v3
    v_lshlrev_b32 v6, 9, v6
    v_lshl_or_b32 v6, v2, 4, v6
    v_lshrrev_b32 v7, 1, v3
    v_lshl_or_b32 v6, v7, 3, v6
    v_mov_b32 v10, {M_TAG}
    s_lshr_b32 s54, s64, 1
    s_lshl_b32 s54, s54, 10
    s_and_b32 s55, s64, 1
    s_lshl_b32 s55, s55, 8
    s_add_u32 s54, s54, s55
    s_cmp_lt_u32 {sJ}, 4
    s_cselect_b32 s55, 0, {WS_V - WS_K}
    s_cselect_b32 s63, -1, 0
    s_add_u32 s54, s54, s55
    s_add_u32 s54, s54, {WS_K}
    s_cmp_lt_u32 {sJ}, 4
    """)
    def kvreads(s):
        if s & 3 == 0: a(f"s_waitcnt vmcnt({24 - 2*s})")
        if s == 0: stamp(1)
        a(f"ds_read_b64_tr_b16 {vr(128+4*s,2)}, v5 offset:{1024*s}\nds_read_b64_tr_b16 {vr(130+4*s,2)}, v5 offset:{1024*s+128}")
        a(f"ds_read_b128 {vr(64+4*s,4)}, v{12+(s&3)} offset:{16384*(s>>2)}")
    for s in range(4): kvreads(s)
    a("s_cbranch_scc0 L_KVv")
    for swap in range(2):
        for s in range(16):
            if s + 4 < 16: kvreads(s+4)
            a(f"s_waitcnt lgkmcnt({min(12, 3*(15-s))})")
            A_, B_ = (64+4*s, 128+4*s) if swap else (128+4*s, 64+4*s)
            a(f"v_mfma_f32_16x16x32_bf16 v[192:195], {vr(A_,4)}, {vr(B_,4)}, {'0' if s == 0 else 'v[192:195]'}")
        if not swap: a("s_branch L_KVd\nL_KVv:")
    a(f"""
    L_KVd:
    s_mul_i32 {sTAG}, {sTAG}, 0x9E3779B1
    s_add_u32 {sTAG}, {sTAG}, 0x7F4A7C15
    v_mov_b32 v11, {sTAG}
    ds_write_b32 v10, v11
    s_nop 3
    """)
    hstamp(12)
    a(f"""
    v_cvt_pk_bf16_f32 v196, v192, v193
    v_cvt_pk_bf16_f32 v197, v194, v195
    buffer_store_dwordx2 v[196:197], v6, {srd(SWS)}, s54 offen sc1
    v_mul_f32 v8, v192, v192
    v_fmac_f32 v8, v193, v193
    v_fmac_f32 v8, v194, v194
    v_fmac_f32 v8, v195, v195
    v_mov_b32 v9, v8
    s_waitcnt lgkmcnt(0)
    """)
    hstamp(13)
    a(f"""
    s_barrier
    v_permlane32_swap_b32 v8, v9
    v_add_f32 v8, v8, v9
    v_mov_b32 v9, v8
    s_nop 1
    v_permlane16_swap_b32 v8, v9
    v_add_f32 v8, v8, v9
    s_nop 1
    v_max_u32_dpp v8, v8, v8 row_ror:8 row_mask:0xf bank_mask:0xf
    s_nop 1
    v_max_u32_dpp v8, v8, v8 row_ror:4 row_mask:0xf bank_mask:0xf
    s_nop 1
    v_max_u32_dpp v8, v8, v8 row_ror:2 row_mask:0xf bank_mask:0xf
    s_nop 1
    v_max_u32_dpp v9, v8, v8 row_ror:1 row_mask:0xf bank_mask:0xf
    s_getreg_b32 s61, hwreg(HW_REG_XCC_ID, 0, 4)
    v_mov_b32 v8, {sTAG}
    v_and_b32 v9, s63, v9
    v_mov_b32 v10, {sTAG}
    v_mov_b32 v11, s61
    {"s_barrier" if o.get("b2") else ""}
    s_mov_b64 exec, 1
    s_waitcnt vmcnt(0)
    buffer_store_dwordx4 v[8:11], off, {srd(SWS)}, s57 sc1
    s_mov_b64 exec, -1
    s_setprio 0
    """)
    stamp(2)
    a(f"""
    {"" if o.get("b2") else "s_barrier"}
    s_barrier
    s_barrier
    s_barrier
    s_call_b64 s[14:15], L_gsetup
    s_branch L_Gjoin
    """)

    a(f"""
    L_nKV:
    s_load_dwordx2 s[{SW2}:{SW2+1}], s[0:1], 48
    s_mov_b32 s{SWS+2}, {WS_SIZE}
    s_mov_b32 s{SWS+3}, s63
    s_cmp_lt_u32 {sW}, 4
    s_cbranch_scc1 L_A1
    s_cmp_eq_u32 {sW}, 5
    s_cbranch_scc1 L_G5
    s_cmp_eq_u32 {sW}, 6
    s_cbranch_scc1 L_G6
    """)
    def loader(n, chunk):
        a("s_waitcnt lgkmcnt(0)\ns_barrier")
        pre = int(o.get("lpre", 2))
        for i in range(pre): chunk(i)
        a(f"s_waitcnt vmcnt({(pre-1)*n})\ns_barrier")
        for i in range(pre, 4): chunk(i)
        a(f"s_waitcnt vmcnt({2*n})\ns_barrier\ns_waitcnt vmcnt({n})\ns_barrier\ns_waitcnt vmcnt(0)\ns_barrier\ns_barrier")
        a("s_call_b64 s[14:15], L_gsetup\ns_branch L_Gjoin")
    a(f"s_lshl_b32 s54, {sGRP}, 16")
    for r in range(3): a(f"s_add_u32 s{61+r}, s60, {r+1}\ns_and_b32 s{61+r}, s{61+r}, 3\ns_lshl_b32 s{16+r}, s{61+r}, 14\ns_add_u32 s{16+r}, s{16+r}, s54\ns_lshl_b32 s{61+r}, s{61+r}, 12")
    def xchunk(i):
        a(f"s_add_u32 s55, {sC0}, {i}\ns_and_b32 s55, s55, 3\ns_lshl_b32 s55, s55, 8")
        for r in range(3):
            a(f"s_add_u32 m0, s{61+r}, {X_ + 16384*i}\ns_add_u32 s60, s{16+r}, s55")
            for q in range(4): a(f"buffer_load_dwordx4 v{4+q}, {srd(SX)}, s60 offen offset:{1024*q} lds")
    loader(12, xchunk)
    a(f"""
    L_G5:
    s_mov_b32 s{SWQ+2}, 524288
    s_mov_b32 s{SWQ+3}, s63
    v_lshrrev_b32 v1, 3, {L}
    v_and_b32 v2, 7, {L}
    v_bfe_u32 v3, {L}, 4, 1
    v_lshlrev_b32 v3, 2, v3
    v_xor_b32 v2, v3, v2
    v_lshlrev_b32 v2, 4, v2
    v_lshl_or_b32 v8, v1, 10, v2
    v_add_u32 v9, 7168, v8
    v_add_u32 v10, 14336, v8
    v_add_u32 v11, 21504, v8
    s_lshl_b32 s64, {sJ}, 7
    """)
    def wchunk(i):
        a(f"s_add_u32 s55, {sC0}, {i}\ns_and_b32 s55, s55, 3\ns_lshl_b32 s55, s55, 17\ns_add_u32 s55, s55, s64")
        for r in range(4):
            a(f"s_mov_b32 m0, {W_ + 16384*i + 4096*r}\n" + ("s_add_u32 s55, s55, 32768" if r else "s_nop 0"))
            for q in range(4): a(f"buffer_load_dwordx4 v{8+q}, {srd(SWQ)}, s55 offen offset:{1024*q} lds")
    loader(16, wchunk)
    a(f"""
    L_G6:
    s_load_dwordx2 s[{SB1}:{SB1+1}], s[0:1], 56
    s_load_dwordx2 s[{SB2}:{SB2+1}], s[0:1], 72
    s_load_dwordx2 s[{SGT}:{SGT+1}], s[0:1], 80
    s_lshl_b32 s60, {sJ}, 7
    s_waitcnt lgkmcnt(0)
    s_barrier
    s_mul_i32 s61, s2, 7168
    s_add_u32 s61, s61, 3584
    s_add_u32 s64, s{SW2}, s61
    s_addc_u32 s65, s{SW2+1}, 0
    s_mov_b32 s{SB1+2}, 3584
    s_mov_b32 s{SB1+3}, 0x00020000
    s_mov_b32 s{SB2+2}, 1024
    s_mov_b32 s{SB2+3}, 0x00020000
    s_mov_b32 s{SGT+2}, 1024
    s_mov_b32 s{SGT+3}, 0x00020000
    v_mov_b32 v4, 0
    v_mov_b32 v5, 0
    v_mov_b32 v6, 0
    v_mov_b32 v7, 0
    v_lshlrev_b32 v16, 4, {L}
    v_add_u32 v2, {MISC}, v16
    v_mov_b32 v8, 0xff800000
    v_mov_b32 v9, v8
    v_mov_b32 v10, v8
    v_mov_b32 v11, v8
    ds_write_b128 v2, v[4:7]
    ds_write_b128 v2, v[8:11] offset:1024
    s_lshl_b32 s61, {sC0}, 4
    v_add_u32 v1, s61, {L}
    v_and_b32 v1, 63, v1
    v_lshlrev_b32 v1, 4, v1
    s_mul_i32 s61, {sJ}, 448
    s_mov_b32 m0, {M_GATE}
    s_waitcnt lgkmcnt(0)
    """)
    def g6touch(i0, i1):
        if not o.get("nopf"):
            for i in range(i0, i1): a(f"s_load_dword s56, s[64:65], {64*i}")
    g6touch(0, 14)
    a(f"""
    buffer_load_dwordx4 v1, {srd(SGT)}, 0 offen lds
    s_mov_b32 m0, {M_B1}
    s_mov_b64 exec, 0xfffffff
    buffer_load_dwordx4 v16, {srd(SB1)}, s61 offen lds
    s_mov_b32 m0, {M_B2}
    s_mov_b64 exec, 0xff
    buffer_load_dwordx4 v16, {srd(SB2)}, s60 offen lds
    s_mov_b64 exec, -1
    """)
    g6touch(14, 28)
    a("s_barrier")
    g6touch(28, 42)
    a("s_barrier")
    g6touch(42, 56)
    a(f"""
    s_barrier
    s_waitcnt vmcnt(0)
    s_barrier
    s_barrier
    s_call_b64 s[14:15], L_gsetup
    s_branch L_Gjoin
    L_A1:
    s_waitcnt lgkmcnt(0)
    s_barrier
    """)
    def codetouch(lbl):
        a(f"""
        s_getpc_b64 s[16:17]
        {lbl}:
        s_mov_b32 s18, L_end - {lbl}
        s_mov_b32 s19, 0x00020000
        s_lshr_b32 s57, s2, 3
        s_lshl2_add_u32 s57, s57, {sW}
        s_mul_i32 s57, s57, 384
        """)
        for i in range(6): a(f"s_buffer_load_dword s56, s[16:19], s57 offset:{64*i}")
    codetouch("L_pc")
    def w1touch(first, n):
        if o.get("nopf"): return
        a(f"s_mul_i32 s60, s2, 7168\ns_add_u32 s60, s60, {first}\ns_add_u32 s{SW2}, s{SW2}, s60\ns_addc_u32 s{SW2+1}, s{SW2+1}, 0")
        for i in range(n): a(f"s_load_dword s56, s[{SW2}:{SW2+1}], {64*i}")
    stamp(1)
    a(f"s_mul_i32 s61, {sW}, 896")
    w1touch("s61", 14)
    a(f"""
    s_lshr_b32 s60, {sW}, 1
    s_lshl_b32 s60, s60, 13
    v_and_b32 v1, 31, {L}
    v_lshrrev_b32 v2, 5, {L}
    v_and_b32 v3, 15, {L}
    v_xor_b32 v3, v2, v3
    v_lshlrev_b32 v3, 4, v3
    v_lshl_or_b32 v168, v1, 8, v3
    v_add_u32 v168, s60, v168
    s_mov_b64 s[12:13], s[{SWS}:{SWS+1}]
    s_mov_b32 s15, 0x00020000
    """)
    XA = [168, 169, 170, 171, 176, 177, 178, 179]
    for k in range(1, 8): a(f"v_xor_b32 v{XA[k]}, {32*k}, v168")
    def tr_addr(dst, hmul, t0=1, t1=2):
        a(f"""
        v_lshrrev_b32 v{t0}, 5, {L}
        v_bfe_u32 v{t1}, {L}, 2, 2
        v_mad_u32_u24 v{t0}, v{t0}, {hmul}, v{t1}
        v_lshlrev_b32 v{t0}, 7, v{t0}
        v_bfe_u32 v{t1}, {L}, 3, 1
        v_lshl_or_b32 v{t0}, v{t1}, 6, v{t0}
        v_bfe_u32 v{t1}, {L}, 4, 1
        v_lshl_or_b32 v{t0}, v{t1}, 5, v{t0}
        v_and_b32 v{t1}, 3, {L}
        v_lshl_or_b32 v{dst}, v{t1}, 3, v{t0}
        """)
    tr_addr(184, 8)
    a(f"""
    s_and_b32 s60, {sW}, 1
    s_lshl_b32 s60, s60, 6
    v_xor_b32 v184, s60, v184
    v_add_u32 v184, {W_}, v184
    v_and_b32 v1, 11, {L}
    v_cmp_eq_u32 vcc, 0, v1
    v_mov_b32 v2, 0x3f803f80
    v_lshlrev_b32 v250, 4, {L}
    v_cndmask_b32 v68, 0, v2, vcc
    v_mov_b32 v251, {M_QMAX}
    v_mov_b32 v69, v68
    v_lshlrev_b32 v247, 5, {L}
    s_lshl_b32 s60, {sW}, 8
    s_add_u32 s60, s60, {OACC}
    v_lshlrev_b32 v244, 2, {L}
    v_add_u32 v244, s60, v244
    v_add_u32 v246, {QF}, v250
    v_add_u32 v252, {WS_V - WS_K}, v250
    s_lshr_b32 s60, {sW}, 1
    s_lshl_b32 s60, s60, 12
    s_and_b32 s61, {sW}, 1
    s_lshl_b32 s61, s61, 11
    s_add_u32 s60, s60, s61
    v_add_u32 v220, s60, v246
    s_lshl_b32 s60, {sW}, 11
    s_add_u32 s60, s60, {WS_KVF}
    s_lshl_b32 s54, {sW}, 14
    s_add_u32 s54, s54, {WS_K}
    s_and_b32 s55, {sJ}, 3
    s_lshl_b32 s55, s55, 12
    s_mov_b32 s62, {QSCALE}
    s_mov_b32 s63, 0
    s_add_u32 s8, s54, s55
    s_add_u32 s55, s55, 4096
    s_and_b32 s55, s55, 0x3fff
    s_add_u32 s9, s54, s55
    s_add_u32 s55, s55, 4096
    s_and_b32 s55, s55, 0x3fff
    s_add_u32 s10, s54, s55
    s_add_u32 s55, s55, 4096
    s_and_b32 s55, s55, 0x3fff
    s_add_u32 s11, s54, s55
    """)
    for t in range(16):
        for r in (68 + 8*t, 70 + 8*t):
            if r != 68: a(f"v_mov_b64 {vr(r,2)}, v[68:69]")
    def qreads(ks):
        b = 192 + 8*(ks % 3)
        a(f"ds_read_b64_tr_b16 {vr(b,2)}, v184 offset:{2048*ks}")
        a(f"ds_read_b64_tr_b16 {vr(b+2,2)}, v184 offset:{2048*ks+512}")
        a(f"ds_read_b128 {vr(b+4,4)}, v{XA[ks&7]} offset:{16384*(ks>>3)}")
    poll = f"buffer_load_dwordx2 v[248:249], v247, {srd(SWS)}, s60 offen sc1"
    D = int(o.get("D", 5))
    early = bool(o.get("early"))
    def kvload(t):
        return [f"buffer_load_dwordx4 {vr(4*t,4)}, v250, s[12:15], s{8+(t>>2)} offen offset:{1024*(t&3)} sc1",
                f"buffer_load_dwordx4 {vr(64+8*t,4)}, v252, s[12:15], s{8+(t>>2)} offen offset:{1024*(t&3)} sc1"]
    first = [x for t in range(D) for x in kvload(t)]
    for c in range(4):
        a(("s_waitcnt vmcnt(0) lgkmcnt(0)\n" if c == 0 else "") + "s_barrier")
        if c == 0: stamp(2)
        if c > 0: hstamp(12 + c)
        if c == 1: a(f"v_mov_b32 v253, {M_TAG}\nds_read_b32 v253, v253")
        if c == (2 if early else 3): a(poll)
        qreads(8*c); qreads(8*c+1)
        if c == 3 and early:
            a(f"s_waitcnt vmcnt(0)\nv_cmp_ne_u32 vcc, {sTAG}, v248\ns_nop 3\ns_cmp_eq_u64 vcc, 0\ns_cselect_b32 s14, {WS_SIZE}, 0")
        for k in range(8):
            ks = 8*c + k
            if k < 6:
                qreads(ks+2); a("s_waitcnt lgkmcnt(6)")
            else:
                a(f"s_waitcnt lgkmcnt({3*(7-k)})")
            if c == 3 and k == 7: a("s_barrier")
            b = 192 + 8*(ks % 3)
            a(f"v_mfma_f32_32x32x16_bf16 v[224:239], {vr(b,4)}, {vr(b+4,4)}, {'0' if ks == 0 else 'v[224:239]'}")
            if c == 3 and early: a("\n".join(first[k:k+1] if k < 7 else first[7:]))
        if c == 1: a(f"v_readfirstlane_b32 {sTAG}, v253")
    stamp(3)
    a(f"""
    s_setprio 2
    {"s_cmp_lg_u32 s14, 0" if early else ""}
    {"s_cbranch_scc1 L_kvgo" if early else "s_branch L_kvchk"}
    L_kvpoll:
    {poll}
    s_add_u32 s63, s63, 1
    s_cmp_gt_u32 s63, {SPIN_MAX}
    s_cbranch_scc1 L_kvok
    L_kvchk:
    s_waitcnt vmcnt(0)
    v_cmp_ne_u32 vcc, {sTAG}, v248
    s_cbranch_vccnz L_kvpoll
    L_kvok:
    s_mov_b32 s14, {WS_SIZE}
    """)
    a("\n".join(first))
    a("L_kvgo:\ns_nop 6")
    stamp(5)
    for r in range(16): a(f"v_mul_f32 v{224+r}, s62, v{224+r}")
    for r in range(8): a(f"v_cvt_pk_bf16_f32 v{192+r}, v{224+2*r}, v{225+2*r}")
    a(f"v_mov_b32 v245, {sTAG}\nds_write_b128 v220, v[192:195]\nds_write_b128 v220, v[196:199] offset:1024")
    a(f"s_cmp_lg_u32 {sW}, 0\ns_cbranch_scc1 L_q0s\nds_write_b32 v251, v245 offset:{M_Q0 - M_QMAX}\nL_q0s:")
    stamp(4)
    a("v_mul_f32 v208, v224, v224\nv_mul_f32 v209, v232, v232")
    for r in range(1, 8): a(f"v_fmac_f32 v208, v{224+r}, v{224+r}\nv_fmac_f32 v209, v{232+r}, v{232+r}")
    a(f"""
    s_mov_b32 s63, 0
    L_q0w:
    ds_read_b32 v210, v251 offset:{M_Q0 - M_QMAX}
    ds_read_b128 v[240:243], v246
    s_add_u32 s63, s63, 1
    s_cmp_gt_u32 s63, {SPIN_MAX}
    s_cbranch_scc1 L_q0x
    s_waitcnt lgkmcnt(0)
    v_cmp_ne_u32 vcc, {sTAG}, v210
    s_cbranch_vccnz L_q0w
    L_q0x:
    v_permlane32_swap_b32 v208, v209
    v_max_u32_dpp v249, v249, v249 row_ror:8 row_mask:0xf bank_mask:0xf
    v_add_f32 v254, v208, v209
    v_mov_b32 v253, 1
    v_max_u32_dpp v249, v249, v249 row_ror:4 row_mask:0xf bank_mask:0xf
    v_max_u32_dpp v254, v254, v254 row_ror:8 row_mask:0xf bank_mask:0xf
    s_mov_b32 s64, 0x00010001
    v_max_u32_dpp v249, v249, v249 row_ror:2 row_mask:0xf bank_mask:0xf
    v_max_u32_dpp v254, v254, v254 row_ror:4 row_mask:0xf bank_mask:0xf
    s_mov_b32 s65, 0x00010001
    v_max_u32_dpp v249, v249, v249 row_ror:1 row_mask:0xf bank_mask:0xf
    v_max_u32_dpp v254, v254, v254 row_ror:2 row_mask:0xf bank_mask:0xf
    v_add_u32 v246, 1024, v246
    s_mov_b32 s62, 8
    v_max_u32_dpp v254, v254, v254 row_ror:1 row_mask:0xf bank_mask:0xf
    s_mov_b64 exec, s[64:65]
    ds_max_u32 v251, v254
    ds_max_u32 v251, v249 offset:4
    ds_add_u32 v251, v253 offset:8
    s_mov_b64 exec, -1
    s_mov_b32 s64, {0 if o.get('noG') else 0x24}
    s_waitcnt vmcnt({2*D-1})
    v_mfma_f32_32x32x16_bf16 v[192:207], v[0:3], v[240:243], 0
    s_nop 4
    """)
    stamp(6)
    if diag: a("s_memrealtime s[86:87]")
    flush = [f"ds_write2st64_b32 v244, v{224+2*r}, v{225+2*r} offset0:{8*r} offset1:{8*r+4}" for r in range(4)] + ["ds_write2st64_b32 v244, v232, v245 offset0:32 offset1:36", f"v_add_u32 v244, {0 if o.get('noG') else SLOT}, v244"]
    def tile(t, peel=False):
        first = peel and t == 0
        S = [192, 208]
        cur = S[t & 1]; nxt = S[(t+1) & 1]
        Kn = 4*((t+1) % 16); Vp = 64 + 8*((t-1) % 16) + 4; Vc = 64 + 8*t
        m0 = f"v_mfma_f32_32x32x16_bf16 v[224:239], {vr(Vp,4)}, {vr(nxt+4,4)}, v[224:239]"
        m1 = f"v_mfma_f32_32x32x16_bf16 {vr(nxt,16)}, {vr(Kn,4)}, v[240:243], 0"
        m2 = f"v_mfma_f32_32x32x16_bf16 v[224:239], {vr(Vc,4)}, {vr(cur,4)}, {'0' if t == 0 else 'v[224:239]'}"
        e = lambda i: f"v_exp_f32 v{cur+i}, v{cur+i}"
        c = lambda i: f"v_cvt_pk_bf16_f32 v{cur+i}, v{cur+2*i}, v{cur+2*i+1}"
        cp7 = f"v_cvt_pk_bf16_f32 v{nxt+7}, v{nxt+14}, v{nxt+15}"
        seq = []
        if peel:
            if t + D < 16: seq += kvload(t + D)
            if t == int(o.get("go", 0)): seq.append(f"ds_write_b32 v251, v245 offset:{M_GO - M_QMAX}")
            seq.append(f"s_waitcnt vmcnt({max(2*min(t+D+1, 16) - (2*t+3), 0)})")
            seq += [f"v_permlane16_swap_b32 v{Vc+r}, v{Vc+4+r}" for r in range(4)]
        qn = ["ds_read_b128 v[240:243], v246", "v_add_u32 v246, 1024, v246"]
        if o.get("even") or (t == 0 and not first):
            seq += [e(0)] + ([] if first else [cp7]) + [e(1), e(2)] + ([] if first else [m0]) + [c(0), e(3), e(4), c(1), e(5), e(6)]
            if t == 15: seq.append("s_waitcnt lgkmcnt(0)")
            seq.append(m1)
            if t == 14: seq += qn
            seq += [c(2), e(7), e(8), c(3), e(9), e(10)]
            if t == 0 and not first: seq += (flush if not o.get("noflush") else [])
            seq += [c(4), m2, e(11), e(12), c(5), e(13), e(14), c(6)]
        else:
            seq += [e(0)] + ([] if first else [cp7]) + [e(1), e(2), e(3)]
            if t == 15: seq.append("s_waitcnt lgkmcnt(0)")
            seq += [e(4), e(5)] + ([] if first else [m0]) + [e(6), e(7), c(0), c(1), m1, c(2), c(3), e(8), e(9), m2]
            if t == 14: seq += qn
            seq += [e(10), c(4), e(11), e(12), c(5), e(13), e(14), c(6)]
        if t == 15: seq += ["s_sub_u32 s62, s62, 1"]
        seq += [e(15)]
        a("\n".join(seq))
    for t in range(16): tile(t, peel=True)
    a("s_mov_b32 s63, 0\ns_branch L_chk2\n.p2align 6\nL_top:")
    for t in range(16): tile(t)
    if diag and not rt and not o.get("hd"):
        a("s_cmp_lt_u32 s62, 2\ns_cbranch_scc1 L_nst\ns_mov_b32 s90, s92\ns_mov_b32 s92, s94\ns_mov_b32 s94, s96\ns_mov_b32 s96, s98\ns_memtime s[98:99]\ns_waitcnt lgkmcnt(0)\nL_nst:")
    a(f"""
    s_bitcmp1_b32 s64, s62
    s_cbranch_scc1 L_check
    s_cmp_lg_u32 s62, 0
    s_cbranch_scc1 L_top
    v_cvt_pk_bf16_f32 v215, v222, v223
    s_nop 1
    v_mfma_f32_32x32x16_bf16 v[224:239], {vr(64+8*15+4,4)}, v[212:215], v[224:239]
    s_nop 11
    """)
    a("\n".join(flush[:5]) + "\ns_waitcnt lgkmcnt(0)")
    stamp(8)
    if diag: a("s_memrealtime s[88:89]")
    a("s_barrier")
    diag_out("a")
    a("s_endpgm")
    a(f"""
    L_check:
    s_mov_b32 s63, 0
    s_cmp_eq_u32 s62, 5
    s_cselect_b32 s60, 4, 12
    s_cselect_b32 s61, {OACC + 2*SLOT - X_}, 0
    s_add_u32 s60, s60, {M_CNTG}
    v_mov_b32 v249, s60
    L_xw:
    ds_read_b32 v248, v249
    s_add_u32 s63, s63, 1
    s_cmp_gt_u32 s63, {SPIN_MAX}
    s_cbranch_scc1 L_xw_x
    s_waitcnt lgkmcnt(0)
    v_cmp_ne_u32 vcc, 4, v248
    s_cbranch_vccnz L_xw
    L_xw_x:
    v_subrev_u32 v244, s61, v244
    s_branch L_top
    L_chk2:
    ds_read_b96 v[248:250], v251
    s_add_u32 s63, s63, 1
    s_cmp_gt_u32 s63, {SPIN_MAX}
    s_cbranch_scc1 L_chk3
    s_waitcnt lgkmcnt(0)
    v_cmp_ne_u32 vcc, 16, v250
    s_cbranch_vccnz L_chk2
    L_chk3:
    v_mul_f32 v248, v248, v249
    v_mov_b32 v249, 0x45700000
    """)
    stamp(7)
    a(f"""
    v_cmp_nle_f32 vcc, v248, v249
    s_cbranch_vccz L_top
    """)
    if o.get("force_slow"): a.l[-1] = "    s_nop 0"
    a(f"""
    v_lshlrev_b32 v246, 4, {L}
    v_add_u32 v246, {QF}, v246
    v_and_b32 v247, 31, {L}
    v_lshlrev_b32 v247, 2, v247
    v_add_u32 v247, {M_M}, v247
    v_mov_b32 v251, {M_CNTS}
    s_mov_b32 s62, 8
    L_slow:
    ds_read_b128 v[240:243], v246
    v_add_u32 v246, 1024, v246
    v_mov_b32 v248, 0xff800000
    s_waitcnt lgkmcnt(0)
    """)
    for t in range(16):
        a(f"v_mfma_f32_32x32x16_bf16 v[192:207], {vr(4*t,4)}, v[240:243], 0\ns_nop 11")
        for r in range(8): a(f"v_max3_f32 v248, v248, v{192+2*r}, v{193+2*r}")
    a(f"""
    ds_max_f32 v247, v248
    s_mov_b64 exec, 1
    ds_add_u32 v251, v253
    s_mov_b64 exec, -1
    s_mov_b32 s63, 0
    L_slow2:
    s_sleep 1
    ds_read_b32 v249, v251
    s_add_u32 s63, s63, 1
    s_cmp_gt_u32 s63, {SPIN_MAX}
    s_cbranch_scc1 L_slow3
    s_waitcnt lgkmcnt(0)
    v_cmp_ne_u32 vcc, 4, v249
    s_cbranch_vccnz L_slow2
    L_slow3:
    ds_read_b32 v248, v247
    v_add_u32 v247, 128, v247
    v_add_u32 v251, 4, v251
    s_waitcnt lgkmcnt(0)
    """)
    for t in range(16):
        a(f"v_mfma_f32_32x32x16_bf16 v[192:207], {vr(4*t,4)}, v[240:243], 0\ns_nop 11")
        for r in range(16): a(f"v_sub_f32 v{192+r}, v{192+r}, v248")
        for r in range(16): a(f"v_exp_f32 v{192+r}, v{192+r}")
        a("s_nop 0")
        for r in range(8): a(f"v_cvt_pk_bf16_f32 v{208+r}, v{192+2*r}, v{193+2*r}")
        a("s_nop 1")
        a(f"v_mfma_f32_32x32x16_bf16 v[224:239], {vr(64+8*t,4)}, v[208:211], {'0' if t == 0 else 'v[224:239]'}")
        a(f"v_mfma_f32_32x32x16_bf16 v[224:239], {vr(68+8*t,4)}, v[212:215], v[224:239]")
    a(f"""
    s_cmp_lg_u32 s62, 6
    s_cbranch_scc1 L_slow5
    s_mov_b32 s63, 0
    v_mov_b32 v249, {M_CNTG + 12}
    L_slow4:
    ds_read_b32 v248, v249
    s_add_u32 s63, s63, 1
    s_cmp_gt_u32 s63, {SPIN_MAX}
    s_cbranch_scc1 L_slow4x
    s_waitcnt lgkmcnt(0)
    v_cmp_ne_u32 vcc, 4, v248
    s_cbranch_vccnz L_slow4
    L_slow4x:
    v_subrev_u32 v244, {OACC + 2*SLOT - X_}, v244
    L_slow5:
    """)
    a("s_nop 11")
    a("\n".join(flush))
    a(f"""
    s_sub_u32 s62, s62, 1
    s_cmp_lg_u32 s62, 0
    s_cbranch_scc1 L_slow
    s_waitcnt lgkmcnt(0)
    s_barrier
    """)
    diag_out("s")
    a("s_endpgm")

    a(f"""
    L_Gjoin:
    s_sub_u32 {sW}, {sW}, 4
    """)
    gw = sW
    def lds_wait(lbl, addr, off, val, sleep=2):
        a(f"""
        s_mov_b32 s63, 0
        {lbl}:
        ds_read_b32 v178, {addr} offset:{off}
        s_add_u32 s63, s63, 1
        s_cmp_gt_u32 s63, {SPIN_MAX}
        s_cbranch_scc1 {lbl}_x
        s_waitcnt lgkmcnt(0)
        v_cmp_ne_u32 vcc, {val}, v178
        s_cbranch_vccz {lbl}_x
        s_sleep {sleep}
        s_branch {lbl}
        {lbl}_x:
        """)
    a(f"""
    ds_read_b32 v178, v177 offset:{M_TAG - M_CNTG}
    ds_read_u16 v152, v12
    ds_read_u16 v156, v12 offset:64
    ds_read_u16 v168, v13
    ds_read_u16 v172, v13 offset:64
    s_setprio 3
    s_waitcnt lgkmcnt(0)
    v_readfirstlane_b32 {sTAG}, v178
    s_nop 3
    """)
    if o.get("noG"): a("s_barrier\ns_branch L_gend")
    PRE = int(o.get("pre", 8))
    if int(o.get("go", 0)) >= 0 and not PRE: lds_wait("L_go", "v177", M_GO - M_CNTG, sTAG, 3)
    a(f"""
    s_setprio 0
    s_lshl_b32 s64, {sGRP}, 8
    s_add_u32 s64, s64, {WS_KVF}
    s_mul_i32 s4, {gw}, {448*1024}
    s_lshl_b32 s55, {sJ}, 7
    s_add_u32 s4, s4, s55
    s_lshl_b32 s7, {gw}, 17
    s_add_u32 s7, s7, s55
    s_mul_i32 s5, {sGRP}, {2*112*1024}
    s_add_u32 s5, s5, {WS_H}
    s_lshl_b32 s24, s48, 11
    s_add_u32 s24, s24, s5
    s_add_u32 s25, s24, {112*1024}
    s_mul_i32 s61, {gw}, {28*1024}
    s_add_u32 s5, s5, s61
    s_and_b32 s6, {sGRP}, {0 if o.get('norot2') else 3}
    s_lshl_b32 s10, {sGRP}, 3
    s_add_u32 s8, s10, {sJ}
    s_lshl_b32 s26, s8, 2
    s_add_u32 s26, s26, {gw}
    s_lshl_b32 s26, s26, 5
    s_add_u32 s26, s26, {WS_HF}
    s_lshl_b32 s8, s8, 3
    s_add_u32 s8, s8, {gw}
    s_lshl_b32 s8, s8, 10
    s_add_u32 s8, s8, {WS_O}
    s_add_u32 s9, s8, 4096
    s_lshl_b32 s60, {gw}, 1
    s_add_u32 s10, s10, s60
    s_lshl_b32 s27, s10, 7
    s_add_u32 s27, s27, {WS_HF}
    s_lshl_b32 s10, s10, 13
    s_add_u32 s10, s10, {WS_O}
    s_add_u32 s65, s10, 8192
    s_lshl_b32 s33, {sGRP}, 16
    s_add_u32 s11, s33, {WS_O + 7*1024}
    s_add_u32 s33, s33, s55
    s_add_u32 s34, s33, 0x8000
    s_lshl_b32 s60, {gw}, 13
    s_add_u32 s33, s33, s60
    s_movk_i32 s32, {4*SLOT // 4}
    s_cmp_lt_u32 {gw}, 2
    s_cselect_b32 s32, {(2*SLOT + X_ - OACC) // 4 & 0xffffffff}, s32
    s_lshl_b32 s32, s32, 2
    """)
    stamp(3)
    a(f"s_cmp_eq_u32 {gw}, 3\ns_cbranch_scc1 L_F1w3")
    ACC = lambda mt, nt: 32*nt + 16*mt
    def mf(mt, nt, A_, B_, c0=False):
        d = vr(ACC(mt, nt), 16)
        a(f"v_mfma_f32_32x32x16_bf16 {d}, {vr(A_,4)}, {vr(B_,4)}, {'0' if c0 else d}")
    class VM:
        def __init__(s_): s_.ops = []
        def op(s_, ins, tag=None): a(ins); s_.ops.append(tag)
        def n(s_, *tags): return len(s_.ops) - 1 - max(i for i, t in enumerate(s_.ops) if t in tags)
    xcload = f"buffer_load_dwordx2 v[194:195], v180, {srd(SWS)}, s64 offen offset:8 sc1"
    def f1reads(k, w3):
        ab = 120 + 8*(k & 1); bb = 64 + 8*(k & 1); u = k & 7; xo = 16384*(k >> 3)
        r0 = [f"ds_read_b64_tr_b16 {vr(ab,2)}, v144 offset:{2048*u}", f"ds_read_b64_tr_b16 {vr(ab+2,2)}, v144 offset:{2048*u+(256 if w3 else 512)}", f"ds_read_b128 {vr(bb,4)}, v{136+u} offset:{xo}"]
        if not w3: r1 = [f"ds_read_b64_tr_b16 {vr(ab+4,2)}, v145 offset:{2048*u}", f"ds_read_b64_tr_b16 {vr(ab+6,2)}, v145 offset:{2048*u+512}"]
        else: r1 = [f"ds_read_b128 {vr(ab+4,4)}, v145 offset:{32*k}"]
        r1.append(f"ds_read_b128 {vr(bb+4,4)}, v{136+u} offset:{xo+8192}")
        return "\n".join(r0), "\n".join(r1)
    def ffn1(w3):
        vm = VM()
        def dma(k, half):
            if k < 32:
                if half == 0: vm.op(f"buffer_load_dwordx4 v148, {srd(SW1)}, s54 offen lds", k)
                elif not w3: vm.op(f"buffer_load_dwordx4 v149, {srd(SW1)}, s54 offen offset:1024 lds", k)
            else:
                vm.op(f"buffer_load_dwordx4 v{150+half}, {srd(SW2 if k < 39 else SWO)}, s54 offen offset:{1024*half} lds", k)
        def adv(k):
            if k < 32 and k & 7: a(f"s_add_u32 s54, s54, {16*3584}")
            elif k < 32: a(f"s_add_u32 s55, {sC0}, {k >> 3}\ns_and_b32 s55, s55, 3\ns_mul_i32 s55, s55, {128*3584}\ns_add_u32 s54, s100, s55")
            elif k == 32: a(f"s_mul_i32 s54, s6, {7*16384}\ns_add_u32 s54, s54, s4")
            elif k < 39: a("s_add_u32 s54, s54, 16384")
            elif k == 39: a(f"s_add_u32 s54, s7, {7*16384}")
        for k in range(8):
            a(f"s_add_u32 m0, s49, {2048*k}\ns_nop 0")
            dma(k, 0); dma(k, 1); adv(k+1)
        if w3: a("s_setprio 3\nv_mov_b32 v156, 0\ns_setprio 0")
        a(f"s_waitcnt vmcnt({vm.n(0)})")
        a("\n".join(f1reads(0, w3)))
        for nt in range(2):
            mf(0, nt, 152, 160, True)
            mf(1, nt, 156, 160, True)
        for k in range(32):
            u = k & 7
            ab = 120 + 8*(k & 1); bb = 64 + 8*(k & 1)
            if k == 12:
                for so in ("s8", "s9"): vm.op(f"buffer_store_dwordx4 v[200:203], v166, {srd(SWS)}, {so} offen sc1")
                vm.op(f"buffer_load_dword v178, v180, {srd(SWS)}, s27 offen sc1")
                vm.op(xcload, "xc")
                if not w3 and not o.get("nopf"):
                    a(f"""
                    s_cmp_eq_u32 {gw}, 0
                    s_cbranch_scc0 L_f1m
                    s_mul_i32 s60, s2, 7168
                    s_mov_b64 exec, s[12:13]
                    buffer_load_dword v178, v196, {srd(SW2)}, s60 offen
                    s_mov_b64 exec, 0xffff
                    s_lshl_b32 s60, s2, 11
                    buffer_load_dword v178, v196, {srd(SWO)}, s60 offen
                    s_mov_b64 exec, -1
                    L_f1m:
                    """)
                if o.get("hpre"):
                    for so in ("s24", "s25"):
                        for q in range(2 if w3 else 4): vm.op(f"buffer_load_dwordx4 v[204:207], v166, {srd(SWS)}, {so} offen offset:{1024*q}")
            if PRE and k == PRE:
                a("s_setprio 3")
                lds_wait("L_go" + "ab"[w3], "v177", M_GO - M_CNTG, sTAG, 2)
                a("s_setprio 0")
                for kk in range(8, 8 + PRE):
                    a(f"s_add_u32 m0, s49, {2048*(kk & 7)}\ns_nop 0")
                    dma(kk, 0); dma(kk, 1); adv(kk+1)
                if PRE == 8:
                    a(f"s_waitcnt vmcnt({vm.n(8)})")
                    a("\n".join(f1reads(8, w3)))
            hold = k < PRE
            a(f"s_waitcnt vmcnt({vm.n(k+1) if k < 31 and not (hold and k == 7) else 63}) lgkmcnt(0)")
            r0, r1 = f1reads(k+1, w3) if k < 31 and not (hold and k == 7) else ("", "")
            mf(0, 0, ab, bb)
            a(r0)
            mf(1, 0, ab+4, bb)
            a(r1)
            if not hold: a(f"s_add_u32 m0, s49, {2048*u}")
            mf(0, 1, ab, bb+4)
            if not hold: dma(k+8, 0)
            if u == 7: a(f"s_mov_b64 exec, 1\nds_add_u32 v177, v167 offset:{4*(k >> 3)}\ns_mov_b64 exec, -1")
            mf(1, 1, ab+4, bb+4)
            if not hold: dma(k+8, 1); adv(k+9)
        a(f"s_waitcnt vmcnt({vm.n('xc')})")
    ffn1(False)
    a("s_branch L_F1done\nL_F1w3:")
    ffn1(True)
    a(f"""
    L_F1done:
    s_mov_b32 s63, 0
    s_getreg_b32 s61, hwreg(HW_REG_XCC_ID, 0, 4)
    s_setprio 3
    s_branch L_xc_c
    L_xc:
    {xcload}
    s_add_u32 s63, s63, 1
    s_cmp_gt_u32 s63, {SPIN_MAX}
    s_cbranch_scc1 L_xc_x
    s_waitcnt vmcnt(0)
    L_xc_c:
    v_cmp_ne_u32 vcc, {sTAG}, v194
    s_cbranch_vccnz L_xc
    L_xc_x:
    v_cmp_ne_u32 vcc, s61, v195
    s_nop 3
    s_cmp_eq_u64 vcc, 0
    s_cselect_b32 s101, {0 if o.get('nofast') else 1}, 0
    """)
    nst = [0]
    def hstore(ins):
        nst[0] += 1
        a(f"s_cbranch_scc1 L_hs{nst[0]}a\n{ins} sc1\ns_branch L_hs{nst[0]}b\nL_hs{nst[0]}a:\n{ins}\nL_hs{nst[0]}b:")
    stamp(4)
    def hst(mt, nt):
        b = ACC(mt, nt)
        for r in range(16): a(f"v_max_f32 v{b+r}, 0, v{b+r}")
        for r in range(8): a(f"v_pk_mul_f32 {vr(b+2*r,2)}, {vr(b+2*r,2)}, {vr(b+2*r,2)}")
        for r in range(8): a(f"v_cvt_pk_bf16_f32 v{b+r}, v{b+2*r}, v{b+2*r+1}")
        so = "s25" if nt else "s24"
        st = hstore if o.get("hpre") else (lambda ins: a(ins + " sc1"))
        a("s_cmp_eq_u32 s101, 1")
        st(f"buffer_store_dwordx4 {vr(b,4)}, v166, {srd(SWS)}, {so} offen offset:{2048*mt}")
        st(f"buffer_store_dwordx4 {vr(b+4,4)}, v166, {srd(SWS)}, {so} offen offset:{2048*mt+1024}")
    hst(0, 0); hst(0, 1)
    a(f"s_cmp_eq_u32 {gw}, 3\ns_cbranch_scc1 L_gate")
    hst(1, 0); hst(1, 1)
    a(f"""
    s_branch L_gated
    L_gate:
    v_mul_f32 v16, {0x80000000 | LOG2E}, v16
    v_mul_f32 v48, {0x80000000 | LOG2E}, v48
    v_exp_f32 v16, v16
    v_exp_f32 v48, v48
    s_nop 0
    v_add_f32 v16, 1.0, v16
    v_add_f32 v48, 1.0, v48
    v_rcp_f32 v16, v16
    v_rcp_f32 v48, v48
    s_nop 1
    ds_write_b32 v192, v16
    ds_write_b32 v192, v48 offset:128
    L_gated:
    s_mov_b64 exec, 1
    ds_add_u32 v177, v167 offset:16
    s_mov_b64 exec, -1
    """)
    def fin(B, sfx, first):
        a(f"""
        s_mov_b32 s63, 0
        L_fw{sfx}:
        ds_read_b32 v{B}, v176
        s_add_u32 s63, s63, 1
        s_cmp_gt_u32 s63, {SPIN_MAX}
        s_cbranch_scc1 L_fw{sfx}_x
        s_waitcnt lgkmcnt(0)
        v_cmp_ne_u32 vcc, {sTAG}, v{B}
        s_cbranch_vccz L_fw{sfx}_x
        s_sleep 3
        s_branch L_fw{sfx}
        L_fw{sfx}_x:
        ds_read2st64_b32 {vr(B+32,2)}, v181 offset0:32 offset1:33
        ds_read2st64_b32 {vr(B+34,2)}, v181 offset0:34 offset1:35
        """)
        for w in range(4):
            for r in range(4): a(f"ds_read2st64_b32 {vr(B+8*w+2*r,2)}, v181 offset0:{8*r+w} offset1:{8*r+4+w}")
        a(f"s_cmp_eq_u32 s101, 1\ns_waitcnt lgkmcnt(8)\nv_pk_add_f32 {vr(B+32,2)}, {vr(B+32,2)}, {vr(B+34,2)}")
        for r in range(4): a(f"v_pk_add_f32 {vr(B+2*r,2)}, {vr(B+2*r,2)}, {vr(B+8+2*r,2)}")
        a(f"v_add_f32 v{B+32}, v{B+32}, v{B+33}\ns_waitcnt lgkmcnt(0)")
        for r in range(4): a(f"v_pk_add_f32 {vr(B+16+2*r,2)}, {vr(B+16+2*r,2)}, {vr(B+24+2*r,2)}")
        a(f"v_rcp_f32 v{B+32}, v{B+32}")
        for r in range(4): a(f"v_pk_add_f32 {vr(B+2*r,2)}, {vr(B+2*r,2)}, {vr(B+16+2*r,2)}")
        a(f"v_mul_f32 v{B+32}, v{B+32}, v164")
        for r in range(4): a(f"v_pk_mul_f32 {vr(B+2*r,2)}, {vr(B+2*r,2)}, {vr(B+32,2)} op_sel_hi:[1,0]")
        for r in range(4): a(f"v_cvt_pk_bf16_f32 v{B+r}, v{B+2*r}, v{B+2*r+1}")
        for r in range(4): a(f"v_min_u32 v{B+r}, -2, v{B+r}")
        hstore(f"buffer_store_dwordx4 {vr(B,4)}, v166, {srd(SWS)}, {'s8' if first else 's4'} offen")
        if first:
            a(f"""
            s_or_b32 s55, s2, {gw}
            s_cbranch_scc1 L_noep
            v_mov_b32 v{B+33}, {sTAG}
            s_mov_b64 exec, 1
            buffer_store_dword v{B+33}, off, {srd(SWS)}, 0 sc1
            s_mov_b64 exec, -1
            L_noep:
            """)
        else: a("s_nop 0")
    def flag_wait(lbl, vaddr, soff, sleep=2):
        a(f"""
        s_mov_b32 s63, 0
        {lbl}:
        buffer_load_dword v178, {vaddr}, {srd(SWS)}, {soff} offen sc1
        s_add_u32 s63, s63, 1
        s_cmp_gt_u32 s63, {SPIN_MAX}
        s_cbranch_scc1 {lbl}_x
        s_waitcnt vmcnt(0)
        v_cmp_ne_u32 vcc, {sTAG}, v178
        s_cbranch_vccz {lbl}_x
        s_sleep {sleep}
        s_branch {lbl}
        {lbl}_x:
        """)
    a(f"""
    v_mov_b32 v129, {sTAG}
    s_cmp_eq_u32 {gw}, 0
    s_cselect_b32 s60, -1, 0
    v_and_b32 v160, s60, v160
    s_cmp_eq_u32 s101, 1
    s_mov_b64 exec, 1
    s_waitcnt vmcnt(0)
    """)
    hstore(f"buffer_store_dword v129, off, {srd(SWS)}, s26")
    a("s_mov_b64 exec, -1")
    stamp(5)
    lds_wait("L_gs1", "v177", 16, "4")
    a("ds_read_b32 v164, v192\nds_read_b32 v165, v192 offset:128")
    for nt in range(2):
        mf(0, nt, 168, 160, True); mf(1, nt, 172, 160, True)
    flag_wait("L_hw", "v180", "s27")
    a(f"v_mov_b32 v180, v193\nv_subrev_u32 v168, {OACC - X_}, v190\nv_subrev_u32 v169, {OACC - X_}, v191")
    stamp(6)
    a(f"""
    s_setprio 0
    s_mul_i32 s60, s6, 7168
    s_add_u32 s60, s60, s5
    s_add_u32 s61, s60, {112*1024}
    """)
    vm = VM()
    def hA(k): vm.op(f"buffer_load_dwordx4 {vr(64+8*(k%7),4)}, v166, {srd(SWS)}, s60 offen sc1", ("h", k)); a("s_add_u32 s60, s60, 1024")
    def hB(k): vm.op(f"buffer_load_dwordx4 {vr(68+8*(k%7),4)}, v166, {srd(SWS)}, s61 offen sc1", ("h", k)); a("s_add_u32 s61, s61, 1024")
    for k in range(7): hA(k); hB(k)
    def f2reads(k):
        ab = 120 + 8*(k & 1); slot = k % 7
        return (f"ds_read_b64_tr_b16 {vr(ab,2)}, v146 offset:{2048*slot}\nds_read_b64_tr_b16 {vr(ab+2,2)}, v146 offset:{2048*slot+1024}\n"
                f"ds_read_b64_tr_b16 {vr(ab+4,2)}, v147 offset:{2048*slot}\nds_read_b64_tr_b16 {vr(ab+6,2)}, v147 offset:{2048*slot+1024}")
    a(f2reads(0))
    for k in range(28):
        u = k % 7
        if u == 0 and k < 21: a(f"s_add_u32 s6, s6, 1\ns_and_b32 s6, s6, 3\ns_mul_i32 s54, s6, {7*16384}\ns_add_u32 s54, s54, s4\ns_mul_i32 s60, s6, 7168\ns_add_u32 s60, s60, s5\ns_add_u32 s61, s60, {112*1024}")
        if k == 21: a("s_mov_b32 s54, s7\ns_mov_b32 s60, s10\ns_mov_b32 s61, s65")
        if k == int(o.get("fink", 16)):
            a("s_setprio 3")
            fin(196, "m", True)
            a("s_setprio 0")
        ab = 120 + 8*(k & 1); bb = 64 + 8*u
        need = [("h", k)] + ([("w", k+1)] if 7 <= k+1 < 28 else [])
        a(f"s_waitcnt vmcnt({vm.n(*need)}) lgkmcnt(0)")
        mf(0, 0, ab, bb)
        if k < 27: a(f2reads(k+1))
        mf(1, 0, ab+4, bb)
        if k < 25: hA(k+7)
        a(f"s_add_u32 m0, s49, {2048*u}")
        mf(0, 1, ab, bb+4)
        sr = srd(SW2 if k < 21 else SWO)
        vm.op(f"buffer_load_dwordx4 v150, {sr}, s54 offen lds", ("w", k+7))
        vm.op(f"buffer_load_dwordx4 v151, {sr}, s54 offen offset:1024 lds", ("w", k+7))
        a("s_add_u32 s54, s54, 16384")
        mf(1, 1, ab+4, bb+4)
        if k < 25: hB(k+7)
    a("s_setprio 3")
    stamp(7)
    def cnt_add(off): a(f"s_mov_b64 exec, 1\nds_add_u32 v177, v167 offset:{off}\ns_mov_b64 exec, -1")
    a("v_sub_f32 v182, 1.0, v164\nv_sub_f32 v184, 1.0, v165\nv_mov_b32 v164, v165\ns_waitcnt vmcnt(0) lgkmcnt(0)")
    cnt_add(20)
    WOF = lambda i, mt: 192 + 8*i + 4*mt if (i, mt) != (7, 1) else 136
    for i in range(8):
        for mt in range(2):
            for e in range(2): a(f"ds_read_b64_tr_b16 {vr(WOF(i,mt)+2*e,2)}, v{146+mt} offset:{2048*i+1024*e}")
    for r in range(16): a(f"v_pk_mul_f32 {vr(2*r,2)}, {vr(2*r,2)}, v[182:183] op_sel_hi:[1,0]")
    for r in range(16, 32): a(f"v_pk_mul_f32 {vr(2*r,2)}, {vr(2*r,2)}, v[184:185] op_sel_hi:[1,0]")
    OF = lambda jj, sl: 64 + 8*sl + 4*jj
    def oload(jj, sl): return f"buffer_load_dwordx4 {vr(OF(jj, sl),4)}, v166, {srd(SWS)}, {('s10', 's65', 's8', 's9')[jj + 2*(sl >> 2)]} offen offset:{1024*(sl&3)} sc1"
    def ofrags(lbl, loads, regs, sleep, pre=False):
        n = len(loads)
        a("s_mov_b32 s63, 0")
        if pre: a(f"s_branch {lbl}_c")
        a(f"{lbl}:")
        a("\n".join(loads))
        a(f"s_add_u32 s63, s63, 1\ns_cmp_gt_u32 s63, {SPIN_MAX}\ns_cbranch_scc1 {lbl}_x\n{lbl}_c:")
        for i in range(n):
            r = regs[i]
            a(f"s_waitcnt vmcnt({n-1-i})")
            if i == 0: a(f"v_max3_u32 v178, v{r}, v{r+1}, v{r+2}\nv_max_u32 v178, v178, v{r+3}")
            else: a(f"v_max3_u32 v178, v178, v{r}, v{r+1}\nv_max3_u32 v178, v178, v{r+2}, v{r+3}")
        a(f"v_cmp_eq_u32 vcc, -1, v178\ns_cbranch_vccz {lbl}_x")
        if sleep: a(f"s_sleep {sleep}")
        a(f"s_branch {lbl}\n{lbl}_x:\ns_waitcnt vmcnt(0)")
    def wo_stage(lbl, nt, sls, sleep, pre):
        ks = [(jj, sl) for sl in sls for jj in range(2)]
        ofrags(lbl, [oload(*k) for k in ks], [OF(*k) for k in ks], sleep, pre)
        a("s_waitcnt lgkmcnt(0)\ns_setprio 0")
        for jj, sl in ks:
            i = 4*jj + (sl & 3)
            mf(0, nt, WOF(i, 0), OF(jj, sl)); mf(1, nt, WOF(i, 1), OF(jj, sl))
        a("s_setprio 3")
    stamp(8)
    wo_stage("L_o0", 0, range(4), 4, True)
    stamp(9)
    a(f"s_add_u32 s4, s8, 4096\ns_add_u32 s8, s10, 4096\ns_add_u32 s9, s65, 4096\nv_add_u32 v176, s32, v176\nv_add_u32 v181, s32, v181")
    a(f"s_mul_i32 s5, {gw}, {SLOT}\ns_cmp_lt_u32 {gw}, 2\ns_cselect_b32 s6, {OACC + 2*SLOT - X_}, 0\ns_add_u32 s5, s5, s6\ns_sub_u32 s5, s49, s5\ns_add_u32 s5, s5, {8192 + 2*SLOT - X_}")
    for mt in range(2):
        for i in range(4): a(f"ds_write_b128 v{186+i}, {vr(16*mt+4*i,4)} offset:{128*mt}")
    cnt_add(28)
    lds_wait("L_w1", "v177", 20, "4")
    FA = lambda s_, ct: (120 + 8*s_ + 4*ct) if s_ < 2 else (148 + 8*(s_-2) + 4*ct)
    for s_ in range(4):
        for ct in range(2):
            for e in range(2): a(f"ds_read_b64_tr_b16 {vr(FA(s_,ct)+2*e,2)}, v253 offset:{16384*s_+1024*e+32*ct}")
    cnt_add(24)
    a(f"s_cmp_lt_u32 {gw}, 2\ns_cbranch_scc0 L_nf\ns_call_b64 s[14:15], L_fin\nL_nf:")
    lds_wait("L_rw", "v177", 28, "4", 1)
    for p in range(4):
        a(f"ds_read_b128 {vr(8*p,4)}, v{190 if p < 2 else 168} offset:{SLOT*(p&1)}\nds_read_b128 {vr(4+8*p,4)}, v{191 if p < 2 else 169} offset:{SLOT*(p&1)}")
    for i in range(4): a(f"v_add_u32 v{186+i}, s5, v{186+i}")
    a("s_waitcnt lgkmcnt(4)")
    for r in range(4): a(f"v_pk_add_f32 {vr(2*r,2)}, {vr(2*r,2)}, {vr(8+2*r,2)}")
    a("s_waitcnt lgkmcnt(0)")
    for r in range(4): a(f"v_pk_add_f32 {vr(16+2*r,2)}, {vr(16+2*r,2)}, {vr(24+2*r,2)}")
    for r in range(4): a(f"v_pk_add_f32 {vr(2*r,2)}, {vr(2*r,2)}, {vr(16+2*r,2)}")
    for r in range(4): a(f"v_cvt_pk_bf16_f32 v{172+r}, v{2*r}, v{2*r+1}")
    stamp(10)
    wo_stage("L_o1", 1, (4, 5), 4, False)
    a(f"s_cmp_eq_u32 {gw}, 2\ns_cbranch_scc0 L_nf1\ns_call_b64 s[14:15], L_fin\nL_nf1:")
    stamp(11)
    wo_stage("L_o1b", 1, (6,), 4, False)
    a("s_add_u32 s65, s11, 32768")
    fl = [f"buffer_load_dwordx4 {vr(108+0,4)}, v252, {srd(SWS)}, s11 offen sc1", f"buffer_load_dwordx4 {vr(104,4)}, v254, {srd(SWS)}, s11 offen sc1",
          f"buffer_load_dwordx4 {vr(100,4)}, v252, {srd(SWS)}, s65 offen sc1", f"buffer_load_dwordx4 {vr(140,4)}, v254, {srd(SWS)}, s65 offen sc1"]
    fr = [108, 104, 100, 140]
    if not o.get("nowarm"): a("\n".join(fl))
    lds_wait("L_w2", "v177", 24, "4")
    a("s_nop 2")
    for mt in range(2):
        for i in range(4): a(f"ds_write_b128 v{186+i}, {vr(32+16*mt+4*i,4)} offset:{128*mt}")
    cnt_add(32)
    lds_wait("L_rw1", "v177", 32, "4", 1)
    for p in range(4):
        a(f"ds_read_b128 {vr(64+8*p,4)}, v183 offset:{16384*p}\nds_read_b128 {vr(68+8*p,4)}, v185 offset:{16384*p}")
    a("s_waitcnt lgkmcnt(4)")
    for r in range(4): a(f"v_pk_add_f32 {vr(64+2*r,2)}, {vr(64+2*r,2)}, {vr(72+2*r,2)}")
    a("s_waitcnt lgkmcnt(0)")
    for r in range(4): a(f"v_pk_add_f32 {vr(80+2*r,2)}, {vr(80+2*r,2)}, {vr(88+2*r,2)}")
    for r in range(4): a(f"v_pk_add_f32 {vr(2*r,2)}, {vr(64+2*r,2)}, {vr(80+2*r,2)}")
    stamp(12)
    a(f"s_barrier\ns_cmp_eq_u32 {gw}, 3\ns_cbranch_scc0 L_nf2\ns_call_b64 s[14:15], L_fwf_x\nL_nf2:")
    stamp(13)
    ofrags("L_o2", fl, fr, 0)
    stamp(14)
    a(f"buffer_store_dwordx4 v[172:175], v179, {srd(SOUT)}, s33 offen")
    for s_ in range(4):
        for ct in range(2): a(f"v_mfma_f32_16x16x32_bf16 {vr(4*ct,4)}, {vr(FA(s_,ct),4)}, {vr(fr[s_],4)}, {vr(4*ct,4)}")
    a("""
    s_nop 6
    v_cvt_pk_bf16_f32 v8, v0, v1
    v_cvt_pk_bf16_f32 v9, v2, v3
    v_cvt_pk_bf16_f32 v10, v4, v5
    v_cvt_pk_bf16_f32 v11, v6, v7
    s_nop 1
    v_permlane16_swap_b32 v8, v10
    v_permlane16_swap_b32 v9, v11
    """)
    a(f"buffer_store_dwordx4 v[8:11], v180, {srd(SOUT)}, s34 offen")
    stamp(15)
    a("s_branch L_gend")
    a(f"""
    L_gsetup:
    s_load_dwordx2 s[{SW1}:{SW1+1}], s[0:1], 48
    s_load_dwordx2 s[{SWO}:{SWO+1}], s[0:1], 32
    s_load_dwordx2 s[{SW2}:{SW2+1}], s[0:1], 64
    s_load_dwordx2 s[{SOUT}:{SOUT+1}], s[0:1], 88
    s_mov_b32 s{SW1+2}, 1835008
    s_mov_b32 s{SW1+3}, 0x00020000
    s_mov_b32 s{SWO+2}, 524288
    s_mov_b32 s{SWO+3}, 0x00020000
    s_mov_b32 s{SW2+2}, 1835008
    s_mov_b32 s{SW2+3}, 0x00020000
    s_mov_b32 s{SOUT+2}, 2097152
    s_mov_b32 s{SOUT+3}, 0x00020000
    s_sub_u32 s101, {sW}, 4
    s_lshr_b32 s48, {sJ}, 1
    s_mul_i32 s48, s48, 7
    s_and_b32 s63, {sJ}, 1
    s_lshl_b32 s62, s63, 2
    s_add_u32 s62, s62, s101
    s_cmp_eq_u32 s101, 3
    s_cselect_b32 s62, 3, s62
    s_cselect_b32 s63, s63, 0
    s_add_u32 s48, s48, s62
    s_lshl_b32 s48, s48, 1
    s_add_u32 s48, s48, s63
    s_lshl_b32 s100, s48, 6
    s_mul_i32 s54, {sC0}, {128*3584}
    s_add_u32 s54, s54, s100
    s_lshl_b32 s49, s101, 14
    s_add_u32 s49, s49, {W_}
    v_lshrrev_b32 v14, 3, {L}
    v_and_b32 v15, 7, {L}
    v_bfe_u32 v3, {L}, 4, 1
    v_lshlrev_b32 v3, 2, v3
    v_xor_b32 v2, v3, v15
    v_lshlrev_b32 v2, 4, v2
    v_lshl_or_b32 v150, v14, 10, v2
    v_add_u32 v151, 7168, v150
    v_mul_u32_u24 v148, 3584, v14
    v_add_u32 v148, v148, v2
    v_add_u32 v149, {8*3584-1024}, v148
    v_lshlrev_b32 v180, 5, v15
    v_lshlrev_b32 v2, 1, v15
    v_xor_b32 v2, v14, v2
    v_lshlrev_b32 v2, 4, v2
    v_lshl_or_b32 v190, v14, 8, v2
    s_lshl_b32 s62, s101, 11
    s_add_u32 s62, s62, {OACC}
    v_add_u32 v190, s62, v190
    v_xor_b32 v191, 16, v190
    v_lshlrev_b32 v2, 4, v15
    v_lshl_or_b32 v179, v14, 10, v2
    v_and_b32 v1, 31, {L}
    v_lshrrev_b32 v14, 5, {L}
    v_xor_b32 v2, v14, v15
    v_lshlrev_b32 v2, 4, v2
    v_lshl_or_b32 v186, v1, 8, v2
    s_mul_i32 s62, {sJ}, 7
    s_sub_u32 s62, s48, s62
    s_lshl_b32 s62, s62, 6
    s_add_u32 s62, s62, {M_B1}
    v_lshlrev_b32 v13, 1, v1
    v_add_u32 v12, s62, v13
    v_add_u32 v13, {M_B2}, v13
    v_lshlrev_b32 v192, 2, v1
    v_add_u32 v192, {M_G}, v192
    v_and_b32 v3, 15, {L}
    v_xor_b32 v3, v14, v3
    v_lshlrev_b32 v3, 4, v3
    v_lshl_or_b32 v136, v1, 8, v3
    """)
    for k in range(1, 8): a(f"v_xor_b32 v{136+k}, {32*k}, v136")
    tr_addr(144, 8)
    a("v_add_u32 v144, s49, v144\nv_xor_b32 v145, 64, v144")
    tr_addr(146, 4)
    a("v_add_u32 v146, s49, v146\nv_xor_b32 v147, 64, v146")
    for r in (153, 154, 155, 157, 158, 159, 161, 162, 163, 169, 170, 171, 173, 174, 175): a(f"v_mov_b32 v{r}, 0")
    a(f"""
    v_cmp_gt_u32 vcc, 32, {L}
    v_mov_b32 v1, 0x3f80
    v_lshlrev_b32 v166, 4, {L}
    v_cndmask_b32 v160, 0, v1, vcc
    v_mov_b32 v167, 1
    v_mov_b32 v177, {M_CNTG}
    v_mov_b64 v[200:201], -1
    v_mov_b64 v[202:203], -1
    s_and_b32 s62, s101, 1
    s_lshr_b32 s63, s101, 1
    v_and_b32 v1, 15, {L}
    v_lshl_add_u32 v1, s62, 4, v1
    v_lshrrev_b32 v2, 4, {L}
    v_xor_b32 v3, v2, v15
    v_lshlrev_b32 v3, 4, v3
    v_lshl_or_b32 v3, v1, 8, v3
    s_lshl_b32 s62, s63, 7
    s_add_u32 s62, s62, {W_ + 8192}
    v_add_u32 v183, s62, v3
    v_xor_b32 v185, 64, v183
    ; v252/v254 = (g4>>1)*8192 + 16*(row + 32*(g4&1)) (+16384)
    v_and_b32 v3, 1, v2
    v_lshl_add_u32 v252, v3, 5, v1
    v_lshlrev_b32 v252, 4, v252
    v_lshl_add_u32 v252, v14, 13, v252
    v_add_u32 v254, 0x4000, v252
    v_lshlrev_b32 v193, 10, v1
    v_lshl_or_b32 v193, v3, 5, v193
    v_lshl_or_b32 v193, v14, 4, v193
    s_lshl_b32 s62, s63, 6
    v_add_u32 v193, s62, v193
    ; v253 = W + 2048*(4*(g4>>1)+3) + (4h + r')*128 + 16*((4ch + (c'>>1)) ^ 4*(r'>>1)) + 8*(c'&1)
    v_bfe_u32 v1, {L}, 2, 2
    v_lshl_or_b32 v1, v3, 2, v1
    v_lshlrev_b32 v1, 7, v1
    v_lshl_or_b32 v1, v14, 13, v1
    v_bfe_u32 v2, {L}, 3, 1
    v_xor_b32 v2, s63, v2
    v_lshl_or_b32 v1, v2, 6, v1
    v_and_b32 v2, 3, {L}
    v_lshl_or_b32 v1, v2, 3, v1
    v_add_u32 v253, {W_ + 6144}, v1
    v_lshlrev_b32 v196, 7, {L}
    s_mov_b32 s12, -1
    s_mov_b32 s13, 0xffffff
    s_mul_i32 s62, s101, {SLOT}
    s_add_u32 s63, s62, {OACC}
    s_sub_u32 s62, s62, {2*SLOT - X_}
    s_cmp_lt_u32 s101, 2
    s_cselect_b32 s62, s63, s62
    v_lshlrev_b32 v181, 2, {L}
    v_add_u32 v181, s62, v181
    v_add_u32 v186, s62, v186
    v_xor_b32 v187, 32, v186
    v_xor_b32 v188, 64, v186
    v_xor_b32 v189, 0x60, v186
    s_add_u32 s62, s62, {9216 + 252}
    v_lshl_add_u32 v176, v2, 8, s62
    s_cmp_eq_u32 s101, 3
    s_cbranch_scc0 L_gsx
    v_bfe_u32 v2, {L}, 2, 2
    v_lshl_or_b32 v2, v14, 3, v2
    v_lshlrev_b32 v2, 6, v2
    v_bfe_u32 v3, {L}, 4, 1
    v_lshl_or_b32 v2, v3, 5, v2
    v_and_b32 v3, 3, {L}
    v_lshl_or_b32 v2, v3, 3, v2
    v_add_u32 v144, s49, v2
    v_lshlrev_b32 v145, 4, v14
    v_add_u32 v145, {M_GATE}, v145
    v_lshrrev_b32 v1, 2, {L}
    v_mul_u32_u24 v148, 3584, v1
    v_lshl_add_u32 v148, v3, 4, v148
    L_gsx:
    s_waitcnt lgkmcnt(0)
    s_setpc_b64 s[14:15]
    """)
    a("L_fin:")
    fin(64, "f", False)
    a("s_setpc_b64 s[14:15]\nL_gend:")
    if diag: a(f"s_add_u32 {sW}, {sW}, 4")
    diag_out("g")
    a("L_end:\ns_endpgm")

    hdr = open(os.path.join(os.path.dirname(os.path.abspath(__file__)), "..", "cdna_kernels", NAME + ".s.ref")).read().split("\n")
    i0 = next(i for i, l in enumerate(hdr) if l.startswith("; Override"))
    head = "\n".join(hdr[:i0]) + f"\n; @launch grid=(256,1,1) block=(512,1,1) lds={LDS_BYTES}\n"
    return head + f""".amdgcn_target "amdgcn-amd-amdhsa--gfx950"
.text
.globl {NAME}_kernel
.p2align 8
.type {NAME}_kernel,@function
{NAME}_kernel:
{a.text()}.section .rodata,"a"
.p2align 6
.amdhsa_kernel {NAME}_kernel
  .amdhsa_next_free_vgpr 256
  .amdhsa_next_free_sgpr 102
  .amdhsa_accum_offset 256
  .amdhsa_group_segment_fixed_size 0
  .amdhsa_kernarg_size 112
  .amdhsa_user_sgpr_count 2
  .amdhsa_user_sgpr_kernarg_segment_ptr 1
  .amdhsa_system_sgpr_workgroup_id_x 1
.end_amdhsa_kernel
"""

if __name__ == "__main__":
    out = sys.argv[1] if len(sys.argv) > 1 else os.path.join(os.path.dirname(os.path.abspath(__file__)), "..", "cdna_kernels", NAME + ".s")
    opts = dict(x.split("=") if "=" in x else (x, 1) for x in sys.argv[2:])
    open(out, "w").write(gen(diag=bool(opts.pop("diag", 0)), opts=opts))
```

```python
import sys, os
NAME = "gated_mix__grouped_kv_mqa__dense_activation_squared_relu__prompt"

class Asm:
    def __init__(self): self.l = []
    def __call__(self, s):
        for x in s.strip("\n").split("\n"):
            x = x.strip()
            if not x: continue
            self.l.append(x if x.endswith(":") else "    " + x)
    def text(self): return "\n".join(self.l) + "\n"

def vr(a, n): return f"v[{a}:{a+n-1}]"

X_ = 0; W_ = 65536; S_ = 131072
OACC = S_; SLOT = 10240
QF = S_ + 2*SLOT
MISC = QF + 8192
M_G = MISC
M_QMAX = MISC + 256
M_KMAX = MISC + 260
M_CNTA = MISC + 264
M_CNTG = MISC + 272
M_CNTS = MISC + 320
M_M = MISC + 1024
M_GATE = MISC + 2048
M_TAG = MISC + 3072
M_Q0 = MISC + 3076
M_GO = MISC + 3080
M_B1 = MISC + 3136
M_B2 = MISC + 3584
LDS_BYTES = 163840
WS_EPOCH = 0
WS_KVF = 0x1000
WS_HF = 0x10000
WS_OF = 0x40000
WS_K = 0x80000
WS_V = 0x90000
WS_O = 0x100000
WS_H = 0x400000
WS_DIAG = 0xC00000
WS_SIZE = 0x1000000
SX, SWQ, SWKV, SWO, SW1, SB1, SW2, SB2, SGT, SOUT, SWS, SH = 4, 8, 12, 16, 20, 24, 28, 32, 36, 40, 44, 56
def srd(b): return f"s[{b}:{b+3}]"
sW, sGRP, sJ, sTAG, sC0 = "s50", "s51", "s52", "s53", "s3"
QSCALE = 0x3eb8aa3b
LOG2E = 0x3fb8aa3b
SPIN_MAX = 200000

def gen(diag=False, opts=None):
    o = dict(opts or {})
    a = Asm()
    nstamp = [0]
    rt = o.get("rt") or o.get("enc")
    inG = [False]
    gsetup_s = f"""
    s_load_dwordx2 s[{SW1}:{SW1+1}], s[0:1], 48
    s_load_dwordx2 s[{SWO}:{SWO+1}], s[0:1], 32
    s_load_dwordx2 s[{SW2}:{SW2+1}], s[0:1], 64
    s_load_dwordx2 s[{SOUT}:{SOUT+1}], s[0:1], 88
    s_mov_b32 s{SW1+2}, 1835008
    s_mov_b32 s{SW1+3}, 0x00020000
    s_mov_b32 s{SWO+2}, 524288
    s_mov_b32 s{SWO+3}, 0x00020000
    s_mov_b32 s{SW2+2}, 1835008
    s_mov_b32 s{SW2+3}, 0x00020000
    s_mov_b32 s{SOUT+2}, 2097152
    s_mov_b32 s{SOUT+3}, 0x00020000
    """
    def hstamp(i):
        if diag and o.get("hd"): a(f"s_memtime s[{68+2*i}:{69+2*i}]")
    def stamp(i):
        if o.get("lite"):
            if i in (6, 15) or (i == 8 and not inG[0]): a(f"s_memrealtime s[{68+2*i}:{69+2*i}]")
            return
        if diag and not (o.get("hd") and i > 8):
            a(f"{'s_memrealtime' if rt else 's_memtime'} s[{68+2*i}:{69+2*i}]")
    def diag_out(lbl):
        if diag and o.get("enc"):
            role, st = o["enc"][0], int(o["enc"][1:])
            wv = {"a": int(o.get("wv", 0)), "g": 7}[role]
            if lbl == role:
                a(f"s_cmp_lg_u32 s2, 0\ns_cbranch_scc1 L_encx{lbl}\ns_cmp_lg_u32 {sW}, {wv}\ns_cbranch_scc1 L_encx{lbl}\ns_waitcnt lgkmcnt(0)")
                if st < 16: a(f"s_sub_u32 s60, s{68+2*st}, s66\ns_lshl_b32 s60, s60, 4")
                else: a("s_mov_b32 s60, 0")
                a(f"s_add_u32 s60, s60, 5000\nL_enc{lbl}:\ns_sleep 4\ns_memrealtime s[62:63]\ns_waitcnt lgkmcnt(0)\ns_sub_u32 s62, s62, s66\ns_cmp_lt_u32 s62, s60\ns_cbranch_scc1 L_enc{lbl}\nL_encx{lbl}:")
        elif diag and rt:
            idx = {"a": [(1, 1), (2, 2), (4, 3), (5, 4), (6, 5), (7, 6), (8, 7)], "s": [], "g": [(2, 8), (3, 9), (4, 10), (6, 11), (7, 12), (15, 13), (9, 14), (11, 15)]}[lbl]
            a("s_load_dwordx2 s[60:61], s[0:1], 96\ns_mov_b32 s62, 256\ns_mov_b32 s63, 0x00020000\ns_waitcnt vmcnt(0) lgkmcnt(0)\ns_mov_b64 exec, 1")
            a("s_not_b32 s66, s66\nv_mov_b32 v1, s66\nbuffer_atomic_umax v1, off, s[60:63], 0\ns_nop 1")
            for st, d in idx:
                a(f"v_mov_b32 v1, s{68+2*st}\nbuffer_atomic_umax v1, off, s[60:63], 0 offset:{4*d}\ns_nop 1")
            a("s_waitcnt vmcnt(0)")
        elif diag:
            a(f"s_lshl_b32 s60, s2, 3\ns_add_u32 s60, s60, {sW}\ns_lshl_b32 s60, s60, 7\ns_add_u32 s60, s60, {WS_DIAG}")
            a("s_waitcnt vmcnt(0) lgkmcnt(0)\ns_mov_b64 exec, 1")
            for i in range(17):
                a(f"v_mov_b32 v1, s{66+2*i}\nbuffer_store_dword v1, off, {srd(SWS)}, s60 offset:{4*i}\ns_nop 1")
            a("s_waitcnt vmcnt(0)")

    L = "v255"
    if diag: a("s_memrealtime s[66:67]\ns_memtime s[68:69]")
    a(f"""
    s_cmp_ge_u32 s2, 256
    s_cbranch_scc1 L_end
    s_load_dwordx4 s[{SWKV}:{SWKV+3}], s[0:1], 16
    s_load_dwordx2 s[{SX}:{SX+1}], s[0:1], 0
    s_load_dwordx2 s[{SWQ}:{SWQ+1}], s[0:1], 8
    s_load_dwordx2 s[{SWS}:{SWS+1}], s[0:1], 104
    s_getpc_b64 s[60:61]
    s_movk_i32 s62, {int(o.get('pf0', 6144))}
    s_mov_b32 s63, 0x00020000
    v_lshlrev_b32 v2, 7, v0
    v_lshrrev_b32 v1, 6, v0
    buffer_load_dword v197, v2, s[60:63], 0 offen
    v_and_b32 v255, 63, v0
    v_readfirstlane_b32 {sW}, v1
    s_and_b32 s54, s2, 7
    s_bfe_u32 {sJ}, s2, 0x30003
    s_lshr_b32 s55, s2, 6
    s_lshl2_add_u32 {sGRP}, s54, s55
    s_mov_b32 s{SX+2}, 2097152
    s_mov_b32 s{SX+3}, s63
    s_add_u32 {sC0}, s54, {sJ}
    s_and_b32 {sC0}, {sC0}, 3
    s_and_b32 s60, {sJ}, 3
    v_lshrrev_b32 v3, 4, {L}
    v_and_b32 v2, 15, {L}
    v_xor_b32 v12, v3, v2
    v_lshlrev_b32 v12, 4, v12
    v_lshl_or_b32 v4, v3, 10, v12
    v_xor_b32 v5, 64, v4
    v_add_u32 v5, 3072, v5
    v_xor_b32 v6, 0x80, v4
    v_add_u32 v6, 6144, v6
    v_xor_b32 v7, 0xc0, v4
    v_add_u32 v7, 9216, v7
    v_lshlrev_b32 v1, 4, {L}
    """)
    if diag:
        for i in (range(2, 17) if not o.get("lite") else ()): a(f"s_mov_b32 s{66+2*i}, 0")
    a(f"""
    s_cmp_eq_u32 {sW}, 7
    s_cbranch_scc0 L_nKV
    """)
    a(f"""
    s_setprio 3
    s_lshl2_add_u32 s64, {sGRP}, s60
    s_lshl_b32 s62, s64, 14
    s_lshl_b32 s65, s60, 12
    s_mov_b32 s61, {sC0}
    s_cmp_lt_u32 {sJ}, 4
    s_waitcnt lgkmcnt(0)
    s_cselect_b32 s{SWKV}, s{SWKV}, s{SWKV+2}
    s_cselect_b32 s{SWKV+1}, s{SWKV+1}, s{SWKV+3}
    s_movk_i32 s{SWKV+2}, 16384
    s_mov_b32 s{SWKV+3}, 0x00020000
    """)
    hstamp(9)
    for i in range(4):
        a(f"s_mov_b32 m0, {OACC + 4096*i}\ns_lshl_b32 s55, s61, 12")
        for q in range(4): a(f"buffer_load_dwordx4 v1, {srd(SWKV)}, s55 offen offset:{1024*q} lds")
        a(f"s_lshl_b32 s55, s61, 8\ns_add_u32 m0, s65, {X_ + 16384*i}\ns_add_u32 s55, s55, s62")
        for q in range(4): a(f"buffer_load_dwordx4 v{4+q}, {srd(SX)}, s55 offen offset:{1024*q} lds")
        if i < 3: a("s_add_u32 s61, s61, 1\ns_and_b32 s61, s61, 3")
    hstamp(11)
    a(f"""
    s_barrier
    s_load_dword {sTAG}, s[{SWS}:{SWS+1}], 0
    s_lshl3_add_u32 s57, {sGRP}, {sJ}
    s_lshl_b32 s57, s57, 5
    s_add_u32 s57, s57, {WS_KVF}
    s_load_dword s56, s[{SWS}:{SWS+1}], s57
    {gsetup_s}
    s_mov_b32 s{SWS+2}, {WS_SIZE}
    s_mov_b32 s{SWS+3}, 0x00020000
    v_lshlrev_b32 v5, 8, v3
    v_lshl_or_b32 v5, v2, 3, v5
    v_add_u32 v5, {OACC}, v5
    v_lshl_or_b32 v12, v2, 8, v12
    v_add_u32 v12, s65, v12
    v_xor_b32 v13, 64, v12
    v_xor_b32 v14, 0x80, v12
    v_xor_b32 v15, 0xc0, v12
    v_and_b32 v6, 1, v3
    v_lshlrev_b32 v6, 9, v6
    v_lshl_or_b32 v6, v2, 4, v6
    v_lshrrev_b32 v7, 1, v3
    v_lshl_or_b32 v6, v7, 3, v6
    v_mov_b32 v10, {M_TAG}
    s_lshr_b32 s54, s64, 1
    s_lshl_b32 s54, s54, 10
    s_and_b32 s55, s64, 1
    s_lshl_b32 s55, s55, 8
    s_add_u32 s54, s54, s55
    s_cmp_lt_u32 {sJ}, 4
    s_cselect_b32 s55, 0, {WS_V - WS_K}
    s_cselect_b32 s63, -1, 0
    s_add_u32 s54, s54, s55
    s_add_u32 s54, s54, {WS_K}
    s_cmp_lt_u32 {sJ}, 4
    """)
    def kvreads(s):
        if s & 3 == 0: a(f"s_waitcnt vmcnt({24 - 2*s})")
        if s == 0: stamp(1)
        a(f"ds_read_b64_tr_b16 {vr(128+4*s,2)}, v5 offset:{1024*s}\nds_read_b64_tr_b16 {vr(130+4*s,2)}, v5 offset:{1024*s+128}")
        a(f"ds_read_b128 {vr(64+4*s,4)}, v{12+(s&3)} offset:{16384*(s>>2)}")
    for s in range(4): kvreads(s)
    a("s_cbranch_scc0 L_KVv")
    for swap in range(2):
        for s in range(16):
            if s + 4 < 16: kvreads(s+4)
            a(f"s_waitcnt lgkmcnt({min(12, 3*(15-s))})")
            A_, B_ = (64+4*s, 128+4*s) if swap else (128+4*s, 64+4*s)
            a(f"v_mfma_f32_16x16x32_bf16 v[192:195], {vr(A_,4)}, {vr(B_,4)}, {'0' if s == 0 else 'v[192:195]'}")
        if not swap: a("s_branch L_KVd\nL_KVv:")
    a(f"""
    L_KVd:
    s_mul_i32 {sTAG}, {sTAG}, 0x9E3779B1
    s_add_u32 {sTAG}, {sTAG}, 0x7F4A7C15
    v_mov_b32 v11, {sTAG}
    ds_write_b32 v10, v11
    s_nop 3
    """)
    hstamp(12)
    a(f"""
    v_cvt_pk_bf16_f32 v196, v192, v193
    v_cvt_pk_bf16_f32 v197, v194, v195
    buffer_store_dwordx2 v[196:197], v6, {srd(SWS)}, s54 offen sc1
    v_mul_f32 v8, v192, v192
    v_fmac_f32 v8, v193, v193
    v_fmac_f32 v8, v194, v194
    v_fmac_f32 v8, v195, v195
    v_mov_b32 v9, v8
    s_waitcnt lgkmcnt(0)
    """)
    hstamp(13)
    a(f"""
    s_barrier
    v_permlane32_swap_b32 v8, v9
    v_add_f32 v8, v8, v9
    v_mov_b32 v9, v8
    s_nop 1
    v_permlane16_swap_b32 v8, v9
    v_add_f32 v8, v8, v9
    s_nop 1
    v_max_u32_dpp v8, v8, v8 row_ror:8 row_mask:0xf bank_mask:0xf
    s_nop 1
    v_max_u32_dpp v8, v8, v8 row_ror:4 row_mask:0xf bank_mask:0xf
    s_nop 1
    v_max_u32_dpp v8, v8, v8 row_ror:2 row_mask:0xf bank_mask:0xf
    s_nop 1
    v_max_u32_dpp v9, v8, v8 row_ror:1 row_mask:0xf bank_mask:0xf
    s_getreg_b32 s61, hwreg(HW_REG_XCC_ID, 0, 4)
    v_mov_b32 v8, {sTAG}
    v_and_b32 v9, s63, v9
    v_mov_b32 v10, {sTAG}
    v_mov_b32 v11, s61
    {"s_barrier" if o.get("b2") else ""}
    s_mov_b64 exec, 1
    s_waitcnt vmcnt(0)
    buffer_store_dwordx4 v[8:11], off, {srd(SWS)}, s57 sc1
    s_mov_b64 exec, -1
    s_setprio 0
    """)
    stamp(2)
    a(f"""
    {"" if o.get("b2") else "s_barrier"}
    s_barrier
    s_barrier
    s_barrier
    s_call_b64 s[14:15], L_gsetup
    s_branch L_Gjoin
    """)

    a(f"""
    L_nKV:
    s_load_dwordx2 s[{SW2}:{SW2+1}], s[0:1], 48
    s_mov_b32 s{SWS+2}, {WS_SIZE}
    s_mov_b32 s{SWS+3}, s63
    s_cmp_lt_u32 {sW}, 4
    s_cbranch_scc1 L_A1
    s_cmp_eq_u32 {sW}, 5
    s_cbranch_scc1 L_G5
    s_cmp_eq_u32 {sW}, 6
    s_cbranch_scc1 L_G6
    """)
    def loader(n, chunk):
        a("s_waitcnt lgkmcnt(0)\ns_barrier")
        pre = int(o.get("lpre", 2))
        for i in range(pre): chunk(i)
        gp = int(o.get("gp", 1))
        a(gsetup_s)
        if gp == 0: a("s_call_b64 s[14:15], L_gsetup")
        a(f"s_waitcnt vmcnt({(pre-1)*n})\ns_barrier")
        for i in range(pre, 4): chunk(i)
        if gp == 1: a("s_call_b64 s[14:15], L_gsetup")
        a(f"s_waitcnt vmcnt({2*n})\ns_barrier\ns_waitcnt vmcnt({n})\ns_barrier\ns_waitcnt vmcnt(0)\ns_barrier\ns_barrier")
        if gp == 2: a("s_call_b64 s[14:15], L_gsetup")
        a("s_branch L_Gjoin")
    a(f"s_lshl_b32 s54, {sGRP}, 16")
    for r in range(3): a(f"s_add_u32 s{33+r}, s60, {r+1}\ns_and_b32 s{33+r}, s{33+r}, 3\ns_lshl_b32 s{57+r}, s{33+r}, 14\ns_add_u32 s{57+r}, s{57+r}, s54\ns_lshl_b32 s{33+r}, s{33+r}, 12")
    def xchunk(i):
        a(f"s_add_u32 s55, {sC0}, {i}\ns_and_b32 s55, s55, 3\ns_lshl_b32 s55, s55, 8")
        for r in range(3):
            a(f"s_add_u32 m0, s{33+r}, {X_ + 16384*i}\ns_add_u32 s60, s{57+r}, s55")
            for q in range(4): a(f"buffer_load_dwordx4 v{4+q}, {srd(SX)}, s60 offen offset:{1024*q} lds")
    loader(12, xchunk)
    a(f"""
    L_G5:
    s_mov_b32 s{SWQ+2}, 524288
    s_mov_b32 s{SWQ+3}, s63
    v_lshrrev_b32 v1, 3, {L}
    v_and_b32 v2, 7, {L}
    v_bfe_u32 v3, {L}, 4, 1
    v_lshlrev_b32 v3, 2, v3
    v_xor_b32 v2, v3, v2
    v_lshlrev_b32 v2, 4, v2
    v_lshl_or_b32 v8, v1, 10, v2
    v_add_u32 v9, 7168, v8
    v_add_u32 v10, 14336, v8
    v_add_u32 v11, 21504, v8
    s_lshl_b32 s64, {sJ}, 7
    """)
    def wchunk(i):
        a(f"s_add_u32 s55, {sC0}, {i}\ns_and_b32 s55, s55, 3\ns_lshl_b32 s55, s55, 17\ns_add_u32 s55, s55, s64")
        for r in range(4):
            a(f"s_mov_b32 m0, {W_ + 16384*i + 4096*r}\n" + ("s_add_u32 s55, s55, 32768" if r else "s_nop 0"))
            for q in range(4): a(f"buffer_load_dwordx4 v{8+q}, {srd(SWQ)}, s55 offen offset:{1024*q} lds")
    loader(16, wchunk)
    a(f"""
    L_G6:
    s_load_dwordx2 s[{SB1}:{SB1+1}], s[0:1], 56
    s_load_dwordx2 s[{SB2}:{SB2+1}], s[0:1], 72
    s_load_dwordx2 s[{SGT}:{SGT+1}], s[0:1], 80
    s_lshl_b32 s60, {sJ}, 7
    s_waitcnt lgkmcnt(0)
    s_barrier
    s_mul_i32 s61, s2, 7168
    s_add_u32 s61, s61, 3584
    s_add_u32 s64, s{SW2}, s61
    s_addc_u32 s65, s{SW2+1}, 0
    s_mov_b32 s{SB1+2}, 3584
    s_mov_b32 s{SB1+3}, 0x00020000
    s_mov_b32 s{SB2+2}, 1024
    s_mov_b32 s{SB2+3}, 0x00020000
    s_mov_b32 s{SGT+2}, 1024
    s_mov_b32 s{SGT+3}, 0x00020000
    v_mov_b32 v4, 0
    v_mov_b32 v5, 0
    v_mov_b32 v6, 0
    v_mov_b32 v7, 0
    v_lshlrev_b32 v16, 4, {L}
    v_add_u32 v2, {MISC}, v16
    v_mov_b32 v8, 0xff800000
    v_mov_b32 v9, v8
    v_mov_b32 v10, v8
    v_mov_b32 v11, v8
    ds_write_b128 v2, v[4:7]
    ds_write_b128 v2, v[8:11] offset:1024
    s_lshl_b32 s61, {sC0}, 4
    v_add_u32 v1, s61, {L}
    v_and_b32 v1, 63, v1
    v_lshlrev_b32 v1, 4, v1
    s_mul_i32 s61, {sJ}, 448
    s_mov_b32 m0, {M_GATE}
    s_waitcnt lgkmcnt(0)
    """)
    def g6touch(i0, i1):
        if not o.get("nopf"):
            for i in range(i0, i1): a(f"s_load_dword s56, s[64:65], {64*i}")
    g6touch(0, 14)
    a(f"""
    buffer_load_dwordx4 v1, {srd(SGT)}, 0 offen lds
    s_mov_b32 m0, {M_B1}
    s_mov_b64 exec, 0xfffffff
    buffer_load_dwordx4 v16, {srd(SB1)}, s61 offen lds
    s_mov_b32 m0, {M_B2}
    s_mov_b64 exec, 0xff
    buffer_load_dwordx4 v16, {srd(SB2)}, s60 offen lds
    s_mov_b64 exec, -1
    """)
    a(gsetup_s + "\ns_call_b64 s[14:15], L_gsetup")
    g6touch(14, 28)
    a("s_barrier")
    g6touch(28, 42)
    a("s_barrier")
    g6touch(42, 56)
    a(f"""
    s_barrier
    s_waitcnt vmcnt(0)
    s_barrier
    s_barrier
    s_branch L_Gjoin
    L_A1:
    s_waitcnt lgkmcnt(0)
    s_barrier
    """)
    def codetouch(lbl):
        a(f"""
        s_getpc_b64 s[16:17]
        {lbl}:
        s_mov_b32 s18, L_end - {lbl}
        s_mov_b32 s19, 0x00020000
        s_lshr_b32 s57, s2, 3
        s_lshl2_add_u32 s57, s57, {sW}
        s_mul_i32 s57, s57, 384
        """)
        for i in range(6): a(f"s_buffer_load_dword s56, s[16:19], s57 offset:{64*i}")
    codetouch("L_pc")
    def w1touch(first, n):
        if o.get("nopf"): return
        a(f"s_mul_i32 s60, s2, 7168\ns_add_u32 s60, s60, {first}\ns_add_u32 s{SW2}, s{SW2}, s60\ns_addc_u32 s{SW2+1}, s{SW2+1}, 0")
        for i in range(n): a(f"s_load_dword s56, s[{SW2}:{SW2+1}], {64*i}")
    stamp(1)
    a(f"s_mul_i32 s61, {sW}, 896")
    w1touch("s61", 14)
    a(f"""
    s_lshr_b32 s60, {sW}, 1
    s_lshl_b32 s60, s60, 13
    v_and_b32 v1, 31, {L}
    v_lshrrev_b32 v2, 5, {L}
    v_and_b32 v3, 15, {L}
    v_xor_b32 v3, v2, v3
    v_lshlrev_b32 v3, 4, v3
    v_lshl_or_b32 v168, v1, 8, v3
    v_add_u32 v168, s60, v168
    s_mov_b64 s[12:13], s[{SWS}:{SWS+1}]
    s_mov_b32 s15, 0x00020000
    """)
    XA = [168, 169, 170, 171, 176, 177, 178, 179]
    for k in range(1, 8): a(f"v_xor_b32 v{XA[k]}, {32*k}, v168")
    def tr_addr(dst, hmul, t0=1, t1=2):
        a(f"""
        v_lshrrev_b32 v{t0}, 5, {L}
        v_bfe_u32 v{t1}, {L}, 2, 2
        v_mad_u32_u24 v{t0}, v{t0}, {hmul}, v{t1}
        v_lshlrev_b32 v{t0}, 7, v{t0}
        v_bfe_u32 v{t1}, {L}, 3, 1
        v_lshl_or_b32 v{t0}, v{t1}, 6, v{t0}
        v_bfe_u32 v{t1}, {L}, 4, 1
        v_lshl_or_b32 v{t0}, v{t1}, 5, v{t0}
        v_and_b32 v{t1}, 3, {L}
        v_lshl_or_b32 v{dst}, v{t1}, 3, v{t0}
        """)
    tr_addr(184, 8)
    a(f"""
    s_and_b32 s60, {sW}, 1
    s_lshl_b32 s60, s60, 6
    v_xor_b32 v184, s60, v184
    v_add_u32 v184, {W_}, v184
    v_and_b32 v1, 11, {L}
    v_cmp_eq_u32 vcc, 0, v1
    v_mov_b32 v2, 0x3f803f80
    v_lshlrev_b32 v250, 4, {L}
    v_cndmask_b32 v68, 0, v2, vcc
    v_mov_b32 v251, {M_QMAX}
    v_mov_b32 v69, v68
    v_lshlrev_b32 v247, 5, {L}
    s_lshl_b32 s60, {sW}, 8
    s_add_u32 s60, s60, {OACC}
    v_lshlrev_b32 v244, 2, {L}
    v_add_u32 v244, s60, v244
    v_add_u32 v246, {QF}, v250
    v_add_u32 v252, {WS_V - WS_K}, v250
    s_lshr_b32 s60, {sW}, 1
    s_lshl_b32 s60, s60, 12
    s_and_b32 s61, {sW}, 1
    s_lshl_b32 s61, s61, 11
    s_add_u32 s60, s60, s61
    v_add_u32 v220, s60, v246
    s_lshl_b32 s60, {sW}, 11
    s_add_u32 s60, s60, {WS_KVF}
    s_lshl_b32 s54, {sW}, 14
    s_add_u32 s54, s54, {WS_K}
    s_and_b32 s55, {sJ}, 3
    s_lshl_b32 s55, s55, 12
    s_mov_b32 s62, {QSCALE}
    s_mov_b32 s63, 0
    s_add_u32 s8, s54, s55
    s_add_u32 s55, s55, 4096
    s_and_b32 s55, s55, 0x3fff
    s_add_u32 s9, s54, s55
    s_add_u32 s55, s55, 4096
    s_and_b32 s55, s55, 0x3fff
    s_add_u32 s10, s54, s55
    s_add_u32 s55, s55, 4096
    s_and_b32 s55, s55, 0x3fff
    s_add_u32 s11, s54, s55
    """)
    for t in range(16):
        for r in (68 + 8*t, 70 + 8*t):
            if r != 68: a(f"v_mov_b64 {vr(r,2)}, v[68:69]")
    def qreads(ks):
        b = 192 + 8*(ks % 3)
        a(f"ds_read_b64_tr_b16 {vr(b,2)}, v184 offset:{2048*ks}")
        a(f"ds_read_b64_tr_b16 {vr(b+2,2)}, v184 offset:{2048*ks+512}")
        a(f"ds_read_b128 {vr(b+4,4)}, v{XA[ks&7]} offset:{16384*(ks>>3)}")
    poll = f"buffer_load_dwordx2 v[248:249], v247, {srd(SWS)}, s60 offen sc1"
    D = int(o.get("D", 5))
    early = bool(o.get("early"))
    def kvload(t):
        return [f"buffer_load_dwordx4 {vr(4*t,4)}, v250, s[12:15], s{8+(t>>2)} offen offset:{1024*(t&3)} sc1",
                f"buffer_load_dwordx4 {vr(64+8*t,4)}, v252, s[12:15], s{8+(t>>2)} offen offset:{1024*(t&3)} sc1"]
    first = [x for t in range(D) for x in kvload(t)]
    for c in range(4):
        a(("s_waitcnt vmcnt(0) lgkmcnt(0)\n" if c == 0 else "") + "s_barrier")
        if c == 0: stamp(2)
        if c > 0: hstamp(12 + c)
        if c == 1: a(f"v_mov_b32 v253, {M_TAG}\nds_read_b32 v253, v253")
        if c == (2 if early else 3): a(poll)
        qreads(8*c); qreads(8*c+1)
        if c == 3 and early:
            a(f"s_waitcnt vmcnt(0)\nv_cmp_ne_u32 vcc, {sTAG}, v248\ns_nop 3\ns_cmp_eq_u64 vcc, 0\ns_cselect_b32 s14, {WS_SIZE}, 0")
        for k in range(8):
            ks = 8*c + k
            if k < 6:
                qreads(ks+2); a("s_waitcnt lgkmcnt(6)")
            else:
                a(f"s_waitcnt lgkmcnt({3*(7-k)})")
            if c == 3 and k == 7: a("s_barrier")
            b = 192 + 8*(ks % 3)
            a(f"v_mfma_f32_32x32x16_bf16 v[224:239], {vr(b,4)}, {vr(b+4,4)}, {'0' if ks == 0 else 'v[224:239]'}")
            if c == 3 and early: a("\n".join(first[k:k+1] if k < 7 else first[7:]))
        if c == 1: a(f"v_readfirstlane_b32 {sTAG}, v253")
    stamp(3)
    a(f"""
    s_setprio 2
    {"s_cmp_lg_u32 s14, 0" if early else ""}
    {"s_cbranch_scc1 L_kvgo" if early else "s_branch L_kvchk"}
    L_kvpoll:
    {poll}
    s_add_u32 s63, s63, 1
    s_cmp_gt_u32 s63, {SPIN_MAX}
    s_cbranch_scc1 L_kvok
    L_kvchk:
    s_waitcnt vmcnt(0)
    v_cmp_ne_u32 vcc, {sTAG}, v248
    s_cbranch_vccnz L_kvpoll
    L_kvok:
    s_mov_b32 s14, {WS_SIZE}
    """)
    a("\n".join(first))
    a("L_kvgo:\ns_nop 6")
    stamp(5)
    for r in range(16): a(f"v_mul_f32 v{224+r}, s62, v{224+r}")
    for r in range(8): a(f"v_cvt_pk_bf16_f32 v{192+r}, v{224+2*r}, v{225+2*r}")
    a(f"v_mov_b32 v245, {sTAG}\nds_write_b128 v220, v[192:195]\nds_write_b128 v220, v[196:199] offset:1024")
    a(f"s_cmp_lg_u32 {sW}, 0\ns_cbranch_scc1 L_q0s\nds_write_b32 v251, v245 offset:{M_Q0 - M_QMAX}\nL_q0s:")
    stamp(4)
    a("v_mul_f32 v208, v224, v224\nv_mul_f32 v209, v232, v232")
    for r in range(1, 8): a(f"v_fmac_f32 v208, v{224+r}, v{224+r}\nv_fmac_f32 v209, v{232+r}, v{232+r}")
    a(f"""
    s_mov_b32 s63, 0
    L_q0w:
    ds_read_b32 v210, v251 offset:{M_Q0 - M_QMAX}
    ds_read_b128 v[240:243], v246
    s_add_u32 s63, s63, 1
    s_cmp_gt_u32 s63, {SPIN_MAX}
    s_cbranch_scc1 L_q0x
    s_waitcnt lgkmcnt(0)
    v_cmp_ne_u32 vcc, {sTAG}, v210
    s_cbranch_vccnz L_q0w
    L_q0x:
    v_permlane32_swap_b32 v208, v209
    v_max_u32_dpp v249, v249, v249 row_ror:8 row_mask:0xf bank_mask:0xf
    v_add_f32 v254, v208, v209
    v_mov_b32 v253, 1
    v_max_u32_dpp v249, v249, v249 row_ror:4 row_mask:0xf bank_mask:0xf
    v_max_u32_dpp v254, v254, v254 row_ror:8 row_mask:0xf bank_mask:0xf
    s_mov_b32 s64, 0x00010001
    v_max_u32_dpp v249, v249, v249 row_ror:2 row_mask:0xf bank_mask:0xf
    v_max_u32_dpp v254, v254, v254 row_ror:4 row_mask:0xf bank_mask:0xf
    s_mov_b32 s65, 0x00010001
    v_max_u32_dpp v249, v249, v249 row_ror:1 row_mask:0xf bank_mask:0xf
    v_max_u32_dpp v254, v254, v254 row_ror:2 row_mask:0xf bank_mask:0xf
    v_add_u32 v246, 1024, v246
    s_mov_b32 s62, 6
    v_max_u32_dpp v254, v254, v254 row_ror:1 row_mask:0xf bank_mask:0xf
    s_mov_b64 exec, s[64:65]
    ds_max_u32 v251, v254
    ds_max_u32 v251, v249 offset:4
    ds_add_u32 v251, v253 offset:8
    s_mov_b64 exec, -1
    s_mov_b32 s64, {0 if o.get('noG') else 0x24}
    s_waitcnt vmcnt({2*D-1})
    v_mfma_f32_32x32x16_bf16 v[192:207], v[0:3], v[240:243], 0
    s_nop 4
    """)
    stamp(6)
    if diag and not o.get("lite"): a("s_memrealtime s[86:87]")
    flush = [f"ds_write2st64_b32 v244, v{224+2*r}, v{225+2*r} offset0:{8*r} offset1:{8*r+4}" for r in range(4)] + ["ds_write2st64_b32 v244, v232, v245 offset0:32 offset1:36", f"v_add_u32 v244, {0 if o.get('noG') else SLOT}, v244"]
    def tile(t, peel=False):
        first = peel and t == 0
        S = [192, 208]
        cur = S[t & 1]; nxt = S[(t+1) & 1]
        Kn = 4*((t+1) % 16); Vp = 64 + 8*((t-1) % 16) + 4; Vc = 64 + 8*t
        m0 = f"v_mfma_f32_32x32x16_bf16 v[224:239], {vr(Vp,4)}, {vr(nxt+4,4)}, v[224:239]"
        m1 = f"v_mfma_f32_32x32x16_bf16 {vr(nxt,16)}, {vr(Kn,4)}, v[240:243], 0"
        m2 = f"v_mfma_f32_32x32x16_bf16 v[224:239], {vr(Vc,4)}, {vr(cur,4)}, {'0' if t == 0 else 'v[224:239]'}"
        e = lambda i: f"v_exp_f32 v{cur+i}, v{cur+i}"
        c = lambda i: f"v_cvt_pk_bf16_f32 v{cur+i}, v{cur+2*i}, v{cur+2*i+1}"
        cp7 = f"v_cvt_pk_bf16_f32 v{nxt+7}, v{nxt+14}, v{nxt+15}"
        seq = []
        if peel:
            if t + D < 16: seq += kvload(t + D)
            if t == int(o.get("go", 8)): seq.append(f"ds_write_b32 v251, v245 offset:{M_GO - M_QMAX}")
            seq.append(f"s_waitcnt vmcnt({max(2*min(t+D+1, 16) - (2*t+3), 0)})")
            seq += [f"v_permlane16_swap_b32 v{Vc+r}, v{Vc+4+r}" for r in range(4)]
        qn = ["ds_read_b128 v[240:243], v246", "v_add_u32 v246, 1024, v246"]
        if peel: qn.append("ds_read_b96 v[248:250], v251")
        if o.get("even") or (t == 0 and not first):
            seq += [e(0)] + ([] if first else [cp7]) + [e(1), e(2)] + ([] if first else [m0]) + [c(0), e(3), e(4), c(1), e(5), e(6)]
            if t == 15: seq.append("s_waitcnt lgkmcnt(0)")
            seq.append(m1)
            if t == 14: seq += qn
            seq += [c(2), e(7), e(8), c(3), e(9), e(10)]
            if t == 0 and not first: seq += (flush if not o.get("noflush") else [])
            seq += [c(4), m2, e(11), e(12), c(5), e(13), e(14), c(6)]
        else:
            seq += [e(0)] + ([] if first else [cp7]) + [e(1), e(2), e(3)]
            if t == 15: seq.append("s_waitcnt lgkmcnt(0)")
            seq += [e(4), e(5)] + ([] if first else [m0]) + [e(6), e(7), c(0), c(1), m1, c(2), c(3), e(8), e(9), m2]
            if t == 14: seq += qn
            seq += [e(10), c(4), e(11), e(12), c(5), e(13), e(14), c(6)]
        if t == 15 and not peel: seq += ["s_bitcmp1_b32 s64, s62"]
        seq += [e(15)]
        a("\n".join(seq))
    for t in range(16): tile(t, peel=True)
    stamp(7)
    a(f"""
    v_cmp_ne_u32 vcc, 16, v250
    v_mul_f32 v248, v248, v249
    s_mov_b32 s63, 0
    s_cbranch_vccnz L_chk2
    v_cmp_nge_f32 vcc, 0x45700000, v248
    {"s_nop 0" if o.get("force_slow") else "s_cbranch_vccz L_top"}
    s_branch L_slowgo
    .p2align 6
    L_top:
    """)
    for t in range(16): tile(t)
    if diag and not rt and not o.get("hd") and not o.get("lite"):
        a("s_cselect_b32 s57, 1, 0\ns_cmp_lt_u32 s62, 2\ns_cbranch_scc1 L_nst\ns_mov_b32 s90, s92\ns_mov_b32 s92, s94\ns_mov_b32 s94, s96\ns_mov_b32 s96, s98\ns_memtime s[98:99]\ns_waitcnt lgkmcnt(0)\nL_nst:\ns_cmp_eq_u32 s57, 1")
    a(f"""
    s_cbranch_scc1 L_check
    s_sub_u32 s62, s62, 1
    s_cbranch_scc0 L_top
    v_cvt_pk_bf16_f32 v215, v222, v223
    s_nop 1
    v_mfma_f32_32x32x16_bf16 v[224:239], {vr(64+8*15+4,4)}, v[212:215], v[224:239]
    s_nop 11
    """)
    a("\n".join(flush[:5]) + "\ns_waitcnt lgkmcnt(0)")
    stamp(8)
    if diag and not o.get("lite"): a("s_memrealtime s[88:89]")
    a("s_barrier")
    diag_out("a")
    a("s_endpgm")
    a(f"""
    L_check:
    s_mov_b32 s63, 0
    s_sub_u32 s62, s62, 1
    s_cmp_eq_u32 s62, 4
    s_cselect_b32 s60, 4, 12
    s_cselect_b32 s61, {OACC + 2*SLOT - X_}, 0
    s_add_u32 s60, s60, {M_CNTG}
    v_mov_b32 v249, s60
    L_xw:
    ds_read_b32 v248, v249
    s_add_u32 s63, s63, 1
    s_cmp_gt_u32 s63, {SPIN_MAX}
    s_cbranch_scc1 L_xw_x
    s_waitcnt lgkmcnt(0)
    v_cmp_ne_u32 vcc, 4, v248
    s_cbranch_vccnz L_xw
    L_xw_x:
    v_subrev_u32 v244, s61, v244
    s_branch L_top
    L_chk2:
    ds_read_b96 v[248:250], v251
    s_add_u32 s63, s63, 1
    s_cmp_gt_u32 s63, {SPIN_MAX}
    s_cbranch_scc1 L_chk3
    s_waitcnt lgkmcnt(0)
    v_cmp_ne_u32 vcc, 16, v250
    s_cbranch_vccnz L_chk2
    L_chk3:
    v_mul_f32 v248, v248, v249
    v_cmp_nge_f32 vcc, 0x45700000, v248
    {"s_nop 0" if o.get("force_slow") else "s_cbranch_vccz L_top"}
    L_slowgo:
    """)
    a(f"""
    v_lshlrev_b32 v246, 4, {L}
    v_add_u32 v246, {QF}, v246
    v_and_b32 v247, 31, {L}
    v_lshlrev_b32 v247, 2, v247
    v_add_u32 v247, {M_M}, v247
    v_mov_b32 v251, {M_CNTS}
    s_mov_b32 s62, 8
    L_slow:
    ds_read_b128 v[240:243], v246
    v_add_u32 v246, 1024, v246
    v_mov_b32 v248, 0xff800000
    s_waitcnt lgkmcnt(0)
    """)
    for t in range(16):
        a(f"v_mfma_f32_32x32x16_bf16 v[192:207], {vr(4*t,4)}, v[240:243], 0\ns_nop 11")
        for r in range(8): a(f"v_max3_f32 v248, v248, v{192+2*r}, v{193+2*r}")
    a(f"""
    ds_max_f32 v247, v248
    s_mov_b64 exec, 1
    ds_add_u32 v251, v253
    s_mov_b64 exec, -1
    s_mov_b32 s63, 0
    L_slow2:
    s_sleep 1
    ds_read_b32 v249, v251
    s_add_u32 s63, s63, 1
    s_cmp_gt_u32 s63, {SPIN_MAX}
    s_cbranch_scc1 L_slow3
    s_waitcnt lgkmcnt(0)
    v_cmp_ne_u32 vcc, 4, v249
    s_cbranch_vccnz L_slow2
    L_slow3:
    ds_read_b32 v248, v247
    v_add_u32 v247, 128, v247
    v_add_u32 v251, 4, v251
    s_waitcnt lgkmcnt(0)
    """)
    for t in range(16):
        a(f"v_mfma_f32_32x32x16_bf16 v[192:207], {vr(4*t,4)}, v[240:243], 0\ns_nop 11")
        for r in range(16): a(f"v_sub_f32 v{192+r}, v{192+r}, v248")
        for r in range(16): a(f"v_exp_f32 v{192+r}, v{192+r}")
        a("s_nop 0")
        for r in range(8): a(f"v_cvt_pk_bf16_f32 v{208+r}, v{192+2*r}, v{193+2*r}")
        a("s_nop 1")
        a(f"v_mfma_f32_32x32x16_bf16 v[224:239], {vr(64+8*t,4)}, v[208:211], {'0' if t == 0 else 'v[224:239]'}")
        a(f"v_mfma_f32_32x32x16_bf16 v[224:239], {vr(68+8*t,4)}, v[212:215], v[224:239]")
    a(f"""
    s_cmp_lg_u32 s62, 6
    s_cbranch_scc1 L_slow5
    s_mov_b32 s63, 0
    v_mov_b32 v249, {M_CNTG + 12}
    L_slow4:
    ds_read_b32 v248, v249
    s_add_u32 s63, s63, 1
    s_cmp_gt_u32 s63, {SPIN_MAX}
    s_cbranch_scc1 L_slow4x
    s_waitcnt lgkmcnt(0)
    v_cmp_ne_u32 vcc, 4, v248
    s_cbranch_vccnz L_slow4
    L_slow4x:
    v_subrev_u32 v244, {OACC + 2*SLOT - X_}, v244
    L_slow5:
    """)
    a("s_nop 11")
    a("\n".join(flush))
    a(f"""
    s_sub_u32 s62, s62, 1
    s_cmp_lg_u32 s62, 0
    s_cbranch_scc1 L_slow
    s_waitcnt lgkmcnt(0)
    s_barrier
    """)
    diag_out("s")
    a("s_endpgm")

    a(f"""
    L_Gjoin:
    s_sub_u32 {sW}, {sW}, 4
    """)
    gw = sW
    inG[0] = True
    def lds_wait(lbl, addr, off, val, sleep=2):
        a(f"""
        s_mov_b32 s63, 0
        {lbl}:
        ds_read_b32 v178, {addr} offset:{off}
        s_add_u32 s63, s63, 1
        s_cmp_gt_u32 s63, {SPIN_MAX}
        s_cbranch_scc1 {lbl}_x
        s_waitcnt lgkmcnt(0)
        v_cmp_ne_u32 vcc, {val}, v178
        s_cbranch_vccz {lbl}_x
        s_sleep {sleep}
        s_branch {lbl}
        {lbl}_x:
        """)
    a(f"""
    ds_read_b32 v178, v177 offset:{M_TAG - M_CNTG}
    ds_read_u16 v152, v12
    ds_read_u16 v156, v12 offset:64
    ds_read_u16 v168, v13
    ds_read_u16 v172, v13 offset:64
    s_setprio 3
    s_waitcnt lgkmcnt(0)
    v_readfirstlane_b32 {sTAG}, v178
    s_nop 3
    """)
    if o.get("noG"): a("s_barrier\ns_branch L_gend")
    PRE = int(o.get("pre", 8))
    if int(o.get("go", 8)) >= 0 and not PRE: lds_wait("L_go", "v177", M_GO - M_CNTG, sTAG, 3)
    a(f"""
    s_setprio 0
    s_lshl_b32 s64, {sGRP}, 8
    s_add_u32 s64, s64, {WS_KVF}
    s_mul_i32 s4, {gw}, {448*1024}
    s_lshl_b32 s55, {sJ}, 7
    s_add_u32 s4, s4, s55
    s_lshl_b32 s7, {gw}, 17
    s_add_u32 s7, s7, s55
    s_mul_i32 s5, {sGRP}, {2*112*1024}
    s_add_u32 s5, s5, {WS_H}
    s_lshl_b32 s24, s48, 11
    s_add_u32 s24, s24, s5
    s_add_u32 s25, s24, {112*1024}
    s_mul_i32 s61, {gw}, {28*1024}
    s_add_u32 s5, s5, s61
    s_and_b32 s6, {sGRP}, {0 if o.get('norot2') else 3}
    s_lshl_b32 s10, {sGRP}, 3
    s_add_u32 s8, s10, {sJ}
    s_lshl_b32 s26, s8, 2
    s_add_u32 s26, s26, {gw}
    s_lshl_b32 s26, s26, 5
    s_add_u32 s26, s26, {WS_HF}
    s_lshl_b32 s8, s8, 3
    s_add_u32 s8, s8, {gw}
    s_lshl_b32 s8, s8, 10
    s_add_u32 s8, s8, {WS_O}
    s_add_u32 s9, s8, 4096
    s_lshl_b32 s60, {gw}, 1
    s_add_u32 s10, s10, s60
    s_lshl_b32 s27, s10, 7
    s_add_u32 s27, s27, {WS_HF}
    s_lshl_b32 s10, s10, 13
    s_add_u32 s10, s10, {WS_O}
    s_add_u32 s65, s10, 8192
    s_lshl_b32 s33, {sGRP}, 16
    s_add_u32 s11, s33, {WS_O + 7*1024}
    s_add_u32 s33, s33, s55
    s_add_u32 s34, s33, 0x8000
    s_lshl_b32 s60, {gw}, 13
    s_add_u32 s33, s33, s60
    s_movk_i32 s32, {4*SLOT // 4}
    s_cmp_lt_u32 {gw}, 2
    s_cselect_b32 s32, {(2*SLOT + X_ - OACC) // 4 & 0xffffffff}, s32
    s_lshl_b32 s32, s32, 2
    """)
    stamp(3)
    a(f"s_cmp_eq_u32 {gw}, 3\ns_cbranch_scc1 L_F1w3")
    ACC = lambda mt, nt: 32*nt + 16*mt
    def mf(mt, nt, A_, B_, c0=False):
        d = vr(ACC(mt, nt), 16)
        a(f"v_mfma_f32_32x32x16_bf16 {d}, {vr(A_,4)}, {vr(B_,4)}, {'0' if c0 else d}")
    class VM:
        def __init__(s_): s_.ops = []
        def op(s_, ins, tag=None): a(ins); s_.ops.append(tag)
        def n(s_, *tags): return len(s_.ops) - 1 - max(i for i, t in enumerate(s_.ops) if t in tags)
    xcload = f"buffer_load_dwordx2 v[194:195], v180, {srd(SWS)}, s64 offen offset:8 sc1"
    def f1reads(k, w3):
        ab = 120 + 8*(k & 1); bb = 64 + 8*(k & 1); u = k & 7; xo = 16384*(k >> 3)
        r0 = [f"ds_read_b64_tr_b16 {vr(ab,2)}, v144 offset:{2048*u}", f"ds_read_b64_tr_b16 {vr(ab+2,2)}, v144 offset:{2048*u+(256 if w3 else 512)}", f"ds_read_b128 {vr(bb,4)}, v{136+u} offset:{xo}"]
        if not w3: r1 = [f"ds_read_b64_tr_b16 {vr(ab+4,2)}, v145 offset:{2048*u}", f"ds_read_b64_tr_b16 {vr(ab+6,2)}, v145 offset:{2048*u+512}"]
        else: r1 = [f"ds_read_b128 {vr(ab+4,4)}, v145 offset:{32*k}"]
        r1.append(f"ds_read_b128 {vr(bb+4,4)}, v{136+u} offset:{xo+8192}")
        return "\n".join(r0), "\n".join(r1)
    def ffn1(w3):
        vm = VM()
        def dma(k, half):
            if k < 32:
                if half == 0: vm.op(f"buffer_load_dwordx4 v148, {srd(SW1)}, s54 offen lds", k)
                elif not w3: vm.op(f"buffer_load_dwordx4 v149, {srd(SW1)}, s54 offen offset:1024 lds", k)
            else:
                vm.op(f"buffer_load_dwordx4 v{150+half}, {srd(SW2 if k < 39 else SWO)}, s54 offen offset:{1024*half} lds", k)
        def adv(k):
            if k < 32 and k & 7: a(f"s_add_u32 s54, s54, {16*3584}")
            elif k < 32: a(f"s_add_u32 s55, {sC0}, {k >> 3}\ns_and_b32 s55, s55, 3\ns_mul_i32 s55, s55, {128*3584}\ns_add_u32 s54, s100, s55")
            elif k == 32: a(f"s_mul_i32 s54, s6, {7*16384}\ns_add_u32 s54, s54, s4")
            elif k < 39: a("s_add_u32 s54, s54, 16384")
            elif k == 39: a(f"s_add_u32 s54, s7, {7*16384}")
        for k in range(8):
            a(f"s_add_u32 m0, s49, {2048*k}\ns_nop 0")
            dma(k, 0); dma(k, 1); adv(k+1)
        if w3: a("s_setprio 3\nv_mov_b32 v156, 0\ns_setprio 0")
        a(f"s_waitcnt vmcnt({vm.n(0)})")
        a("\n".join(f1reads(0, w3)))
        for nt in range(2):
            mf(0, nt, 152, 160, True)
            mf(1, nt, 156, 160, True)
        for k in range(32):
            u = k & 7
            ab = 120 + 8*(k & 1); bb = 64 + 8*(k & 1)
            if k == 12:
                for so in ("s8", "s9"): vm.op(f"buffer_store_dwordx4 v[200:203], v166, {srd(SWS)}, {so} offen sc1")
                vm.op(f"buffer_load_dword v178, v180, {srd(SWS)}, s27 offen sc1")
                vm.op(xcload, "xc")
                if not w3 and not o.get("nopf"):
                    a(f"""
                    s_cmp_eq_u32 {gw}, 0
                    s_cbranch_scc0 L_f1m
                    s_mul_i32 s60, s2, 7168
                    s_mov_b64 exec, s[12:13]
                    buffer_load_dword v178, v196, {srd(SW2)}, s60 offen
                    s_mov_b64 exec, 0xffff
                    s_lshl_b32 s60, s2, 11
                    buffer_load_dword v178, v196, {srd(SWO)}, s60 offen
                    s_mov_b64 exec, -1
                    L_f1m:
                    """)
                if o.get("hpre"):
                    for so in ("s24", "s25"):
                        for q in range(2 if w3 else 4): vm.op(f"buffer_load_dwordx4 v[204:207], v166, {srd(SWS)}, {so} offen offset:{1024*q}")
            if PRE and k == PRE:
                a("s_setprio 3")
                lds_wait("L_go" + "ab"[w3], "v177", M_GO - M_CNTG, sTAG, 2)
                a("s_setprio 0")
                for kk in range(8, 8 + PRE):
                    a(f"s_add_u32 m0, s49, {2048*(kk & 7)}\ns_nop 0")
                    dma(kk, 0); dma(kk, 1); adv(kk+1)
                if PRE == 8:
                    a(f"s_waitcnt vmcnt({vm.n(8)})")
                    a("\n".join(f1reads(8, w3)))
            hold = k < PRE
            a(f"s_waitcnt vmcnt({vm.n(k+1) if k < 31 and not (hold and k == 7) else 63}) lgkmcnt(0)")
            r0, r1 = f1reads(k+1, w3) if k < 31 and not (hold and k == 7) else ("", "")
            mf(0, 0, ab, bb)
            a(r0)
            mf(1, 0, ab+4, bb)
            a(r1)
            if not hold: a(f"s_add_u32 m0, s49, {2048*u}")
            mf(0, 1, ab, bb+4)
            if not hold: dma(k+8, 0)
            if u == 7: a(f"s_mov_b64 exec, 1\nds_add_u32 v177, v167 offset:{4*(k >> 3)}\ns_mov_b64 exec, -1")
            mf(1, 1, ab+4, bb+4)
            if not hold: dma(k+8, 1); adv(k+9)
        a(f"s_waitcnt vmcnt({vm.n('xc')})")
    ffn1(False)
    a("s_branch L_F1done\nL_F1w3:")
    ffn1(True)
    a(f"""
    L_F1done:
    s_mov_b32 s63, 0
    s_getreg_b32 s61, hwreg(HW_REG_XCC_ID, 0, 4)
    s_setprio 3
    s_branch L_xc_c
    L_xc:
    {xcload}
    s_add_u32 s63, s63, 1
    s_cmp_gt_u32 s63, {SPIN_MAX}
    s_cbranch_scc1 L_xc_x
    s_waitcnt vmcnt(0)
    L_xc_c:
    v_cmp_ne_u32 vcc, {sTAG}, v194
    s_cbranch_vccnz L_xc
    L_xc_x:
    v_cmp_ne_u32 vcc, s61, v195
    s_nop 3
    s_cmp_eq_u64 vcc, 0
    s_cselect_b32 s101, {0 if o.get('nofast') else 1}, 0
    """)
    nst = [0]
    def hstore(ins):
        nst[0] += 1
        a(f"s_cbranch_scc1 L_hs{nst[0]}a\n{ins} sc1\ns_branch L_hs{nst[0]}b\nL_hs{nst[0]}a:\n{ins}\nL_hs{nst[0]}b:")
    stamp(4)
    def hst(mt, nt):
        b = ACC(mt, nt)
        for r in range(16): a(f"v_max_f32 v{b+r}, 0, v{b+r}")
        for r in range(8): a(f"v_pk_mul_f32 {vr(b+2*r,2)}, {vr(b+2*r,2)}, {vr(b+2*r,2)}")
        for r in range(8): a(f"v_cvt_pk_bf16_f32 v{b+r}, v{b+2*r}, v{b+2*r+1}")
        so = "s25" if nt else "s24"
        st = hstore if o.get("hpre") else (lambda ins: a(ins + " sc1"))
        a("s_cmp_eq_u32 s101, 1")
        st(f"buffer_store_dwordx4 {vr(b,4)}, v166, {srd(SWS)}, {so} offen offset:{2048*mt}")
        st(f"buffer_store_dwordx4 {vr(b+4,4)}, v166, {srd(SWS)}, {so} offen offset:{2048*mt+1024}")
    hst(0, 0); hst(0, 1)
    a(f"s_cmp_eq_u32 {gw}, 3\ns_cbranch_scc1 L_gate")
    hst(1, 0); hst(1, 1)
    a(f"""
    s_branch L_gated
    L_gate:
    v_mul_f32 v16, {0x80000000 | LOG2E}, v16
    v_mul_f32 v48, {0x80000000 | LOG2E}, v48
    v_exp_f32 v16, v16
    v_exp_f32 v48, v48
    s_nop 0
    v_add_f32 v16, 1.0, v16
    v_add_f32 v48, 1.0, v48
    v_rcp_f32 v16, v16
    v_rcp_f32 v48, v48
    s_nop 1
    ds_write_b32 v192, v16
    ds_write_b32 v192, v48 offset:128
    L_gated:
    s_mov_b64 exec, 1
    ds_add_u32 v177, v167 offset:16
    s_mov_b64 exec, -1
    """)
    def fin(B, sfx, first):
        a(f"""
        s_mov_b32 s63, 0
        L_fw{sfx}:
        ds_read_b32 v{B}, v176
        s_add_u32 s63, s63, 1
        s_cmp_gt_u32 s63, {SPIN_MAX}
        s_cbranch_scc1 L_fw{sfx}_x
        s_waitcnt lgkmcnt(0)
        v_cmp_ne_u32 vcc, {sTAG}, v{B}
        s_cbranch_vccz L_fw{sfx}_x
        s_sleep 3
        s_branch L_fw{sfx}
        L_fw{sfx}_x:
        ds_read2st64_b32 {vr(B+32,2)}, v181 offset0:32 offset1:33
        ds_read2st64_b32 {vr(B+34,2)}, v181 offset0:34 offset1:35
        """)
        for w in range(4):
            for r in range(4): a(f"ds_read2st64_b32 {vr(B+8*w+2*r,2)}, v181 offset0:{8*r+w} offset1:{8*r+4+w}")
        a(f"s_cmp_eq_u32 s101, 1\ns_waitcnt lgkmcnt(8)\nv_pk_add_f32 {vr(B+32,2)}, {vr(B+32,2)}, {vr(B+34,2)}")
        for r in range(4): a(f"v_pk_add_f32 {vr(B+2*r,2)}, {vr(B+2*r,2)}, {vr(B+8+2*r,2)}")
        a(f"v_add_f32 v{B+32}, v{B+32}, v{B+33}\ns_waitcnt lgkmcnt(0)")
        for r in range(4): a(f"v_pk_add_f32 {vr(B+16+2*r,2)}, {vr(B+16+2*r,2)}, {vr(B+24+2*r,2)}")
        a(f"v_rcp_f32 v{B+32}, v{B+32}")
        for r in range(4): a(f"v_pk_add_f32 {vr(B+2*r,2)}, {vr(B+2*r,2)}, {vr(B+16+2*r,2)}")
        a(f"v_mul_f32 v{B+32}, v{B+32}, v164")
        for r in range(4): a(f"v_pk_mul_f32 {vr(B+2*r,2)}, {vr(B+2*r,2)}, {vr(B+32,2)} op_sel_hi:[1,0]")
        for r in range(4): a(f"v_cvt_pk_bf16_f32 v{B+r}, v{B+2*r}, v{B+2*r+1}")
        for r in range(4): a(f"v_min_u32 v{B+r}, -2, v{B+r}")
        hstore(f"buffer_store_dwordx4 {vr(B,4)}, v166, {srd(SWS)}, {'s8' if first else 's4'} offen")
        if first:
            a(f"""
            s_or_b32 s55, s2, {gw}
            s_cbranch_scc1 L_noep
            v_mov_b32 v{B+33}, {sTAG}
            s_mov_b64 exec, 1
            buffer_store_dword v{B+33}, off, {srd(SWS)}, 0 sc1
            s_mov_b64 exec, -1
            L_noep:
            """)
        else: a("s_nop 0")
    def flag_wait(lbl, vaddr, soff, sleep=2):
        a(f"""
        s_mov_b32 s63, 0
        {lbl}:
        buffer_load_dword v178, {vaddr}, {srd(SWS)}, {soff} offen sc1
        s_add_u32 s63, s63, 1
        s_cmp_gt_u32 s63, {SPIN_MAX}
        s_cbranch_scc1 {lbl}_x
        s_waitcnt vmcnt(0)
        v_cmp_ne_u32 vcc, {sTAG}, v178
        s_cbranch_vccz {lbl}_x
        s_sleep {sleep}
        s_branch {lbl}
        {lbl}_x:
        """)
    a(f"""
    v_mov_b32 v129, {sTAG}
    s_cmp_eq_u32 {gw}, 0
    s_cselect_b32 s60, -1, 0
    v_and_b32 v160, s60, v160
    s_cmp_eq_u32 s101, 1
    s_mov_b64 exec, 1
    s_waitcnt vmcnt(0)
    """)
    hstore(f"buffer_store_dword v129, off, {srd(SWS)}, s26")
    a("s_mov_b64 exec, -1")
    stamp(5)
    lds_wait("L_gs1", "v177", 16, "4")
    a("ds_read_b32 v164, v192\nds_read_b32 v165, v192 offset:128")
    for nt in range(2):
        mf(0, nt, 168, 160, True); mf(1, nt, 172, 160, True)
    flag_wait("L_hw", "v180", "s27")
    a(f"v_mov_b32 v180, v193\nv_subrev_u32 v168, {OACC - X_}, v190\nv_subrev_u32 v169, {OACC - X_}, v191\nv_mov_b64 v[170:171], v[198:199]")
    stamp(6)
    a(f"""
    s_setprio 0
    s_mul_i32 s60, s6, 7168
    s_add_u32 s60, s60, s5
    s_add_u32 s61, s60, {112*1024}
    """)
    vm = VM()
    def hA(k): vm.op(f"buffer_load_dwordx4 {vr(64+8*(k%7),4)}, v166, {srd(SWS)}, s60 offen sc1", ("h", k)); a("s_add_u32 s60, s60, 1024")
    def hB(k): vm.op(f"buffer_load_dwordx4 {vr(68+8*(k%7),4)}, v166, {srd(SWS)}, s61 offen sc1", ("h", k)); a("s_add_u32 s61, s61, 1024")
    for k in range(7): hA(k); hB(k)
    def f2reads(k):
        ab = 120 + 8*(k & 1); slot = k % 7
        return (f"ds_read_b64_tr_b16 {vr(ab,2)}, v146 offset:{2048*slot}\nds_read_b64_tr_b16 {vr(ab+2,2)}, v146 offset:{2048*slot+1024}\n"
                f"ds_read_b64_tr_b16 {vr(ab+4,2)}, v147 offset:{2048*slot}\nds_read_b64_tr_b16 {vr(ab+6,2)}, v147 offset:{2048*slot+1024}")
    a(f2reads(0))
    for k in range(28):
        u = k % 7
        if u == 0 and k < 21: a(f"s_add_u32 s6, s6, 1\ns_and_b32 s6, s6, 3\ns_mul_i32 s54, s6, {7*16384}\ns_add_u32 s54, s54, s4\ns_mul_i32 s60, s6, 7168\ns_add_u32 s60, s60, s5\ns_add_u32 s61, s60, {112*1024}")
        if k == 21: a("s_mov_b32 s54, s7\ns_mov_b32 s60, s10\ns_mov_b32 s61, s65")
        if k == int(o.get("fink", 16)):
            a("s_setprio 3")
            fin(196, "m", True)
            a("s_setprio 0")
        ab = 120 + 8*(k & 1); bb = 64 + 8*u
        need = [("h", k)] + ([("w", k+1)] if 7 <= k+1 < 28 else [])
        a(f"s_waitcnt vmcnt({vm.n(*need)}) lgkmcnt(0)")
        mf(0, 0, ab, bb)
        if k < 27: a(f2reads(k+1))
        mf(1, 0, ab+4, bb)
        if k < 25: hA(k+7)
        a(f"s_add_u32 m0, s49, {2048*u}")
        mf(0, 1, ab, bb+4)
        sr = srd(SW2 if k < 21 else SWO)
        vm.op(f"buffer_load_dwordx4 v150, {sr}, s54 offen lds", ("w", k+7))
        vm.op(f"buffer_load_dwordx4 v151, {sr}, s54 offen offset:1024 lds", ("w", k+7))
        a("s_add_u32 s54, s54, 16384")
        mf(1, 1, ab+4, bb+4)
        if k < 25: hB(k+7)
    a("s_setprio 3")
    stamp(7)
    def cnt_add(off): a(f"s_mov_b64 exec, 1\nds_add_u32 v177, v167 offset:{off}\ns_mov_b64 exec, -1")
    a("v_sub_f32 v182, 1.0, v164\nv_sub_f32 v184, 1.0, v165\nv_mov_b32 v164, v165\ns_waitcnt vmcnt(0) lgkmcnt(0)")
    cnt_add(20)
    WOF = lambda i, mt: 192 + 8*i + 4*mt if (i, mt) != (7, 1) else 136
    for i in range(8):
        for mt in range(2):
            for e in range(2): a(f"ds_read_b64_tr_b16 {vr(WOF(i,mt)+2*e,2)}, v{146+mt} offset:{2048*i+1024*e}")
    for r in range(16): a(f"v_pk_mul_f32 {vr(2*r,2)}, {vr(2*r,2)}, v[182:183] op_sel_hi:[1,0]")
    for r in range(16, 32): a(f"v_pk_mul_f32 {vr(2*r,2)}, {vr(2*r,2)}, v[184:185] op_sel_hi:[1,0]")
    OF = lambda jj, sl: 64 + 8*sl + 4*jj
    def oload(jj, sl): return f"buffer_load_dwordx4 {vr(OF(jj, sl),4)}, v166, {srd(SWS)}, {('s10', 's65', 's8', 's9')[jj + 2*(sl >> 2)]} offen offset:{1024*(sl&3)} sc1"
    def ofrags(lbl, loads, regs, sleep, pre=False):
        n = len(loads)
        a("s_mov_b32 s63, 0")
        if pre: a(f"s_branch {lbl}_c")
        a(f"{lbl}:")
        a("\n".join(loads))
        a(f"s_add_u32 s63, s63, 1\ns_cmp_gt_u32 s63, {SPIN_MAX}\ns_cbranch_scc1 {lbl}_x\n{lbl}_c:")
        for i in range(n):
            r = regs[i]
            a(f"s_waitcnt vmcnt({n-1-i})")
            if i == 0: a(f"v_max3_u32 v178, v{r}, v{r+1}, v{r+2}\nv_max_u32 v178, v178, v{r+3}")
            else: a(f"v_max3_u32 v178, v178, v{r}, v{r+1}\nv_max3_u32 v178, v178, v{r+2}, v{r+3}")
        a(f"v_cmp_eq_u32 vcc, -1, v178\ns_cbranch_vccz {lbl}_x")
        if sleep: a(f"s_sleep {sleep}")
        a(f"s_branch {lbl}\n{lbl}_x:\ns_waitcnt vmcnt(0)")
    def wo_stage(lbl, nt, sls, sleep, pre):
        ks = [(jj, sl) for sl in sls for jj in range(2)]
        ofrags(lbl, [oload(*k) for k in ks], [OF(*k) for k in ks], sleep, pre)
        a("s_waitcnt lgkmcnt(0)\ns_setprio 0")
        for jj, sl in ks:
            i = 4*jj + (sl & 3)
            mf(0, nt, WOF(i, 0), OF(jj, sl)); mf(1, nt, WOF(i, 1), OF(jj, sl))
        a("s_setprio 3")
    stamp(8)
    wo_stage("L_o0", 0, range(4), 4, True)
    stamp(9)
    a(f"s_add_u32 s4, s8, 4096\ns_add_u32 s8, s10, 4096\ns_add_u32 s9, s65, 4096\nv_add_u32 v176, s32, v176\nv_add_u32 v181, s32, v181")
    a(f"s_mul_i32 s5, {gw}, {SLOT}\ns_cmp_lt_u32 {gw}, 2\ns_cselect_b32 s6, {OACC + 2*SLOT - X_}, 0\ns_add_u32 s5, s5, s6\ns_sub_u32 s5, s49, s5\ns_add_u32 s5, s5, {8192 + 2*SLOT - X_}")
    for mt in range(2):
        for i in range(4): a(f"ds_write_b128 v{186+i}, {vr(16*mt+4*i,4)} offset:{128*mt}")
    cnt_add(28)
    lds_wait("L_w1", "v177", 20, "4")
    FA = lambda s_, ct: (120 + 8*s_ + 4*ct) if s_ < 2 else (148 + 8*(s_-2) + 4*ct)
    for s_ in range(4):
        for ct in range(2):
            for e in range(2): a(f"ds_read_b64_tr_b16 {vr(FA(s_,ct)+2*e,2)}, v253 offset:{16384*s_+1024*e+32*ct}")
    cnt_add(24)
    a(f"s_cmp_lt_u32 {gw}, 2\ns_cbranch_scc0 L_nf\ns_call_b64 s[14:15], L_fin\nL_nf:")
    lds_wait("L_rw", "v177", 28, "4", 1)
    for p in range(4):
        a(f"ds_read_b128 {vr(8*p,4)}, v{190 if p < 2 else 168} offset:{SLOT*(p&1)}\nds_read_b128 {vr(4+8*p,4)}, v{191 if p < 2 else 169} offset:{SLOT*(p&1)}")
    for i in range(4): a(f"v_add_u32 v{186+i}, s5, v{186+i}")
    a("s_waitcnt lgkmcnt(4)")
    for r in range(4): a(f"v_pk_add_f32 {vr(2*r,2)}, {vr(2*r,2)}, {vr(8+2*r,2)}")
    a("s_waitcnt lgkmcnt(0)")
    for r in range(4): a(f"v_pk_add_f32 {vr(16+2*r,2)}, {vr(16+2*r,2)}, {vr(24+2*r,2)}")
    for r in range(4): a(f"v_pk_add_f32 {vr(2*r,2)}, {vr(2*r,2)}, {vr(16+2*r,2)}")
    for r in range(4): a(f"v_cvt_pk_bf16_f32 v{172+r}, v{2*r}, v{2*r+1}")
    stamp(10)
    wo_stage("L_o1", 1, (4, 5), 4, False)
    a(f"s_cmp_eq_u32 {gw}, 2\ns_cbranch_scc0 L_nf1\ns_call_b64 s[14:15], L_fin\nL_nf1:")
    stamp(11)
    wo_stage("L_o1b", 1, (6,), 4, False)
    a("s_add_u32 s65, s11, 32768")
    fl = [f"buffer_load_dwordx4 {vr(108+0,4)}, v252, {srd(SWS)}, s11 offen sc1", f"buffer_load_dwordx4 {vr(104,4)}, v254, {srd(SWS)}, s11 offen sc1",
          f"buffer_load_dwordx4 {vr(100,4)}, v252, {srd(SWS)}, s65 offen sc1", f"buffer_load_dwordx4 {vr(140,4)}, v254, {srd(SWS)}, s65 offen sc1"]
    fr = [108, 104, 100, 140]
    if not o.get("nowarm"): a("\n".join(fl))
    lds_wait("L_w2", "v177", 24, "4")
    a("s_nop 2")
    for mt in range(2):
        for i in range(4): a(f"ds_write_b128 v{186+i}, {vr(32+16*mt+4*i,4)} offset:{128*mt}")
    cnt_add(32)
    lds_wait("L_rw1", "v177", 32, "4", 1)
    for p in range(4):
        a(f"ds_read_b128 {vr(64+8*p,4)}, v183 offset:{16384*p}\nds_read_b128 {vr(68+8*p,4)}, v185 offset:{16384*p}")
    a("s_waitcnt lgkmcnt(4)")
    for r in range(4): a(f"v_pk_add_f32 {vr(64+2*r,2)}, {vr(64+2*r,2)}, {vr(72+2*r,2)}")
    a("s_waitcnt lgkmcnt(0)")
    for r in range(4): a(f"v_pk_add_f32 {vr(80+2*r,2)}, {vr(80+2*r,2)}, {vr(88+2*r,2)}")
    for r in range(4): a(f"v_pk_add_f32 {vr(2*r,2)}, {vr(64+2*r,2)}, {vr(80+2*r,2)}")
    if o.get("oearly"): a(f"buffer_store_dwordx4 v[172:175], v179, {srd(SOUT)}, s33 offen {o.get('ost', '')}")
    stamp(12)
    if not o.get("fin4"):
        a(f"s_barrier\ns_cmp_eq_u32 {gw}, 3\ns_cbranch_scc0 L_nf2\ns_call_b64 s[14:15], L_fwf_x\nL_nf2:")
    else:
        a(f"""
    s_lshl_b32 s60, {gw}, 10
    s_sub_u32 s4, s4, s60
    s_lshl2_add_u32 s4, {gw}, s4
    s_add_u32 s4, s4, 3072
    s_cmp_eq_u32 s101, 1
    s_barrier
    ds_read2st64_b32 v[72:73], v170 offset0:32 offset1:33
    ds_read2st64_b32 v[74:75], v170 offset0:34 offset1:35
    ds_read2st64_b32 v[64:65], v171 offset0:0 offset1:4
    ds_read2st64_b32 v[66:67], v171 offset0:1 offset1:5
    ds_read2st64_b32 v[68:69], v171 offset0:2 offset1:6
    ds_read2st64_b32 v[70:71], v171 offset0:3 offset1:7
    s_waitcnt lgkmcnt(4)
    v_pk_add_f32 v[72:73], v[72:73], v[74:75]
    s_waitcnt lgkmcnt(2)
    v_pk_add_f32 v[64:65], v[64:65], v[66:67]
    v_add_f32 v72, v72, v73
    s_waitcnt lgkmcnt(0)
    v_pk_add_f32 v[68:69], v[68:69], v[70:71]
    v_rcp_f32 v72, v72
    v_pk_add_f32 v[64:65], v[64:65], v[68:69]
    v_mul_f32 v72, v72, v164
    v_pk_mul_f32 v[64:65], v[64:65], v[72:73] op_sel_hi:[1,0]
    v_cvt_pk_bf16_f32 v64, v64, v65
    v_min_u32 v64, -2, v64
        """)
        hstore(f"buffer_store_dword v64, v166, {srd(SWS)}, s4 offen")
    stamp(13)
    ofrags("L_o2", fl, fr, 0)
    stamp(14)
    if not o.get("oearly"): a(f"buffer_store_dwordx4 v[172:175], v179, {srd(SOUT)}, s33 offen {o.get('ost', '')}")
    for s_ in range(4):
        for ct in range(2): a(f"v_mfma_f32_16x16x32_bf16 {vr(4*ct,4)}, {vr(FA(s_,ct),4)}, {vr(fr[s_],4)}, {vr(4*ct,4)}")
    a("""
    s_nop 6
    v_cvt_pk_bf16_f32 v8, v0, v1
    v_cvt_pk_bf16_f32 v9, v2, v3
    v_cvt_pk_bf16_f32 v10, v4, v5
    v_cvt_pk_bf16_f32 v11, v6, v7
    s_nop 1
    v_permlane16_swap_b32 v8, v10
    v_permlane16_swap_b32 v9, v11
    """)
    a(f"buffer_store_dwordx4 v[8:11], v180, {srd(SOUT)}, s34 offen {o.get('ost', '')}")
    stamp(15)
    a("s_branch L_gend")
    a(f"""
    L_gsetup:
    s_sub_u32 s101, {sW}, 4
    s_lshr_b32 s48, {sJ}, 1
    s_mul_i32 s48, s48, 7
    s_and_b32 s63, {sJ}, 1
    s_lshl_b32 s62, s63, 2
    s_add_u32 s62, s62, s101
    s_cmp_eq_u32 s101, 3
    s_cselect_b32 s62, 3, s62
    s_cselect_b32 s63, s63, 0
    s_add_u32 s48, s48, s62
    s_lshl_b32 s48, s48, 1
    s_add_u32 s48, s48, s63
    s_lshl_b32 s100, s48, 6
    s_mul_i32 s54, {sC0}, {128*3584}
    s_add_u32 s54, s54, s100
    s_lshl_b32 s49, s101, 14
    s_add_u32 s49, s49, {W_}
    v_lshrrev_b32 v14, 3, {L}
    v_and_b32 v15, 7, {L}
    v_bfe_u32 v3, {L}, 4, 1
    v_lshlrev_b32 v3, 2, v3
    v_xor_b32 v2, v3, v15
    v_lshlrev_b32 v2, 4, v2
    v_lshl_or_b32 v150, v14, 10, v2
    v_add_u32 v151, 7168, v150
    v_mul_u32_u24 v148, 3584, v14
    v_add_u32 v148, v148, v2
    v_add_u32 v149, {8*3584-1024}, v148
    v_lshlrev_b32 v180, 5, v15
    v_lshlrev_b32 v2, 1, v15
    v_xor_b32 v2, v14, v2
    v_lshlrev_b32 v2, 4, v2
    v_lshl_or_b32 v190, v14, 8, v2
    s_lshl_b32 s62, s101, 11
    s_add_u32 s62, s62, {OACC}
    v_add_u32 v190, s62, v190
    v_xor_b32 v191, 16, v190
    v_lshlrev_b32 v2, 4, v15
    v_lshl_or_b32 v179, v14, 10, v2
    v_and_b32 v1, 31, {L}
    v_lshrrev_b32 v14, 5, {L}
    v_xor_b32 v2, v14, v15
    v_lshlrev_b32 v2, 4, v2
    v_lshl_or_b32 v186, v1, 8, v2
    s_mul_i32 s62, {sJ}, 7
    s_sub_u32 s62, s48, s62
    s_lshl_b32 s62, s62, 6
    s_add_u32 s62, s62, {M_B1}
    v_lshlrev_b32 v13, 1, v1
    v_add_u32 v12, s62, v13
    v_add_u32 v13, {M_B2}, v13
    v_lshlrev_b32 v192, 2, v1
    v_add_u32 v192, {M_G}, v192
    v_and_b32 v3, 15, {L}
    v_xor_b32 v3, v14, v3
    v_lshlrev_b32 v3, 4, v3
    v_lshl_or_b32 v136, v1, 8, v3
    """)
    for k in range(1, 8): a(f"v_xor_b32 v{136+k}, {32*k}, v136")
    tr_addr(144, 8)
    a("v_add_u32 v144, s49, v144\nv_xor_b32 v145, 64, v144")
    tr_addr(146, 4)
    a("v_add_u32 v146, s49, v146\nv_xor_b32 v147, 64, v146")
    for r in (153, 154, 155, 157, 158, 159, 161, 162, 163, 169, 170, 171, 173, 174, 175): a(f"v_mov_b32 v{r}, 0")
    a(f"""
    v_cmp_gt_u32 vcc, 32, {L}
    v_mov_b32 v1, 0x3f80
    v_lshlrev_b32 v166, 4, {L}
    v_cndmask_b32 v160, 0, v1, vcc
    v_mov_b32 v167, 1
    v_mov_b32 v177, {M_CNTG}
    v_mov_b64 v[200:201], -1
    v_mov_b64 v[202:203], -1
    s_and_b32 s62, s101, 1
    s_lshr_b32 s63, s101, 1
    v_and_b32 v1, 15, {L}
    v_lshl_add_u32 v1, s62, 4, v1
    v_lshrrev_b32 v2, 4, {L}
    v_xor_b32 v3, v2, v15
    v_lshlrev_b32 v3, 4, v3
    v_lshl_or_b32 v3, v1, 8, v3
    s_lshl_b32 s62, s63, 7
    s_add_u32 s62, s62, {W_ + 8192}
    v_add_u32 v183, s62, v3
    v_xor_b32 v185, 64, v183
    ; v252/v254 = (g4>>1)*8192 + 16*(row + 32*(g4&1)) (+16384)
    v_and_b32 v3, 1, v2
    v_lshl_add_u32 v252, v3, 5, v1
    v_lshlrev_b32 v252, 4, v252
    v_lshl_add_u32 v252, v14, 13, v252
    v_add_u32 v254, 0x4000, v252
    v_lshlrev_b32 v193, 10, v1
    v_lshl_or_b32 v193, v3, 5, v193
    v_lshl_or_b32 v193, v14, 4, v193
    s_lshl_b32 s62, s63, 6
    v_add_u32 v193, s62, v193
    ; v253 = W + 2048*(4*(g4>>1)+3) + (4h + r')*128 + 16*((4ch + (c'>>1)) ^ 4*(r'>>1)) + 8*(c'&1)
    v_bfe_u32 v1, {L}, 2, 2
    v_lshl_or_b32 v1, v3, 2, v1
    v_lshlrev_b32 v1, 7, v1
    v_lshl_or_b32 v1, v14, 13, v1
    v_bfe_u32 v2, {L}, 3, 1
    v_xor_b32 v2, s63, v2
    v_lshl_or_b32 v1, v2, 6, v1
    v_and_b32 v2, 3, {L}
    v_lshl_or_b32 v1, v2, 3, v1
    v_add_u32 v253, {W_ + 6144}, v1
    v_lshlrev_b32 v196, 7, {L}
    s_mov_b32 s12, -1
    s_mov_b32 s13, 0xffffff
    v_lshlrev_b32 v198, 2, {L}
    v_add_u32 v198, {X_ + 5*SLOT}, v198
    s_lshl_b32 s62, s101, 11
    v_add_u32 v199, s62, v198
    s_mul_i32 s62, s101, {SLOT}
    s_add_u32 s63, s62, {OACC}
    s_sub_u32 s62, s62, {2*SLOT - X_}
    s_cmp_lt_u32 s101, 2
    s_cselect_b32 s62, s63, s62
    v_lshlrev_b32 v181, 2, {L}
    v_add_u32 v181, s62, v181
    v_add_u32 v186, s62, v186
    v_xor_b32 v187, 32, v186
    v_xor_b32 v188, 64, v186
    v_xor_b32 v189, 0x60, v186
    s_add_u32 s62, s62, {9216 + 252}
    v_lshl_add_u32 v176, v2, 8, s62
    s_cmp_eq_u32 s101, 3
    s_cbranch_scc0 L_gsx
    v_bfe_u32 v2, {L}, 2, 2
    v_lshl_or_b32 v2, v14, 3, v2
    v_lshlrev_b32 v2, 6, v2
    v_bfe_u32 v3, {L}, 4, 1
    v_lshl_or_b32 v2, v3, 5, v2
    v_and_b32 v3, 3, {L}
    v_lshl_or_b32 v2, v3, 3, v2
    v_add_u32 v144, s49, v2
    v_lshlrev_b32 v145, 4, v14
    v_add_u32 v145, {M_GATE}, v145
    v_lshrrev_b32 v1, 2, {L}
    v_mul_u32_u24 v148, 3584, v1
    v_lshl_add_u32 v148, v3, 4, v148
    L_gsx:
    s_waitcnt lgkmcnt(0)
    s_setpc_b64 s[14:15]
    """)
    a("L_fin:")
    fin(64, "f", False)
    a("s_setpc_b64 s[14:15]\nL_gend:")
    if diag: a(f"s_add_u32 {sW}, {sW}, 4")
    diag_out("g")
    a("L_end:\ns_endpgm")

    hdr = open(os.path.join(os.path.dirname(os.path.abspath(__file__)), "..", "cdna_kernels", NAME + ".s.ref")).read().split("\n")
    i0 = next(i for i, l in enumerate(hdr) if l.startswith("; Override"))
    head = "\n".join(hdr[:i0]) + f"\n; @launch grid=(256,1,1) block=(512,1,1) lds={LDS_BYTES}\n"
    return head + f""".amdgcn_target "amdgcn-amd-amdhsa--gfx950"
.text
.globl {NAME}_kernel
.p2align 8
.type {NAME}_kernel,@function
{NAME}_kernel:
{a.text()}.section .rodata,"a"
.p2align 6
.amdhsa_kernel {NAME}_kernel
  .amdhsa_next_free_vgpr 256
  .amdhsa_next_free_sgpr 102
  .amdhsa_accum_offset 256
  .amdhsa_group_segment_fixed_size 0
  .amdhsa_kernarg_size 112
  .amdhsa_user_sgpr_count 2
  .amdhsa_user_sgpr_kernarg_segment_ptr 1
  .amdhsa_system_sgpr_workgroup_id_x 1
.end_amdhsa_kernel
"""

if __name__ == "__main__":
    out = sys.argv[1] if len(sys.argv) > 1 else os.path.join(os.path.dirname(os.path.abspath(__file__)), "..", "cdna_kernels", NAME + ".s")
    opts = dict(x.split("=") if "=" in x else (x, 1) for x in sys.argv[2:])
    open(out, "w").write(gen(diag=bool(opts.pop("diag", 0)), opts=opts))
```

```python
import sys, os
NAME = "gated_mix__grouped_kv_mqa__dense_activation_squared_relu__prompt"

class Asm:
    def __init__(self): self.l = []
    def __call__(self, s):
        for x in s.strip("\n").split("\n"):
            x = x.strip()
            if not x: continue
            self.l.append(x if x.endswith(":") else "    " + x)
    def text(self): return "\n".join(self.l) + "\n"

def vr(a, n): return f"v[{a}:{a+n-1}]"

X_ = 0; W_ = 65536; S_ = 131072
OACC = S_; SLOT = 10240
QF = S_ + 2*SLOT
MISC = QF + 8192
M_G = MISC
M_QMAX = MISC + 256
M_KMAX = MISC + 260
M_CNTA = MISC + 264
M_CNTG = MISC + 272
M_CNTS = MISC + 320
M_M = MISC + 1024
M_GATE = MISC + 2048
M_TAG = MISC + 3072
M_Q0 = MISC + 352
M_GO = MISC + 356
M_B1 = MISC + 3136
M_B2 = MISC + 3584
LDS_BYTES = 163840
WS_EPOCH = 0
WS_KVF = 0x1000
WS_KVF1 = 0x4000
WS_HF = 0x10000
WS_OF = 0x40000
WS_K = 0x80000
WS_V = 0x90000
WS_O = 0x100000
WS_H = 0x400000
WS_DIAG = 0xC00000
WS_SIZE = 0x1000000
SX, SWQ, SWKV, SWO, SW1, SB1, SW2, SB2, SGT, SOUT, SWS, SH = 4, 8, 12, 16, 20, 24, 28, 32, 36, 40, 44, 56
def srd(b): return f"s[{b}:{b+3}]"
sW, sGRP, sJ, sTAG, sC0 = "s50", "s51", "s52", "s53", "s3"
QSCALE = 0x3eb8aa3b
LOG2E = 0x3fb8aa3b
SPIN_MAX = 1000000

def gen(diag=False, opts=None):
    o = dict(opts or {})
    a = Asm()
    nstamp = [0]
    rt = o.get("rt") or o.get("enc")
    def xtouch(i0):
        if o.get("nopf"): return ""
        return f"s_mul_i32 s59, s2, 7168\ns_add_u32 s36, s{SW2}, s59\ns_addc_u32 s37, s{SW2+1}, 0\n" + "\n".join(f"s_load_dword s56, s[36:37], {64*i}" for i in range(i0, i0+7)) + "\n"
    inG = [False]
    gsetup_s = f"""
    s_load_dwordx2 s[{SW1}:{SW1+1}], s[0:1], 48
    s_load_dwordx2 s[{SWO}:{SWO+1}], s[0:1], 32
    s_load_dwordx2 s[{SW2}:{SW2+1}], s[0:1], 64
    s_load_dwordx2 s[{SOUT}:{SOUT+1}], s[0:1], 88
    s_mov_b32 s{SW1+2}, 1835008
    s_mov_b32 s{SW1+3}, 0x00020000
    s_mov_b32 s{SWO+2}, 524288
    s_mov_b32 s{SWO+3}, 0x00020000
    s_mov_b32 s{SW2+2}, 1835008
    s_mov_b32 s{SW2+3}, 0x00020000
    s_mov_b32 s{SOUT+2}, 2097152
    s_mov_b32 s{SOUT+3}, 0x00020000
    """
    def hstamp(i):
        if diag and o.get("hd"): a(f"s_memtime s[{68+2*i}:{69+2*i}]")
    def stamp(i):
        if o.get("lite"):
            if i in (6, 15) or (i == 8 and not inG[0]): a(f"s_memrealtime s[{68+2*i}:{69+2*i}]")
            return
        if diag and not (o.get("hd") and i > 8):
            a(f"{'s_memrealtime' if rt else 's_memtime'} s[{68+2*i}:{69+2*i}]")
    def diag_out(lbl):
        if diag and o.get("enc"):
            role, st = o["enc"][0], int(o["enc"][1:])
            wv = {"a": int(o.get("wv", 0)), "g": 7}[role]
            if lbl == role:
                a(f"s_cmp_lg_u32 s2, 0\ns_cbranch_scc1 L_encx{lbl}\ns_cmp_lg_u32 {sW}, {wv}\ns_cbranch_scc1 L_encx{lbl}\ns_waitcnt lgkmcnt(0)")
                if st < 16: a(f"s_sub_u32 s60, s{68+2*st}, s66\ns_lshl_b32 s60, s60, 4")
                else: a("s_mov_b32 s60, 0")
                a(f"s_add_u32 s60, s60, 5000\nL_enc{lbl}:\ns_sleep 4\ns_memrealtime s[62:63]\ns_waitcnt lgkmcnt(0)\ns_sub_u32 s62, s62, s66\ns_cmp_lt_u32 s62, s60\ns_cbranch_scc1 L_enc{lbl}\nL_encx{lbl}:")
        elif diag and rt:
            idx = {"a": [(1, 1), (2, 2), (4, 3), (5, 4), (6, 5), (7, 6), (8, 7)], "s": [], "g": [(2, 8), (3, 9), (4, 10), (6, 11), (7, 12), (15, 13), (9, 14), (11, 15)]}[lbl]
            a("s_load_dwordx2 s[60:61], s[0:1], 96\ns_mov_b32 s62, 256\ns_mov_b32 s63, 0x00020000\ns_waitcnt vmcnt(0) lgkmcnt(0)\ns_mov_b64 exec, 1")
            a("s_not_b32 s66, s66\nv_mov_b32 v1, s66\nbuffer_atomic_umax v1, off, s[60:63], 0\ns_nop 1")
            for st, d in idx:
                a(f"v_mov_b32 v1, s{68+2*st}\nbuffer_atomic_umax v1, off, s[60:63], 0 offset:{4*d}\ns_nop 1")
            a("s_waitcnt vmcnt(0)")
        elif diag:
            a(f"s_lshl_b32 s60, s2, 3\ns_add_u32 s60, s60, {sW}\ns_lshl_b32 s60, s60, 7\ns_add_u32 s60, s60, {WS_DIAG}")
            a("s_waitcnt vmcnt(0) lgkmcnt(0)\ns_mov_b64 exec, 1")
            for i in range(17):
                a(f"v_mov_b32 v1, s{66+2*i}\nbuffer_store_dword v1, off, {srd(SWS)}, s60 offset:{4*i}\ns_nop 1")
            a("s_waitcnt vmcnt(0)")

    L = "v255"
    def tr_addr(dst, hmul, t0=1, t1=2):
        a(f"""
        v_lshrrev_b32 v{t0}, 5, {L}
        v_bfe_u32 v{t1}, {L}, 2, 2
        v_mad_u32_u24 v{t0}, v{t0}, {hmul}, v{t1}
        v_lshlrev_b32 v{t0}, 7, v{t0}
        v_bfe_u32 v{t1}, {L}, 3, 1
        v_lshl_or_b32 v{t0}, v{t1}, 6, v{t0}
        v_bfe_u32 v{t1}, {L}, 4, 1
        v_lshl_or_b32 v{t0}, v{t1}, 5, v{t0}
        v_and_b32 v{t1}, 3, {L}
        v_lshl_or_b32 v{dst}, v{t1}, 3, v{t0}
        """)
    def gsetup1():
        a(f"""
        s_sub_u32 s101, {sW}, 4
        s_lshr_b32 s48, {sJ}, 1
        s_mul_i32 s48, s48, 7
        s_and_b32 s63, {sJ}, 1
        s_lshl_b32 s62, s63, 2
        s_add_u32 s62, s62, s101
        s_cmp_eq_u32 s101, 3
        s_cselect_b32 s62, 3, s62
        s_cselect_b32 s63, s63, 0
        s_add_u32 s48, s48, s62
        s_lshl_b32 s48, s48, 1
        s_add_u32 s48, s48, s63
        s_lshl_b32 s100, s48, 6
        s_mul_i32 s54, {sC0}, {128*3584}
        s_add_u32 s54, s54, s100
        s_lshl_b32 s49, s101, 14
        s_add_u32 s49, s49, {W_}
        v_lshrrev_b32 v14, 3, {L}
        v_and_b32 v15, 7, {L}
        v_bfe_u32 v3, {L}, 4, 1
        v_lshlrev_b32 v3, 2, v3
        v_xor_b32 v2, v3, v15
        v_lshlrev_b32 v2, 4, v2
        v_lshl_or_b32 v150, v14, 10, v2
        v_add_u32 v151, 7168, v150
        v_mul_u32_u24 v148, 3584, v14
        v_add_u32 v148, v148, v2
        v_add_u32 v149, {8*3584-1024}, v148
        v_lshlrev_b32 v180, 5, v15
        v_lshlrev_b32 v2, 1, v15
        v_xor_b32 v2, v14, v2
        v_lshlrev_b32 v2, 4, v2
        v_lshl_or_b32 v190, v14, 8, v2
        s_lshl_b32 s62, s101, 11
        s_add_u32 s62, s62, {OACC}
        v_add_u32 v190, s62, v190
        v_xor_b32 v191, 16, v190
        v_lshlrev_b32 v2, 4, v15
        v_lshl_or_b32 v179, v14, 10, v2
        v_and_b32 v1, 31, {L}
        v_lshrrev_b32 v14, 5, {L}
        v_xor_b32 v2, v14, v15
        v_lshlrev_b32 v2, 4, v2
        v_lshl_or_b32 v186, v1, 8, v2
        s_mul_i32 s62, {sJ}, 7
        s_sub_u32 s62, s48, s62
        s_lshl_b32 s62, s62, 6
        s_add_u32 s62, s62, {M_B1}
        v_lshlrev_b32 v13, 1, v1
        v_add_u32 v12, s62, v13
        v_add_u32 v13, {M_B2}, v13
        v_lshlrev_b32 v192, 2, v1
        v_add_u32 v192, {M_G}, v192
        v_and_b32 v3, 15, {L}
        v_xor_b32 v3, v14, v3
        v_lshlrev_b32 v3, 4, v3
        v_lshl_or_b32 v136, v1, 8, v3
        """)
        for k in range(1, 8): a(f"v_xor_b32 v{136+k}, {32*k}, v136")
        tr_addr(144, 8)
        a("v_add_u32 v144, s49, v144\nv_xor_b32 v145, 64, v144")
    def gsetup2(w7):
        tr_addr(146, 4)
        a("v_add_u32 v146, s49, v146\nv_xor_b32 v147, 64, v146")
        for r in (153, 154, 155, 157, 158, 159, 161, 162, 163, 169, 170, 171, 173, 174, 175): a(f"v_mov_b32 v{r}, 0")
        a(f"""
        v_cmp_gt_u32 vcc, 32, {L}
        v_mov_b32 v1, 0x3f80
        v_lshlrev_b32 v166, 4, {L}
        v_cndmask_b32 v160, 0, v1, vcc
        v_mov_b32 v167, 1
        v_mov_b32 v177, {M_CNTG}
        v_mov_b64 v[200:201], -1
        v_mov_b64 v[202:203], -1
        s_and_b32 s62, s101, 1
        s_lshr_b32 s63, s101, 1
        v_and_b32 v1, 15, {L}
        v_lshl_add_u32 v1, s62, 4, v1
        v_lshrrev_b32 v2, 4, {L}
        v_xor_b32 v3, v2, v15
        v_lshlrev_b32 v3, 4, v3
        v_lshl_or_b32 v3, v1, 8, v3
        s_lshl_b32 s62, s63, 7
        s_add_u32 s62, s62, {W_ + 8192}
        v_add_u32 v183, s62, v3
        v_xor_b32 v185, 64, v183
        ; v252/v254 = (g4>>1)*8192 + 16*(row + 32*(g4&1)) (+16384)
        v_and_b32 v3, 1, v2
        v_lshl_add_u32 v252, v3, 5, v1
        v_lshlrev_b32 v252, 4, v252
        v_lshl_add_u32 v252, v14, 13, v252
        v_add_u32 v254, 0x4000, v252
        v_lshlrev_b32 v193, 10, v1
        v_lshl_or_b32 v193, v3, 5, v193
        v_lshl_or_b32 v193, v14, 4, v193
        s_lshl_b32 s62, s63, 6
        v_add_u32 v193, s62, v193
        ; v253 = W + 2048*(4*(g4>>1)+3) + (4h + r')*128 + 16*((4ch + (c'>>1)) ^ 4*(r'>>1)) + 8*(c'&1)
        v_bfe_u32 v1, {L}, 2, 2
        v_lshl_or_b32 v1, v3, 2, v1
        v_lshlrev_b32 v1, 7, v1
        v_lshl_or_b32 v1, v14, 13, v1
        v_bfe_u32 v2, {L}, 3, 1
        v_xor_b32 v2, s63, v2
        v_lshl_or_b32 v1, v2, 6, v1
        v_and_b32 v2, 3, {L}
        v_lshl_or_b32 v1, v2, 3, v1
        v_add_u32 v253, {W_ + 6144}, v1
        v_lshlrev_b32 v196, 7, {L}
        v_lshlrev_b32 v198, 2, {L}
        v_add_u32 v198, {X_ + 5*SLOT}, v198
        s_lshl_b32 s62, s101, 11
        v_add_u32 v199, s62, v198
        s_mul_i32 s62, s101, {SLOT}
        s_add_u32 s63, s62, {OACC}
        s_sub_u32 s62, s62, {2*SLOT - X_}
        s_cmp_lt_u32 s101, 2
        s_cselect_b32 s62, s63, s62
        v_lshlrev_b32 v181, 2, {L}
        v_add_u32 v181, s62, v181
        v_add_u32 v186, s62, v186
        v_xor_b32 v187, 32, v186
        v_xor_b32 v188, 64, v186
        v_xor_b32 v189, 0x60, v186
        s_add_u32 s62, s62, {9216 + 252}
        v_lshl_add_u32 v176, v2, 8, s62
    """)
        if w7: a(f"""
        s_cmp_eq_u32 s101, 3
        s_cbranch_scc0 L_gsx
        v_bfe_u32 v2, {L}, 2, 2
        v_lshl_or_b32 v2, v14, 3, v2
        v_lshlrev_b32 v2, 6, v2
        v_bfe_u32 v3, {L}, 4, 1
        v_lshl_or_b32 v2, v3, 5, v2
        v_and_b32 v3, 3, {L}
        v_lshl_or_b32 v2, v3, 3, v2
        v_add_u32 v144, s49, v2
        v_lshlrev_b32 v145, 4, v14
        v_add_u32 v145, {M_GATE}, v145
        v_lshrrev_b32 v1, 2, {L}
        v_mul_u32_u24 v148, 3584, v1
        v_lshl_add_u32 v148, v3, 4, v148
        """)
    if diag: a("s_memrealtime s[66:67]\ns_memtime s[68:69]")
    a(f"""
    s_cmp_ge_u32 s2, 256
    s_cbranch_scc1 L_end
    s_load_dwordx4 s[{SWKV}:{SWKV+3}], s[0:1], 16
    s_load_dwordx2 s[{SX}:{SX+1}], s[0:1], 0
    s_load_dwordx2 s[{SWQ}:{SWQ+1}], s[0:1], 8
    s_load_dwordx2 s[{SWS}:{SWS+1}], s[0:1], 104
    s_getpc_b64 s[60:61]
    s_movk_i32 s62, {int(o.get('pf0', 6144))}
    s_mov_b32 s63, 0x00020000
    v_lshlrev_b32 v2, 7, v0
    v_lshrrev_b32 v1, 6, v0
    buffer_load_dword v197, v2, s[60:63], 0 offen
    v_and_b32 v255, 63, v0
    v_readfirstlane_b32 {sW}, v1
    s_and_b32 s54, s2, 7
    s_bfe_u32 {sJ}, s2, 0x30003
    s_lshr_b32 s55, s2, 6
    s_lshl2_add_u32 {sGRP}, s54, s55
    s_mov_b32 s{SX+2}, 2097152
    s_mov_b32 s{SX+3}, s63
    s_add_u32 {sC0}, s54, {sJ}
    s_and_b32 {sC0}, {sC0}, 3
    s_and_b32 s60, {sJ}, 3
    v_lshrrev_b32 v3, 4, {L}
    v_and_b32 v2, 15, {L}
    v_xor_b32 v12, v3, v2
    v_lshlrev_b32 v12, 4, v12
    v_lshl_or_b32 v4, v3, 10, v12
    v_xor_b32 v5, 64, v4
    v_add_u32 v5, 3072, v5
    v_xor_b32 v6, 0x80, v4
    v_add_u32 v6, 6144, v6
    v_xor_b32 v7, 0xc0, v4
    v_add_u32 v7, 9216, v7
    v_lshlrev_b32 v1, 4, {L}
    """)
    if diag:
        for i in (range(2, 17) if not o.get("lite") else ()): a(f"s_mov_b32 s{66+2*i}, 0")
    a(f"""
    s_cmp_eq_u32 {sW}, 7
    s_cbranch_scc0 L_nKV
    """)
    a(f"""
    s_setprio 3
    s_lshl2_add_u32 s64, {sGRP}, s60
    s_lshl_b32 s62, s64, 14
    s_lshl_b32 s65, s60, 12
    s_mov_b32 s61, {sC0}
    v_and_b32 v8, 1, v3
    v_lshlrev_b32 v8, 9, v8
    v_lshl_or_b32 v8, v2, 4, v8
    v_lshrrev_b32 v9, 1, v3
    v_lshl_or_b32 v8, v9, 3, v8
    v_mov_b64 v[10:11], -1
    s_lshr_b32 s54, s64, 1
    s_lshl_b32 s54, s54, 10
    s_and_b32 s55, s64, 1
    s_lshl_b32 s55, s55, 8
    s_add_u32 s54, s54, s55
    s_add_u32 s54, s54, {WS_K}
    s_add_u32 s55, s54, {WS_V - WS_K}
    s_mov_b32 s{SWS+2}, {WS_SIZE}
    s_mov_b32 s{SWS+3}, s63
    s_cmp_lt_u32 {sJ}, 4
    s_cselect_b32 s54, s54, s55
    s_waitcnt lgkmcnt(0)
    buffer_store_dwordx2 v[10:11], v8, {srd(SWS)}, s54 offen sc1
    s_load_dword {sTAG}, s[{SWS}:{SWS+1}], 0
    s_cselect_b32 s{SWKV}, s{SWKV}, s{SWKV+2}
    s_cselect_b32 s{SWKV+1}, s{SWKV+1}, s{SWKV+3}
    s_movk_i32 s{SWKV+2}, 16384
    s_mov_b32 s{SWKV+3}, 0x00020000
    """)
    hstamp(9)
    for i in range(4):
        a(f"s_mov_b32 m0, {OACC + 4096*i}\ns_lshl_b32 s55, s61, 12")
        for q in range(4): a(f"buffer_load_dwordx4 v1, {srd(SWKV)}, s55 offen offset:{1024*q} lds")
        a(f"s_lshl_b32 s55, s61, 8\ns_add_u32 m0, s65, {X_ + 16384*i}\ns_add_u32 s55, s55, s62")
        for q in range(4): a(f"buffer_load_dwordx4 v{4+q}, {srd(SX)}, s55 offen offset:{1024*q} lds")
        if i < 3: a("s_add_u32 s61, s61, 1\ns_and_b32 s61, s61, 3")
    hstamp(11)
    a(f"""
    s_barrier
    s_lshl3_add_u32 s57, {sGRP}, {sJ}
    s_lshl_b32 s57, s57, 5
    s_add_u32 s58, s57, {WS_KVF1}
    s_add_u32 s57, s57, {WS_KVF}
    s_load_dword s56, s[{SWS}:{SWS+1}], s57
    s_load_dword s56, s[{SWS}:{SWS+1}], s58
    s_load_dwordx2 s[{SW2}:{SW2+1}], s[0:1], 48
    v_lshlrev_b32 v5, 8, v3
    v_lshl_or_b32 v5, v2, 3, v5
    v_add_u32 v5, {OACC}, v5
    v_lshl_or_b32 v12, v2, 8, v12
    v_add_u32 v12, s65, v12
    v_xor_b32 v13, 64, v12
    v_xor_b32 v14, 0x80, v12
    v_xor_b32 v15, 0xc0, v12
    v_mov_b32 v6, {M_TAG}
    s_getreg_b32 s61, hwreg(HW_REG_XCC_ID, 0, 4)
    v_mov_b32 v11, s61
    s_cmp_lt_u32 {sJ}, 4
    s_cselect_b32 s63, -1, 0
    """)
    def kvreads(s):
        if s & 3 == 0: a(f"s_waitcnt vmcnt({24 if s == 0 else 25 - 2*s})")
        if s == 0: stamp(1)
        a(f"ds_read_b64_tr_b16 {vr(128+4*s,2)}, v5 offset:{1024*s}\nds_read_b64_tr_b16 {vr(130+4*s,2)}, v5 offset:{1024*s+128}")
        a(f"ds_read_b128 {vr(64+4*s,4)}, v{12+(s&3)} offset:{16384*(s>>2)}")
    for s in range(4): kvreads(s)
    a(f"""
    s_waitcnt lgkmcnt(0)
    s_mul_i32 {sTAG}, {sTAG}, 0x9E3779B1
    s_add_u32 {sTAG}, {sTAG}, 0x7F4A7C15
    s_cmp_lt_u32 {sJ}, 4
    v_mov_b32 v10, {sTAG}
    s_mov_b64 exec, 1
    buffer_store_dwordx2 v[10:11], off, {srd(SWS)}, s57 sc1
    ds_write_b32 v6, v10
    s_mov_b64 exec, -1
    s_cbranch_scc0 L_KVv
    """)
    for swap in range(2):
        for s in range(16):
            if s + 4 < 16: kvreads(s+4)
            a(f"s_waitcnt lgkmcnt({min(12, 3*(15-s))})")
            A_, B_ = (64+4*s, 128+4*s) if swap else (128+4*s, 64+4*s)
            a(f"v_mfma_f32_16x16x32_bf16 v[192:195], {vr(A_,4)}, {vr(B_,4)}, {'0' if s == 0 else 'v[192:195]'}")
        if not swap: a("s_branch L_KVd\nL_KVv:")
    a(f"""
    L_KVd:
    s_nop 7
    """)
    hstamp(12)
    a(f"""
    v_cvt_pk_bf16_f32 v196, v192, v193
    v_cvt_pk_bf16_f32 v197, v194, v195
    v_min_u32 v196, -2, v196
    v_min_u32 v197, -2, v197
    buffer_store_dwordx2 v[196:197], v8, {srd(SWS)}, s54 offen sc1
    v_mul_f32 v8, v192, v192
    v_fmac_f32 v8, v193, v193
    v_fmac_f32 v8, v194, v194
    v_fmac_f32 v8, v195, v195
    v_mov_b32 v9, v8
    s_nop 1
    v_permlane32_swap_b32 v8, v9
    v_add_f32 v8, v8, v9
    v_mov_b32 v9, v8
    s_nop 1
    v_permlane16_swap_b32 v8, v9
    v_add_f32 v8, v8, v9
    s_nop 1
    v_max_u32_dpp v8, v8, v8 row_ror:8 row_mask:0xf bank_mask:0xf
    s_nop 1
    v_max_u32_dpp v8, v8, v8 row_ror:4 row_mask:0xf bank_mask:0xf
    s_nop 1
    v_max_u32_dpp v8, v8, v8 row_ror:2 row_mask:0xf bank_mask:0xf
    s_nop 1
    v_max_u32_dpp v9, v8, v8 row_ror:1 row_mask:0xf bank_mask:0xf
    s_mov_b64 exec, 1
    v_and_b32 v11, s63, v9
    buffer_store_dwordx2 v[10:11], off, {srd(SWS)}, s58 sc1
    s_mov_b64 exec, -1
    s_setprio 0
    """)
    hstamp(13)
    a("s_barrier\n" + xtouch(105) + gsetup_s)
    stamp(2)
    a(f"""
    """)
    late = f"s_setprio {o.get('gprio', 1)}\ns_call_b64 s[38:39], L_gsetup\ns_call_b64 s[38:39], L_gsetup2\ns_branch L_Gjoin"
    a(f"""
    s_barrier
    s_barrier
    s_barrier
    s_barrier
    {late}
    """)

    a(f"""
    L_nKV:
    s_load_dwordx2 s[{SW2}:{SW2+1}], s[0:1], 48
    s_mov_b32 s{SWS+2}, {WS_SIZE}
    s_mov_b32 s{SWS+3}, s63
    s_cmp_lt_u32 {sW}, 4
    s_cbranch_scc1 L_A1
    """)
    a(f"""
    s_cmp_eq_u32 {sW}, 5
    s_cbranch_scc1 L_G5
    s_cmp_eq_u32 {sW}, 6
    s_cbranch_scc1 L_G6
    """)
    def loader(n, chunk, t0):
        a("s_waitcnt lgkmcnt(0)\ns_barrier")
        pre = int(o.get("lpre", 3))
        for i in range(pre): chunk(i)
        gp = int(o.get("gp", 2))
        a(f"s_waitcnt vmcnt({(pre-1)*n})\ns_barrier")
        for i in range(pre, 4): chunk(i)
        a(xtouch(t0) + gsetup_s)
        a(f"s_waitcnt vmcnt({2*n})\ns_barrier\ns_waitcnt vmcnt({n})\ns_barrier\ns_waitcnt vmcnt(0)\ns_barrier\ns_barrier")
        a(late)
    a(f"s_lshl_b32 s61, {sGRP}, 16")
    for r in range(3): a(f"s_add_u32 s{33+r}, s60, {r+1}\ns_and_b32 s{33+r}, s{33+r}, 3\ns_lshl_b32 s{57+r}, s{33+r}, 14\ns_add_u32 s{57+r}, s{57+r}, s61\ns_lshl_b32 s{33+r}, s{33+r}, 12")
    def xchunk(i):
        a(f"s_add_u32 s55, {sC0}, {i}\ns_and_b32 s55, s55, 3\ns_lshl_b32 s55, s55, 8")
        for r in range(3):
            a(f"s_add_u32 m0, s{33+r}, {X_ + 16384*i}\ns_add_u32 s60, s{57+r}, s55")
            for q in range(4): a(f"buffer_load_dwordx4 v{4+q}, {srd(SX)}, s60 offen offset:{1024*q} lds")
    loader(12, xchunk, 91)
    a(f"""
    L_G5:
    s_mov_b32 s{SWQ+2}, 524288
    s_mov_b32 s{SWQ+3}, 0x00020000
    v_lshrrev_b32 v1, 3, {L}
    v_and_b32 v2, 7, {L}
    v_bfe_u32 v3, {L}, 4, 1
    v_lshlrev_b32 v3, 2, v3
    v_xor_b32 v2, v3, v2
    v_lshlrev_b32 v2, 4, v2
    v_lshl_or_b32 v8, v1, 10, v2
    v_add_u32 v9, 7168, v8
    v_add_u32 v10, 14336, v8
    v_add_u32 v11, 21504, v8
    s_lshl_b32 s64, {sJ}, 7
    """)
    def wchunk(i):
        a(f"s_add_u32 s55, {sC0}, {i}\ns_and_b32 s55, s55, 3\ns_lshl_b32 s55, s55, 17\ns_add_u32 s55, s55, s64")
        for r in range(4):
            a(f"s_mov_b32 m0, {W_ + 16384*i + 4096*r}\n" + ("s_add_u32 s55, s55, 32768" if r else "s_nop 0"))
            for q in range(4): a(f"buffer_load_dwordx4 v{8+q}, {srd(SWQ)}, s55 offen offset:{1024*q} lds")
    loader(16, wchunk, 98)
    a(f"""
    L_G6:
    s_load_dwordx2 s[{SB1}:{SB1+1}], s[0:1], 56
    s_load_dwordx2 s[{SB2}:{SB2+1}], s[0:1], 72
    s_load_dwordx2 s[{SGT}:{SGT+1}], s[0:1], 80
    s_lshl_b32 s60, {sJ}, 7
    s_waitcnt lgkmcnt(0)
    s_barrier
    s_mul_i32 s61, s2, 7168
    s_add_u32 s61, s61, 3584
    s_add_u32 s64, s{SW2}, s61
    s_addc_u32 s65, s{SW2+1}, 0
    s_mov_b32 s{SB1+2}, 3584
    s_mov_b32 s{SB1+3}, 0x00020000
    s_mov_b32 s{SB2+2}, 1024
    s_mov_b32 s{SB2+3}, 0x00020000
    s_mov_b32 s{SGT+2}, 1024
    s_mov_b32 s{SGT+3}, 0x00020000
    v_mov_b32 v4, 0
    v_mov_b32 v5, 0
    v_mov_b32 v6, 0
    v_mov_b32 v7, 0
    v_lshlrev_b32 v16, 4, {L}
    v_add_u32 v2, {MISC}, v16
    v_mov_b32 v8, 0xff800000
    v_mov_b32 v9, v8
    v_mov_b32 v10, v8
    v_mov_b32 v11, v8
    ds_write_b128 v2, v[4:7]
    ds_write_b128 v2, v[8:11] offset:1024
    v_add_u32 v2, {OACC + SLOT + 9216}, v16
    ds_write_b128 v2, v[4:7]
    s_lshl_b32 s57, {sC0}, 4
    s_mul_i32 s61, {sJ}, 448
    s_mov_b32 m0, {M_GATE}
    s_waitcnt lgkmcnt(0)
    """)
    def g6touch(i0, i1):
        if not o.get("nopf"):
            for i in range(i0, i1): a(f"s_load_dword s56, s[64:65], {64*i}")
    g6touch(0, 14)
    a(f"""
    {"s_call_b64 s[58:59], L_gsetupx" if not o.get("g6l") else ""}
    v_add_u32 v1, s57, {L}
    v_and_b32 v1, 63, v1
    v_lshlrev_b32 v1, 4, v1
    s_barrier
    buffer_load_dwordx4 v1, {srd(SGT)}, 0 offen lds
    s_mov_b32 m0, {M_B1}
    s_mov_b64 exec, 0xfffffff
    buffer_load_dwordx4 v16, {srd(SB1)}, s61 offen lds
    s_mov_b32 m0, {M_B2}
    s_mov_b64 exec, 0xff
    buffer_load_dwordx4 v16, {srd(SB2)}, s60 offen lds
    s_mov_b64 exec, -1
    """)
    g6touch(14, 28)
    a("s_barrier\ns_barrier")
    a(gsetup_s)
    g6touch(28, 35)
    a("s_waitcnt vmcnt(0)\ns_barrier")
    a(f"""
    s_barrier
    {"s_branch L_Gjoin" if not o.get("g6l") else late}
    """)
    a(f"""
    L_A1:
    s_waitcnt lgkmcnt(0)
    s_barrier
    """)
    def codetouch(lbl):
        a(f"""
        s_getpc_b64 s[16:17]
        {lbl}:
        s_mov_b32 s18, L_end - {lbl}
        s_mov_b32 s19, 0x00020000
        s_lshr_b32 s57, s2, 3
        s_lshl2_add_u32 s57, s57, {sW}
        s_mul_i32 s57, s57, 384
        """)
        for i in range(6): a(f"s_buffer_load_dword s56, s[16:19], s57 offset:{64*i}")
    codetouch("L_pc")
    def w1touch(first, n):
        if o.get("nopf"): return
        a(f"s_mul_i32 s60, s2, 7168\ns_add_u32 s60, s60, {first}\ns_add_u32 s{SW2}, s{SW2}, s60\ns_addc_u32 s{SW2+1}, s{SW2+1}, 0")
        for i in range(n): a(f"s_load_dword s56, s[{SW2}:{SW2+1}], {64*i}")
    stamp(1)
    a(f"s_mul_i32 s61, {sW}, 896")
    w1touch("s61", 14)
    a(f"""
    s_lshr_b32 s60, {sW}, 1
    s_lshl_b32 s60, s60, 13
    v_and_b32 v1, 31, {L}
    v_lshrrev_b32 v2, 5, {L}
    v_and_b32 v3, 15, {L}
    v_xor_b32 v3, v2, v3
    v_lshlrev_b32 v3, 4, v3
    v_lshl_or_b32 v168, v1, 8, v3
    v_add_u32 v168, s60, v168
    s_mov_b64 s[12:13], s[{SWS}:{SWS+1}]
    s_mov_b32 s15, 0x00020000
    """)
    XA = [168, 169, 170, 171, 176, 177, 178, 179]
    for k in range(1, 8): a(f"v_xor_b32 v{XA[k]}, {32*k}, v168")
    tr_addr(184, 8)
    a(f"""
    s_and_b32 s60, {sW}, 1
    s_lshl_b32 s60, s60, 6
    v_xor_b32 v184, s60, v184
    v_add_u32 v184, {W_}, v184
    v_and_b32 v1, 11, {L}
    v_cmp_eq_u32 vcc, 0, v1
    v_mov_b32 v2, 0x3f803f80
    v_lshlrev_b32 v250, 4, {L}
    v_cndmask_b32 v68, 0, v2, vcc
    v_mov_b32 v251, {M_QMAX}
    v_mov_b32 v69, v68
    v_lshlrev_b32 v247, 5, {L}
    s_lshl_b32 s60, {sW}, 8
    s_add_u32 s60, s60, {OACC}
    v_lshlrev_b32 v244, 2, {L}
    v_add_u32 v244, s60, v244
    v_add_u32 v246, {QF}, v250
    v_add_u32 v252, {WS_V - WS_K}, v250
    s_lshr_b32 s60, {sW}, 1
    s_lshl_b32 s60, s60, 12
    s_and_b32 s61, {sW}, 1
    s_lshl_b32 s61, s61, 11
    s_add_u32 s60, s60, s61
    v_add_u32 v220, s60, v246
    s_lshl_b32 s60, {sW}, 11
    s_add_u32 s61, s60, {WS_KVF1}
    s_add_u32 s60, s60, {WS_KVF}
    s_lshl_b32 s54, {sW}, 14
    s_add_u32 s54, s54, {WS_K}
    s_and_b32 s55, {sJ}, 3
    s_lshl_b32 s55, s55, 12
    s_mov_b32 s62, {QSCALE}
    s_mov_b32 s63, 0
    s_add_u32 s8, s54, s55
    s_add_u32 s55, s55, 4096
    s_and_b32 s55, s55, 0x3fff
    s_add_u32 s9, s54, s55
    s_add_u32 s55, s55, 4096
    s_and_b32 s55, s55, 0x3fff
    s_add_u32 s10, s54, s55
    s_add_u32 s55, s55, 4096
    s_and_b32 s55, s55, 0x3fff
    s_add_u32 s11, s54, s55
    """)
    def padinit():
        for t in range(16):
            for r in (68 + 8*t, 70 + 8*t):
                if r != 68: a(f"v_mov_b64 {vr(r,2)}, v[68:69]")
    padinit()
    def qreads(ks):
        b = 192 + 8*(ks % 3)
        a(f"ds_read_b64_tr_b16 {vr(b,2)}, v184 offset:{2048*ks}")
        a(f"ds_read_b64_tr_b16 {vr(b+2,2)}, v184 offset:{2048*ks+512}")
        a(f"ds_read_b128 {vr(b+4,4)}, v{XA[ks&7]} offset:{16384*(ks>>3)}")
    poll = f"buffer_load_dwordx2 v[248:249], v247, {srd(SWS)}, s60 offen sc1"
    D = int(o.get("D", 5))
    early = True
    pollc = int(o.get("pollc", 2))
    poll1 = f"buffer_load_dwordx2 v[248:249], v247, {srd(SWS)}, s61 offen sc1"
    def kvload(t):
        return [f"buffer_load_dwordx4 {vr(4*t,4)}, v250, s[12:15], s{8+(t>>2)} offen offset:{1024*(t&3)} sc1",
                f"buffer_load_dwordx4 {vr(64+8*t,4)}, v252, s[12:15], s{8+(t>>2)} offen offset:{1024*(t&3)} sc1"]
    first = [x for t in range(D) for x in kvload(t)]
    for c in range(4):
        a(("s_waitcnt vmcnt(0) lgkmcnt(0)\n" if c == 0 else "") + "s_barrier")
        if c == 0: stamp(2)
        if c > 0: hstamp(12 + c)
        if c == 1: a(f"v_mov_b32 v253, {M_TAG}\nds_read_b32 v253, v253")
        if c == pollc: a(poll)
        qreads(8*c); qreads(8*c+1)
        if c == 3 and early:
            a(f"s_waitcnt vmcnt(0)\nv_cmp_ne_u32 vcc, {sTAG}, v248\ns_nop 3\ns_cmp_eq_u64 vcc, 0\ns_cselect_b32 s14, {WS_SIZE}, 0\n{poll1}")
        for k in range(8):
            ks = 8*c + k
            if k < 6:
                qreads(ks+2); a("s_waitcnt lgkmcnt(6)")
            else:
                a(f"s_waitcnt lgkmcnt({3*(7-k)})")
            if c == 3 and k == 7: a("s_barrier")
            b = 192 + 8*(ks % 3)
            a(f"v_mfma_f32_32x32x16_bf16 v[224:239], {vr(b,4)}, {vr(b+4,4)}, {'0' if ks == 0 else 'v[224:239]'}")
            if c == 3 and early: a("\n".join(first[k:k+1] if k < 7 else first[7:]))
        if c == 1: a(f"v_readfirstlane_b32 {sTAG}, v253")
    stamp(3)
    a("s_setprio 2\ns_nop 9")
    for r in range(16): a(f"v_mul_f32 v{224+r}, s62, v{224+r}")
    for r in range(8): a(f"v_cvt_pk_bf16_f32 v{192+r}, v{224+2*r}, v{225+2*r}")
    a(f"v_mov_b32 v245, {sTAG}\nds_write_b128 v220, v[192:195]\nds_write_b128 v220, v[196:199] offset:1024")
    a(f"s_cmp_lg_u32 {sW}, 0\ns_cbranch_scc1 L_q0s\nds_write_b32 v251, v245 offset:{M_Q0 - M_QMAX}\nL_q0s:")
    stamp(4)
    a("v_mul_f32 v208, v224, v224\nv_mul_f32 v209, v232, v232")
    for r in range(1, 8): a(f"v_fmac_f32 v208, v{224+r}, v{224+r}\nv_fmac_f32 v209, v{232+r}, v{232+r}")
    a(f"""
    s_mov_b32 s63, 0
    L_q0w:
    ds_read_b32 v210, v251 offset:{M_Q0 - M_QMAX}
    ds_read_b128 v[240:243], v246
    s_add_u32 s63, s63, 1
    s_cmp_gt_u32 s63, {SPIN_MAX}
    s_cbranch_scc1 L_q0x
    s_waitcnt lgkmcnt(0)
    v_cmp_ne_u32 vcc, {sTAG}, v210
    s_cbranch_vccnz L_q0w
    L_q0x:
    s_cmp_eq_u32 s14, 0
    s_cbranch_scc1 L_kvlate
    s_waitcnt vmcnt({2*D})
    v_cmp_ne_u32 vcc, {sTAG}, v248
    s_cbranch_vccnz L_kvlate1
    L_kvgo:
    """)
    stamp(5)
    a(f"""
    v_permlane32_swap_b32 v208, v209
    v_max_u32_dpp v249, v249, v249 row_ror:8 row_mask:0xf bank_mask:0xf
    v_add_f32 v254, v208, v209
    v_mov_b32 v253, 1
    v_max_u32_dpp v249, v249, v249 row_ror:4 row_mask:0xf bank_mask:0xf
    v_max_u32_dpp v254, v254, v254 row_ror:8 row_mask:0xf bank_mask:0xf
    s_mov_b32 s64, 0x00010001
    v_max_u32_dpp v249, v249, v249 row_ror:2 row_mask:0xf bank_mask:0xf
    v_max_u32_dpp v254, v254, v254 row_ror:4 row_mask:0xf bank_mask:0xf
    s_mov_b32 s65, 0x00010001
    v_max_u32_dpp v249, v249, v249 row_ror:1 row_mask:0xf bank_mask:0xf
    v_max_u32_dpp v254, v254, v254 row_ror:2 row_mask:0xf bank_mask:0xf
    v_add_u32 v246, 1024, v246
    s_mov_b32 s62, 6
    v_max_u32_dpp v254, v254, v254 row_ror:1 row_mask:0xf bank_mask:0xf
    s_mov_b64 exec, s[64:65]
    ds_max_u32 v251, v254
    ds_max_u32 v251, v249 offset:4
    ds_add_u32 v251, v253 offset:8
    s_mov_b64 exec, -1
    s_mov_b32 s64, {0 if o.get('noG') else 0x24}
    s_mov_b32 s65, 0
    L_qk0:
    s_waitcnt vmcnt({2*D-1})
    v_mfma_f32_32x32x16_bf16 v[192:207], v[0:3], v[240:243], 0
    v_max_u32 v254, v0, v2
    s_nop 1
    """)
    stamp(6)
    if diag and not o.get("lite"): a("s_memrealtime s[86:87]")
    flush = [f"ds_write2st64_b32 v244, v{224+2*r}, v{225+2*r} offset0:{8*r} offset1:{8*r+4}" for r in range(4)] + ["ds_write2st64_b32 v244, v232, v245 offset0:32 offset1:36", f"v_add_u32 v244, {0 if o.get('noG') else SLOT}, v244"]
    def tile(t, peel=False):
        first = peel and t == 0
        S = [192, 208]
        cur = S[t & 1]; nxt = S[(t+1) & 1]
        Kn = 4*((t+1) % 16); Vp = 64 + 8*((t-1) % 16) + 4; Vc = 64 + 8*t
        m0 = f"v_mfma_f32_32x32x16_bf16 v[224:239], {vr(Vp,4)}, {vr(nxt+4,4)}, v[224:239]"
        m1 = f"v_mfma_f32_32x32x16_bf16 {vr(nxt,16)}, {vr(Kn,4)}, v[240:243], 0"
        m2 = f"v_mfma_f32_32x32x16_bf16 v[224:239], {vr(Vc,4)}, {vr(cur,4)}, {'0' if t == 0 else 'v[224:239]'}"
        e = lambda i: f"v_exp_f32 v{cur+i}, v{cur+i}"
        c = lambda i: f"v_cvt_pk_bf16_f32 v{cur+i}, v{cur+2*i}, v{cur+2*i+1}"
        cp7 = f"v_cvt_pk_bf16_f32 v{nxt+7}, v{nxt+14}, v{nxt+15}"
        seq = []
        if peel:
            if t + D < 16: seq += kvload(t + D)
            if t == int(o.get("go", 8)): seq.append(f"ds_write_b32 v251, v245 offset:{M_GO - M_QMAX}")
            seq.append(f"s_waitcnt vmcnt({max(2*min(t+D+1, 16) - (2*t+3), 0)})")
            seq.append(f"v_max3_u32 v254, v254, v{Vc}, v{Vc+2}")
            if t < 15: seq.append(f"v_max3_u32 v254, v254, v{Kn}, v{Kn+2}")
            seq += [f"v_permlane16_swap_b32 v{Vc+r}, v{Vc+4+r}" for r in range(4)]
        qn = ["ds_read_b128 v[240:243], v246", "v_add_u32 v246, 1024, v246"]
        if peel: qn.append("ds_read_b96 v[248:250], v251")
        if not o.get("clus") and not o.get("even"):
            seq += [e(0)] + ([] if first else [cp7]) + [e(1), e(2), c(0)] + ([] if first else [m0]) + [e(3), e(4)]
            if t == 15: seq.append("s_waitcnt lgkmcnt(0)")
            seq += [e(5), m1]
            if t == 14: seq += qn
            seq += [e(6), e(7), e(8), c(1), e(9), e(10), e(11), c(2), e(12)]
            if t == 0 and not first: seq += (flush if not o.get("noflush") else [])
            seq += [e(13), c(3), c(4), e(14), m2, c(5), c(6)]
        elif o.get("even") or (t == 0 and not first):
            seq += [e(0)] + ([] if first else [cp7]) + [e(1), e(2)] + ([] if first else [m0]) + [c(0), e(3), e(4), c(1), e(5), e(6)]
            if t == 15: seq.append("s_waitcnt lgkmcnt(0)")
            seq.append(m1)
            if t == 14: seq += qn
            seq += [c(2), e(7), e(8), c(3), e(9), e(10)]
            if t == 0 and not first: seq += (flush if not o.get("noflush") else [])
            seq += [c(4), m2, e(11), e(12), c(5), e(13), e(14), c(6)]
        else:
            seq += [e(0)] + ([] if first else [cp7]) + [e(1), e(2), e(3)]
            if t == 15: seq.append("s_waitcnt lgkmcnt(0)")
            seq += [e(4), e(5)] + ([] if first else [m0]) + [e(6), e(7), c(0), c(1), m1, c(2), c(3), e(8), e(9), m2]
            if t == 14: seq += qn
            seq += [e(10), c(4), e(11), e(12), c(5), e(13), e(14), c(6)]
        if t == 15 and not peel: seq += ["s_bitcmp1_b32 s64, s62"]
        seq += [e(15)]
        a("\n".join(seq))
    for t in range(16): tile(t, peel=True)
    stamp(7)
    a(f"""
    v_cmp_eq_u32 vcc, -1, v254
    {"s_cmp_eq_u32 s65, 0" if o.get("force_redo") else ""}
    {"s_cbranch_scc1 L_redo" if o.get("force_redo") else ""}
    s_cbranch_vccnz L_redo
    L_clean:
    v_cmp_ne_u32 vcc, 16, v250
    v_mul_f32 v248, v248, v249
    s_mov_b32 s63, 0
    s_cbranch_vccnz L_chk2
    v_cmp_nge_f32 vcc, 0x45700000, v248
    {"s_nop 0" if o.get("force_slow") else "s_cbranch_vccz L_top"}
    s_branch L_slowgo
    .p2align 6
    L_top:
    """)
    for t in range(16): tile(t)
    if diag and not rt and not o.get("hd") and not o.get("lite"):
        a("s_cselect_b32 s57, 1, 0\ns_cmp_lt_u32 s62, 2\ns_cbranch_scc1 L_nst\ns_mov_b32 s90, s92\ns_mov_b32 s92, s94\ns_mov_b32 s94, s96\ns_mov_b32 s96, s98\ns_memtime s[98:99]\ns_waitcnt lgkmcnt(0)\nL_nst:\ns_cmp_eq_u32 s57, 1")
    a(f"""
    s_cbranch_scc1 L_check
    s_sub_u32 s62, s62, 1
    s_cbranch_scc0 L_top
    v_cvt_pk_bf16_f32 v215, v222, v223
    s_nop 1
    v_mfma_f32_32x32x16_bf16 v[224:239], {vr(64+8*15+4,4)}, v[212:215], v[224:239]
    s_nop 11
    """)
    a("\n".join(flush[:5]) + "\ns_waitcnt lgkmcnt(0)")
    stamp(8)
    if diag and not o.get("lite"): a("s_memrealtime s[88:89]")
    a("s_barrier")
    diag_out("a")
    a("s_endpgm")
    a(f"""
    L_kvlate:
    {poll}
    s_add_u32 s63, s63, 1
    s_cmp_gt_u32 s63, {SPIN_MAX}
    s_cbranch_scc1 L_kvlate1
    s_waitcnt vmcnt(0)
    v_cmp_ne_u32 vcc, {sTAG}, v248
    s_cbranch_vccnz L_kvlate
    L_kvlate1:
    {poll1}
    s_add_u32 s63, s63, 1
    s_cmp_gt_u32 s63, {SPIN_MAX}
    s_cbranch_scc1 L_kvlate2
    s_waitcnt vmcnt(0)
    v_cmp_ne_u32 vcc, {sTAG}, v248
    s_cbranch_vccnz L_kvlate1
    L_kvlate2:
    s_mov_b32 s14, {WS_SIZE}
    """)
    a("\n".join(first) + "\ns_branch L_kvgo")
    a(f"""
    L_redo:
    s_add_u32 s65, s65, 1
    s_cmp_gt_u32 s65, 1000
    s_cbranch_scc1 L_clean
    v_and_b32 v250, 11, {L}
    v_cmp_eq_u32 vcc, 0, v250
    v_mov_b32 v249, 0x3f803f80
    v_lshlrev_b32 v250, 4, {L}
    v_cndmask_b32 v68, 0, v249, vcc
    v_add_u32 v246, {QF}, v250
    v_mov_b32 v69, v68
    s_nop 7
    s_nop 7
    ds_read_b128 v[240:243], v246
    v_add_u32 v246, 1024, v246
    """)
    padinit()
    a("\n".join(first) + "\ns_waitcnt lgkmcnt(0)\ns_branch L_qk0")
    a(f"""
    L_check:
    s_mov_b32 s63, 0
    s_sub_u32 s62, s62, 1
    s_cmp_eq_u32 s62, 4
    s_cselect_b32 s60, 4, 12
    s_cselect_b32 s61, {OACC + 2*SLOT - X_}, 0
    s_add_u32 s60, s60, {M_CNTG}
    v_mov_b32 v249, s60
    L_xw:
    ds_read_b32 v248, v249
    s_add_u32 s63, s63, 1
    s_cmp_gt_u32 s63, {SPIN_MAX}
    s_cbranch_scc1 L_xw_x
    s_waitcnt lgkmcnt(0)
    v_cmp_ne_u32 vcc, 4, v248
    s_cbranch_vccnz L_xw
    L_xw_x:
    v_subrev_u32 v244, s61, v244
    s_branch L_top
    L_chk2:
    ds_read_b96 v[248:250], v251
    s_add_u32 s63, s63, 1
    s_cmp_gt_u32 s63, {SPIN_MAX}
    s_cbranch_scc1 L_chk3
    s_waitcnt lgkmcnt(0)
    v_cmp_ne_u32 vcc, 16, v250
    s_cbranch_vccnz L_chk2
    L_chk3:
    v_mul_f32 v248, v248, v249
    v_cmp_nge_f32 vcc, 0x45700000, v248
    {"s_nop 0" if o.get("force_slow") else "s_cbranch_vccz L_top"}
    L_slowgo:
    """)
    a(f"""
    v_lshlrev_b32 v246, 4, {L}
    v_add_u32 v246, {QF}, v246
    v_and_b32 v247, 31, {L}
    v_lshlrev_b32 v247, 2, v247
    v_add_u32 v247, {M_M}, v247
    v_mov_b32 v251, {M_CNTS}
    s_mov_b32 s62, 8
    L_slow:
    ds_read_b128 v[240:243], v246
    v_add_u32 v246, 1024, v246
    v_mov_b32 v248, 0xff800000
    s_waitcnt lgkmcnt(0)
    """)
    for t in range(16):
        a(f"v_mfma_f32_32x32x16_bf16 v[192:207], {vr(4*t,4)}, v[240:243], 0\ns_nop 11")
        for r in range(8): a(f"v_max3_f32 v248, v248, v{192+2*r}, v{193+2*r}")
    a(f"""
    ds_max_f32 v247, v248
    s_mov_b64 exec, 1
    ds_add_u32 v251, v253
    s_mov_b64 exec, -1
    s_mov_b32 s63, 0
    L_slow2:
    s_sleep 1
    ds_read_b32 v249, v251
    s_add_u32 s63, s63, 1
    s_cmp_gt_u32 s63, {SPIN_MAX}
    s_cbranch_scc1 L_slow3
    s_waitcnt lgkmcnt(0)
    v_cmp_ne_u32 vcc, 4, v249
    s_cbranch_vccnz L_slow2
    L_slow3:
    ds_read_b32 v248, v247
    v_add_u32 v247, 128, v247
    v_add_u32 v251, 4, v251
    s_waitcnt lgkmcnt(0)
    """)
    for t in range(16):
        a(f"v_mfma_f32_32x32x16_bf16 v[192:207], {vr(4*t,4)}, v[240:243], 0\ns_nop 11")
        for r in range(16): a(f"v_sub_f32 v{192+r}, v{192+r}, v248")
        for r in range(16): a(f"v_exp_f32 v{192+r}, v{192+r}")
        a("s_nop 0")
        for r in range(8): a(f"v_cvt_pk_bf16_f32 v{208+r}, v{192+2*r}, v{193+2*r}")
        a("s_nop 1")
        a(f"v_mfma_f32_32x32x16_bf16 v[224:239], {vr(64+8*t,4)}, v[208:211], {'0' if t == 0 else 'v[224:239]'}")
        a(f"v_mfma_f32_32x32x16_bf16 v[224:239], {vr(68+8*t,4)}, v[212:215], v[224:239]")
    a(f"""
    s_cmp_lg_u32 s62, 6
    s_cbranch_scc1 L_slow5
    s_mov_b32 s63, 0
    v_mov_b32 v249, {M_CNTG + 12}
    L_slow4:
    ds_read_b32 v248, v249
    s_add_u32 s63, s63, 1
    s_cmp_gt_u32 s63, {SPIN_MAX}
    s_cbranch_scc1 L_slow4x
    s_waitcnt lgkmcnt(0)
    v_cmp_ne_u32 vcc, 4, v248
    s_cbranch_vccnz L_slow4
    L_slow4x:
    v_subrev_u32 v244, {OACC + 2*SLOT - X_}, v244
    L_slow5:
    """)
    a("s_nop 11")
    a("\n".join(flush))
    a(f"""
    s_sub_u32 s62, s62, 1
    s_cmp_lg_u32 s62, 0
    s_cbranch_scc1 L_slow
    s_waitcnt lgkmcnt(0)
    s_barrier
    """)
    diag_out("s")
    a("s_endpgm")

    a(f"""
    L_Gjoin:
    s_sub_u32 {sW}, {sW}, 4
    """)
    gw = sW
    inG[0] = True
    def lds_wait(lbl, addr, off, val, sleep=2):
        a(f"""
        s_mov_b32 s63, 0
        {lbl}:
        ds_read_b32 v178, {addr} offset:{off}
        s_add_u32 s63, s63, 1
        s_cmp_gt_u32 s63, {SPIN_MAX}
        s_cbranch_scc1 {lbl}_x
        s_waitcnt lgkmcnt(0)
        v_cmp_ne_u32 vcc, {val}, v178
        s_cbranch_vccz {lbl}_x
        s_sleep {sleep}
        s_branch {lbl}
        {lbl}_x:
        """)
    a(f"""
    ds_read_b32 v178, v177 offset:{M_TAG - M_CNTG}
    ds_read_u16 v152, v12
    ds_read_u16 v156, v12 offset:64
    ds_read_u16 v168, v13
    ds_read_u16 v172, v13 offset:64
    s_setprio 3
    s_waitcnt lgkmcnt(0)
    v_readfirstlane_b32 {sTAG}, v178
    s_nop 3
    """)
    if o.get("noG"): a("s_barrier\ns_branch L_gend")
    PRE = int(o.get("pre", 8))
    if int(o.get("go", 8)) >= 0 and not PRE: lds_wait("L_go", "v177", M_GO - M_CNTG, sTAG, 3)
    a(f"""
    s_setprio 0
    s_lshl_b32 s64, {sGRP}, 8
    s_add_u32 s64, s64, {WS_KVF}
    s_mul_i32 s4, {gw}, {448*1024}
    s_lshl_b32 s55, {sJ}, 7
    s_add_u32 s4, s4, s55
    s_lshl_b32 s7, {gw}, 17
    s_add_u32 s7, s7, s55
    s_mul_i32 s5, {sGRP}, {2*112*1024}
    s_add_u32 s5, s5, {WS_H}
    s_lshl_b32 s24, s48, 11
    s_add_u32 s24, s24, s5
    s_add_u32 s25, s24, {112*1024}
    s_mul_i32 s61, {gw}, {28*1024}
    s_add_u32 s5, s5, s61
    s_and_b32 s6, {sGRP}, {0 if o.get('norot2') else 3}
    s_lshl_b32 s10, {sGRP}, 3
    s_add_u32 s8, s10, {sJ}
    s_lshl_b32 s26, s8, 2
    s_add_u32 s26, s26, {gw}
    s_lshl_b32 s26, s26, 5
    s_add_u32 s26, s26, {WS_HF}
    s_lshl_b32 s8, s8, 3
    s_add_u32 s8, s8, {gw}
    s_lshl_b32 s8, s8, 10
    s_add_u32 s8, s8, {WS_O}
    s_add_u32 s9, s8, 4096
    s_lshl_b32 s60, {gw}, 1
    s_add_u32 s10, s10, s60
    s_lshl_b32 s27, s10, 7
    s_add_u32 s27, s27, {WS_HF}
    s_lshl_b32 s10, s10, 13
    s_add_u32 s10, s10, {WS_O}
    s_add_u32 s65, s10, 8192
    s_lshl_b32 s33, {sGRP}, 16
    s_add_u32 s11, s33, {WS_O + 7*1024}
    s_add_u32 s33, s33, s55
    s_add_u32 s34, s33, 0x8000
    s_lshl_b32 s60, {gw}, 13
    s_add_u32 s33, s33, s60
    s_movk_i32 s32, {4*SLOT // 4}
    s_cmp_lt_u32 {gw}, 2
    s_cselect_b32 s32, {(2*SLOT + X_ - OACC) // 4 & 0xffffffff}, s32
    s_lshl_b32 s32, s32, 2
    """)
    stamp(3)
    a(f"s_cmp_eq_u32 {gw}, 3\ns_cbranch_scc1 L_F1w3")
    ACC = lambda mt, nt: 32*nt + 16*mt
    def mf(mt, nt, A_, B_, c0=False):
        d = vr(ACC(mt, nt), 16)
        a(f"v_mfma_f32_32x32x16_bf16 {d}, {vr(A_,4)}, {vr(B_,4)}, {'0' if c0 else d}")
    class VM:
        def __init__(s_): s_.ops = []
        def op(s_, ins, tag=None): a(ins); s_.ops.append(tag)
        def n(s_, *tags): return len(s_.ops) - 1 - max(i for i, t in enumerate(s_.ops) if t in tags)
    xcload = f"buffer_load_dwordx2 v[194:195], v180, {srd(SWS)}, s64 offen sc1"
    def f1reads(k, w3):
        ab = 120 + 8*(k & 1); bb = 64 + 8*(k & 1); u = k & 7; xo = 16384*(k >> 3)
        r0 = [f"ds_read_b64_tr_b16 {vr(ab,2)}, v144 offset:{2048*u}", f"ds_read_b64_tr_b16 {vr(ab+2,2)}, v144 offset:{2048*u+(256 if w3 else 512)}", f"ds_read_b128 {vr(bb,4)}, v{136+u} offset:{xo}"]
        if not w3: r1 = [f"ds_read_b64_tr_b16 {vr(ab+4,2)}, v145 offset:{2048*u}", f"ds_read_b64_tr_b16 {vr(ab+6,2)}, v145 offset:{2048*u+512}"]
        else: r1 = ["s_mov_b64 exec, s[36:37]", f"ds_read_b128 {vr(ab+4,4)}, v145 offset:{32*k}", "s_mov_b64 exec, -1"]
        r1.append(f"ds_read_b128 {vr(bb+4,4)}, v{136+u} offset:{xo+8192}")
        return "\n".join(r0), "\n".join(r1)
    def ffn1(w3):
        vm = VM()
        def dma(k, half):
            if k < 32:
                if half == 0: vm.op(f"buffer_load_dwordx4 v148, {srd(SW1)}, s54 offen lds", k)
                elif not w3: vm.op(f"buffer_load_dwordx4 v149, {srd(SW1)}, s54 offen offset:1024 lds", k)
            else:
                vm.op(f"buffer_load_dwordx4 v{150+half}, {srd(SW2 if k < 39 else SWO)}, s54 offen offset:{1024*half} lds", k)
        def adv(k):
            if k < 32 and k & 7: a(f"s_add_u32 s54, s54, {16*3584}")
            elif k < 32: a(f"s_add_u32 s55, {sC0}, {k >> 3}\ns_and_b32 s55, s55, 3\ns_mul_i32 s55, s55, {128*3584}\ns_add_u32 s54, s100, s55")
            elif k == 32: a(f"s_mul_i32 s54, s6, {7*16384}\ns_add_u32 s54, s54, s4")
            elif k < 39: a("s_add_u32 s54, s54, 16384")
            elif k == 39: a(f"s_add_u32 s54, s7, {7*16384}")
        for k in range(8):
            a(f"s_add_u32 m0, s49, {2048*k}\ns_nop 0")
            dma(k, 0); dma(k, 1); adv(k+1)
        if w3: a("s_setprio 3\nv_mov_b32 v156, 0\nv_mov_b64 v[124:125], 0\nv_mov_b64 v[126:127], 0\nv_mov_b64 v[132:133], 0\nv_mov_b64 v[134:135], 0\ns_mov_b32 s36, 0x11\ns_mov_b32 s37, 0x11\ns_setprio 0")
        a(f"s_waitcnt vmcnt({vm.n(0)})")
        a("\n".join(f1reads(0, w3)))
        for nt in range(2):
            mf(0, nt, 152, 160, True)
            mf(1, nt, 156, 160, True)
        for k in range(32):
            u = k & 7
            ab = 120 + 8*(k & 1); bb = 64 + 8*(k & 1)
            if k == 12:
                for so in ("s8", "s9"): vm.op(f"buffer_store_dwordx4 v[200:203], v166, {srd(SWS)}, {so} offen sc1")
                vm.op(f"buffer_load_dword v178, v180, {srd(SWS)}, s27 offen sc1")
                vm.op(xcload, "xc")
                if not w3 and not o.get("nopf"):
                    a(f"""
                    s_cmp_eq_u32 {gw}, 0
                    s_cbranch_scc0 L_f1m
                    s_mul_i32 s60, s2, 7168
                    s_lshr_b64 exec, -1, 8
                    buffer_load_dword v178, v196, {srd(SW2)}, s60 offen
                    s_mov_b64 exec, 0xffff
                    s_lshl_b32 s60, s2, 11
                    buffer_load_dword v178, v196, {srd(SWO)}, s60 offen
                    s_mov_b64 exec, -1
                    L_f1m:
                    """)
                if o.get("hpre"):
                    for so in ("s24", "s25"):
                        for q in range(2 if w3 else 4): vm.op(f"buffer_load_dwordx4 v[204:207], v166, {srd(SWS)}, {so} offen offset:{1024*q}")
            if PRE and k == PRE:
                a("s_setprio 3")
                lds_wait("L_go" + "ab"[w3], "v177", M_GO - M_CNTG, sTAG, 2)
                a("s_setprio 0")
                for kk in range(8, 8 + PRE):
                    a(f"s_add_u32 m0, s49, {2048*(kk & 7)}\ns_nop 0")
                    dma(kk, 0); dma(kk, 1); adv(kk+1)
                if PRE == 8:
                    a(f"s_waitcnt vmcnt({vm.n(8)})")
                    a("\n".join(f1reads(8, w3)))
            hold = k < PRE
            a(f"s_waitcnt vmcnt({vm.n(k+1) if k < 31 and not (hold and k == 7) else 63}) lgkmcnt(0)")
            r0, r1 = f1reads(k+1, w3) if k < 31 and not (hold and k == 7) else ("", "")
            mf(0, 0, ab, bb)
            a(r0)
            mf(1, 0, ab+4, bb)
            a(r1)
            if not hold: a(f"s_add_u32 m0, s49, {2048*u}")
            mf(0, 1, ab, bb+4)
            if not hold: dma(k+8, 0)
            if u == 7: a(f"s_mov_b64 exec, 1\nds_add_u32 v177, v167 offset:{4*(k >> 3)}\ns_mov_b64 exec, -1")
            mf(1, 1, ab+4, bb+4)
            if not hold: dma(k+8, 1); adv(k+9)
        a(f"s_waitcnt vmcnt({vm.n('xc')})")
    ffn1(False)
    a("s_branch L_F1done\nL_F1w3:")
    ffn1(True)
    a(f"""
    L_F1done:
    s_mov_b32 s63, 0
    s_getreg_b32 s61, hwreg(HW_REG_XCC_ID, 0, 4)
    s_setprio 3
    s_branch L_xc_c
    L_xc:
    {xcload}
    s_add_u32 s63, s63, 1
    s_cmp_gt_u32 s63, {SPIN_MAX}
    s_cbranch_scc1 L_xc_x
    s_waitcnt vmcnt(0)
    L_xc_c:
    v_cmp_ne_u32 vcc, {sTAG}, v194
    s_cbranch_vccnz L_xc
    L_xc_x:
    v_cmp_ne_u32 vcc, s61, v195
    s_nop 3
    s_cmp_eq_u64 vcc, 0
    s_cselect_b32 s101, {0 if o.get('nofast') else 1}, 0
    """)
    nst = [0]
    def hstore(ins):
        nst[0] += 1
        a(f"s_cbranch_scc1 L_hs{nst[0]}a\n{ins} sc1\ns_branch L_hs{nst[0]}b\nL_hs{nst[0]}a:\n{ins}\nL_hs{nst[0]}b:")
    stamp(4)
    def hst(mt, nt):
        b = ACC(mt, nt)
        for r in range(16): a(f"v_max_f32 v{b+r}, 0, v{b+r}")
        for r in range(8): a(f"v_pk_mul_f32 {vr(b+2*r,2)}, {vr(b+2*r,2)}, {vr(b+2*r,2)}")
        for r in range(8): a(f"v_cvt_pk_bf16_f32 v{b+r}, v{b+2*r}, v{b+2*r+1}")
        so = "s25" if nt else "s24"
        st = hstore if o.get("hpre") else (lambda ins: a(ins + " sc1"))
        a("s_cmp_eq_u32 s101, 1")
        st(f"buffer_store_dwordx4 {vr(b,4)}, v166, {srd(SWS)}, {so} offen offset:{2048*mt}")
        st(f"buffer_store_dwordx4 {vr(b+4,4)}, v166, {srd(SWS)}, {so} offen offset:{2048*mt+1024}")
    hst(0, 0); hst(0, 1)
    a(f"s_cmp_eq_u32 {gw}, 3\ns_cbranch_scc1 L_gate")
    hst(1, 0); hst(1, 1)
    a(f"""
    s_branch L_gated
    L_gate:
    v_mul_f32 v16, {0x80000000 | LOG2E}, v16
    v_mul_f32 v48, {0x80000000 | LOG2E}, v48
    v_exp_f32 v16, v16
    v_exp_f32 v48, v48
    s_nop 0
    v_add_f32 v16, 1.0, v16
    v_add_f32 v48, 1.0, v48
    v_rcp_f32 v16, v16
    v_rcp_f32 v48, v48
    s_nop 1
    ds_write_b32 v192, v16
    ds_write_b32 v192, v48 offset:128
    L_gated:
    s_mov_b64 exec, 1
    ds_add_u32 v177, v167 offset:16
    s_mov_b64 exec, -1
    """)
    def fin(B, sfx, first):
        a(f"""
        s_mov_b32 s63, 0
        L_fw{sfx}:
        ds_read_b32 v{B}, v176
        s_add_u32 s63, s63, 1
        s_cmp_gt_u32 s63, {SPIN_MAX}
        s_cbranch_scc1 L_fw{sfx}_x
        s_waitcnt lgkmcnt(0)
        v_cmp_ne_u32 vcc, {sTAG}, v{B}
        s_cbranch_vccz L_fw{sfx}_x
        s_sleep 3
        s_branch L_fw{sfx}
        L_fw{sfx}_x:
        ds_read2st64_b32 {vr(B+32,2)}, v181 offset0:32 offset1:33
        ds_read2st64_b32 {vr(B+34,2)}, v181 offset0:34 offset1:35
        """)
        for w in range(4):
            for r in range(4): a(f"ds_read2st64_b32 {vr(B+8*w+2*r,2)}, v181 offset0:{8*r+w} offset1:{8*r+4+w}")
        a(f"s_cmp_eq_u32 s58, 1\ns_waitcnt lgkmcnt(8)\nv_pk_add_f32 {vr(B+32,2)}, {vr(B+32,2)}, {vr(B+34,2)}")
        for r in range(4): a(f"v_pk_add_f32 {vr(B+2*r,2)}, {vr(B+2*r,2)}, {vr(B+8+2*r,2)}")
        a(f"v_add_f32 v{B+32}, v{B+32}, v{B+33}\ns_waitcnt lgkmcnt(0)")
        for r in range(4): a(f"v_pk_add_f32 {vr(B+16+2*r,2)}, {vr(B+16+2*r,2)}, {vr(B+24+2*r,2)}")
        a(f"v_rcp_f32 v{B+32}, v{B+32}")
        for r in range(4): a(f"v_pk_add_f32 {vr(B+2*r,2)}, {vr(B+2*r,2)}, {vr(B+16+2*r,2)}")
        a(f"v_mul_f32 v{B+32}, v{B+32}, v164")
        for r in range(4): a(f"v_pk_mul_f32 {vr(B+2*r,2)}, {vr(B+2*r,2)}, {vr(B+32,2)} op_sel_hi:[1,0]")
        for r in range(4): a(f"v_cvt_pk_bf16_f32 v{B+r}, v{B+2*r}, v{B+2*r+1}")
        for r in range(4): a(f"v_min_u32 v{B+r}, -2, v{B+r}")
        ins = f"buffer_store_dwordx4 {vr(B,4)}, v166, {srd(SWS)}, {'s8' if first else 's4'} offen"
        if first: a(ins + " sc1")
        else: hstore(ins)
        if first:
            a(f"""
            s_or_b32 s55, s2, {gw}
            s_cbranch_scc1 L_noep
            v_mov_b32 v{B+33}, {sTAG}
            s_mov_b64 exec, 1
            buffer_store_dword v{B+33}, off, {srd(SWS)}, 0 sc1
            s_mov_b64 exec, -1
            L_noep:
            """)
        else: a("s_nop 0")
    def flag_wait(lbl, vaddr, soff, sleep=2):
        a(f"""
        s_mov_b32 s63, 0
        {lbl}:
        buffer_load_dword v178, {vaddr}, {srd(SWS)}, {soff} offen sc1
        s_add_u32 s63, s63, 1
        s_cmp_gt_u32 s63, {SPIN_MAX}
        s_cbranch_scc1 {lbl}_x
        s_waitcnt vmcnt(0)
        v_cmp_ne_u32 vcc, {sTAG}, v178
        s_cbranch_vccz {lbl}_x
        s_sleep {sleep}
        s_branch {lbl}
        {lbl}_x:
        """)
    a(f"""
    v_mov_b32 v129, {sTAG}
    s_cmp_eq_u32 {gw}, 0
    s_cselect_b32 s60, -1, 0
    v_and_b32 v160, s60, v160
    s_cmp_eq_u32 s101, 1
    s_mov_b64 exec, 1
    s_waitcnt vmcnt(0)
    """)
    hstore(f"buffer_store_dword v129, off, {srd(SWS)}, s26")
    a("s_mov_b64 exec, -1")
    stamp(5)
    lds_wait("L_gs1", "v177", 16, "4")
    a("ds_read_b32 v164, v192\nds_read_b32 v165, v192 offset:128")
    for nt in range(2):
        mf(0, nt, 168, 160, True); mf(1, nt, 172, 160, True)
    flag_wait("L_hw", "v180", "s27")
    a(f"v_mov_b32 v180, v193\nv_subrev_u32 v168, {OACC - X_}, v190\nv_subrev_u32 v169, {OACC - X_}, v191\nv_mov_b64 v[170:171], v[198:199]")
    stamp(6)
    a(f"""
    s_setprio 0
    s_mul_i32 s60, s6, 7168
    s_add_u32 s60, s60, s5
    s_add_u32 s61, s60, {112*1024}
    """)
    vm = VM()
    def hA(k): vm.op(f"buffer_load_dwordx4 {vr(64+8*(k%7),4)}, v166, {srd(SWS)}, s60 offen sc1", ("h", k)); a("s_add_u32 s60, s60, 1024")
    def hB(k): vm.op(f"buffer_load_dwordx4 {vr(68+8*(k%7),4)}, v166, {srd(SWS)}, s61 offen sc1", ("h", k)); a("s_add_u32 s61, s61, 1024")
    for k in range(7): hA(k); hB(k)
    def f2reads(k):
        ab = 120 + 8*(k & 1); slot = k % 7
        return (f"ds_read_b64_tr_b16 {vr(ab,2)}, v146 offset:{2048*slot}\nds_read_b64_tr_b16 {vr(ab+2,2)}, v146 offset:{2048*slot+1024}\n"
                f"ds_read_b64_tr_b16 {vr(ab+4,2)}, v147 offset:{2048*slot}\nds_read_b64_tr_b16 {vr(ab+6,2)}, v147 offset:{2048*slot+1024}")
    a(f2reads(0))
    for k in range(28):
        u = k % 7
        if u == 0 and k < 21: a(f"s_add_u32 s6, s6, 1\ns_and_b32 s6, s6, 3\ns_mul_i32 s54, s6, {7*16384}\ns_add_u32 s54, s54, s4\ns_mul_i32 s60, s6, 7168\ns_add_u32 s60, s60, s5\ns_add_u32 s61, s60, {112*1024}")
        if k == 21: a("s_mov_b32 s54, s7\ns_mov_b32 s60, s10\ns_mov_b32 s61, s65")
        if k == int(o.get("fink", 16)):
            a("s_setprio 3")
            fin(196, "m", True)
            a("s_setprio 0")
        ab = 120 + 8*(k & 1); bb = 64 + 8*u
        need = [("h", k)] + ([("w", k+1)] if 7 <= k+1 < 28 else [])
        a(f"s_waitcnt vmcnt({vm.n(*need)}) lgkmcnt(0)")
        mf(0, 0, ab, bb)
        if k < 27: a(f2reads(k+1))
        mf(1, 0, ab+4, bb)
        if k < 25: hA(k+7)
        a(f"s_add_u32 m0, s49, {2048*u}")
        mf(0, 1, ab, bb+4)
        sr = srd(SW2 if k < 21 else SWO)
        vm.op(f"buffer_load_dwordx4 v150, {sr}, s54 offen lds", ("w", k+7))
        vm.op(f"buffer_load_dwordx4 v151, {sr}, s54 offen offset:1024 lds", ("w", k+7))
        a("s_add_u32 s54, s54, 16384")
        mf(1, 1, ab+4, bb+4)
        if k < 25: hB(k+7)
    a("s_setprio 3")
    stamp(7)
    def cnt_add(off): a(f"s_mov_b64 exec, 1\nds_add_u32 v177, v167 offset:{off}\ns_mov_b64 exec, -1")
    a("v_sub_f32 v182, 1.0, v164\nv_sub_f32 v184, 1.0, v165\nv_mov_b32 v164, v165\ns_waitcnt vmcnt(0) lgkmcnt(0)")
    cnt_add(20)
    WOF = lambda i, mt: 192 + 8*i + 4*mt if (i, mt) != (7, 1) else 136
    for i in range(8):
        for mt in range(2):
            for e in range(2): a(f"ds_read_b64_tr_b16 {vr(WOF(i,mt)+2*e,2)}, v{146+mt} offset:{2048*i+1024*e}")
    for r in range(16): a(f"v_pk_mul_f32 {vr(2*r,2)}, {vr(2*r,2)}, v[182:183] op_sel_hi:[1,0]")
    for r in range(16, 32): a(f"v_pk_mul_f32 {vr(2*r,2)}, {vr(2*r,2)}, v[184:185] op_sel_hi:[1,0]")
    OF = lambda jj, sl: 64 + 8*sl + 4*jj
    def oload(jj, sl): return f"buffer_load_dwordx4 {vr(OF(jj, sl),4)}, v166, {srd(SWS)}, {('s10', 's65', 's8', 's9')[jj + 2*(sl >> 2)]} offen offset:{1024*(sl&3)} sc1"
    def ofrags(lbl, loads, regs, sleep, pre=False):
        n = len(loads)
        a("s_mov_b32 s63, 0")
        if pre: a(f"s_branch {lbl}_c")
        a(f"{lbl}:")
        a("\n".join(loads))
        a(f"s_add_u32 s63, s63, 1\ns_cmp_gt_u32 s63, {SPIN_MAX}\ns_cbranch_scc1 {lbl}_x\n{lbl}_c:")
        for i in range(n):
            r = regs[i]
            a(f"s_waitcnt vmcnt({n-1-i})")
            if i == 0: a(f"v_max3_u32 v178, v{r}, v{r+1}, v{r+2}\nv_max_u32 v178, v178, v{r+3}")
            else: a(f"v_max3_u32 v178, v178, v{r}, v{r+1}\nv_max3_u32 v178, v178, v{r+2}, v{r+3}")
        a(f"v_cmp_eq_u32 vcc, -1, v178\ns_cbranch_vccz {lbl}_x")
        if sleep: a(f"s_sleep {sleep}")
        a(f"s_branch {lbl}\n{lbl}_x:\ns_waitcnt vmcnt(0)")
    def wo_stage(lbl, nt, sls, sleep, pre):
        ks = [(jj, sl) for sl in sls for jj in range(2)]
        ofrags(lbl, [oload(*k) for k in ks], [OF(*k) for k in ks], sleep, pre)
        a("s_waitcnt lgkmcnt(0)\ns_setprio 0")
        for jj, sl in ks:
            i = 4*jj + (sl & 3)
            mf(0, nt, WOF(i, 0), OF(jj, sl)); mf(1, nt, WOF(i, 1), OF(jj, sl))
        a("s_setprio 3")
    stamp(8)
    wo_stage("L_o0", 0, range(4), 4, True)
    stamp(9)
    a(f"s_add_u32 s4, s8, 4096\ns_add_u32 s8, s10, 4096\ns_add_u32 s9, s65, 4096\nv_add_u32 v176, s32, v176\nv_add_u32 v181, s32, v181")
    a(f"s_mul_i32 s5, {gw}, {SLOT}\ns_cmp_lt_u32 {gw}, 2\ns_cselect_b32 s6, {OACC + 2*SLOT - X_}, 0\ns_add_u32 s5, s5, s6\ns_sub_u32 s5, s49, s5\ns_add_u32 s5, s5, {8192 + 2*SLOT - X_}")
    for mt in range(2):
        for i in range(4): a(f"ds_write_b128 v{186+i}, {vr(16*mt+4*i,4)} offset:{128*mt}")
    cnt_add(28)
    lds_wait("L_w1", "v177", 20, "4")
    FA = lambda s_, ct: (120 + 8*s_ + 4*ct) if s_ < 2 else (148 + 8*(s_-2) + 4*ct)
    for s_ in range(4):
        for ct in range(2):
            for e in range(2): a(f"ds_read_b64_tr_b16 {vr(FA(s_,ct)+2*e,2)}, v253 offset:{16384*s_+1024*e+32*ct}")
    cnt_add(24)
    a(f"s_cmp_lt_u32 {gw}, 2\ns_cbranch_scc0 L_nf\ns_mov_b32 s58, {0 if int(o.get('osc', 3)) >= 5 else 's101'}\ns_call_b64 s[14:15], L_fin\nL_nf:")
    lds_wait("L_rw", "v177", 28, "4", 1)
    for p in range(4):
        a(f"ds_read_b128 {vr(8*p,4)}, v{190 if p < 2 else 168} offset:{SLOT*(p&1)}\nds_read_b128 {vr(4+8*p,4)}, v{191 if p < 2 else 169} offset:{SLOT*(p&1)}")
    for i in range(4): a(f"v_add_u32 v{186+i}, s5, v{186+i}")
    a("s_waitcnt lgkmcnt(4)")
    for r in range(4): a(f"v_pk_add_f32 {vr(2*r,2)}, {vr(2*r,2)}, {vr(8+2*r,2)}")
    a("s_waitcnt lgkmcnt(0)")
    for r in range(4): a(f"v_pk_add_f32 {vr(16+2*r,2)}, {vr(16+2*r,2)}, {vr(24+2*r,2)}")
    for r in range(4): a(f"v_pk_add_f32 {vr(2*r,2)}, {vr(2*r,2)}, {vr(16+2*r,2)}")
    for r in range(4): a(f"v_cvt_pk_bf16_f32 v{172+r}, v{2*r}, v{2*r+1}")
    stamp(10)
    wo_stage("L_o1", 1, (4, 5), 4, False)
    a(f"s_cmp_eq_u32 {gw}, 2\ns_cbranch_scc0 L_nf1\ns_mov_b32 s58, {0 if int(o.get('osc', 3)) >= 6 else 's101'}\ns_call_b64 s[14:15], L_fin\nL_nf1:")
    stamp(11)
    wo_stage("L_o1b", 1, (6,), 4, False)
    a("s_add_u32 s65, s11, 32768")
    fl = [f"buffer_load_dwordx4 {vr(108+0,4)}, v252, {srd(SWS)}, s11 offen sc1", f"buffer_load_dwordx4 {vr(104,4)}, v254, {srd(SWS)}, s11 offen sc1",
          f"buffer_load_dwordx4 {vr(100,4)}, v252, {srd(SWS)}, s65 offen sc1", f"buffer_load_dwordx4 {vr(140,4)}, v254, {srd(SWS)}, s65 offen sc1"]
    fr = [108, 104, 100, 140]
    if not o.get("nowarm"): a("\n".join(fl))
    lds_wait("L_w2", "v177", 24, "4")
    a("s_nop 2")
    for mt in range(2):
        for i in range(4): a(f"ds_write_b128 v{186+i}, {vr(32+16*mt+4*i,4)} offset:{128*mt}")
    cnt_add(32)
    lds_wait("L_rw1", "v177", 32, "4", 1)
    for p in range(4):
        a(f"ds_read_b128 {vr(64+8*p,4)}, v183 offset:{16384*p}\nds_read_b128 {vr(68+8*p,4)}, v185 offset:{16384*p}")
    a("s_waitcnt lgkmcnt(4)")
    for r in range(4): a(f"v_pk_add_f32 {vr(64+2*r,2)}, {vr(64+2*r,2)}, {vr(72+2*r,2)}")
    a("s_waitcnt lgkmcnt(0)")
    for r in range(4): a(f"v_pk_add_f32 {vr(80+2*r,2)}, {vr(80+2*r,2)}, {vr(88+2*r,2)}")
    for r in range(4): a(f"v_pk_add_f32 {vr(2*r,2)}, {vr(64+2*r,2)}, {vr(80+2*r,2)}")
    if o.get("oearly"): a(f"buffer_store_dwordx4 v[172:175], v179, {srd(SOUT)}, s33 offen {o.get('ost0', '')}")
    stamp(12)
    if not o.get("fin4"):
        a(f"s_mov_b32 s58, s101\ns_barrier\ns_cmp_eq_u32 {gw}, 3\ns_cbranch_scc0 L_nf2\ns_call_b64 s[14:15], L_fwf_x\nL_nf2:")
    else:
        a(f"""
    s_lshl_b32 s60, {gw}, 10
    s_sub_u32 s4, s4, s60
    s_lshl2_add_u32 s4, {gw}, s4
    s_add_u32 s4, s4, 3072
    s_cmp_eq_u32 s101, 1
    s_barrier
    ds_read2st64_b32 v[72:73], v170 offset0:32 offset1:33
    ds_read2st64_b32 v[74:75], v170 offset0:34 offset1:35
    ds_read2st64_b32 v[64:65], v171 offset0:0 offset1:4
    ds_read2st64_b32 v[66:67], v171 offset0:1 offset1:5
    ds_read2st64_b32 v[68:69], v171 offset0:2 offset1:6
    ds_read2st64_b32 v[70:71], v171 offset0:3 offset1:7
    s_waitcnt lgkmcnt(4)
    v_pk_add_f32 v[72:73], v[72:73], v[74:75]
    s_waitcnt lgkmcnt(2)
    v_pk_add_f32 v[64:65], v[64:65], v[66:67]
    v_add_f32 v72, v72, v73
    s_waitcnt lgkmcnt(0)
    v_pk_add_f32 v[68:69], v[68:69], v[70:71]
    v_rcp_f32 v72, v72
    v_pk_add_f32 v[64:65], v[64:65], v[68:69]
    v_mul_f32 v72, v72, v164
    v_pk_mul_f32 v[64:65], v[64:65], v[72:73] op_sel_hi:[1,0]
    v_cvt_pk_bf16_f32 v64, v64, v65
    v_min_u32 v64, -2, v64
        """)
        hstore(f"buffer_store_dword v64, v166, {srd(SWS)}, s4 offen")
    stamp(13)
    ofrags("L_o2", fl, fr, 0)
    stamp(14)
    if not o.get("oearly"): a(f"buffer_store_dwordx4 v[172:175], v179, {srd(SOUT)}, s33 offen {o.get('ost0', '')}")
    for s_ in range(4):
        for ct in range(2): a(f"v_mfma_f32_16x16x32_bf16 {vr(4*ct,4)}, {vr(FA(s_,ct),4)}, {vr(fr[s_],4)}, {vr(4*ct,4)}")
    a("""
    s_nop 6
    v_cvt_pk_bf16_f32 v8, v0, v1
    v_cvt_pk_bf16_f32 v9, v2, v3
    v_cvt_pk_bf16_f32 v10, v4, v5
    v_cvt_pk_bf16_f32 v11, v6, v7
    s_nop 1
    v_permlane16_swap_b32 v8, v10
    v_permlane16_swap_b32 v9, v11
    """)
    a(f"buffer_store_dwordx4 v[8:11], v180, {srd(SOUT)}, s34 offen {o.get('ost1', '')}")
    stamp(15)
    a("s_branch L_gend")
    if not o.get("g6l"): a("L_gsetupx:\ns_mov_b32 s55, s38\ns_call_b64 s[38:39], L_gsetup\ns_call_b64 s[38:39], L_gsetup2\ns_mov_b32 s38, s55\ns_mov_b32 s39, 0x00020000\ns_setpc_b64 s[58:59]")
    a("L_gsetup:")
    gsetup1()
    a("s_setpc_b64 s[38:39]\nL_gsetup2:")
    gsetup2(True)
    a("L_gsx:\ns_setpc_b64 s[38:39]")
    a("L_fin:")
    fin(64, "f", False)
    a("s_setpc_b64 s[14:15]\nL_gend:")
    if diag: a(f"s_add_u32 {sW}, {sW}, 4")
    diag_out("g")
    a("L_end:\ns_endpgm")

    hdr = open(os.path.join(os.path.dirname(os.path.abspath(__file__)), "..", "cdna_kernels", NAME + ".s.ref")).read().split("\n")
    i0 = next(i for i, l in enumerate(hdr) if l.startswith("; Override"))
    head = "\n".join(hdr[:i0]) + f"\n; @launch grid=(256,1,1) block=(512,1,1) lds={LDS_BYTES}\n"
    return head + f""".amdgcn_target "amdgcn-amd-amdhsa--gfx950"
.text
.globl {NAME}_kernel
.p2align 8
.type {NAME}_kernel,@function
{NAME}_kernel:
{a.text()}.section .rodata,"a"
.p2align 6
.amdhsa_kernel {NAME}_kernel
  .amdhsa_next_free_vgpr 256
  .amdhsa_next_free_sgpr 102
  .amdhsa_accum_offset 256
  .amdhsa_group_segment_fixed_size 0
  .amdhsa_kernarg_size 112
  .amdhsa_user_sgpr_count 2
  .amdhsa_user_sgpr_kernarg_segment_ptr 1
  .amdhsa_system_sgpr_workgroup_id_x 1
.end_amdhsa_kernel
"""

if __name__ == "__main__":
    out = sys.argv[1] if len(sys.argv) > 1 else os.path.join(os.path.dirname(os.path.abspath(__file__)), "..", "cdna_kernels", NAME + ".s")
    opts = dict(x.split("=") if "=" in x else (x, 1) for x in sys.argv[2:])
    open(out, "w").write(gen(diag=bool(opts.pop("diag", 0)), opts=opts))
```

```python
import sys, os
NAME = "gated_mix__grouped_kv_mqa__dense_activation_squared_relu__prompt"

class Asm:
    def __init__(self): self.l = []
    def __call__(self, s):
        for x in s.strip("\n").split("\n"):
            x = x.strip()
            if not x: continue
            self.l.append(x if x.endswith(":") else "    " + x)
    def text(self): return "\n".join(self.l) + "\n"

def vr(a, n): return f"v[{a}:{a+n-1}]"

X_ = 0; W_ = 65536; S_ = 131072
OACC = S_; SLOT = 10240
QF = S_ + 2*SLOT
MISC = QF + 8192
M_G = MISC
M_QMAX = MISC + 256
M_KMAX = MISC + 260
M_CNTA = MISC + 264
M_CNTG = MISC + 272
M_CNTS = MISC + 320
M_M = MISC + 1024
M_GATE = MISC + 2048
M_TAG = MISC + 3072
M_Q0 = MISC + 352
M_GO = MISC + 356
M_B1 = MISC + 3136
M_B2 = MISC + 3584
LDS_BYTES = 163840
WS_EPOCH = 0
WS_KVF = 0x1000
WS_KVF1 = 0x4000
WS_HF = 0x10000
WS_OF = 0x40000
WS_K = 0x80000
WS_V = 0x90000
WS_O = 0x100000
WS_H = 0x400000
WS_DIAG = 0xC00000
WS_SIZE = 0x1000000
SX, SWQ, SWKV, SWO, SW1, SB1, SW2, SB2, SGT, SOUT, SWS, SH = 4, 8, 12, 16, 20, 24, 28, 32, 36, 40, 44, 56
def srd(b): return f"s[{b}:{b+3}]"
sW, sGRP, sJ, sTAG, sC0 = "s50", "s51", "s52", "s53", "s3"
QSCALE = 0x3eb8aa3b
LOG2E = 0x3fb8aa3b
SPIN_MAX = 1000000

DOC = """;
;                   8 query tiles (32 rows x 1 head) over them; partial sums go to LDS.
; workgroup takes L_slowgo, which subtracts the true row maximum over all 2048 keys.
; Hand-offs between workgroups go through d_ws. Flags carry a tag derived from a word of d_ws that one workgroup
"""

def gen(diag=False, opts=None):
    o = dict(opts or {})
    a = Asm()
    nstamp = [0]
    rt = o.get("rt") or o.get("enc")
    def xtouch(i0):
        if o.get("nopf"): return ""
        return f"s_mul_i32 s59, s2, 7168\ns_add_u32 s36, s{SW2}, s59\ns_addc_u32 s37, s{SW2+1}, 0\n" + "\n".join(f"s_load_dword s56, s[36:37], {64*i}" for i in range(i0, i0+7)) + "\n"
    inG = [False]
    gsetup_s = f"""
    s_load_dwordx2 s[{SW1}:{SW1+1}], s[0:1], 48
    s_load_dwordx2 s[{SWO}:{SWO+1}], s[0:1], 32
    s_load_dwordx2 s[{SW2}:{SW2+1}], s[0:1], 64
    s_load_dwordx2 s[{SOUT}:{SOUT+1}], s[0:1], 88
    s_mov_b32 s{SW1+2}, 1835008
    s_mov_b32 s{SW1+3}, 0x00020000
    s_mov_b32 s{SWO+2}, 524288
    s_mov_b32 s{SWO+3}, 0x00020000
    s_mov_b32 s{SW2+2}, 1835008
    s_mov_b32 s{SW2+3}, 0x00020000
    s_mov_b32 s{SOUT+2}, 2097152
    s_mov_b32 s{SOUT+3}, 0x00020000
    """
    def hstamp(i):
        if diag and o.get("hd"): a(f"s_memtime s[{68+2*i}:{69+2*i}]")
    def stamp(i):
        if o.get("lite"):
            if i in (6, 15) or (i == 8 and not inG[0]): a(f"s_memrealtime s[{68+2*i}:{69+2*i}]")
            return
        if diag and not (o.get("hd") and i > 8):
            a(f"{'s_memrealtime' if rt else 's_memtime'} s[{68+2*i}:{69+2*i}]")
    def diag_out(lbl):
        if diag and o.get("enc"):
            role, st = o["enc"][0], int(o["enc"][1:])
            wv = {"a": int(o.get("wv", 0)), "g": 7}[role]
            if lbl == role:
                a(f"s_cmp_lg_u32 s2, 0\ns_cbranch_scc1 L_encx{lbl}\ns_cmp_lg_u32 {sW}, {wv}\ns_cbranch_scc1 L_encx{lbl}\ns_waitcnt lgkmcnt(0)")
                if st < 16: a(f"s_sub_u32 s60, s{68+2*st}, s66\ns_lshl_b32 s60, s60, 4")
                else: a("s_mov_b32 s60, 0")
                a(f"s_add_u32 s60, s60, 5000\nL_enc{lbl}:\ns_sleep 4\ns_memrealtime s[62:63]\ns_waitcnt lgkmcnt(0)\ns_sub_u32 s62, s62, s66\ns_cmp_lt_u32 s62, s60\ns_cbranch_scc1 L_enc{lbl}\nL_encx{lbl}:")
        elif diag and rt:
            idx = {"a": [(1, 1), (2, 2), (4, 3), (5, 4), (6, 5), (7, 6), (8, 7)], "s": [], "g": [(2, 8), (3, 9), (4, 10), (6, 11), (7, 12), (15, 13), (9, 14), (11, 15)]}[lbl]
            a("s_load_dwordx2 s[60:61], s[0:1], 96\ns_mov_b32 s62, 256\ns_mov_b32 s63, 0x00020000\ns_waitcnt vmcnt(0) lgkmcnt(0)\ns_mov_b64 exec, 1")
            a("s_not_b32 s66, s66\nv_mov_b32 v1, s66\nbuffer_atomic_umax v1, off, s[60:63], 0\ns_nop 1")
            for st, d in idx:
                a(f"v_mov_b32 v1, s{68+2*st}\nbuffer_atomic_umax v1, off, s[60:63], 0 offset:{4*d}\ns_nop 1")
            a("s_waitcnt vmcnt(0)")
        elif diag:
            a(f"s_lshl_b32 s60, s2, 3\ns_add_u32 s60, s60, {sW}\ns_lshl_b32 s60, s60, 7\ns_add_u32 s60, s60, {WS_DIAG}")
            a("s_waitcnt vmcnt(0) lgkmcnt(0)\ns_mov_b64 exec, 1")
            for i in range(17):
                a(f"v_mov_b32 v1, s{66+2*i}\nbuffer_store_dword v1, off, {srd(SWS)}, s60 offset:{4*i}\ns_nop 1")
            a("s_waitcnt vmcnt(0)")

    L = "v255"
    def tr_addr(dst, hmul, t0=1, t1=2):
        a(f"""
        v_lshrrev_b32 v{t0}, 5, {L}
        v_bfe_u32 v{t1}, {L}, 2, 2
        v_mad_u32_u24 v{t0}, v{t0}, {hmul}, v{t1}
        v_lshlrev_b32 v{t0}, 7, v{t0}
        v_bfe_u32 v{t1}, {L}, 3, 1
        v_lshl_or_b32 v{t0}, v{t1}, 6, v{t0}
        v_bfe_u32 v{t1}, {L}, 4, 1
        v_lshl_or_b32 v{t0}, v{t1}, 5, v{t0}
        v_and_b32 v{t1}, 3, {L}
        v_lshl_or_b32 v{dst}, v{t1}, 3, v{t0}
        """)
    def gsetup1():
        a(f"""
        s_sub_u32 s101, {sW}, 4
        s_lshr_b32 s48, {sJ}, 1
        s_mul_i32 s48, s48, 7
        s_and_b32 s63, {sJ}, 1
        s_lshl_b32 s62, s63, 2
        s_add_u32 s62, s62, s101
        s_cmp_eq_u32 s101, 3
        s_cselect_b32 s62, 3, s62
        s_cselect_b32 s63, s63, 0
        s_add_u32 s48, s48, s62
        s_lshl_b32 s48, s48, 1
        s_add_u32 s48, s48, s63
        s_lshl_b32 s100, s48, 6
        s_mul_i32 s54, {sC0}, {128*3584}
        s_add_u32 s54, s54, s100
        s_lshl_b32 s49, s101, 14
        s_add_u32 s49, s49, {W_}
        v_lshrrev_b32 v14, 3, {L}
        v_and_b32 v15, 7, {L}
        v_bfe_u32 v3, {L}, 4, 1
        v_lshlrev_b32 v3, 2, v3
        v_xor_b32 v2, v3, v15
        v_lshlrev_b32 v2, 4, v2
        v_lshl_or_b32 v150, v14, 10, v2
        v_add_u32 v151, 7168, v150
        v_mul_u32_u24 v148, 3584, v14
        v_add_u32 v148, v148, v2
        v_add_u32 v149, {8*3584-1024}, v148
        v_lshlrev_b32 v180, 5, v15
        v_lshlrev_b32 v2, 1, v15
        v_xor_b32 v2, v14, v2
        v_lshlrev_b32 v2, 4, v2
        v_lshl_or_b32 v190, v14, 8, v2
        s_lshl_b32 s62, s101, 11
        s_add_u32 s62, s62, {OACC}
        v_add_u32 v190, s62, v190
        v_xor_b32 v191, 16, v190
        v_lshlrev_b32 v2, 4, v15
        v_lshl_or_b32 v179, v14, 10, v2
        v_and_b32 v1, 31, {L}
        v_lshrrev_b32 v14, 5, {L}
        v_xor_b32 v2, v14, v15
        v_lshlrev_b32 v2, 4, v2
        v_lshl_or_b32 v186, v1, 8, v2
        s_mul_i32 s62, {sJ}, 7
        s_sub_u32 s62, s48, s62
        s_lshl_b32 s62, s62, 6
        s_add_u32 s62, s62, {M_B1}
        v_lshlrev_b32 v13, 1, v1
        v_add_u32 v12, s62, v13
        v_add_u32 v13, {M_B2}, v13
        v_lshlrev_b32 v192, 2, v1
        v_add_u32 v192, {M_G}, v192
        v_and_b32 v3, 15, {L}
        v_xor_b32 v3, v14, v3
        v_lshlrev_b32 v3, 4, v3
        v_lshl_or_b32 v136, v1, 8, v3
        """)
        for k in range(1, 8): a(f"v_xor_b32 v{136+k}, {32*k}, v136")
        tr_addr(144, 8)
        a("v_add_u32 v144, s49, v144\nv_xor_b32 v145, 64, v144")
    def gsetup2(w7):
        tr_addr(146, 4)
        a("v_add_u32 v146, s49, v146\nv_xor_b32 v147, 64, v146")
        for r in (153, 154, 155, 157, 158, 159, 161, 162, 163, 169, 170, 171, 173, 174, 175): a(f"v_mov_b32 v{r}, 0")
        a(f"""
        v_cmp_gt_u32 vcc, 32, {L}
        v_mov_b32 v1, 0x3f80
        v_lshlrev_b32 v166, 4, {L}
        v_cndmask_b32 v160, 0, v1, vcc
        v_mov_b32 v167, 1
        v_mov_b32 v177, {M_CNTG}
        v_mov_b64 v[200:201], -1
        v_mov_b64 v[202:203], -1
        s_and_b32 s62, s101, 1
        s_lshr_b32 s63, s101, 1
        v_and_b32 v1, 15, {L}
        v_lshl_add_u32 v1, s62, 4, v1
        v_lshrrev_b32 v2, 4, {L}
        v_xor_b32 v3, v2, v15
        v_lshlrev_b32 v3, 4, v3
        v_lshl_or_b32 v3, v1, 8, v3
        s_lshl_b32 s62, s63, 7
        s_add_u32 s62, s62, {W_ + 8192}
        v_add_u32 v183, s62, v3
        v_xor_b32 v185, 64, v183
        ; v252/v254 = (g4>>1)*8192 + 16*(row + 32*(g4&1)) (+16384)
        v_and_b32 v3, 1, v2
        v_lshl_add_u32 v252, v3, 5, v1
        v_lshlrev_b32 v252, 4, v252
        v_lshl_add_u32 v252, v14, 13, v252
        v_add_u32 v254, 0x4000, v252
        v_lshlrev_b32 v193, 10, v1
        v_lshl_or_b32 v193, v3, 5, v193
        v_lshl_or_b32 v193, v14, 4, v193
        s_lshl_b32 s62, s63, 6
        v_add_u32 v193, s62, v193
        ; v253 = W + 2048*(4*(g4>>1)+3) + (4h + r')*128 + 16*((4ch + (c'>>1)) ^ 4*(r'>>1)) + 8*(c'&1)
        v_bfe_u32 v1, {L}, 2, 2
        v_lshl_or_b32 v1, v3, 2, v1
        v_lshlrev_b32 v1, 7, v1
        v_lshl_or_b32 v1, v14, 13, v1
        v_bfe_u32 v2, {L}, 3, 1
        v_xor_b32 v2, s63, v2
        v_lshl_or_b32 v1, v2, 6, v1
        v_and_b32 v2, 3, {L}
        v_lshl_or_b32 v1, v2, 3, v1
        v_add_u32 v253, {W_ + 6144}, v1
        v_lshlrev_b32 v196, 7, {L}
        v_lshlrev_b32 v198, 2, {L}
        v_add_u32 v198, {X_ + 5*SLOT}, v198
        s_lshl_b32 s62, s101, 11
        v_add_u32 v199, s62, v198
        s_mul_i32 s62, s101, {SLOT}
        s_add_u32 s63, s62, {OACC}
        s_sub_u32 s62, s62, {2*SLOT - X_}
        s_cmp_lt_u32 s101, 2
        s_cselect_b32 s62, s63, s62
        v_lshlrev_b32 v181, 2, {L}
        v_add_u32 v181, s62, v181
        v_add_u32 v186, s62, v186
        v_xor_b32 v187, 32, v186
        v_xor_b32 v188, 64, v186
        v_xor_b32 v189, 0x60, v186
        s_add_u32 s62, s62, {9216 + 252}
        v_lshl_add_u32 v176, v2, 8, s62
    """)
        if w7: a(f"""
        s_cmp_eq_u32 s101, 3
        s_cbranch_scc0 L_gsx
        v_bfe_u32 v2, {L}, 2, 2
        v_lshl_or_b32 v2, v14, 3, v2
        v_lshlrev_b32 v2, 6, v2
        v_bfe_u32 v3, {L}, 4, 1
        v_lshl_or_b32 v2, v3, 5, v2
        v_and_b32 v3, 3, {L}
        v_lshl_or_b32 v2, v3, 3, v2
        v_add_u32 v144, s49, v2
        v_lshlrev_b32 v145, 4, v14
        v_add_u32 v145, {M_GATE}, v145
        v_lshrrev_b32 v1, 2, {L}
        v_mul_u32_u24 v148, 3584, v1
        v_lshl_add_u32 v148, v3, 4, v148
        """)
    if diag: a("s_memrealtime s[66:67]\ns_memtime s[68:69]")
    a(f"""
    s_cmp_ge_u32 s2, 256
    s_cbranch_scc1 L_end
    s_load_dwordx4 s[{SWKV}:{SWKV+3}], s[0:1], 16
    s_load_dwordx2 s[{SX}:{SX+1}], s[0:1], 0
    s_load_dwordx2 s[{SWQ}:{SWQ+1}], s[0:1], 8
    s_load_dwordx2 s[{SWS}:{SWS+1}], s[0:1], 104
    s_getpc_b64 s[60:61]
    s_movk_i32 s62, {int(o.get('pf0', 6144))}
    s_mov_b32 s63, 0x00020000
    v_lshlrev_b32 v2, 7, v0
    v_lshrrev_b32 v1, 6, v0
    buffer_load_dword v197, v2, s[60:63], 0 offen
    v_and_b32 v255, 63, v0
    v_readfirstlane_b32 {sW}, v1
    s_and_b32 s54, s2, 7
    s_bfe_u32 {sJ}, s2, 0x30003
    s_lshr_b32 s55, s2, 6
    s_lshl2_add_u32 {sGRP}, s54, s55
    s_mov_b32 s{SX+2}, 2097152
    s_mov_b32 s{SX+3}, s63
    s_add_u32 {sC0}, s54, {sJ}
    s_and_b32 {sC0}, {sC0}, 3
    s_and_b32 s60, {sJ}, 3
    v_lshrrev_b32 v3, 4, {L}
    v_and_b32 v2, 15, {L}
    v_xor_b32 v12, v3, v2
    v_lshlrev_b32 v12, 4, v12
    v_lshl_or_b32 v4, v3, 10, v12
    v_xor_b32 v5, 64, v4
    v_add_u32 v5, 3072, v5
    v_xor_b32 v6, 0x80, v4
    v_add_u32 v6, 6144, v6
    v_xor_b32 v7, 0xc0, v4
    v_add_u32 v7, 9216, v7
    v_lshlrev_b32 v1, 4, {L}
    """)
    if diag:
        for i in (range(2, 17) if not o.get("lite") else ()): a(f"s_mov_b32 s{66+2*i}, 0")
    a(f"""
    s_cmp_eq_u32 {sW}, 7
    s_cbranch_scc0 L_nKV
    """)
    a(f"""
    s_setprio 3
    s_lshl2_add_u32 s64, {sGRP}, s60
    s_lshl_b32 s62, s64, 14
    s_lshl_b32 s65, s60, 12
    s_mov_b32 s61, {sC0}
    v_and_b32 v8, 1, v3
    v_lshlrev_b32 v8, 9, v8
    v_lshl_or_b32 v8, v2, 4, v8
    v_lshrrev_b32 v9, 1, v3
    v_lshl_or_b32 v8, v9, 3, v8
    v_mov_b64 v[10:11], -1
    s_lshr_b32 s54, s64, 1
    s_lshl_b32 s54, s54, 10
    s_and_b32 s55, s64, 1
    s_lshl_b32 s55, s55, 8
    s_add_u32 s54, s54, s55
    s_add_u32 s54, s54, {WS_K}
    s_add_u32 s55, s54, {WS_V - WS_K}
    s_mov_b32 s{SWS+2}, {WS_SIZE}
    s_mov_b32 s{SWS+3}, s63
    s_lshl3_add_u32 s57, {sGRP}, {sJ}
    s_lshl_b32 s57, s57, 5
    s_add_u32 s58, s57, {WS_KVF1}
    s_add_u32 s57, s57, {WS_KVF}
    s_cmp_lt_u32 {sJ}, 4
    s_cselect_b32 s54, s54, s55
    s_waitcnt lgkmcnt(0)
    buffer_store_dwordx2 v[10:11], v8, {srd(SWS)}, s54 offen sc1
    s_load_dword {sTAG}, s[{SWS}:{SWS+1}], 0
    s_load_dword s56, s[{SWS}:{SWS+1}], s57
    s_load_dword s56, s[{SWS}:{SWS+1}], s58
    s_cselect_b32 s{SWKV}, s{SWKV}, s{SWKV+2}
    s_cselect_b32 s{SWKV+1}, s{SWKV+1}, s{SWKV+3}
    s_movk_i32 s{SWKV+2}, 16384
    s_mov_b32 s{SWKV+3}, 0x00020000
    """)
    hstamp(9)
    for i in range(4):
        a(f"s_mov_b32 m0, {OACC + 4096*i}\ns_lshl_b32 s55, s61, 12")
        for q in range(4): a(f"buffer_load_dwordx4 v1, {srd(SWKV)}, s55 offen offset:{1024*q} lds")
        a(f"s_lshl_b32 s55, s61, 8\ns_add_u32 m0, s65, {X_ + 16384*i}\ns_add_u32 s55, s55, s62")
        for q in range(4): a(f"buffer_load_dwordx4 v{4+q}, {srd(SX)}, s55 offen offset:{1024*q} lds")
        if i < 3: a("s_add_u32 s61, s61, 1\ns_and_b32 s61, s61, 3")
    hstamp(11)
    a(f"""
    s_barrier
    s_load_dwordx2 s[{SW2}:{SW2+1}], s[0:1], 48
    v_lshlrev_b32 v5, 8, v3
    v_lshl_or_b32 v5, v2, 3, v5
    v_add_u32 v5, {OACC}, v5
    v_lshl_or_b32 v12, v2, 8, v12
    v_add_u32 v12, s65, v12
    v_xor_b32 v13, 64, v12
    v_xor_b32 v14, 0x80, v12
    v_xor_b32 v15, 0xc0, v12
    v_mov_b32 v6, {M_TAG}
    s_getreg_b32 s61, hwreg(HW_REG_XCC_ID, 0, 4)
    v_mov_b32 v11, s61
    s_cmp_lt_u32 {sJ}, 4
    s_cselect_b32 s63, -1, 0
    """)
    def kvreads(s):
        if s & 3 == 0: a(f"s_waitcnt vmcnt({24 if s == 0 else 25 - 2*s})")
        if s == 0: stamp(1)
        a(f"ds_read_b64_tr_b16 {vr(128+4*s,2)}, v5 offset:{1024*s}\nds_read_b64_tr_b16 {vr(130+4*s,2)}, v5 offset:{1024*s+128}")
        a(f"ds_read_b128 {vr(64+4*s,4)}, v{12+(s&3)} offset:{16384*(s>>2)}")
    for s in range(4): kvreads(s)
    a(f"""
    s_waitcnt lgkmcnt(0)
    s_mul_i32 {sTAG}, {sTAG}, 0x9E3779B1
    s_add_u32 {sTAG}, {sTAG}, 0x7F4A7C15
    s_or_b32 {sTAG}, {sTAG}, 1
    s_cmp_lt_u32 {sJ}, 4
    v_mov_b32 v10, {sTAG}
    s_mov_b64 exec, 1
    buffer_store_dwordx2 v[10:11], off, {srd(SWS)}, s57 sc1
    ds_write_b32 v6, v10
    s_mov_b64 exec, -1
    s_cbranch_scc0 L_KVv
    """)
    for swap in range(2):
        for s in range(16):
            if s + 4 < 16: kvreads(s+4)
            a(f"s_waitcnt lgkmcnt({min(12, 3*(15-s))})")
            A_, B_ = (64+4*s, 128+4*s) if swap else (128+4*s, 64+4*s)
            a(f"v_mfma_f32_16x16x32_bf16 v[192:195], {vr(A_,4)}, {vr(B_,4)}, {'0' if s == 0 else 'v[192:195]'}")
        if not swap: a("s_branch L_KVd\nL_KVv:")
    a(f"""
    L_KVd:
    s_nop 7
    """)
    hstamp(12)
    a(f"""
    v_cvt_pk_bf16_f32 v196, v192, v193
    v_cvt_pk_bf16_f32 v197, v194, v195
    v_min_u32 v196, -2, v196
    v_min_u32 v197, -2, v197
    buffer_store_dwordx2 v[196:197], v8, {srd(SWS)}, s54 offen sc1
    {"" if not o.get("b1early") else "s_barrier"}
    v_mul_f32 v8, v192, v192
    v_fmac_f32 v8, v193, v193
    v_fmac_f32 v8, v194, v194
    v_fmac_f32 v8, v195, v195
    v_mov_b32 v9, v8
    s_nop 1
    v_permlane32_swap_b32 v8, v9
    v_add_f32 v8, v8, v9
    v_mov_b32 v9, v8
    s_nop 1
    v_permlane16_swap_b32 v8, v9
    v_add_f32 v8, v8, v9
    s_nop 1
    v_max_u32_dpp v8, v8, v8 row_ror:8 row_mask:0xf bank_mask:0xf
    s_nop 1
    v_max_u32_dpp v8, v8, v8 row_ror:4 row_mask:0xf bank_mask:0xf
    s_nop 1
    v_max_u32_dpp v8, v8, v8 row_ror:2 row_mask:0xf bank_mask:0xf
    s_nop 1
    v_max_u32_dpp v9, v8, v8 row_ror:1 row_mask:0xf bank_mask:0xf
    s_mov_b64 exec, 1
    v_and_b32 v11, s63, v9
    buffer_store_dwordx2 v[10:11], off, {srd(SWS)}, s58 sc1
    s_mov_b64 exec, -1
    s_setprio 0
    """)
    hstamp(13)
    a(("s_barrier\n" if not o.get("b1early") else "") + xtouch(105) + gsetup_s)
    stamp(2)
    a(f"""
    """)
    late = f"s_setprio {o.get('gprio', 1)}\ns_call_b64 s[38:39], L_gsetup\ns_call_b64 s[38:39], L_gsetup2\ns_branch L_Gjoin"
    a(f"""
    s_barrier
    s_barrier
    s_barrier
    s_barrier
    {late}
    """)

    a(f"""
    L_nKV:
    s_load_dwordx2 s[{SW2}:{SW2+1}], s[0:1], 48
    s_mov_b32 s{SWS+2}, {WS_SIZE}
    s_mov_b32 s{SWS+3}, s63
    s_cmp_lt_u32 {sW}, 4
    s_cbranch_scc1 L_A1
    """)
    a(f"""
    s_cmp_eq_u32 {sW}, 5
    s_cbranch_scc1 L_G5
    s_cmp_eq_u32 {sW}, 6
    s_cbranch_scc1 L_G6
    """)
    def loader(n, chunk, t0):
        a("s_waitcnt lgkmcnt(0)\ns_barrier")
        pre = int(o.get("lpre", 3))
        for i in range(pre): chunk(i)
        gp = int(o.get("gp", 2))
        a(f"s_waitcnt vmcnt({(pre-1)*n})\ns_barrier")
        for i in range(pre, 4): chunk(i)
        a(xtouch(t0) + gsetup_s)
        a(f"s_waitcnt vmcnt({2*n})\ns_barrier\ns_waitcnt vmcnt({n})\ns_barrier\ns_waitcnt vmcnt(0)\ns_barrier\ns_barrier")
        a(late)
    a(f"s_lshl_b32 s61, {sGRP}, 16")
    for r in range(3): a(f"s_add_u32 s{33+r}, s60, {r+1}\ns_and_b32 s{33+r}, s{33+r}, 3\ns_lshl_b32 s{57+r}, s{33+r}, 14\ns_add_u32 s{57+r}, s{57+r}, s61\ns_lshl_b32 s{33+r}, s{33+r}, 12")
    def xchunk(i):
        a(f"s_add_u32 s55, {sC0}, {i}\ns_and_b32 s55, s55, 3\ns_lshl_b32 s55, s55, 8")
        for r in range(3):
            a(f"s_add_u32 m0, s{33+r}, {X_ + 16384*i}\ns_add_u32 s60, s{57+r}, s55")
            for q in range(4): a(f"buffer_load_dwordx4 v{4+q}, {srd(SX)}, s60 offen offset:{1024*q} lds")
    loader(12, xchunk, 91)
    a(f"""
    L_G5:
    s_mov_b32 s{SWQ+2}, 524288
    s_mov_b32 s{SWQ+3}, 0x00020000
    v_lshrrev_b32 v1, 3, {L}
    v_and_b32 v2, 7, {L}
    v_bfe_u32 v3, {L}, 4, 1
    v_lshlrev_b32 v3, 2, v3
    v_xor_b32 v2, v3, v2
    v_lshlrev_b32 v2, 4, v2
    v_lshl_or_b32 v8, v1, 10, v2
    v_add_u32 v9, 7168, v8
    v_add_u32 v10, 14336, v8
    v_add_u32 v11, 21504, v8
    s_lshl_b32 s64, {sJ}, 7
    """)
    def wchunk(i):
        a(f"s_add_u32 s55, {sC0}, {i}\ns_and_b32 s55, s55, 3\ns_lshl_b32 s55, s55, 17\ns_add_u32 s55, s55, s64")
        for r in range(4):
            a(f"s_mov_b32 m0, {W_ + 16384*i + 4096*r}\n" + ("s_add_u32 s55, s55, 32768" if r else "s_nop 0"))
            for q in range(4): a(f"buffer_load_dwordx4 v{8+q}, {srd(SWQ)}, s55 offen offset:{1024*q} lds")
    loader(16, wchunk, 98)
    a(f"""
    L_G6:
    s_load_dwordx2 s[{SB1}:{SB1+1}], s[0:1], 56
    s_load_dwordx2 s[{SB2}:{SB2+1}], s[0:1], 72
    s_load_dwordx2 s[{SGT}:{SGT+1}], s[0:1], 80
    s_lshl_b32 s60, {sJ}, 7
    s_waitcnt lgkmcnt(0)
    s_barrier
    s_mul_i32 s61, s2, 7168
    s_add_u32 s61, s61, 3584
    s_add_u32 s64, s{SW2}, s61
    s_addc_u32 s65, s{SW2+1}, 0
    s_mov_b32 s{SB1+2}, 3584
    s_mov_b32 s{SB1+3}, 0x00020000
    s_mov_b32 s{SB2+2}, 1024
    s_mov_b32 s{SB2+3}, 0x00020000
    s_mov_b32 s{SGT+2}, 1024
    s_mov_b32 s{SGT+3}, 0x00020000
    v_mov_b32 v4, 0
    v_mov_b32 v5, 0
    v_mov_b32 v6, 0
    v_mov_b32 v7, 0
    v_lshlrev_b32 v16, 4, {L}
    v_add_u32 v2, {MISC}, v16
    v_mov_b32 v8, 0xff800000
    v_mov_b32 v9, v8
    v_mov_b32 v10, v8
    v_mov_b32 v11, v8
    ds_write_b128 v2, v[4:7]
    ds_write_b128 v2, v[8:11] offset:1024
    v_add_u32 v2, {OACC + SLOT + 9216}, v16
    ds_write_b128 v2, v[4:7]
    s_lshl_b32 s57, {sC0}, 4
    s_mul_i32 s61, {sJ}, 448
    s_mov_b32 m0, {M_GATE}
    s_waitcnt lgkmcnt(0)
    """)
    def g6touch(i0, i1):
        if not o.get("nopf"):
            for i in range(i0, i1): a(f"s_load_dword s56, s[64:65], {64*i}")
    g6touch(0, 14)
    a(f"""
    {"s_call_b64 s[58:59], L_gsetupx" if not o.get("g6l") else ""}
    v_add_u32 v1, s57, {L}
    v_and_b32 v1, 63, v1
    v_lshlrev_b32 v1, 4, v1
    s_barrier
    buffer_load_dwordx4 v1, {srd(SGT)}, 0 offen lds
    s_mov_b32 m0, {M_B1}
    s_mov_b64 exec, 0xfffffff
    buffer_load_dwordx4 v16, {srd(SB1)}, s61 offen lds
    s_mov_b32 m0, {M_B2}
    s_mov_b64 exec, 0xff
    buffer_load_dwordx4 v16, {srd(SB2)}, s60 offen lds
    s_mov_b64 exec, -1
    """)
    g6touch(14, 28)
    a("s_barrier\ns_barrier")
    a(gsetup_s)
    g6touch(28, 35)
    a("s_waitcnt vmcnt(0)\ns_barrier")
    a(f"""
    s_barrier
    {"s_branch L_Gjoin" if not o.get("g6l") else late}
    """)
    a(f"""
    L_A1:
    s_waitcnt lgkmcnt(0)
    s_barrier
    """)
    def codetouch(lbl):
        a(f"""
        s_getpc_b64 s[16:17]
        {lbl}:
        s_mov_b32 s18, L_end - {lbl}
        s_mov_b32 s19, 0x00020000
        s_lshr_b32 s57, s2, 3
        s_lshl2_add_u32 s57, s57, {sW}
        s_mul_i32 s57, s57, 384
        """)
        for i in range(6): a(f"s_buffer_load_dword s56, s[16:19], s57 offset:{64*i}")
    codetouch("L_pc")
    def w1touch(first, n):
        if o.get("nopf"): return
        a(f"s_mul_i32 s60, s2, 7168\ns_add_u32 s60, s60, {first}\ns_add_u32 s{SW2}, s{SW2}, s60\ns_addc_u32 s{SW2+1}, s{SW2+1}, 0")
        for i in range(n): a(f"s_load_dword s56, s[{SW2}:{SW2+1}], {64*i}")
    stamp(1)
    a(f"s_mul_i32 s61, {sW}, 896")
    w1touch("s61", 14)
    a(f"""
    s_lshr_b32 s60, {sW}, 1
    s_lshl_b32 s60, s60, 13
    v_and_b32 v1, 31, {L}
    v_lshrrev_b32 v2, 5, {L}
    v_and_b32 v3, 15, {L}
    v_xor_b32 v3, v2, v3
    v_lshlrev_b32 v3, 4, v3
    v_lshl_or_b32 v168, v1, 8, v3
    v_add_u32 v168, s60, v168
    s_mov_b64 s[12:13], s[{SWS}:{SWS+1}]
    s_mov_b32 s15, 0x00020000
    """)
    XA = [168, 169, 170, 171, 176, 177, 178, 179]
    for k in range(1, 8): a(f"v_xor_b32 v{XA[k]}, {32*k}, v168")
    tr_addr(184, 8)
    a(f"""
    s_and_b32 s60, {sW}, 1
    s_lshl_b32 s60, s60, 6
    v_xor_b32 v184, s60, v184
    v_add_u32 v184, {W_}, v184
    v_and_b32 v1, 11, {L}
    v_cmp_eq_u32 vcc, 0, v1
    v_mov_b32 v2, 0x3f803f80
    v_lshlrev_b32 v250, 4, {L}
    v_cndmask_b32 v68, 0, v2, vcc
    v_mov_b32 v251, {M_QMAX}
    v_mov_b32 v69, v68
    v_lshlrev_b32 v247, 5, {L}
    s_lshl_b32 s60, {sW}, 8
    s_add_u32 s60, s60, {OACC}
    v_lshlrev_b32 v244, 2, {L}
    v_add_u32 v244, s60, v244
    v_add_u32 v246, {QF}, v250
    v_add_u32 v252, {WS_V - WS_K}, v250
    s_lshr_b32 s60, {sW}, 1
    s_lshl_b32 s60, s60, 12
    s_and_b32 s61, {sW}, 1
    s_lshl_b32 s61, s61, 11
    s_add_u32 s60, s60, s61
    v_add_u32 v220, s60, v246
    s_lshl_b32 s60, {sW}, 11
    s_add_u32 s61, s60, {WS_KVF1}
    s_add_u32 s60, s60, {WS_KVF}
    s_lshl_b32 s54, {sW}, 14
    s_add_u32 s54, s54, {WS_K}
    s_and_b32 s55, {sJ}, 3
    s_lshl_b32 s55, s55, 12
    s_mov_b32 s62, {QSCALE}
    s_mov_b32 s63, 0
    s_add_u32 s8, s54, s55
    s_add_u32 s55, s55, 4096
    s_and_b32 s55, s55, 0x3fff
    s_add_u32 s9, s54, s55
    s_add_u32 s55, s55, 4096
    s_and_b32 s55, s55, 0x3fff
    s_add_u32 s10, s54, s55
    s_add_u32 s55, s55, 4096
    s_and_b32 s55, s55, 0x3fff
    s_add_u32 s11, s54, s55
    """)
    def padinit():
        for t in range(16):
            for r in (68 + 8*t, 70 + 8*t):
                if r != 68: a(f"v_mov_b64 {vr(r,2)}, v[68:69]")
    padinit()
    def qreads(ks):
        b = 192 + 8*(ks % 3)
        a(f"ds_read_b64_tr_b16 {vr(b,2)}, v184 offset:{2048*ks}")
        a(f"ds_read_b64_tr_b16 {vr(b+2,2)}, v184 offset:{2048*ks+512}")
        a(f"ds_read_b128 {vr(b+4,4)}, v{XA[ks&7]} offset:{16384*(ks>>3)}")
    poll = f"buffer_load_dwordx2 v[248:249], v247, {srd(SWS)}, s60 offen sc1"
    D = int(o.get("D", 5))
    early = True
    pollc = int(o.get("pollc", 2))
    poll1 = f"buffer_load_dwordx2 v[248:249], v247, {srd(SWS)}, s61 offen sc1"
    def kvload(t):
        return [f"buffer_load_dwordx4 {vr(4*t,4)}, v250, s[12:15], s{8+(t>>2)} offen offset:{1024*(t&3)} sc1",
                f"buffer_load_dwordx4 {vr(64+8*t,4)}, v252, s[12:15], s{8+(t>>2)} offen offset:{1024*(t&3)} sc1"]
    first = [x for t in range(D) for x in kvload(t)]
    KQ = int(o.get("kq", 4))
    for c in range(4):
        a(("s_waitcnt vmcnt(0) lgkmcnt(0)\n" if c == 0 else "") + "s_barrier")
        if c == 0: stamp(2)
        if c > 0: hstamp(12 + c)
        if c == 1: a(f"v_mov_b32 v253, {M_TAG}\nds_read_b32 v253, v253")
        if c == pollc: a(poll)
        qreads(8*c); qreads(8*c+1)
        if c == 3 and early:
            a(f"s_waitcnt vmcnt(0)\nv_cmp_ne_u32 vcc, {sTAG}, v248\ns_nop 3\ns_cmp_eq_u64 vcc, 0\ns_cselect_b32 s14, {WS_SIZE}, 0\n{poll1}")
        for k in range(8):
            ks = 8*c + k
            if k < 6:
                qreads(ks+2); a("s_waitcnt lgkmcnt(6)")
            else:
                a(f"s_waitcnt lgkmcnt({3*(7-k)})")
            if c == 3 and k == 7: a("s_barrier")
            b = 192 + 8*(ks % 3)
            a(f"v_mfma_f32_32x32x16_bf16 v[224:239], {vr(b,4)}, {vr(b+4,4)}, {'0' if ks == 0 else 'v[224:239]'}")
            if c == 3 and k < KQ: a(first[k])
        if c == 1: a(f"v_readfirstlane_b32 {sTAG}, v253")
    stamp(3)
    rest = first[KQ:]
    a("s_setprio 2\n" + "\n".join(rest[:2]) + "\ns_nop 9")
    rest = rest[2:]
    for r in range(16): a(f"v_mul_f32 v{224+r}, s62, v{224+r}")
    for r in range(8): a(f"v_cvt_pk_bf16_f32 v{192+r}, v{224+2*r}, v{225+2*r}")
    a(f"v_mov_b32 v245, {sTAG}\nds_write_b128 v220, v[192:195]\nds_write_b128 v220, v[196:199] offset:1024")
    a(f"s_cmp_lg_u32 {sW}, 0\ns_cbranch_scc1 L_q0s\nds_write_b32 v251, v245 offset:{M_Q0 - M_QMAX}\nL_q0s:")
    stamp(4)
    a("v_mul_f32 v208, v224, v224\nv_mul_f32 v209, v232, v232")
    for r in range(1, 8):
        a(f"v_fmac_f32 v208, v{224+r}, v{224+r}\nv_fmac_f32 v209, v{232+r}, v{232+r}")
        if rest and r & 1: a(rest.pop(0))
    a("\n".join(rest))
    a(f"""
    s_mov_b32 s63, 0
    L_q0w:
    ds_read_b32 v210, v251 offset:{M_Q0 - M_QMAX}
    ds_read_b128 v[240:243], v246
    s_add_u32 s63, s63, 1
    s_cmp_gt_u32 s63, {SPIN_MAX}
    s_cbranch_scc1 L_q0x
    s_waitcnt lgkmcnt(0)
    v_cmp_ne_u32 vcc, {sTAG}, v210
    s_cbranch_vccnz L_q0w
    L_q0x:
    s_cmp_eq_u32 s14, 0
    s_cbranch_scc1 L_kvlate
    s_waitcnt vmcnt({2*D})
    v_cmp_ne_u32 vcc, {sTAG}, v248
    s_cbranch_vccnz L_kvlate1
    L_kvgo:
    """)
    stamp(5)
    a(f"""
    v_permlane32_swap_b32 v208, v209
    v_max_u32_dpp v249, v249, v249 row_ror:8 row_mask:0xf bank_mask:0xf
    v_add_f32 v254, v208, v209
    v_mov_b32 v253, 1
    v_max_u32_dpp v249, v249, v249 row_ror:4 row_mask:0xf bank_mask:0xf
    v_max_u32_dpp v254, v254, v254 row_ror:8 row_mask:0xf bank_mask:0xf
    s_mov_b32 s64, 0x00010001
    v_max_u32_dpp v249, v249, v249 row_ror:2 row_mask:0xf bank_mask:0xf
    v_max_u32_dpp v254, v254, v254 row_ror:4 row_mask:0xf bank_mask:0xf
    s_mov_b32 s65, 0x00010001
    v_max_u32_dpp v249, v249, v249 row_ror:1 row_mask:0xf bank_mask:0xf
    v_max_u32_dpp v254, v254, v254 row_ror:2 row_mask:0xf bank_mask:0xf
    v_add_u32 v246, 1024, v246
    s_mov_b32 s62, 6
    v_max_u32_dpp v254, v254, v254 row_ror:1 row_mask:0xf bank_mask:0xf
    s_mov_b64 exec, s[64:65]
    ds_max_u32 v251, v254
    ds_max_u32 v251, v249 offset:4
    ds_add_u32 v251, v253 offset:8
    s_mov_b64 exec, -1
    s_mov_b32 s64, {0 if o.get('noG') else 0x24}
    s_mov_b32 s65, 0
    L_qk0:
    s_waitcnt vmcnt({2*D-1})
    v_mfma_f32_32x32x16_bf16 v[192:207], v[0:3], v[240:243], 0
    v_max_u32 v254, v0, v2
    s_nop 1
    """)
    stamp(6)
    if diag and not o.get("lite"): a("s_memrealtime s[86:87]")
    flush = [f"ds_write2st64_b32 v244, v{224+2*r}, v{225+2*r} offset0:{8*r} offset1:{8*r+4}" for r in range(4)] + ["ds_write2st64_b32 v244, v232, v245 offset0:32 offset1:36", f"v_add_u32 v244, {0 if o.get('noG') else SLOT}, v244"]
    def tile(t, peel=False):
        first = peel and t == 0
        S = [192, 208]
        cur = S[t & 1]; nxt = S[(t+1) & 1]
        Kn = 4*((t+1) % 16); Vp = 64 + 8*((t-1) % 16) + 4; Vc = 64 + 8*t
        m0 = f"v_mfma_f32_32x32x16_bf16 v[224:239], {vr(Vp,4)}, {vr(nxt+4,4)}, v[224:239]"
        m1 = f"v_mfma_f32_32x32x16_bf16 {vr(nxt,16)}, {vr(Kn,4)}, v[240:243], 0"
        m2 = f"v_mfma_f32_32x32x16_bf16 v[224:239], {vr(Vc,4)}, {vr(cur,4)}, {'0' if t == 0 else 'v[224:239]'}"
        e = lambda i: f"v_exp_f32 v{cur+i}, v{cur+i}"
        c = lambda i: f"v_cvt_pk_bf16_f32 v{cur+i}, v{cur+2*i}, v{cur+2*i+1}"
        cp7 = f"v_cvt_pk_bf16_f32 v{nxt+7}, v{nxt+14}, v{nxt+15}"
        seq = []
        if peel:
            if t + D < 16: seq += kvload(t + D)
            if t == int(o.get("go", 11)): seq.append(f"ds_write_b32 v251, v245 offset:{M_GO - M_QMAX}")
            seq.append(f"s_waitcnt vmcnt({max(2*min(t+D+1, 16) - (2*t+3), 0)})")
            seq.append(f"v_max3_u32 v254, v254, v{Vc}, v{Vc+2}")
            if t < 15: seq.append(f"v_max3_u32 v254, v254, v{Kn}, v{Kn+2}")
            seq += [f"v_permlane16_swap_b32 v{Vc+r}, v{Vc+4+r}" for r in range(4)]
        qn = ["ds_read_b128 v[240:243], v246", "v_add_u32 v246, 1024, v246"]
        if peel: qn.append("ds_read_b96 v[248:250], v251")
        if not o.get("clus") and not o.get("even"):
            seq += [e(0)] + ([] if first else [cp7]) + [e(1), e(2), c(0)] + ([] if first else [m0]) + [e(3), e(4)]
            if t == 15: seq.append("s_waitcnt lgkmcnt(0)")
            seq += [e(5), m1]
            if t == 14: seq += qn
            seq += [e(6), e(7), e(8), c(1), e(9), e(10), e(11), c(2), e(12)]
            if t == 0 and not first: seq += (flush if not o.get("noflush") else [])
            seq += [e(13), c(3), c(4), e(14), m2, c(5), c(6)]
        elif o.get("even") or (t == 0 and not first):
            seq += [e(0)] + ([] if first else [cp7]) + [e(1), e(2)] + ([] if first else [m0]) + [c(0), e(3), e(4), c(1), e(5), e(6)]
            if t == 15: seq.append("s_waitcnt lgkmcnt(0)")
            seq.append(m1)
            if t == 14: seq += qn
            seq += [c(2), e(7), e(8), c(3), e(9), e(10)]
            if t == 0 and not first: seq += (flush if not o.get("noflush") else [])
            seq += [c(4), m2, e(11), e(12), c(5), e(13), e(14), c(6)]
        else:
            seq += [e(0)] + ([] if first else [cp7]) + [e(1), e(2), e(3)]
            if t == 15: seq.append("s_waitcnt lgkmcnt(0)")
            seq += [e(4), e(5)] + ([] if first else [m0]) + [e(6), e(7), c(0), c(1), m1, c(2), c(3), e(8), e(9), m2]
            if t == 14: seq += qn
            seq += [e(10), c(4), e(11), e(12), c(5), e(13), e(14), c(6)]
        if t == 15 and not peel: seq += ["s_bitcmp1_b32 s64, s62"]
        seq += [e(15)]
        a("\n".join(seq))
    for t in range(16): tile(t, peel=True)
    stamp(7)
    a(f"""
    v_cmp_eq_u32 vcc, -1, v254
    {"s_cmp_eq_u32 s65, 0" if o.get("force_redo") else ""}
    {"s_cbranch_scc1 L_redo" if o.get("force_redo") else ""}
    s_cbranch_vccnz L_redo
    L_clean:
    v_cmp_ne_u32 vcc, 16, v250
    v_mul_f32 v248, v248, v249
    s_mov_b32 s63, 0
    s_cbranch_vccnz L_chk2
    v_cmp_nge_f32 vcc, 0x45700000, v248
    {"s_nop 0" if o.get("force_slow") else "s_cbranch_vccz L_top"}
    s_branch L_slowgo
    .p2align 6
    L_top:
    """)
    for t in range(16): tile(t)
    if diag and not rt and not o.get("hd") and not o.get("lite"):
        a("s_cselect_b32 s57, 1, 0\ns_cmp_lt_u32 s62, 2\ns_cbranch_scc1 L_nst\ns_mov_b32 s90, s92\ns_mov_b32 s92, s94\ns_mov_b32 s94, s96\ns_mov_b32 s96, s98\ns_memtime s[98:99]\ns_waitcnt lgkmcnt(0)\nL_nst:\ns_cmp_eq_u32 s57, 1")
    a(f"""
    s_cbranch_scc1 L_check
    s_sub_u32 s62, s62, 1
    s_cbranch_scc0 L_top
    v_cvt_pk_bf16_f32 v215, v222, v223
    s_nop 1
    v_mfma_f32_32x32x16_bf16 v[224:239], {vr(64+8*15+4,4)}, v[212:215], v[224:239]
    L_last:
    s_lshl_b32 s60, {sW}, 10
    s_add_u32 s60, s60, {X_ + 5*SLOT}
    v_lshlrev_b32 v247, 4, {L}
    v_add_u32 v247, s60, v247
    s_nop 7
    """)
    lastflush = flush[:5] if o.get("narrow") else ["ds_write_b128 v247, v[224:227]", "ds_write_b128 v247, v[228:231] offset:4096", "ds_write_b32 v244, v232 offset:8192"]
    a("\n".join(lastflush) + "\ns_waitcnt lgkmcnt(0)")
    stamp(8)
    if diag and not o.get("lite"): a("s_memrealtime s[88:89]")
    a("s_barrier")
    diag_out("a")
    a("s_endpgm")
    a(f"""
    L_kvlate:
    {poll}
    s_add_u32 s63, s63, 1
    s_cmp_gt_u32 s63, {SPIN_MAX}
    s_cbranch_scc1 L_kvlate1
    s_waitcnt vmcnt(0)
    v_cmp_ne_u32 vcc, {sTAG}, v248
    s_cbranch_vccnz L_kvlate
    L_kvlate1:
    {poll1}
    s_add_u32 s63, s63, 1
    s_cmp_gt_u32 s63, {SPIN_MAX}
    s_cbranch_scc1 L_kvlate2
    s_waitcnt vmcnt(0)
    v_cmp_ne_u32 vcc, {sTAG}, v248
    s_cbranch_vccnz L_kvlate1
    L_kvlate2:
    s_mov_b32 s14, {WS_SIZE}
    """)
    a("\n".join(first) + "\ns_branch L_kvgo")
    a(f"""
    L_redo:
    s_add_u32 s65, s65, 1
    s_cmp_gt_u32 s65, 1000
    s_cbranch_scc1 L_clean
    v_and_b32 v250, 11, {L}
    v_cmp_eq_u32 vcc, 0, v250
    v_mov_b32 v249, 0x3f803f80
    v_lshlrev_b32 v250, 4, {L}
    v_cndmask_b32 v68, 0, v249, vcc
    v_add_u32 v246, {QF}, v250
    v_mov_b32 v69, v68
    s_nop 7
    s_nop 7
    ds_read_b128 v[240:243], v246
    v_add_u32 v246, 1024, v246
    """)
    padinit()
    a("\n".join(first) + "\ns_waitcnt lgkmcnt(0)\ns_branch L_qk0")
    a(f"""
    L_check:
    s_mov_b32 s63, 0
    s_sub_u32 s62, s62, 1
    s_cmp_eq_u32 s62, 4
    s_cselect_b32 s60, 4, 12
    s_cselect_b32 s61, {OACC + 2*SLOT - X_}, 0
    s_add_u32 s60, s60, {M_CNTG}
    v_mov_b32 v249, s60
    L_xw:
    ds_read_b32 v248, v249
    s_add_u32 s63, s63, 1
    s_cmp_gt_u32 s63, {SPIN_MAX}
    s_cbranch_scc1 L_xw_x
    s_waitcnt lgkmcnt(0)
    v_cmp_ne_u32 vcc, 4, v248
    s_cbranch_vccnz L_xw
    L_xw_x:
    v_subrev_u32 v244, s61, v244
    s_branch L_top
    L_chk2:
    ds_read_b96 v[248:250], v251
    s_add_u32 s63, s63, 1
    s_cmp_gt_u32 s63, {SPIN_MAX}
    s_cbranch_scc1 L_chk3
    s_waitcnt lgkmcnt(0)
    v_cmp_ne_u32 vcc, 16, v250
    s_cbranch_vccnz L_chk2
    L_chk3:
    v_mul_f32 v248, v248, v249
    v_cmp_nge_f32 vcc, 0x45700000, v248
    {"s_nop 0" if o.get("force_slow") else "s_cbranch_vccz L_top"}
    L_slowgo:
    """)
    a(f"""
    v_lshlrev_b32 v246, 4, {L}
    v_add_u32 v246, {QF}, v246
    v_and_b32 v247, 31, {L}
    v_lshlrev_b32 v247, 2, v247
    v_add_u32 v247, {M_M}, v247
    v_mov_b32 v251, {M_CNTS}
    s_mov_b32 s62, 8
    L_slow:
    ds_read_b128 v[240:243], v246
    v_add_u32 v246, 1024, v246
    v_mov_b32 v248, 0xff800000
    s_waitcnt lgkmcnt(0)
    """)
    for t in range(16):
        a(f"v_mfma_f32_32x32x16_bf16 v[192:207], {vr(4*t,4)}, v[240:243], 0\ns_nop 11")
        for r in range(8): a(f"v_max3_f32 v248, v248, v{192+2*r}, v{193+2*r}")
    a(f"""
    ds_max_f32 v247, v248
    s_mov_b64 exec, 1
    ds_add_u32 v251, v253
    s_mov_b64 exec, -1
    s_mov_b32 s63, 0
    L_slow2:
    s_sleep 1
    ds_read_b32 v249, v251
    s_add_u32 s63, s63, 1
    s_cmp_gt_u32 s63, {SPIN_MAX}
    s_cbranch_scc1 L_slow3
    s_waitcnt lgkmcnt(0)
    v_cmp_ne_u32 vcc, 4, v249
    s_cbranch_vccnz L_slow2
    L_slow3:
    ds_read_b32 v248, v247
    v_add_u32 v247, 128, v247
    v_add_u32 v251, 4, v251
    s_waitcnt lgkmcnt(0)
    """)
    for t in range(16):
        a(f"v_mfma_f32_32x32x16_bf16 v[192:207], {vr(4*t,4)}, v[240:243], 0\ns_nop 11")
        for r in range(16): a(f"v_sub_f32 v{192+r}, v{192+r}, v248")
        for r in range(16): a(f"v_exp_f32 v{192+r}, v{192+r}")
        a("s_nop 0")
        for r in range(8): a(f"v_cvt_pk_bf16_f32 v{208+r}, v{192+2*r}, v{193+2*r}")
        a("s_nop 1")
        a(f"v_mfma_f32_32x32x16_bf16 v[224:239], {vr(64+8*t,4)}, v[208:211], {'0' if t == 0 else 'v[224:239]'}")
        a(f"v_mfma_f32_32x32x16_bf16 v[224:239], {vr(68+8*t,4)}, v[212:215], v[224:239]")
    a(f"""
    s_cmp_lg_u32 s62, 6
    s_cbranch_scc1 L_slow5
    s_mov_b32 s63, 0
    v_mov_b32 v249, {M_CNTG + 12}
    L_slow4:
    ds_read_b32 v248, v249
    s_add_u32 s63, s63, 1
    s_cmp_gt_u32 s63, {SPIN_MAX}
    s_cbranch_scc1 L_slow4x
    s_waitcnt lgkmcnt(0)
    v_cmp_ne_u32 vcc, 4, v248
    s_cbranch_vccnz L_slow4
    L_slow4x:
    v_subrev_u32 v244, {OACC + 2*SLOT - X_}, v244
    L_slow5:
    s_cmp_eq_u32 s62, 1
    s_cbranch_scc1 L_last
    """)
    a("s_nop 11")
    a("\n".join(flush))
    a(f"""
    s_sub_u32 s62, s62, 1
    s_branch L_slow
    """)

    a(f"""
    L_Gjoin:
    s_sub_u32 {sW}, {sW}, 4
    """)
    gw = sW
    inG[0] = True
    def lds_wait(lbl, addr, off, val, sleep=2):
        a(f"""
        s_mov_b32 s63, 0
        {lbl}:
        ds_read_b32 v178, {addr} offset:{off}
        s_add_u32 s63, s63, 1
        s_cmp_gt_u32 s63, {SPIN_MAX}
        s_cbranch_scc1 {lbl}_x
        s_waitcnt lgkmcnt(0)
        v_cmp_ne_u32 vcc, {val}, v178
        s_cbranch_vccz {lbl}_x
        s_sleep {sleep}
        s_branch {lbl}
        {lbl}_x:
        """)
    a(f"""
    ds_read_b32 v178, v177 offset:{M_TAG - M_CNTG}
    ds_read_u16 v152, v12
    ds_read_u16 v156, v12 offset:64
    ds_read_u16 v168, v13
    ds_read_u16 v172, v13 offset:64
    s_setprio 3
    s_waitcnt lgkmcnt(0)
    v_readfirstlane_b32 {sTAG}, v178
    s_nop 3
    """)
    if o.get("noG"): a("s_barrier\ns_branch L_gend")
    PRE = int(o.get("pre", 8))
    if int(o.get("go", 11)) >= 0 and not PRE: lds_wait("L_go", "v177", M_GO - M_CNTG, sTAG, 3)
    a(f"""
    s_setprio 0
    s_lshl_b32 s64, {sGRP}, 8
    s_add_u32 s64, s64, {WS_KVF}
    s_mul_i32 s4, {gw}, {448*1024}
    s_lshl_b32 s55, {sJ}, 7
    s_add_u32 s4, s4, s55
    s_lshl_b32 s7, {gw}, 17
    s_add_u32 s7, s7, s55
    s_mul_i32 s5, {sGRP}, {2*112*1024}
    s_add_u32 s5, s5, {WS_H}
    s_lshl_b32 s24, s48, 11
    s_add_u32 s24, s24, s5
    s_add_u32 s25, s24, {112*1024}
    s_mul_i32 s61, {gw}, {28*1024}
    s_add_u32 s5, s5, s61
    s_and_b32 s6, {sGRP}, {0 if o.get('norot2') else 3}
    s_lshl_b32 s10, {sGRP}, 3
    s_add_u32 s8, s10, {sJ}
    s_lshl_b32 s26, s8, 2
    s_add_u32 s26, s26, {gw}
    s_lshl_b32 s26, s26, 5
    s_add_u32 s26, s26, {WS_HF}
    s_lshl_b32 s8, s8, 3
    s_add_u32 s8, s8, {gw}
    s_lshl_b32 s8, s8, 10
    s_add_u32 s8, s8, {WS_O}
    s_add_u32 s9, s8, 4096
    s_lshl_b32 s60, {gw}, 1
    s_add_u32 s10, s10, s60
    s_lshl_b32 s27, s10, 7
    s_add_u32 s27, s27, {WS_HF}
    s_lshl_b32 s10, s10, 13
    s_add_u32 s10, s10, {WS_O}
    s_add_u32 s65, s10, 8192
    s_lshl_b32 s33, {sGRP}, 16
    s_add_u32 s11, s33, {WS_O + 7*1024}
    s_add_u32 s33, s33, s55
    s_add_u32 s34, s33, 0x8000
    s_lshl_b32 s60, {gw}, 13
    s_add_u32 s33, s33, s60
    s_movk_i32 s32, {4*SLOT // 4}
    s_cmp_lt_u32 {gw}, 2
    s_cselect_b32 s32, {(2*SLOT + X_ - OACC) // 4 & 0xffffffff}, s32
    s_lshl_b32 s32, s32, 2
    """)
    stamp(3)
    a(f"s_cmp_eq_u32 {gw}, 3\ns_cbranch_scc1 L_F1w3")
    ACC = lambda mt, nt: 32*nt + 16*mt
    def mf(mt, nt, A_, B_, c0=False):
        d = vr(ACC(mt, nt), 16)
        a(f"v_mfma_f32_32x32x16_bf16 {d}, {vr(A_,4)}, {vr(B_,4)}, {'0' if c0 else d}")
    class VM:
        def __init__(s_): s_.ops = []
        def op(s_, ins, tag=None): a(ins); s_.ops.append(tag)
        def n(s_, *tags): return len(s_.ops) - 1 - max(i for i, t in enumerate(s_.ops) if t in tags)
    xcload = f"buffer_load_dwordx2 v[194:195], v180, {srd(SWS)}, s64 offen sc1"
    def f1reads(k, w3):
        ab = 120 + 8*(k & 1); bb = 64 + 8*(k & 1); u = k & 7; xo = 16384*(k >> 3)
        r0 = [f"ds_read_b64_tr_b16 {vr(ab,2)}, v144 offset:{2048*u}", f"ds_read_b64_tr_b16 {vr(ab+2,2)}, v144 offset:{2048*u+(256 if w3 else 512)}", f"ds_read_b128 {vr(bb,4)}, v{136+u} offset:{xo}"]
        if not w3: r1 = [f"ds_read_b64_tr_b16 {vr(ab+4,2)}, v145 offset:{2048*u}", f"ds_read_b64_tr_b16 {vr(ab+6,2)}, v145 offset:{2048*u+512}"]
        else: r1 = ["s_mov_b64 exec, s[36:37]", f"ds_read_b128 {vr(ab+4,4)}, v145 offset:{32*k}", "s_mov_b64 exec, -1"]
        r1.append(f"ds_read_b128 {vr(bb+4,4)}, v{136+u} offset:{xo+8192}")
        return "\n".join(r0), "\n".join(r1)
    def ffn1(w3):
        vm = VM()
        def dma(k, half):
            if k < 32:
                if half == 0: vm.op(f"buffer_load_dwordx4 v148, {srd(SW1)}, s54 offen lds", k)
                elif not w3: vm.op(f"buffer_load_dwordx4 v149, {srd(SW1)}, s54 offen offset:1024 lds", k)
            else:
                vm.op(f"buffer_load_dwordx4 v{150+half}, {srd(SW2 if k < 39 else SWO)}, s54 offen offset:{1024*half} lds", k)
        def adv(k):
            if k < 32 and k & 7: a(f"s_add_u32 s54, s54, {16*3584}")
            elif k < 32: a(f"s_add_u32 s55, {sC0}, {k >> 3}\ns_and_b32 s55, s55, 3\ns_mul_i32 s55, s55, {128*3584}\ns_add_u32 s54, s100, s55")
            elif k == 32: a(f"s_mul_i32 s54, s6, {7*16384}\ns_add_u32 s54, s54, s4")
            elif k < 39: a("s_add_u32 s54, s54, 16384")
            elif k == 39: a(f"s_add_u32 s54, s7, {7*16384}")
        for k in range(8):
            a(f"s_add_u32 m0, s49, {2048*k}\ns_nop 0")
            dma(k, 0); dma(k, 1); adv(k+1)
        if w3: a("s_setprio 3\nv_mov_b32 v156, 0\nv_mov_b64 v[124:125], 0\nv_mov_b64 v[126:127], 0\nv_mov_b64 v[132:133], 0\nv_mov_b64 v[134:135], 0\ns_mov_b32 s36, 0x11\ns_mov_b32 s37, 0x11\ns_setprio 0")
        a(f"s_waitcnt vmcnt({vm.n(0)})")
        a("\n".join(f1reads(0, w3)))
        for nt in range(2):
            mf(0, nt, 152, 160, True)
            mf(1, nt, 156, 160, True)
        for k in range(32):
            u = k & 7
            ab = 120 + 8*(k & 1); bb = 64 + 8*(k & 1)
            if k == 12:
                for so in ("s8", "s9"): vm.op(f"buffer_store_dwordx4 v[200:203], v166, {srd(SWS)}, {so} offen sc1")
                vm.op(f"buffer_load_dword v178, v180, {srd(SWS)}, s27 offen sc1")
                vm.op(xcload, "xc")
                if not w3 and not o.get("nopf"):
                    a(f"""
                    s_cmp_eq_u32 {gw}, 0
                    s_cbranch_scc0 L_f1m
                    s_mul_i32 s60, s2, 7168
                    s_lshr_b64 exec, -1, 8
                    buffer_load_dword v178, v196, {srd(SW2)}, s60 offen
                    s_mov_b64 exec, 0xffff
                    s_lshl_b32 s60, s2, 11
                    buffer_load_dword v178, v196, {srd(SWO)}, s60 offen
                    s_mov_b64 exec, -1
                    L_f1m:
                    """)
                if o.get("hpre"):
                    for so in ("s24", "s25"):
                        for q in range(2 if w3 else 4): vm.op(f"buffer_load_dwordx4 v[204:207], v166, {srd(SWS)}, {so} offen offset:{1024*q}")
            if PRE and k == PRE:
                a("s_setprio 3")
                lds_wait("L_go" + "ab"[w3], "v177", M_GO - M_CNTG, sTAG, 2)
                a("s_setprio 0")
                for kk in range(8, 8 + PRE):
                    a(f"s_add_u32 m0, s49, {2048*(kk & 7)}\ns_nop 0")
                    dma(kk, 0); dma(kk, 1); adv(kk+1)
                if PRE == 8:
                    a(f"s_waitcnt vmcnt({vm.n(8)})")
                    a("\n".join(f1reads(8, w3)))
            hold = k < PRE
            a(f"s_waitcnt vmcnt({vm.n(k+1) if k < 31 and not (hold and k == 7) else 63}) lgkmcnt(0)")
            r0, r1 = f1reads(k+1, w3) if k < 31 and not (hold and k == 7) else ("", "")
            mf(0, 0, ab, bb)
            a(r0)
            mf(1, 0, ab+4, bb)
            a(r1)
            if not hold: a(f"s_add_u32 m0, s49, {2048*u}")
            mf(0, 1, ab, bb+4)
            if not hold: dma(k+8, 0)
            if u == 7: a(f"s_mov_b64 exec, 1\nds_add_u32 v177, v167 offset:{4*(k >> 3)}\ns_mov_b64 exec, -1")
            mf(1, 1, ab+4, bb+4)
            if not hold: dma(k+8, 1); adv(k+9)
        a(f"s_waitcnt vmcnt({vm.n('xc')})")
    ffn1(False)
    a("s_branch L_F1done\nL_F1w3:")
    ffn1(True)
    a(f"""
    L_F1done:
    s_mov_b32 s63, 0
    s_getreg_b32 s61, hwreg(HW_REG_XCC_ID, 0, 4)
    s_setprio 3
    s_branch L_xc_c
    L_xc:
    {xcload}
    s_add_u32 s63, s63, 1
    s_cmp_gt_u32 s63, {SPIN_MAX}
    s_cbranch_scc1 L_xc_x
    s_waitcnt vmcnt(0)
    L_xc_c:
    v_cmp_ne_u32 vcc, {sTAG}, v194
    s_cbranch_vccnz L_xc
    L_xc_x:
    v_cmp_ne_u32 vcc, s61, v195
    s_nop 3
    s_cmp_eq_u64 vcc, 0
    s_cselect_b32 s101, {0 if o.get('nofast') else 1}, 0
    """)
    nst = [0]
    def hstore(ins):
        nst[0] += 1
        a(f"s_cbranch_scc1 L_hs{nst[0]}a\n{ins} sc1\ns_branch L_hs{nst[0]}b\nL_hs{nst[0]}a:\n{ins}\nL_hs{nst[0]}b:")
    stamp(4)
    def hst(mt, nt):
        b = ACC(mt, nt)
        for r in range(16): a(f"v_max_f32 v{b+r}, 0, v{b+r}")
        for r in range(8): a(f"v_pk_mul_f32 {vr(b+2*r,2)}, {vr(b+2*r,2)}, {vr(b+2*r,2)}")
        for r in range(8): a(f"v_cvt_pk_bf16_f32 v{b+r}, v{b+2*r}, v{b+2*r+1}")
        so = "s25" if nt else "s24"
        st = hstore if o.get("hpre") else (lambda ins: a(ins + " sc1"))
        a("s_cmp_eq_u32 s101, 1")
        st(f"buffer_store_dwordx4 {vr(b,4)}, v166, {srd(SWS)}, {so} offen offset:{2048*mt}")
        st(f"buffer_store_dwordx4 {vr(b+4,4)}, v166, {srd(SWS)}, {so} offen offset:{2048*mt+1024}")
    hst(0, 0); hst(0, 1)
    a(f"s_cmp_eq_u32 {gw}, 3\ns_cbranch_scc1 L_gate")
    hst(1, 0); hst(1, 1)
    a(f"""
    s_branch L_gated
    L_gate:
    v_mul_f32 v16, {0x80000000 | LOG2E}, v16
    v_mul_f32 v48, {0x80000000 | LOG2E}, v48
    v_exp_f32 v16, v16
    v_exp_f32 v48, v48
    s_nop 0
    v_add_f32 v16, 1.0, v16
    v_add_f32 v48, 1.0, v48
    v_rcp_f32 v16, v16
    v_rcp_f32 v48, v48
    s_nop 1
    ds_write_b32 v192, v16
    ds_write_b32 v192, v48 offset:128
    L_gated:
    s_mov_b64 exec, 1
    ds_add_u32 v177, v167 offset:16
    s_mov_b64 exec, -1
    """)
    def fin(B, sfx, first):
        a(f"""
        s_mov_b32 s63, 0
        L_fw{sfx}:
        ds_read_b32 v{B}, v176
        s_add_u32 s63, s63, 1
        s_cmp_gt_u32 s63, {SPIN_MAX}
        s_cbranch_scc1 L_fw{sfx}_x
        s_waitcnt lgkmcnt(0)
        v_cmp_ne_u32 vcc, {sTAG}, v{B}
        s_cbranch_vccz L_fw{sfx}_x
        s_sleep 3
        s_branch L_fw{sfx}
        L_fw{sfx}_x:
        ds_read2st64_b32 {vr(B+32,2)}, v181 offset0:32 offset1:33
        ds_read2st64_b32 {vr(B+34,2)}, v181 offset0:34 offset1:35
        """)
        for w in range(4):
            for r in range(4): a(f"ds_read2st64_b32 {vr(B+8*w+2*r,2)}, v181 offset0:{8*r+w} offset1:{8*r+4+w}")
        a(f"s_cmp_eq_u32 s58, 1\ns_waitcnt lgkmcnt(8)\nv_pk_add_f32 {vr(B+32,2)}, {vr(B+32,2)}, {vr(B+34,2)}")
        for r in range(4): a(f"v_pk_add_f32 {vr(B+2*r,2)}, {vr(B+2*r,2)}, {vr(B+8+2*r,2)}")
        a(f"v_add_f32 v{B+32}, v{B+32}, v{B+33}\ns_waitcnt lgkmcnt(0)")
        for r in range(4): a(f"v_pk_add_f32 {vr(B+16+2*r,2)}, {vr(B+16+2*r,2)}, {vr(B+24+2*r,2)}")
        a(f"v_rcp_f32 v{B+32}, v{B+32}")
        for r in range(4): a(f"v_pk_add_f32 {vr(B+2*r,2)}, {vr(B+2*r,2)}, {vr(B+16+2*r,2)}")
        a(f"v_mul_f32 v{B+32}, v{B+32}, v164")
        for r in range(4): a(f"v_pk_mul_f32 {vr(B+2*r,2)}, {vr(B+2*r,2)}, {vr(B+32,2)} op_sel_hi:[1,0]")
        for r in range(4): a(f"v_cvt_pk_bf16_f32 v{B+r}, v{B+2*r}, v{B+2*r+1}")
        for r in range(4): a(f"v_min_u32 v{B+r}, -2, v{B+r}")
        ins = f"buffer_store_dwordx4 {vr(B,4)}, v166, {srd(SWS)}, {'s8' if first else 's4'} offen"
        if first: a(ins + " sc1")
        else: hstore(ins)
        if first:
            a(f"""
            s_or_b32 s55, s2, {gw}
            s_cbranch_scc1 L_noep
            v_mov_b32 v{B+33}, {sTAG}
            s_mov_b64 exec, 1
            buffer_store_dword v{B+33}, off, {srd(SWS)}, 0 sc1
            s_mov_b64 exec, -1
            L_noep:
            """)
        else: a("s_nop 0")
    def flag_wait(lbl, vaddr, soff, sleep=2):
        a(f"""
        s_mov_b32 s63, 0
        {lbl}:
        buffer_load_dword v178, {vaddr}, {srd(SWS)}, {soff} offen sc1
        s_add_u32 s63, s63, 1
        s_cmp_gt_u32 s63, {SPIN_MAX}
        s_cbranch_scc1 {lbl}_x
        s_waitcnt vmcnt(0)
        v_cmp_ne_u32 vcc, {sTAG}, v178
        s_cbranch_vccz {lbl}_x
        s_sleep {sleep}
        s_branch {lbl}
        {lbl}_x:
        """)
    a(f"""
    v_mov_b32 v129, {sTAG}
    s_cmp_eq_u32 {gw}, 0
    s_cselect_b32 s60, -1, 0
    v_and_b32 v160, s60, v160
    s_cmp_eq_u32 s101, 1
    s_mov_b64 exec, 1
    s_waitcnt vmcnt(0)
    """)
    hstore(f"buffer_store_dword v129, off, {srd(SWS)}, s26")
    a("s_mov_b64 exec, -1")
    stamp(5)
    lds_wait("L_gs1", "v177", 16, "4")
    a("ds_read_b32 v164, v192\nds_read_b32 v165, v192 offset:128")
    for nt in range(2):
        mf(0, nt, 168, 160, True); mf(1, nt, 172, 160, True)
    flag_wait("L_hw", "v180", "s27")
    a(f"v_mov_b32 v180, v193\nv_subrev_u32 v168, {OACC - X_}, v190\nv_subrev_u32 v169, {OACC - X_}, v191\nv_mov_b64 v[170:171], v[198:199]")
    stamp(6)
    a(f"""
    s_setprio 0
    s_mul_i32 s60, s6, 7168
    s_add_u32 s60, s60, s5
    s_add_u32 s61, s60, {112*1024}
    """)
    vm = VM()
    def hA(k): vm.op(f"buffer_load_dwordx4 {vr(64+8*(k%7),4)}, v166, {srd(SWS)}, s60 offen sc1", ("h", k)); a("s_add_u32 s60, s60, 1024")
    def hB(k): vm.op(f"buffer_load_dwordx4 {vr(68+8*(k%7),4)}, v166, {srd(SWS)}, s61 offen sc1", ("h", k)); a("s_add_u32 s61, s61, 1024")
    for k in range(7): hA(k); hB(k)
    def f2reads(k):
        ab = 120 + 8*(k & 1); slot = k % 7
        return (f"ds_read_b64_tr_b16 {vr(ab,2)}, v146 offset:{2048*slot}\nds_read_b64_tr_b16 {vr(ab+2,2)}, v146 offset:{2048*slot+1024}\n"
                f"ds_read_b64_tr_b16 {vr(ab+4,2)}, v147 offset:{2048*slot}\nds_read_b64_tr_b16 {vr(ab+6,2)}, v147 offset:{2048*slot+1024}")
    a(f2reads(0))
    for k in range(28):
        u = k % 7
        if u == 0 and k < 21: a(f"s_add_u32 s6, s6, 1\ns_and_b32 s6, s6, 3\ns_mul_i32 s54, s6, {7*16384}\ns_add_u32 s54, s54, s4\ns_mul_i32 s60, s6, 7168\ns_add_u32 s60, s60, s5\ns_add_u32 s61, s60, {112*1024}")
        if k == 21: a("s_mov_b32 s54, s7\ns_mov_b32 s60, s10\ns_mov_b32 s61, s65")
        if k == int(o.get("fink", 16)):
            a("s_setprio 3")
            fin(196, "m", True)
            a("s_setprio 0")
        ab = 120 + 8*(k & 1); bb = 64 + 8*u
        need = [("h", k)] + ([("w", k+1)] if 7 <= k+1 < 28 else [])
        a(f"s_waitcnt vmcnt({vm.n(*need)}) lgkmcnt(0)")
        mf(0, 0, ab, bb)
        if k < 27: a(f2reads(k+1))
        mf(1, 0, ab+4, bb)
        if k < 25: hA(k+7)
        a(f"s_add_u32 m0, s49, {2048*u}")
        mf(0, 1, ab, bb+4)
        sr = srd(SW2 if k < 21 else SWO)
        vm.op(f"buffer_load_dwordx4 v150, {sr}, s54 offen lds", ("w", k+7))
        vm.op(f"buffer_load_dwordx4 v151, {sr}, s54 offen offset:1024 lds", ("w", k+7))
        a("s_add_u32 s54, s54, 16384")
        mf(1, 1, ab+4, bb+4)
        if k < 25: hB(k+7)
    a("s_setprio 3")
    stamp(7)
    def cnt_add(off): a(f"s_mov_b64 exec, 1\nds_add_u32 v177, v167 offset:{off}\ns_mov_b64 exec, -1")
    a("v_sub_f32 v182, 1.0, v164\nv_sub_f32 v184, 1.0, v165\nv_mov_b32 v164, v165\ns_waitcnt vmcnt(0) lgkmcnt(0)")
    cnt_add(20)
    WOF = lambda i, mt: 192 + 8*i + 4*mt if (i, mt) != (7, 1) else 136
    for i in range(8):
        for mt in range(2):
            for e in range(2): a(f"ds_read_b64_tr_b16 {vr(WOF(i,mt)+2*e,2)}, v{146+mt} offset:{2048*i+1024*e}")
    for r in range(16): a(f"v_pk_mul_f32 {vr(2*r,2)}, {vr(2*r,2)}, v[182:183] op_sel_hi:[1,0]")
    for r in range(16, 32): a(f"v_pk_mul_f32 {vr(2*r,2)}, {vr(2*r,2)}, v[184:185] op_sel_hi:[1,0]")
    OF = lambda jj, sl: 64 + 8*sl + 4*jj
    def oload(jj, sl): return f"buffer_load_dwordx4 {vr(OF(jj, sl),4)}, v166, {srd(SWS)}, {('s10', 's65', 's8', 's9')[jj + 2*(sl >> 2)]} offen offset:{1024*(sl&3)} sc1"
    def ofrags(lbl, loads, regs, sleep, pre=False):
        n = len(loads)
        a("s_mov_b32 s63, 0")
        if pre: a(f"s_branch {lbl}_c")
        a(f"{lbl}:")
        a("\n".join(loads))
        a(f"s_add_u32 s63, s63, 1\ns_cmp_gt_u32 s63, {SPIN_MAX}\ns_cbranch_scc1 {lbl}_x\n{lbl}_c:")
        for i in range(n):
            r = regs[i]
            a(f"s_waitcnt vmcnt({n-1-i})")
            if not o.get("chk4"):
                a(f"v_max_u32 v178, v{r}, v{r+2}" if i == 0 else f"v_max3_u32 v178, v178, v{r}, v{r+2}")
            elif i == 0: a(f"v_max3_u32 v178, v{r}, v{r+1}, v{r+2}\nv_max_u32 v178, v178, v{r+3}")
            else: a(f"v_max3_u32 v178, v178, v{r}, v{r+1}\nv_max3_u32 v178, v178, v{r+2}, v{r+3}")
        a(f"v_cmp_eq_u32 vcc, -1, v178\ns_cbranch_vccz {lbl}_x")
        if sleep: a(f"s_sleep {sleep}")
        a(f"s_branch {lbl}\n{lbl}_x:\ns_waitcnt vmcnt(0)")
    def wo_stage(lbl, nt, sls, sleep, pre):
        ks = [(jj, sl) for sl in sls for jj in range(2)]
        ofrags(lbl, [oload(*k) for k in ks], [OF(*k) for k in ks], sleep, pre)
        a("s_waitcnt lgkmcnt(0)\ns_setprio 0")
        for jj, sl in ks:
            i = 4*jj + (sl & 3)
            mf(0, nt, WOF(i, 0), OF(jj, sl)); mf(1, nt, WOF(i, 1), OF(jj, sl))
        a("s_setprio 3")
    stamp(8)
    wo_stage("L_o0", 0, range(4), 4, True)
    stamp(9)
    a(f"s_add_u32 s4, s8, 4096\ns_add_u32 s8, s10, 4096\ns_add_u32 s9, s65, 4096\nv_add_u32 v176, s32, v176\nv_add_u32 v181, s32, v181")
    a(f"s_mul_i32 s5, {gw}, {SLOT}\ns_cmp_lt_u32 {gw}, 2\ns_cselect_b32 s6, {OACC + 2*SLOT - X_}, 0\ns_add_u32 s5, s5, s6\ns_sub_u32 s5, s49, s5\ns_add_u32 s5, s5, {8192 + 2*SLOT - X_}")
    for mt in range(2):
        for i in range(4): a(f"ds_write_b128 v{186+i}, {vr(16*mt+4*i,4)} offset:{128*mt}")
    cnt_add(28)
    lds_wait("L_w1", "v177", 20, "4")
    FA = lambda s_, ct: (120 + 8*s_ + 4*ct) if s_ < 2 else (148 + 8*(s_-2) + 4*ct)
    for s_ in range(4):
        for ct in range(2):
            for e in range(2): a(f"ds_read_b64_tr_b16 {vr(FA(s_,ct)+2*e,2)}, v253 offset:{16384*s_+1024*e+32*ct}")
    cnt_add(24)
    a(f"s_cmp_lt_u32 {gw}, 2\ns_cbranch_scc0 L_nf\ns_mov_b32 s58, {0 if int(o.get('osc', 3)) >= 5 else 's101'}\ns_call_b64 s[14:15], L_fin\nL_nf:")
    lds_wait("L_rw", "v177", 28, "4", 1)
    for p in range(4):
        a(f"ds_read_b128 {vr(8*p,4)}, v{190 if p < 2 else 168} offset:{SLOT*(p&1)}\nds_read_b128 {vr(4+8*p,4)}, v{191 if p < 2 else 169} offset:{SLOT*(p&1)}")
    for i in range(4): a(f"v_add_u32 v{186+i}, s5, v{186+i}")
    a("s_waitcnt lgkmcnt(4)")
    for r in range(4): a(f"v_pk_add_f32 {vr(2*r,2)}, {vr(2*r,2)}, {vr(8+2*r,2)}")
    a("s_waitcnt lgkmcnt(0)")
    for r in range(4): a(f"v_pk_add_f32 {vr(16+2*r,2)}, {vr(16+2*r,2)}, {vr(24+2*r,2)}")
    for r in range(4): a(f"v_pk_add_f32 {vr(2*r,2)}, {vr(2*r,2)}, {vr(16+2*r,2)}")
    for r in range(4): a(f"v_cvt_pk_bf16_f32 v{172+r}, v{2*r}, v{2*r+1}")
    stamp(10)
    wo_stage("L_o1", 1, (4, 5), 4, False)
    a(f"s_cmp_eq_u32 {gw}, 2\ns_cbranch_scc0 L_nf1\ns_mov_b32 s58, {0 if int(o.get('osc', 3)) >= 6 else 's101'}\ns_call_b64 s[14:15], L_fin\nL_nf1:")
    stamp(11)
    wo_stage("L_o1b", 1, (6,), 4, False)
    a("s_add_u32 s65, s11, 32768")
    fl = [f"buffer_load_dwordx4 {vr(108+0,4)}, v252, {srd(SWS)}, s11 offen sc1", f"buffer_load_dwordx4 {vr(104,4)}, v254, {srd(SWS)}, s11 offen sc1",
          f"buffer_load_dwordx4 {vr(100,4)}, v252, {srd(SWS)}, s65 offen sc1", f"buffer_load_dwordx4 {vr(140,4)}, v254, {srd(SWS)}, s65 offen sc1"]
    fr = [108, 104, 100, 140]
    if not o.get("nowarm"): a("\n".join(fl))
    lds_wait("L_w2", "v177", 24, "4")
    a("s_nop 2")
    for mt in range(2):
        for i in range(4): a(f"ds_write_b128 v{186+i}, {vr(32+16*mt+4*i,4)} offset:{128*mt}")
    cnt_add(32)
    lds_wait("L_rw1", "v177", 32, "4", 1)
    for p in range(4):
        a(f"ds_read_b128 {vr(64+8*p,4)}, v183 offset:{16384*p}\nds_read_b128 {vr(68+8*p,4)}, v185 offset:{16384*p}")
    a("s_waitcnt lgkmcnt(4)")
    for r in range(4): a(f"v_pk_add_f32 {vr(64+2*r,2)}, {vr(64+2*r,2)}, {vr(72+2*r,2)}")
    a("s_waitcnt lgkmcnt(0)")
    for r in range(4): a(f"v_pk_add_f32 {vr(80+2*r,2)}, {vr(80+2*r,2)}, {vr(88+2*r,2)}")
    for r in range(4): a(f"v_pk_add_f32 {vr(2*r,2)}, {vr(64+2*r,2)}, {vr(80+2*r,2)}")
    if o.get("oearly"): a(f"buffer_store_dwordx4 v[172:175], v179, {srd(SOUT)}, s33 offen {o.get('ost0', '')}")
    stamp(12)
    if not o.get("narrow"):
        a(f"""
        v_add_u32 v171, {X_ + 5*SLOT}, v166
        s_cmp_eq_u32 {gw}, 3
        s_barrier
        s_cbranch_scc0 L_nf2
        ds_read2st64_b32 v[96:97], v170 offset0:32 offset1:33
        ds_read2st64_b32 v[98:99], v170 offset0:34 offset1:35
        """)
        for w in range(4): a(f"ds_read_b128 {vr(64+8*w,4)}, v171 offset:{1024*w}\nds_read_b128 {vr(68+8*w,4)}, v171 offset:{1024*w+4096}")
        a("s_cmp_eq_u32 s101, 1\ns_waitcnt lgkmcnt(8)\nv_pk_add_f32 v[96:97], v[96:97], v[98:99]\ns_waitcnt lgkmcnt(4)\nv_add_f32 v96, v96, v97")
        for r in range(4): a(f"v_pk_add_f32 {vr(64+2*r,2)}, {vr(64+2*r,2)}, {vr(72+2*r,2)}")
        a("v_rcp_f32 v96, v96\ns_waitcnt lgkmcnt(0)")
        for r in range(4): a(f"v_pk_add_f32 {vr(80+2*r,2)}, {vr(80+2*r,2)}, {vr(88+2*r,2)}")
        a("v_mul_f32 v96, v96, v164")
        for r in range(4): a(f"v_pk_add_f32 {vr(64+2*r,2)}, {vr(64+2*r,2)}, {vr(80+2*r,2)}")
        for r in range(4): a(f"v_pk_mul_f32 {vr(64+2*r,2)}, {vr(64+2*r,2)}, v[96:97] op_sel_hi:[1,0]")
        for r in range(4): a(f"v_cvt_pk_bf16_f32 v{64+r}, v{64+2*r}, v{65+2*r}")
        for r in range(4): a(f"v_min_u32 v{64+r}, -2, v{64+r}")
        hstore(f"buffer_store_dwordx4 v[64:67], v166, {srd(SWS)}, s4 offen")
        a("L_nf2:")
    elif not o.get("fin4"):
        a(f"s_mov_b32 s58, s101\ns_barrier\ns_cmp_eq_u32 {gw}, 3\ns_cbranch_scc0 L_nf2\ns_call_b64 s[14:15], L_fwf_x\nL_nf2:")
    else:
        a(f"""
    s_lshl_b32 s60, {gw}, 10
    s_sub_u32 s4, s4, s60
    s_lshl2_add_u32 s4, {gw}, s4
    s_add_u32 s4, s4, 3072
    s_cmp_eq_u32 s101, 1
    s_barrier
    ds_read2st64_b32 v[72:73], v170 offset0:32 offset1:33
    ds_read2st64_b32 v[74:75], v170 offset0:34 offset1:35
    ds_read2st64_b32 v[64:65], v171 offset0:0 offset1:4
    ds_read2st64_b32 v[66:67], v171 offset0:1 offset1:5
    ds_read2st64_b32 v[68:69], v171 offset0:2 offset1:6
    ds_read2st64_b32 v[70:71], v171 offset0:3 offset1:7
    s_waitcnt lgkmcnt(4)
    v_pk_add_f32 v[72:73], v[72:73], v[74:75]
    s_waitcnt lgkmcnt(2)
    v_pk_add_f32 v[64:65], v[64:65], v[66:67]
    v_add_f32 v72, v72, v73
    s_waitcnt lgkmcnt(0)
    v_pk_add_f32 v[68:69], v[68:69], v[70:71]
    v_rcp_f32 v72, v72
    v_pk_add_f32 v[64:65], v[64:65], v[68:69]
    v_mul_f32 v72, v72, v164
    v_pk_mul_f32 v[64:65], v[64:65], v[72:73] op_sel_hi:[1,0]
    v_cvt_pk_bf16_f32 v64, v64, v65
    v_min_u32 v64, -2, v64
        """)
        hstore(f"buffer_store_dword v64, v166, {srd(SWS)}, s4 offen")
    stamp(13)
    ofrags("L_o2", fl, fr, 0)
    stamp(14)
    if not o.get("oearly"): a(f"buffer_store_dwordx4 v[172:175], v179, {srd(SOUT)}, s33 offen {o.get('ost0', '')}")
    for s_ in range(4):
        for ct in range(2): a(f"v_mfma_f32_16x16x32_bf16 {vr(4*ct,4)}, {vr(FA(s_,ct),4)}, {vr(fr[s_],4)}, {vr(4*ct,4)}")
    a("""
    s_nop 6
    v_cvt_pk_bf16_f32 v8, v0, v1
    v_cvt_pk_bf16_f32 v9, v2, v3
    v_cvt_pk_bf16_f32 v10, v4, v5
    v_cvt_pk_bf16_f32 v11, v6, v7
    s_nop 1
    v_permlane16_swap_b32 v8, v10
    v_permlane16_swap_b32 v9, v11
    """)
    a(f"buffer_store_dwordx4 v[8:11], v180, {srd(SOUT)}, s34 offen {o.get('ost1', '')}")
    stamp(15)
    a("s_branch L_gend")
    if not o.get("g6l"): a("L_gsetupx:\ns_mov_b32 s55, s38\ns_call_b64 s[38:39], L_gsetup\ns_call_b64 s[38:39], L_gsetup2\ns_mov_b32 s38, s55\ns_mov_b32 s39, 0x00020000\ns_setpc_b64 s[58:59]")
    a("L_gsetup:")
    gsetup1()
    a("s_setpc_b64 s[38:39]\nL_gsetup2:")
    gsetup2(True)
    a("L_gsx:\ns_setpc_b64 s[38:39]")
    a("L_fin:")
    fin(64, "f", False)
    a("s_setpc_b64 s[14:15]\nL_gend:")
    if diag: a(f"s_add_u32 {sW}, {sW}, 4")
    diag_out("g")
    a("L_end:\ns_endpgm")

    hdr = open(os.path.join(os.path.dirname(os.path.abspath(__file__)), "..", "cdna_kernels", NAME + ".s.ref")).read().split("\n")
    i0 = next(i for i, l in enumerate(hdr) if l.startswith("; Override"))
    head = "\n".join(hdr[:i0]) + f"\n; @launch grid=(256,1,1) block=(512,1,1) lds={LDS_BYTES}\n"
    head += DOC
    return head + f""".amdgcn_target "amdgcn-amd-amdhsa--gfx950"
.text
.globl {NAME}_kernel
.p2align 8
.type {NAME}_kernel,@function
{NAME}_kernel:
{a.text()}.section .rodata,"a"
.p2align 6
.amdhsa_kernel {NAME}_kernel
  .amdhsa_next_free_vgpr 256
  .amdhsa_next_free_sgpr 102
  .amdhsa_accum_offset 256
  .amdhsa_group_segment_fixed_size 0
  .amdhsa_kernarg_size 112
  .amdhsa_user_sgpr_count 2
  .amdhsa_user_sgpr_kernarg_segment_ptr 1
  .amdhsa_system_sgpr_workgroup_id_x 1
.end_amdhsa_kernel
"""

if __name__ == "__main__":
    out = sys.argv[1] if len(sys.argv) > 1 else os.path.join(os.path.dirname(os.path.abspath(__file__)), "..", "cdna_kernels", NAME + ".s")
    opts = dict(x.split("=") if "=" in x else (x, 1) for x in sys.argv[2:])
    open(out, "w").write(gen(diag=bool(opts.pop("diag", 0)), opts=opts))
```

```python
import sys, os
NAME = "gated_mix__grouped_kv_mqa__dense_activation_squared_relu__prompt"

class Asm:
    def __init__(self): self.l = []
    def __call__(self, s):
        for x in s.strip("\n").split("\n"):
            x = x.strip()
            if not x: continue
            self.l.append(x if x.endswith(":") else "    " + x)
    def text(self): return "\n".join(self.l) + "\n"

def vr(a, n): return f"v[{a}:{a+n-1}]"

X_ = 0; W_ = 65536; S_ = 131072
OACC = S_; SLOT = 10240
QF = S_ + 2*SLOT
MISC = QF + 8192
M_G = MISC
M_QMAX = MISC + 256
M_KMAX = MISC + 260
M_CNTA = MISC + 264
M_CNTG = MISC + 272
M_CNTS = MISC + 320
M_M = MISC + 1024
M_GATE = MISC + 2048
M_TAG = MISC + 3072
M_Q0 = MISC + 352
M_GO = MISC + 356
M_B1 = MISC + 3136
M_B2 = MISC + 3584
LDS_BYTES = 163840
WS_EPOCH = 0
WS_KVF = 0x1000
WS_KVF1 = 0x4000
WS_HF = 0x10000
WS_OF = 0x40000
WS_K = 0x80000
WS_V = 0x90000
WS_O = 0x100000
WS_H = 0x400000
WS_DIAG = 0xC00000
WS_SIZE = 0x1000000
SX, SWQ, SWKV, SWO, SW1, SB1, SW2, SB2, SGT, SOUT, SWS, SH = 4, 8, 12, 16, 20, 24, 28, 32, 36, 40, 44, 56
def srd(b): return f"s[{b}:{b+3}]"
sW, sGRP, sJ, sTAG, sC0 = "s50", "s51", "s52", "s53", "s3"
QSCALE = 0x3eb8aa3b
LOG2E = 0x3fb8aa3b
SPIN_MAX = 1000000

DOC = """;
;                   8 query tiles (32 rows x 1 head) over them; partial sums go to LDS.
; workgroup takes L_slowgo, which subtracts the true row maximum over all 2048 keys.
; Hand-offs between workgroups go through d_ws. Flags carry a tag derived from a word of d_ws that one workgroup
"""

def gen(diag=False, opts=None):
    o = dict(opts or {})
    a = Asm()
    nstamp = [0]
    rt = o.get("rt") or o.get("enc")
    def xtouch(i0):
        if o.get("nopf") or o.get("vt") or o.get("lt"): return ""
        return f"s_mul_i32 s59, s2, 7168\ns_add_u32 s36, s{SW2}, s59\ns_addc_u32 s37, s{SW2+1}, 0\n" + "\n".join(f"s_load_dword s56, s[36:37], {64*i}" for i in range(i0, i0+7)) + "\n"
    inG = [False]
    gsetup_s = f"""
    s_load_dwordx2 s[{SW1}:{SW1+1}], s[0:1], 48
    s_load_dwordx2 s[{SWO}:{SWO+1}], s[0:1], 32
    s_load_dwordx2 s[{SW2}:{SW2+1}], s[0:1], 64
    s_load_dwordx2 s[{SOUT}:{SOUT+1}], s[0:1], 88
    s_mov_b32 s{SW1+2}, 1835008
    s_mov_b32 s{SW1+3}, 0x00020000
    s_mov_b32 s{SWO+2}, 524288
    s_mov_b32 s{SWO+3}, 0x00020000
    s_mov_b32 s{SW2+2}, 1835008
    s_mov_b32 s{SW2+3}, 0x00020000
    s_mov_b32 s{SOUT+2}, 2097152
    s_mov_b32 s{SOUT+3}, 0x00020000
    """
    def hstamp(i):
        if diag and o.get("hd"): a(f"s_memtime s[{68+2*i}:{69+2*i}]")
    def stamp(i):
        if o.get("lite"):
            if i in (6, 15) or (i == 8 and not inG[0]): a(f"s_memrealtime s[{68+2*i}:{69+2*i}]")
            return
        if diag and not (o.get("hd") and i > 8):
            a(f"{'s_memrealtime' if rt else 's_memtime'} s[{68+2*i}:{69+2*i}]")
    def diag_out(lbl):
        if diag and o.get("enc"):
            role, st = o["enc"][0], int(o["enc"][1:])
            wv = {"a": int(o.get("wv", 0)), "g": 7}[role]
            if lbl == role:
                a(f"s_cmp_lg_u32 s2, 0\ns_cbranch_scc1 L_encx{lbl}\ns_cmp_lg_u32 {sW}, {wv}\ns_cbranch_scc1 L_encx{lbl}\ns_waitcnt lgkmcnt(0)")
                if st < 16: a(f"s_sub_u32 s60, s{68+2*st}, s66\ns_lshl_b32 s60, s60, 4")
                else: a("s_mov_b32 s60, 0")
                a(f"s_add_u32 s60, s60, 5000\nL_enc{lbl}:\ns_sleep 4\ns_memrealtime s[62:63]\ns_waitcnt lgkmcnt(0)\ns_sub_u32 s62, s62, s66\ns_cmp_lt_u32 s62, s60\ns_cbranch_scc1 L_enc{lbl}\nL_encx{lbl}:")
        elif diag and rt:
            idx = {"a": [(1, 1), (2, 2), (4, 3), (5, 4), (6, 5), (7, 6), (8, 7)], "s": [], "g": [(2, 8), (3, 9), (4, 10), (6, 11), (7, 12), (15, 13), (9, 14), (11, 15)]}[lbl]
            a("s_load_dwordx2 s[60:61], s[0:1], 96\ns_mov_b32 s62, 256\ns_mov_b32 s63, 0x00020000\ns_waitcnt vmcnt(0) lgkmcnt(0)\ns_mov_b64 exec, 1")
            a("s_not_b32 s66, s66\nv_mov_b32 v1, s66\nbuffer_atomic_umax v1, off, s[60:63], 0\ns_nop 1")
            for st, d in idx:
                a(f"v_mov_b32 v1, s{68+2*st}\nbuffer_atomic_umax v1, off, s[60:63], 0 offset:{4*d}\ns_nop 1")
            a("s_waitcnt vmcnt(0)")
        elif diag:
            a(f"s_lshl_b32 s60, s2, 3\ns_add_u32 s60, s60, {sW}\ns_lshl_b32 s60, s60, 7\ns_add_u32 s60, s60, {WS_DIAG}")
            a("s_waitcnt vmcnt(0) lgkmcnt(0)\ns_mov_b64 exec, 1")
            for i in range(17):
                a(f"v_mov_b32 v1, s{66+2*i}\nbuffer_store_dword v1, off, {srd(SWS)}, s60 offset:{4*i}\ns_nop 1")
            a("s_waitcnt vmcnt(0)")

    L = "v255"
    def tr_addr(dst, hmul, t0=1, t1=2):
        a(f"""
        v_lshrrev_b32 v{t0}, 5, {L}
        v_bfe_u32 v{t1}, {L}, 2, 2
        v_mad_u32_u24 v{t0}, v{t0}, {hmul}, v{t1}
        v_lshlrev_b32 v{t0}, 7, v{t0}
        v_bfe_u32 v{t1}, {L}, 3, 1
        v_lshl_or_b32 v{t0}, v{t1}, 6, v{t0}
        v_bfe_u32 v{t1}, {L}, 4, 1
        v_lshl_or_b32 v{t0}, v{t1}, 5, v{t0}
        v_and_b32 v{t1}, 3, {L}
        v_lshl_or_b32 v{dst}, v{t1}, 3, v{t0}
        """)
    def gsetup1():
        a(f"""
        s_sub_u32 s101, {sW}, 4
        s_lshr_b32 s48, {sJ}, 1
        s_mul_i32 s48, s48, 7
        s_and_b32 s63, {sJ}, 1
        s_lshl_b32 s62, s63, 2
        s_add_u32 s62, s62, s101
        s_cmp_eq_u32 s101, 3
        s_cselect_b32 s62, 3, s62
        s_cselect_b32 s63, s63, 0
        s_add_u32 s48, s48, s62
        s_lshl_b32 s48, s48, 1
        s_add_u32 s48, s48, s63
        s_lshl_b32 s100, s48, 6
        s_mul_i32 s54, {sC0}, {128*3584}
        s_add_u32 s54, s54, s100
        s_lshl_b32 s49, s101, 14
        s_add_u32 s49, s49, {W_}
        v_lshrrev_b32 v14, 3, {L}
        v_and_b32 v15, 7, {L}
        v_bfe_u32 v3, {L}, 4, 1
        v_lshlrev_b32 v3, 2, v3
        v_xor_b32 v2, v3, v15
        v_lshlrev_b32 v2, 4, v2
        v_lshl_or_b32 v150, v14, 10, v2
        v_add_u32 v151, 7168, v150
        v_mul_u32_u24 v148, 3584, v14
        v_add_u32 v148, v148, v2
        v_add_u32 v149, {8*3584-1024}, v148
        v_lshlrev_b32 v180, 5, v15
        v_lshlrev_b32 v2, 1, v15
        v_xor_b32 v2, v14, v2
        v_lshlrev_b32 v2, 4, v2
        v_lshl_or_b32 v190, v14, 8, v2
        s_lshl_b32 s62, s101, 11
        s_add_u32 s62, s62, {OACC}
        v_add_u32 v190, s62, v190
        v_xor_b32 v191, 16, v190
        v_lshlrev_b32 v2, 4, v15
        v_lshl_or_b32 v179, v14, 10, v2
        v_and_b32 v1, 31, {L}
        v_lshrrev_b32 v14, 5, {L}
        v_xor_b32 v2, v14, v15
        v_lshlrev_b32 v2, 4, v2
        v_lshl_or_b32 v186, v1, 8, v2
        s_mul_i32 s62, {sJ}, 7
        s_sub_u32 s62, s48, s62
        s_lshl_b32 s62, s62, 6
        s_add_u32 s62, s62, {M_B1}
        v_lshlrev_b32 v13, 1, v1
        v_add_u32 v12, s62, v13
        v_add_u32 v13, {M_B2}, v13
        v_lshlrev_b32 v192, 2, v1
        v_add_u32 v192, {M_G}, v192
        v_and_b32 v3, 15, {L}
        v_xor_b32 v3, v14, v3
        v_lshlrev_b32 v3, 4, v3
        v_lshl_or_b32 v136, v1, 8, v3
        """)
        for k in range(1, 8): a(f"v_xor_b32 v{136+k}, {32*k}, v136")
        tr_addr(144, 8)
        a("v_add_u32 v144, s49, v144\nv_xor_b32 v145, 64, v144")
    def gsetup2(w7):
        tr_addr(146, 4)
        a("v_add_u32 v146, s49, v146\nv_xor_b32 v147, 64, v146")
        for r in (153, 154, 155, 157, 158, 159, 161, 162, 163, 169, 170, 171, 173, 174, 175): a(f"v_mov_b32 v{r}, 0")
        a(f"""
        v_cmp_gt_u32 vcc, 32, {L}
        v_mov_b32 v1, 0x3f80
        v_lshlrev_b32 v166, 4, {L}
        v_cndmask_b32 v160, 0, v1, vcc
        v_mov_b32 v167, 1
        v_mov_b32 v177, {M_CNTG}
        v_mov_b64 v[200:201], -1
        v_mov_b64 v[202:203], -1
        s_and_b32 s62, s101, 1
        s_lshr_b32 s63, s101, 1
        v_and_b32 v1, 15, {L}
        v_lshl_add_u32 v1, s62, 4, v1
        v_lshrrev_b32 v2, 4, {L}
        v_xor_b32 v3, v2, v15
        v_lshlrev_b32 v3, 4, v3
        v_lshl_or_b32 v3, v1, 8, v3
        s_lshl_b32 s62, s63, 7
        s_add_u32 s62, s62, {W_ + 8192}
        v_add_u32 v183, s62, v3
        v_xor_b32 v185, 64, v183
        ; v252/v254 = (g4>>1)*8192 + 16*(row + 32*(g4&1)) (+16384)
        v_and_b32 v3, 1, v2
        v_lshl_add_u32 v252, v3, 5, v1
        v_lshlrev_b32 v252, 4, v252
        v_lshl_add_u32 v252, v14, 13, v252
        v_add_u32 v254, 0x4000, v252
        v_lshlrev_b32 v193, 10, v1
        v_lshl_or_b32 v193, v3, 5, v193
        v_lshl_or_b32 v193, v14, 4, v193
        s_lshl_b32 s62, s63, 6
        v_add_u32 v193, s62, v193
        ; v253 = W + 2048*(4*(g4>>1)+3) + (4h + r')*128 + 16*((4ch + (c'>>1)) ^ 4*(r'>>1)) + 8*(c'&1)
        v_bfe_u32 v1, {L}, 2, 2
        v_lshl_or_b32 v1, v3, 2, v1
        v_lshlrev_b32 v1, 7, v1
        v_lshl_or_b32 v1, v14, 13, v1
        v_bfe_u32 v2, {L}, 3, 1
        v_xor_b32 v2, s63, v2
        v_lshl_or_b32 v1, v2, 6, v1
        v_and_b32 v2, 3, {L}
        v_lshl_or_b32 v1, v2, 3, v1
        v_add_u32 v253, {W_ + 6144}, v1
        v_lshlrev_b32 v196, 7, {L}
        v_lshlrev_b32 v198, 2, {L}
        v_add_u32 v198, {X_ + 5*SLOT}, v198
        s_lshl_b32 s62, s101, 11
        v_add_u32 v199, s62, v198
        s_mul_i32 s62, s101, {SLOT}
        s_add_u32 s63, s62, {OACC}
        s_sub_u32 s62, s62, {2*SLOT - X_}
        s_cmp_lt_u32 s101, 2
        s_cselect_b32 s62, s63, s62
        v_lshlrev_b32 v181, 2, {L}
        v_add_u32 v181, s62, v181
        v_add_u32 v186, s62, v186
        v_xor_b32 v187, 32, v186
        v_xor_b32 v188, 64, v186
        v_xor_b32 v189, 0x60, v186
        s_add_u32 s62, s62, {9216 + 252}
        v_lshl_add_u32 v176, v2, 8, s62
    """)
        if w7: a(f"""
        s_cmp_eq_u32 s101, 3
        s_cbranch_scc0 L_gsx
        v_bfe_u32 v2, {L}, 2, 2
        v_lshl_or_b32 v2, v14, 3, v2
        v_lshlrev_b32 v2, 6, v2
        v_bfe_u32 v3, {L}, 4, 1
        v_lshl_or_b32 v2, v3, 5, v2
        v_and_b32 v3, 3, {L}
        v_lshl_or_b32 v2, v3, 3, v2
        v_add_u32 v144, s49, v2
        v_lshlrev_b32 v145, 4, v14
        v_add_u32 v145, {M_GATE}, v145
        v_lshrrev_b32 v1, 2, {L}
        v_mul_u32_u24 v148, 3584, v1
        v_lshl_add_u32 v148, v3, 4, v148
        """)
    if diag: a("s_memrealtime s[66:67]\ns_memtime s[68:69]")
    a(f"""
    s_cmp_ge_u32 s2, 256
    s_cbranch_scc1 L_end
    s_load_dwordx4 s[{SWKV}:{SWKV+3}], s[0:1], 16
    s_load_dwordx2 s[{SX}:{SX+1}], s[0:1], 0
    s_load_dwordx2 s[{SWQ}:{SWQ+1}], s[0:1], 8
    s_load_dwordx2 s[{SWS}:{SWS+1}], s[0:1], 104
    s_getpc_b64 s[60:61]
    s_movk_i32 s62, {int(o.get('pf0', 6144))}
    s_mov_b32 s63, 0x00020000
    v_lshlrev_b32 v2, 7, v0
    v_lshrrev_b32 v1, 6, v0
    buffer_load_dword v197, v2, s[60:63], 0 offen
    v_and_b32 v255, 63, v0
    v_readfirstlane_b32 {sW}, v1
    s_and_b32 s54, s2, 7
    s_bfe_u32 {sJ}, s2, 0x30003
    s_lshr_b32 s55, s2, 6
    s_lshl2_add_u32 {sGRP}, s54, s55
    s_mov_b32 s{SX+2}, 2097152
    s_mov_b32 s{SX+3}, s63
    s_add_u32 {sC0}, s54, {sJ}
    s_and_b32 {sC0}, {sC0}, 3
    s_and_b32 s60, {sJ}, 3
    v_lshrrev_b32 v3, 4, {L}
    v_and_b32 v2, 15, {L}
    v_xor_b32 v12, v3, v2
    v_lshlrev_b32 v12, 4, v12
    v_lshl_or_b32 v4, v3, 10, v12
    v_xor_b32 v5, 64, v4
    v_add_u32 v5, 3072, v5
    v_xor_b32 v6, 0x80, v4
    v_add_u32 v6, 6144, v6
    v_xor_b32 v7, 0xc0, v4
    v_add_u32 v7, 9216, v7
    v_lshlrev_b32 v1, 4, {L}
    """)
    if diag:
        for i in (range(2, 17) if not o.get("lite") else ()): a(f"s_mov_b32 s{66+2*i}, 0")
    a(f"""
    s_cmp_eq_u32 {sW}, 7
    s_cbranch_scc0 L_nKV
    """)
    a(f"""
    s_setprio 3
    s_lshl2_add_u32 s64, {sGRP}, s60
    s_lshl_b32 s62, s64, 14
    s_lshl_b32 s65, s60, 12
    s_mov_b32 s61, {sC0}
    v_and_b32 v8, 1, v3
    v_lshlrev_b32 v8, 9, v8
    v_lshl_or_b32 v8, v2, 4, v8
    v_lshrrev_b32 v9, 1, v3
    v_lshl_or_b32 v8, v9, 3, v8
    v_mov_b64 v[10:11], -1
    s_lshr_b32 s54, s64, 1
    s_lshl_b32 s54, s54, 10
    s_and_b32 s55, s64, 1
    s_lshl_b32 s55, s55, 8
    s_add_u32 s54, s54, s55
    s_add_u32 s54, s54, {WS_K}
    s_add_u32 s55, s54, {WS_V - WS_K}
    s_mov_b32 s{SWS+2}, {WS_SIZE}
    s_mov_b32 s{SWS+3}, s63
    s_lshl3_add_u32 s57, {sGRP}, {sJ}
    s_lshl_b32 s57, s57, 5
    s_add_u32 s58, s57, {WS_KVF1}
    s_add_u32 s57, s57, {WS_KVF}
    s_cmp_lt_u32 {sJ}, 4
    s_cselect_b32 s54, s54, s55
    s_waitcnt lgkmcnt(0)
    buffer_store_dwordx2 v[10:11], v8, {srd(SWS)}, s54 offen sc1
    s_load_dword {sTAG}, s[{SWS}:{SWS+1}], 0
    s_load_dword s56, s[{SWS}:{SWS+1}], s57
    s_load_dword s56, s[{SWS}:{SWS+1}], s58
    s_cselect_b32 s{SWKV}, s{SWKV}, s{SWKV+2}
    s_cselect_b32 s{SWKV+1}, s{SWKV+1}, s{SWKV+3}
    s_movk_i32 s{SWKV+2}, 16384
    s_mov_b32 s{SWKV+3}, 0x00020000
    """)
    hstamp(9)
    for i in range(4):
        a(f"s_mov_b32 m0, {OACC + 4096*i}\ns_lshl_b32 s55, s61, 12")
        for q in range(4): a(f"buffer_load_dwordx4 v1, {srd(SWKV)}, s55 offen offset:{1024*q} lds")
        a(f"s_lshl_b32 s55, s61, 8\ns_add_u32 m0, s65, {X_ + 16384*i}\ns_add_u32 s55, s55, s62")
        for q in range(4): a(f"buffer_load_dwordx4 v{4+q}, {srd(SX)}, s55 offen offset:{1024*q} lds")
        if i < 3: a("s_add_u32 s61, s61, 1\ns_and_b32 s61, s61, 3")
    hstamp(11)
    a(f"""
    s_barrier
    s_load_dwordx2 s[{SW2}:{SW2+1}], s[0:1], 48
    v_lshlrev_b32 v5, 8, v3
    v_lshl_or_b32 v5, v2, 3, v5
    v_add_u32 v5, {OACC}, v5
    v_lshl_or_b32 v12, v2, 8, v12
    v_add_u32 v12, s65, v12
    v_xor_b32 v13, 64, v12
    v_xor_b32 v14, 0x80, v12
    v_xor_b32 v15, 0xc0, v12
    v_mov_b32 v6, {M_TAG}
    s_getreg_b32 s61, hwreg(HW_REG_XCC_ID, 0, 4)
    v_mov_b32 v11, s61
    s_cmp_lt_u32 {sJ}, 4
    s_cselect_b32 s63, -1, 0
    """)
    def kvreads(s):
        if s & 3 == 0: a(f"s_waitcnt vmcnt({24 if s == 0 else 25 - 2*s})")
        if s == 0: stamp(1)
        a(f"ds_read_b64_tr_b16 {vr(128+4*s,2)}, v5 offset:{1024*s}\nds_read_b64_tr_b16 {vr(130+4*s,2)}, v5 offset:{1024*s+128}")
        a(f"ds_read_b128 {vr(64+4*s,4)}, v{12+(s&3)} offset:{16384*(s>>2)}")
    for s in range(4): kvreads(s)
    a(f"""
    s_waitcnt lgkmcnt(0)
    s_mul_i32 {sTAG}, {sTAG}, 0x9E3779B1
    s_add_u32 {sTAG}, {sTAG}, 0x7F4A7C15
    s_or_b32 {sTAG}, {sTAG}, 1
    s_cmp_lt_u32 {sJ}, 4
    v_mov_b32 v10, {sTAG}
    s_mov_b64 exec, 1
    buffer_store_dwordx2 v[10:11], off, {srd(SWS)}, s57 sc1
    ds_write_b32 v6, v10
    s_mov_b64 exec, -1
    s_cbranch_scc0 L_KVv
    """)
    for swap in range(2):
        for s in range(16):
            if s + 4 < 16: kvreads(s+4)
            a(f"s_waitcnt lgkmcnt({min(12, 3*(15-s))})")
            A_, B_ = (64+4*s, 128+4*s) if swap else (128+4*s, 64+4*s)
            a(f"v_mfma_f32_16x16x32_bf16 v[192:195], {vr(A_,4)}, {vr(B_,4)}, {'0' if s == 0 else 'v[192:195]'}")
        if not swap: a("s_branch L_KVd\nL_KVv:")
    a(f"""
    L_KVd:
    s_nop 7
    """)
    hstamp(12)
    a(f"""
    v_cvt_pk_bf16_f32 v196, v192, v193
    v_cvt_pk_bf16_f32 v197, v194, v195
    v_min_u32 v196, -2, v196
    v_min_u32 v197, -2, v197
    buffer_store_dwordx2 v[196:197], v8, {srd(SWS)}, s54 offen sc1
    {"" if not o.get("b1early") else "s_barrier"}
    v_mul_f32 v8, v192, v192
    v_fmac_f32 v8, v193, v193
    v_fmac_f32 v8, v194, v194
    v_fmac_f32 v8, v195, v195
    v_mov_b32 v9, v8
    s_nop 1
    v_permlane32_swap_b32 v8, v9
    v_add_f32 v8, v8, v9
    v_mov_b32 v9, v8
    s_nop 1
    v_permlane16_swap_b32 v8, v9
    v_add_f32 v8, v8, v9
    s_nop 1
    v_max_u32_dpp v8, v8, v8 row_ror:8 row_mask:0xf bank_mask:0xf
    s_nop 1
    v_max_u32_dpp v8, v8, v8 row_ror:4 row_mask:0xf bank_mask:0xf
    s_nop 1
    v_max_u32_dpp v8, v8, v8 row_ror:2 row_mask:0xf bank_mask:0xf
    s_nop 1
    v_max_u32_dpp v9, v8, v8 row_ror:1 row_mask:0xf bank_mask:0xf
    s_mov_b64 exec, 1
    v_and_b32 v11, s63, v9
    buffer_store_dwordx2 v[10:11], off, {srd(SWS)}, s58 sc1
    s_mov_b64 exec, -1
    s_setprio 0
    """)
    hstamp(13)
    a(("s_barrier\n" if not o.get("b1early") else "") + xtouch(105) + gsetup_s)
    stamp(2)
    a(f"""
    """)
    late = f"s_setprio {o.get('gprio', 1)}\ns_call_b64 s[38:39], L_gsetup\ns_call_b64 s[38:39], L_gsetup2\ns_branch L_Gjoin"
    a(f"""
    s_barrier
    s_barrier
    s_barrier
    s_barrier
    {late}
    """)

    a(f"""
    L_nKV:
    s_load_dwordx2 s[{SW2}:{SW2+1}], s[0:1], 48
    s_mov_b32 s{SWS+2}, {WS_SIZE}
    s_mov_b32 s{SWS+3}, s63
    s_cmp_lt_u32 {sW}, 4
    s_cbranch_scc1 L_A1
    """)
    a(f"""
    s_cmp_eq_u32 {sW}, 5
    s_cbranch_scc1 L_G5
    s_cmp_eq_u32 {sW}, 6
    s_cbranch_scc1 L_G6
    """)
    def loader(n, chunk, t0):
        a("s_waitcnt lgkmcnt(0)\ns_barrier")
        pre = int(o.get("lpre", 3))
        for i in range(pre): chunk(i)
        gp = int(o.get("gp", 2))
        a(f"s_waitcnt vmcnt({(pre-1)*n})\ns_barrier")
        for i in range(pre, 4): chunk(i)
        a(xtouch(t0) + gsetup_s)
        a(f"s_waitcnt vmcnt({2*n})\ns_barrier\ns_waitcnt vmcnt({n})\ns_barrier\ns_waitcnt vmcnt(0)\ns_barrier\ns_barrier")
        a(late)
    a(f"s_lshl_b32 s61, {sGRP}, 16")
    for r in range(3): a(f"s_add_u32 s{33+r}, s60, {r+1}\ns_and_b32 s{33+r}, s{33+r}, 3\ns_lshl_b32 s{57+r}, s{33+r}, 14\ns_add_u32 s{57+r}, s{57+r}, s61\ns_lshl_b32 s{33+r}, s{33+r}, 12")
    def xchunk(i):
        a(f"s_add_u32 s55, {sC0}, {i}\ns_and_b32 s55, s55, 3\ns_lshl_b32 s55, s55, 8")
        for r in range(3):
            a(f"s_add_u32 m0, s{33+r}, {X_ + 16384*i}\ns_add_u32 s60, s{57+r}, s55")
            for q in range(4): a(f"buffer_load_dwordx4 v{4+q}, {srd(SX)}, s60 offen offset:{1024*q} lds")
    loader(12, xchunk, 91)
    a(f"""
    L_G5:
    s_mov_b32 s{SWQ+2}, 524288
    s_mov_b32 s{SWQ+3}, 0x00020000
    v_lshrrev_b32 v1, 3, {L}
    v_and_b32 v2, 7, {L}
    v_bfe_u32 v3, {L}, 4, 1
    v_lshlrev_b32 v3, 2, v3
    v_xor_b32 v2, v3, v2
    v_lshlrev_b32 v2, 4, v2
    v_lshl_or_b32 v8, v1, 10, v2
    v_add_u32 v9, 7168, v8
    v_add_u32 v10, 14336, v8
    v_add_u32 v11, 21504, v8
    s_lshl_b32 s64, {sJ}, 7
    """)
    def wchunk(i):
        a(f"s_add_u32 s55, {sC0}, {i}\ns_and_b32 s55, s55, 3\ns_lshl_b32 s55, s55, 17\ns_add_u32 s55, s55, s64")
        for r in range(4):
            a(f"s_mov_b32 m0, {W_ + 16384*i + 4096*r}\n" + ("s_add_u32 s55, s55, 32768" if r else "s_nop 0"))
            for q in range(4): a(f"buffer_load_dwordx4 v{8+q}, {srd(SWQ)}, s55 offen offset:{1024*q} lds")
    loader(16, wchunk, 98)
    a(f"""
    L_G6:
    s_load_dwordx2 s[{SB1}:{SB1+1}], s[0:1], 56
    s_load_dwordx2 s[{SB2}:{SB2+1}], s[0:1], 72
    s_load_dwordx2 s[{SGT}:{SGT+1}], s[0:1], 80
    s_lshl_b32 s60, {sJ}, 7
    s_waitcnt lgkmcnt(0)
    s_barrier
    s_mul_i32 s61, s2, 7168
    s_add_u32 s61, s61, 3584
    s_add_u32 s64, s{SW2}, s61
    s_addc_u32 s65, s{SW2+1}, 0
    s_mov_b32 s{SB1+2}, 3584
    s_mov_b32 s{SB1+3}, 0x00020000
    s_mov_b32 s{SB2+2}, 1024
    s_mov_b32 s{SB2+3}, 0x00020000
    s_mov_b32 s{SGT+2}, 1024
    s_mov_b32 s{SGT+3}, 0x00020000
    v_mov_b32 v4, 0
    v_mov_b32 v5, 0
    v_mov_b32 v6, 0
    v_mov_b32 v7, 0
    v_lshlrev_b32 v16, 4, {L}
    v_add_u32 v2, {MISC}, v16
    v_mov_b32 v8, 0xff800000
    v_mov_b32 v9, v8
    v_mov_b32 v10, v8
    v_mov_b32 v11, v8
    ds_write_b128 v2, v[4:7]
    ds_write_b128 v2, v[8:11] offset:1024
    v_add_u32 v2, {OACC + SLOT + 9216}, v16
    ds_write_b128 v2, v[4:7]
    s_lshl_b32 s57, {sC0}, 4
    s_mul_i32 s61, {sJ}, 448
    s_mov_b32 m0, {M_GATE}
    s_waitcnt lgkmcnt(0)
    """)
    def g6touch(i0, i1):
        if not o.get("nopf") and not o.get("vt") and not o.get("lt"):
            for i in range(i0, i1): a(f"s_load_dword s56, s[64:65], {64*i}")
    g6touch(0, 14)
    a(f"""
    {"s_call_b64 s[58:59], L_gsetupx" if not o.get("g6l") else ""}
    v_add_u32 v1, s57, {L}
    v_and_b32 v1, 63, v1
    v_lshlrev_b32 v1, 4, v1
    s_barrier
    buffer_load_dwordx4 v1, {srd(SGT)}, 0 offen lds
    s_mov_b32 m0, {M_B1}
    s_mov_b64 exec, 0xfffffff
    buffer_load_dwordx4 v16, {srd(SB1)}, s61 offen lds
    s_mov_b32 m0, {M_B2}
    s_mov_b64 exec, 0xff
    buffer_load_dwordx4 v16, {srd(SB2)}, s60 offen lds
    s_mov_b64 exec, -1
    """)
    g6touch(14, 28)
    a("s_barrier\ns_barrier")
    a(gsetup_s)
    g6touch(28, 35)
    a("s_waitcnt vmcnt(0)\ns_barrier")
    a(f"""
    s_barrier
    {"s_branch L_Gjoin" if not o.get("g6l") else late}
    """)
    a(f"""
    L_A1:
    """)
    if o.get("vt"):
        a(f"""
        s_cmp_gt_u32 {sW}, 1
        s_cbranch_scc1 L_A1b
        v_lshlrev_b32 v2, 7, {L}
        s_cmp_eq_u32 {sW}, 0
        s_cbranch_scc1 L_A1a
        s_getpc_b64 s[16:17]
        L_pc:
        s_mov_b32 s18, L_end - L_pc
        s_mov_b32 s19, 0x00020000
        s_lshr_b32 s57, s2, 3
        s_mul_i32 s57, s57, {128*9}
        s_mov_b64 exec, 0x1ff
        buffer_load_dword v197, v2, s[16:19], s57 offen
        s_mov_b64 exec, -1
        s_branch L_A1b
        L_A1a:
        s_mov_b32 s{SW2+2}, 1835008
        s_mov_b32 s{SW2+3}, 0x00020000
        s_mul_i32 s57, s2, 7168
        s_lshr_b64 exec, -1, 8
        s_waitcnt lgkmcnt(0)
        buffer_load_dword v197, v2, {srd(SW2)}, s57 offen
        s_mov_b64 exec, -1
        L_A1b:
        """)
    a(f"""
    s_waitcnt lgkmcnt(0)
    s_barrier
    """)
    def codetouch(lbl):
        a(f"""
        s_getpc_b64 s[16:17]
        {lbl}:
        s_mov_b32 s18, L_end - {lbl}
        s_mov_b32 s19, 0x00020000
        s_lshr_b32 s57, s2, 3
        s_lshl2_add_u32 s57, s57, {sW}
        s_mul_i32 s57, s57, 384
        """)
        for i in range(6): a(f"s_buffer_load_dword s56, s[16:19], s57 offset:{64*i}")
    if not o.get("vt"): codetouch("L_pc")
    def w1touch(first, n):
        if o.get("nopf") or o.get("vt"): return
        a(f"s_mul_i32 s60, s2, 7168\ns_add_u32 s60, s60, {first}\ns_add_u32 s{SW2}, s{SW2}, s60\ns_addc_u32 s{SW2+1}, s{SW2+1}, 0")
        if o.get("lt"): return
        for i in range(n): a(f"s_load_dword s56, s[{SW2}:{SW2+1}], {64*i}")
    stamp(1)
    a(f"s_mul_i32 s61, {sW}, {1792 if o.get('lt') else 896}")
    w1touch("s61", 14)
    a(f"""
    s_lshr_b32 s60, {sW}, 1
    s_lshl_b32 s60, s60, 13
    v_and_b32 v1, 31, {L}
    v_lshrrev_b32 v2, 5, {L}
    v_and_b32 v3, 15, {L}
    v_xor_b32 v3, v2, v3
    v_lshlrev_b32 v3, 4, v3
    v_lshl_or_b32 v168, v1, 8, v3
    v_add_u32 v168, s60, v168
    s_mov_b64 s[12:13], s[{SWS}:{SWS+1}]
    s_mov_b32 s15, 0x00020000
    """)
    XA = [168, 169, 170, 171, 176, 177, 178, 179]
    for k in range(1, 8): a(f"v_xor_b32 v{XA[k]}, {32*k}, v168")
    tr_addr(184, 8)
    a(f"""
    s_and_b32 s60, {sW}, 1
    s_lshl_b32 s60, s60, 6
    v_xor_b32 v184, s60, v184
    v_add_u32 v184, {W_}, v184
    v_and_b32 v1, 11, {L}
    v_cmp_eq_u32 vcc, 0, v1
    v_mov_b32 v2, 0x3f803f80
    v_lshlrev_b32 v250, 4, {L}
    v_cndmask_b32 v68, 0, v2, vcc
    v_mov_b32 v251, {M_QMAX}
    v_mov_b32 v69, v68
    v_lshlrev_b32 v247, 5, {L}
    s_lshl_b32 s60, {sW}, 8
    s_add_u32 s60, s60, {OACC}
    v_lshlrev_b32 v244, 2, {L}
    v_add_u32 v244, s60, v244
    v_add_u32 v246, {QF}, v250
    v_add_u32 v252, {WS_V - WS_K}, v250
    s_lshr_b32 s60, {sW}, 1
    s_lshl_b32 s60, s60, 12
    s_and_b32 s61, {sW}, 1
    s_lshl_b32 s61, s61, 11
    s_add_u32 s60, s60, s61
    v_add_u32 v220, s60, v246
    s_lshl_b32 s60, {sW}, 11
    s_add_u32 s61, s60, {WS_KVF1}
    s_add_u32 s60, s60, {WS_KVF}
    s_lshl_b32 s54, {sW}, 14
    s_add_u32 s54, s54, {WS_K}
    s_and_b32 s55, {sJ}, 3
    s_lshl_b32 s55, s55, 12
    s_mov_b32 s62, {QSCALE}
    s_mov_b32 s63, 0
    s_add_u32 s8, s54, s55
    s_add_u32 s55, s55, 4096
    s_and_b32 s55, s55, 0x3fff
    s_add_u32 s9, s54, s55
    s_add_u32 s55, s55, 4096
    s_and_b32 s55, s55, 0x3fff
    s_add_u32 s10, s54, s55
    s_add_u32 s55, s55, 4096
    s_and_b32 s55, s55, 0x3fff
    s_add_u32 s11, s54, s55
    """)
    def padinit():
        for t in range(16):
            for r in (68 + 8*t, 70 + 8*t):
                if r != 68: a(f"v_mov_b64 {vr(r,2)}, v[68:69]")
    padinit()
    def qreads(ks):
        b = 192 + 8*(ks % 3)
        a(f"ds_read_b64_tr_b16 {vr(b,2)}, v184 offset:{2048*ks}")
        a(f"ds_read_b64_tr_b16 {vr(b+2,2)}, v184 offset:{2048*ks+512}")
        a(f"ds_read_b128 {vr(b+4,4)}, v{XA[ks&7]} offset:{16384*(ks>>3)}")
    poll = f"buffer_load_dwordx2 v[248:249], v247, {srd(SWS)}, s60 offen sc1"
    D = int(o.get("D", 5))
    early = True
    pollc = int(o.get("pollc", 2))
    poll1 = f"buffer_load_dwordx2 v[248:249], v247, {srd(SWS)}, s61 offen sc1"
    def kvload(t):
        return [f"buffer_load_dwordx4 {vr(4*t,4)}, v250, s[12:15], s{8+(t>>2)} offen offset:{1024*(t&3)} sc1",
                f"buffer_load_dwordx4 {vr(64+8*t,4)}, v252, s[12:15], s{8+(t>>2)} offen offset:{1024*(t&3)} sc1"]
    first = [x for t in range(D) for x in kvload(t)]
    KQ = int(o.get("kq", 4))
    for c in range(4):
        a(("s_waitcnt vmcnt(0) lgkmcnt(0)\n" if c == 0 else "") + "s_barrier")
        if c == 0: stamp(2)
        if c > 0: hstamp(12 + c)
        if c == 1: a(f"v_mov_b32 v253, {M_TAG}\nds_read_b32 v253, v253")
        if c == pollc: a(poll)
        qreads(8*c); qreads(8*c+1)
        if c == 3 and pollc < 3:
            a(f"s_waitcnt vmcnt(0)\nv_cmp_ne_u32 vcc, {sTAG}, v248\ns_nop 3\ns_cmp_eq_u64 vcc, 0\ns_cselect_b32 s14, {WS_SIZE}, 0\n{poll1.replace(srd(SWS), 's[12:15]')}")
        for k in range(8):
            ks = 8*c + k
            if k < 6:
                qreads(ks+2); a("s_waitcnt lgkmcnt(6)")
            else:
                a(f"s_waitcnt lgkmcnt({3*(7-k)})")
            if c == 3 and k == 7: a("s_barrier")
            b = 192 + 8*(ks % 3)
            a(f"v_mfma_f32_32x32x16_bf16 v[224:239], {vr(b,4)}, {vr(b+4,4)}, {'0' if ks == 0 else 'v[224:239]'}")
            if c == 3 and k < KQ and pollc < 3: a(first[k])
        if c == 1: a(f"v_readfirstlane_b32 {sTAG}, v253")
    stamp(3)
    rest = first[KQ:]
    if pollc == 3:
        a(f"s_waitcnt vmcnt(0)\nv_cmp_ne_u32 vcc, {sTAG}, v248\ns_nop 3\ns_cmp_eq_u64 vcc, 0\ns_cselect_b32 s14, {WS_SIZE}, 0\n{poll1.replace(srd(SWS), 's[12:15]')}")
        a("\n".join(first[:KQ]))
    a("s_setprio 2\n" + "\n".join(rest[:2]) + "\ns_nop 9")
    rest = rest[2:]
    for r in range(16): a(f"v_mul_f32 v{224+r}, s62, v{224+r}")
    for r in range(8): a(f"v_cvt_pk_bf16_f32 v{192+r}, v{224+2*r}, v{225+2*r}")
    a(f"v_mov_b32 v245, {sTAG}\nds_write_b128 v220, v[192:195]\nds_write_b128 v220, v[196:199] offset:1024")
    a(f"s_cmp_lg_u32 {sW}, 0\ns_cbranch_scc1 L_q0s\nds_write_b32 v251, v245 offset:{M_Q0 - M_QMAX}\nL_q0s:")
    stamp(4)
    a("v_mul_f32 v208, v224, v224\nv_mul_f32 v209, v232, v232")
    for r in range(1, 8):
        a(f"v_fmac_f32 v208, v{224+r}, v{224+r}\nv_fmac_f32 v209, v{232+r}, v{232+r}")
        if rest and r & 1: a(rest.pop(0))
    a("\n".join(rest))
    a(f"""
    s_mov_b32 s63, 0
    L_q0w:
    ds_read_b32 v210, v251 offset:{M_Q0 - M_QMAX}
    ds_read_b128 v[240:243], v246
    s_add_u32 s63, s63, 1
    s_cmp_gt_u32 s63, {SPIN_MAX}
    s_cbranch_scc1 L_q0x
    s_waitcnt lgkmcnt(0)
    v_cmp_ne_u32 vcc, {sTAG}, v210
    s_cbranch_vccnz L_q0w
    L_q0x:
    s_waitcnt vmcnt({2*D})
    v_cmp_ne_u32 vcc, {sTAG}, v248
    s_cbranch_vccnz L_kvlate
    L_kvgo:
    """)
    stamp(5)
    a(f"""
    v_permlane32_swap_b32 v208, v209
    v_max_u32_dpp v249, v249, v249 row_ror:8 row_mask:0xf bank_mask:0xf
    v_add_f32 v254, v208, v209
    v_mov_b32 v253, 1
    v_max_u32_dpp v249, v249, v249 row_ror:4 row_mask:0xf bank_mask:0xf
    v_max_u32_dpp v254, v254, v254 row_ror:8 row_mask:0xf bank_mask:0xf
    s_mov_b32 s64, 0x00010001
    v_max_u32_dpp v249, v249, v249 row_ror:2 row_mask:0xf bank_mask:0xf
    v_max_u32_dpp v254, v254, v254 row_ror:4 row_mask:0xf bank_mask:0xf
    s_mov_b32 s65, 0x00010001
    v_max_u32_dpp v249, v249, v249 row_ror:1 row_mask:0xf bank_mask:0xf
    v_max_u32_dpp v254, v254, v254 row_ror:2 row_mask:0xf bank_mask:0xf
    v_add_u32 v246, 1024, v246
    s_mov_b32 s62, 6
    v_max_u32_dpp v254, v254, v254 row_ror:1 row_mask:0xf bank_mask:0xf
    s_mov_b64 exec, s[64:65]
    ds_max_u32 v251, v254
    ds_max_u32 v251, v249 offset:4
    ds_add_u32 v251, v253 offset:8
    s_mov_b64 exec, -1
    s_mov_b32 s64, {0 if o.get('noG') else 0x24}
    s_mov_b32 s65, 0
    L_qk0:
    s_waitcnt vmcnt({2*D-1})
    v_mfma_f32_32x32x16_bf16 v[192:207], v[0:3], v[240:243], 0
    v_max_u32 v254, v0, v2
    s_nop 1
    """)
    stamp(6)
    if diag and not o.get("lite"): a("s_memrealtime s[86:87]")
    flush = [f"ds_write2st64_b32 v244, v{224+2*r}, v{225+2*r} offset0:{8*r} offset1:{8*r+4}" for r in range(4)] + ["ds_write2st64_b32 v244, v232, v245 offset0:32 offset1:36", f"v_add_u32 v244, {0 if o.get('noG') else SLOT}, v244"]
    def tile(t, peel=False):
        first = peel and t == 0
        S = [192, 208]
        cur = S[t & 1]; nxt = S[(t+1) & 1]
        Kn = 4*((t+1) % 16); Vp = 64 + 8*((t-1) % 16) + 4; Vc = 64 + 8*t
        m0 = f"v_mfma_f32_32x32x16_bf16 v[224:239], {vr(Vp,4)}, {vr(nxt+4,4)}, v[224:239]"
        m1 = f"v_mfma_f32_32x32x16_bf16 {vr(nxt,16)}, {vr(Kn,4)}, v[240:243], 0"
        m2 = f"v_mfma_f32_32x32x16_bf16 v[224:239], {vr(Vc,4)}, {vr(cur,4)}, {'0' if t == 0 else 'v[224:239]'}"
        e = lambda i: f"v_exp_f32 v{cur+i}, v{cur+i}"
        c = lambda i: f"v_cvt_pk_bf16_f32 v{cur+i}, v{cur+2*i}, v{cur+2*i+1}"
        cp7 = f"v_cvt_pk_bf16_f32 v{nxt+7}, v{nxt+14}, v{nxt+15}"
        seq = []
        if peel:
            if t + D < 16: seq += kvload(t + D)
            lt = [int(x) for x in str(o.get("lt", "")).split(",") if x]
            if t in lt: seq += [f"s_load_dword s56, s[{SW2}:{SW2+1}], {64*(7*lt.index(t) + i)}" for i in range(7)]
            if t == int(o.get("go", 11)): seq.append(f"ds_write_b32 v251, v245 offset:{M_GO - M_QMAX}")
            seq.append(f"s_waitcnt vmcnt({max(2*min(t+D+1, 16) - (2*t+3), 0)})")
            seq.append(f"v_max3_u32 v254, v254, v{Vc}, v{Vc+2}")
            if t < 15: seq.append(f"v_max3_u32 v254, v254, v{Kn}, v{Kn+2}")
            seq += [f"v_permlane16_swap_b32 v{Vc+r}, v{Vc+4+r}" for r in range(4)]
        qn = ["ds_read_b128 v[240:243], v246", "v_add_u32 v246, 1024, v246"]
        if peel: qn.append("ds_read_b96 v[248:250], v251")
        if not o.get("clus") and not o.get("even"):
            seq += [e(0)] + ([] if first else [cp7]) + [e(1), e(2), c(0)] + ([] if first else [m0]) + [e(3), e(4)]
            if t == 15: seq.append("s_waitcnt lgkmcnt(0)")
            seq += [e(5), m1]
            if t == 14: seq += qn
            seq += [e(6), e(7), e(8), c(1), e(9), e(10), e(11), c(2), e(12)]
            if t == 0 and not first: seq += (flush if not o.get("noflush") else [])
            seq += [e(13), c(3), c(4), e(14), m2, c(5), c(6)]
        elif o.get("even") or (t == 0 and not first):
            seq += [e(0)] + ([] if first else [cp7]) + [e(1), e(2)] + ([] if first else [m0]) + [c(0), e(3), e(4), c(1), e(5), e(6)]
            if t == 15: seq.append("s_waitcnt lgkmcnt(0)")
            seq.append(m1)
            if t == 14: seq += qn
            seq += [c(2), e(7), e(8), c(3), e(9), e(10)]
            if t == 0 and not first: seq += (flush if not o.get("noflush") else [])
            seq += [c(4), m2, e(11), e(12), c(5), e(13), e(14), c(6)]
        else:
            seq += [e(0)] + ([] if first else [cp7]) + [e(1), e(2), e(3)]
            if t == 15: seq.append("s_waitcnt lgkmcnt(0)")
            seq += [e(4), e(5)] + ([] if first else [m0]) + [e(6), e(7), c(0), c(1), m1, c(2), c(3), e(8), e(9), m2]
            if t == 14: seq += qn
            seq += [e(10), c(4), e(11), e(12), c(5), e(13), e(14), c(6)]
        if t == 15 and not peel: seq += ["s_bitcmp1_b32 s64, s62"]
        seq += [e(15)]
        a("\n".join(seq))
    for t in range(16): tile(t, peel=True)
    stamp(7)
    a(f"""
    v_cmp_eq_u32 vcc, -1, v254
    {"s_cmp_eq_u32 s65, 0" if o.get("force_redo") else ""}
    {"s_cbranch_scc1 L_redo" if o.get("force_redo") else ""}
    s_cbranch_vccnz L_redo
    L_clean:
    v_cmp_ne_u32 vcc, 16, v250
    v_mul_f32 v248, v248, v249
    s_mov_b32 s63, 0
    s_cbranch_vccnz L_chk2
    v_cmp_nge_f32 vcc, 0x45700000, v248
    {"s_nop 0" if o.get("force_slow") else "s_cbranch_vccz L_top"}
    s_branch L_slowgo
    .p2align 6
    L_top:
    """)
    for t in range(16): tile(t)
    if diag and not rt and not o.get("hd") and not o.get("lite"):
        a("s_cselect_b32 s57, 1, 0\ns_cmp_lt_u32 s62, 2\ns_cbranch_scc1 L_nst\ns_mov_b32 s90, s92\ns_mov_b32 s92, s94\ns_mov_b32 s94, s96\ns_mov_b32 s96, s98\ns_memtime s[98:99]\ns_waitcnt lgkmcnt(0)\nL_nst:\ns_cmp_eq_u32 s57, 1")
    a(f"""
    s_cbranch_scc1 L_check
    s_sub_u32 s62, s62, 1
    s_cbranch_scc0 L_top
    v_cvt_pk_bf16_f32 v215, v222, v223
    s_nop 1
    v_mfma_f32_32x32x16_bf16 v[224:239], {vr(64+8*15+4,4)}, v[212:215], v[224:239]
    L_last:
    s_lshl_b32 s60, {sW}, 10
    s_add_u32 s60, s60, {X_ + 5*SLOT}
    v_lshlrev_b32 v247, 4, {L}
    v_add_u32 v247, s60, v247
    s_nop 7
    """)
    lastflush = flush[:5] if o.get("narrow") else ["ds_write_b128 v247, v[224:227]", "ds_write_b128 v247, v[228:231] offset:4096", "ds_write_b32 v244, v232 offset:8192"]
    a("\n".join(lastflush) + "\ns_waitcnt lgkmcnt(0)")
    stamp(8)
    if diag and not o.get("lite"): a("s_memrealtime s[88:89]")
    a("s_barrier")
    diag_out("a")
    a("s_endpgm")
    a(f"""
    L_kvlate:
    s_sleep {o.get('lsl', 4)}
    {poll1}
    s_add_u32 s63, s63, 1
    s_cmp_gt_u32 s63, {SPIN_MAX}
    s_cbranch_scc1 L_kvlate2
    s_waitcnt vmcnt(0)
    v_cmp_ne_u32 vcc, {sTAG}, v248
    s_cbranch_vccnz L_kvlate
    L_kvlate2:
    s_mov_b32 s14, {WS_SIZE}
    """)
    a("\n".join(first) + "\ns_branch L_kvgo")
    a(f"""
    L_redo:
    s_add_u32 s65, s65, 1
    s_cmp_gt_u32 s65, 1000
    s_cbranch_scc1 L_clean
    v_and_b32 v250, 11, {L}
    v_cmp_eq_u32 vcc, 0, v250
    v_mov_b32 v249, 0x3f803f80
    v_lshlrev_b32 v250, 4, {L}
    v_cndmask_b32 v68, 0, v249, vcc
    v_add_u32 v246, {QF}, v250
    v_mov_b32 v69, v68
    s_nop 7
    s_nop 7
    ds_read_b128 v[240:243], v246
    v_add_u32 v246, 1024, v246
    """)
    padinit()
    a("\n".join(first) + "\ns_waitcnt lgkmcnt(0)\ns_branch L_qk0")
    a(f"""
    L_check:
    s_mov_b32 s63, 0
    s_sub_u32 s62, s62, 1
    s_cmp_eq_u32 s62, 4
    s_cselect_b32 s60, 4, 12
    s_cselect_b32 s61, {OACC + 2*SLOT - X_}, 0
    s_add_u32 s60, s60, {M_CNTG}
    v_mov_b32 v249, s60
    L_xw:
    ds_read_b32 v248, v249
    s_add_u32 s63, s63, 1
    s_cmp_gt_u32 s63, {SPIN_MAX}
    s_cbranch_scc1 L_xw_x
    s_waitcnt lgkmcnt(0)
    v_cmp_ne_u32 vcc, 4, v248
    s_cbranch_vccnz L_xw
    L_xw_x:
    v_subrev_u32 v244, s61, v244
    s_branch L_top
    L_chk2:
    ds_read_b96 v[248:250], v251
    s_add_u32 s63, s63, 1
    s_cmp_gt_u32 s63, {SPIN_MAX}
    s_cbranch_scc1 L_chk3
    s_waitcnt lgkmcnt(0)
    v_cmp_ne_u32 vcc, 16, v250
    s_cbranch_vccnz L_chk2
    L_chk3:
    v_mul_f32 v248, v248, v249
    v_cmp_nge_f32 vcc, 0x45700000, v248
    {"s_nop 0" if o.get("force_slow") else "s_cbranch_vccz L_top"}
    L_slowgo:
    """)
    a(f"""
    v_lshlrev_b32 v246, 4, {L}
    v_add_u32 v246, {QF}, v246
    v_and_b32 v247, 31, {L}
    v_lshlrev_b32 v247, 2, v247
    v_add_u32 v247, {M_M}, v247
    v_mov_b32 v251, {M_CNTS}
    s_mov_b32 s62, 8
    L_slow:
    ds_read_b128 v[240:243], v246
    v_add_u32 v246, 1024, v246
    v_mov_b32 v248, 0xff800000
    s_waitcnt lgkmcnt(0)
    """)
    for t in range(16):
        a(f"v_mfma_f32_32x32x16_bf16 v[192:207], {vr(4*t,4)}, v[240:243], 0\ns_nop 11")
        for r in range(8): a(f"v_max3_f32 v248, v248, v{192+2*r}, v{193+2*r}")
    a(f"""
    ds_max_f32 v247, v248
    s_mov_b64 exec, 1
    ds_add_u32 v251, v253
    s_mov_b64 exec, -1
    s_mov_b32 s63, 0
    L_slow2:
    s_sleep 1
    ds_read_b32 v249, v251
    s_add_u32 s63, s63, 1
    s_cmp_gt_u32 s63, {SPIN_MAX}
    s_cbranch_scc1 L_slow3
    s_waitcnt lgkmcnt(0)
    v_cmp_ne_u32 vcc, 4, v249
    s_cbranch_vccnz L_slow2
    L_slow3:
    ds_read_b32 v248, v247
    v_add_u32 v247, 128, v247
    v_add_u32 v251, 4, v251
    s_waitcnt lgkmcnt(0)
    """)
    for t in range(16):
        a(f"v_mfma_f32_32x32x16_bf16 v[192:207], {vr(4*t,4)}, v[240:243], 0\ns_nop 11")
        for r in range(16): a(f"v_sub_f32 v{192+r}, v{192+r}, v248")
        for r in range(16): a(f"v_exp_f32 v{192+r}, v{192+r}")
        a("s_nop 0")
        for r in range(8): a(f"v_cvt_pk_bf16_f32 v{208+r}, v{192+2*r}, v{193+2*r}")
        a("s_nop 1")
        a(f"v_mfma_f32_32x32x16_bf16 v[224:239], {vr(64+8*t,4)}, v[208:211], {'0' if t == 0 else 'v[224:239]'}")
        a(f"v_mfma_f32_32x32x16_bf16 v[224:239], {vr(68+8*t,4)}, v[212:215], v[224:239]")
    a(f"""
    s_cmp_lg_u32 s62, 6
    s_cbranch_scc1 L_slow5
    s_mov_b32 s63, 0
    v_mov_b32 v249, {M_CNTG + 12}
    L_slow4:
    ds_read_b32 v248, v249
    s_add_u32 s63, s63, 1
    s_cmp_gt_u32 s63, {SPIN_MAX}
    s_cbranch_scc1 L_slow4x
    s_waitcnt lgkmcnt(0)
    v_cmp_ne_u32 vcc, 4, v248
    s_cbranch_vccnz L_slow4
    L_slow4x:
    v_subrev_u32 v244, {OACC + 2*SLOT - X_}, v244
    L_slow5:
    s_cmp_eq_u32 s62, 1
    s_cbranch_scc1 L_last
    """)
    a("s_nop 11")
    a("\n".join(flush))
    a(f"""
    s_sub_u32 s62, s62, 1
    s_branch L_slow
    """)

    a(f"""
    L_Gjoin:
    s_sub_u32 {sW}, {sW}, 4
    """)
    gw = sW
    inG[0] = True
    def lds_wait(lbl, addr, off, val, sleep=2):
        a(f"""
        s_mov_b32 s63, 0
        {lbl}:
        ds_read_b32 v178, {addr} offset:{off}
        s_add_u32 s63, s63, 1
        s_cmp_gt_u32 s63, {SPIN_MAX}
        s_cbranch_scc1 {lbl}_x
        s_waitcnt lgkmcnt(0)
        v_cmp_ne_u32 vcc, {val}, v178
        s_cbranch_vccz {lbl}_x
        s_sleep {sleep}
        s_branch {lbl}
        {lbl}_x:
        """)
    a(f"""
    ds_read_b32 v178, v177 offset:{M_TAG - M_CNTG}
    ds_read_u16 v152, v12
    ds_read_u16 v156, v12 offset:64
    ds_read_u16 v168, v13
    ds_read_u16 v172, v13 offset:64
    s_setprio 3
    s_waitcnt lgkmcnt(0)
    v_readfirstlane_b32 {sTAG}, v178
    s_nop 3
    """)
    if o.get("noG"): a("s_barrier\ns_branch L_gend")
    PRE = int(o.get("pre", 8))
    if int(o.get("go", 11)) >= 0 and not PRE: lds_wait("L_go", "v177", M_GO - M_CNTG, sTAG, 3)
    a(f"""
    s_setprio 0
    s_lshl_b32 s64, {sGRP}, 8
    s_add_u32 s64, s64, {WS_KVF}
    s_mul_i32 s4, {gw}, {448*1024}
    s_lshl_b32 s55, {sJ}, 7
    s_add_u32 s4, s4, s55
    s_lshl_b32 s7, {gw}, 17
    s_add_u32 s7, s7, s55
    s_mul_i32 s5, {sGRP}, {2*112*1024}
    s_add_u32 s5, s5, {WS_H}
    s_lshl_b32 s24, s48, 11
    s_add_u32 s24, s24, s5
    s_add_u32 s25, s24, {112*1024}
    s_mul_i32 s61, {gw}, {28*1024}
    s_add_u32 s5, s5, s61
    s_and_b32 s6, {sGRP}, {0 if o.get('norot2') else 3}
    s_lshl_b32 s10, {sGRP}, 3
    s_add_u32 s8, s10, {sJ}
    s_lshl_b32 s26, s8, 2
    s_add_u32 s26, s26, {gw}
    s_lshl_b32 s26, s26, 5
    s_add_u32 s26, s26, {WS_HF}
    s_lshl_b32 s8, s8, 3
    s_add_u32 s8, s8, {gw}
    s_lshl_b32 s8, s8, 10
    s_add_u32 s8, s8, {WS_O}
    s_add_u32 s9, s8, 4096
    s_lshl_b32 s60, {gw}, 1
    s_add_u32 s10, s10, s60
    s_lshl_b32 s27, s10, 7
    s_add_u32 s27, s27, {WS_HF}
    s_lshl_b32 s10, s10, 13
    s_add_u32 s10, s10, {WS_O}
    s_add_u32 s65, s10, 8192
    s_lshl_b32 s33, {sGRP}, 16
    s_add_u32 s11, s33, {WS_O + 7*1024}
    s_add_u32 s33, s33, s55
    s_add_u32 s34, s33, 0x8000
    s_lshl_b32 s60, {gw}, 13
    s_add_u32 s33, s33, s60
    s_movk_i32 s32, {4*SLOT // 4}
    s_cmp_lt_u32 {gw}, 2
    s_cselect_b32 s32, {(2*SLOT + X_ - OACC) // 4 & 0xffffffff}, s32
    s_lshl_b32 s32, s32, 2
    """)
    stamp(3)
    a(f"s_cmp_eq_u32 {gw}, 3\ns_cbranch_scc1 L_F1w3")
    ACC = lambda mt, nt: 32*nt + 16*mt
    def mf(mt, nt, A_, B_, c0=False):
        d = vr(ACC(mt, nt), 16)
        a(f"v_mfma_f32_32x32x16_bf16 {d}, {vr(A_,4)}, {vr(B_,4)}, {'0' if c0 else d}")
    class VM:
        def __init__(s_): s_.ops = []
        def op(s_, ins, tag=None): a(ins); s_.ops.append(tag)
        def n(s_, *tags): return len(s_.ops) - 1 - max(i for i, t in enumerate(s_.ops) if t in tags)
    xcload = f"buffer_load_dwordx2 v[194:195], v180, {srd(SWS)}, s64 offen sc1"
    def f1reads(k, w3):
        ab = 120 + 8*(k & 1); bb = 64 + 8*(k & 1); u = k & 7; xo = 16384*(k >> 3)
        r0 = [f"ds_read_b64_tr_b16 {vr(ab,2)}, v144 offset:{2048*u}", f"ds_read_b64_tr_b16 {vr(ab+2,2)}, v144 offset:{2048*u+(256 if w3 else 512)}", f"ds_read_b128 {vr(bb,4)}, v{136+u} offset:{xo}"]
        if not w3: r1 = [f"ds_read_b64_tr_b16 {vr(ab+4,2)}, v145 offset:{2048*u}", f"ds_read_b64_tr_b16 {vr(ab+6,2)}, v145 offset:{2048*u+512}"]
        else: r1 = ["s_mov_b64 exec, s[36:37]", f"ds_read_b128 {vr(ab+4,4)}, v145 offset:{32*k}", "s_mov_b64 exec, -1"]
        r1.append(f"ds_read_b128 {vr(bb+4,4)}, v{136+u} offset:{xo+8192}")
        return "\n".join(r0), "\n".join(r1)
    def ffn1(w3):
        vm = VM()
        def dma(k, half):
            if k < 32:
                if half == 0: vm.op(f"buffer_load_dwordx4 v148, {srd(SW1)}, s54 offen lds", k)
                elif not w3: vm.op(f"buffer_load_dwordx4 v149, {srd(SW1)}, s54 offen offset:1024 lds", k)
            else:
                vm.op(f"buffer_load_dwordx4 v{150+half}, {srd(SW2 if k < 39 else SWO)}, s54 offen offset:{1024*half} lds", k)
        def adv(k):
            if k < 32 and k & 7: a(f"s_add_u32 s54, s54, {16*3584}")
            elif k < 32: a(f"s_add_u32 s55, {sC0}, {k >> 3}\ns_and_b32 s55, s55, 3\ns_mul_i32 s55, s55, {128*3584}\ns_add_u32 s54, s100, s55")
            elif k == 32: a(f"s_mul_i32 s54, s6, {7*16384}\ns_add_u32 s54, s54, s4")
            elif k < 39: a("s_add_u32 s54, s54, 16384")
            elif k == 39: a(f"s_add_u32 s54, s7, {7*16384}")
        for k in range(8):
            a(f"s_add_u32 m0, s49, {2048*k}\ns_nop 0")
            dma(k, 0); dma(k, 1); adv(k+1)
        if w3: a("s_setprio 3\nv_mov_b64 v[124:125], 0\nv_mov_b64 v[126:127], 0\nv_mov_b64 v[132:133], 0\nv_mov_b64 v[134:135], 0\ns_mov_b32 s36, 0x10100101\ns_mov_b32 s37, 0x10100101\ns_setprio 0")
        a(f"s_waitcnt vmcnt({vm.n(0)})")
        a("\n".join(f1reads(0, w3)))
        for nt in range(2):
            mf(0, nt, 152, 160, True)
            if not w3: mf(1, nt, 156, 160, True)
        def mf1(nt, A_, B_, k):
            if not w3: return mf(1, nt, A_, B_)
            d = vr(ACC(1, nt), 4)
            a(f"v_mfma_f32_16x16x32_bf16 {d}, {vr(A_,4)}, {vr(B_,4)}, {d if k else '0'}")
        for k in range(32):
            u = k & 7
            ab = 120 + 8*(k & 1); bb = 64 + 8*(k & 1)
            if k == 12:
                for so in ("s8", "s9"): vm.op(f"buffer_store_dwordx4 v[200:203], v166, {srd(SWS)}, {so} offen sc1")
                vm.op(f"buffer_load_dword v178, v180, {srd(SWS)}, s27 offen sc1")
                vm.op(xcload, "xc")
                if not w3 and not o.get("nopf"):
                    a(f"""
                    s_cmp_eq_u32 {gw}, 0
                    s_cbranch_scc0 L_f1m
                    s_mul_i32 s60, s2, 7168
                    s_lshr_b64 exec, -1, 8
                    buffer_load_dword v178, v196, {srd(SW2)}, s60 offen
                    s_mov_b64 exec, 0xffff
                    s_lshl_b32 s60, s2, 11
                    buffer_load_dword v178, v196, {srd(SWO)}, s60 offen
                    s_mov_b64 exec, -1
                    L_f1m:
                    """)
                if o.get("hpre"):
                    for so in ("s24", "s25"):
                        for q in range(2 if w3 else 4): vm.op(f"buffer_load_dwordx4 v[204:207], v166, {srd(SWS)}, {so} offen offset:{1024*q}")
            if PRE and k == PRE:
                a("s_setprio 3")
                lds_wait("L_go" + "ab"[w3], "v177", M_GO - M_CNTG, sTAG, 2)
                a("s_setprio 0")
                for kk in range(8, 8 + PRE):
                    a(f"s_add_u32 m0, s49, {2048*(kk & 7)}\ns_nop 0")
                    dma(kk, 0); dma(kk, 1); adv(kk+1)
                if PRE == 8:
                    a(f"s_waitcnt vmcnt({vm.n(8)})")
                    a("\n".join(f1reads(8, w3)))
            hold = k < PRE
            a(f"s_waitcnt vmcnt({vm.n(k+1) if k < 31 and not (hold and k == 7) else 63}) lgkmcnt(0)")
            r0, r1 = f1reads(k+1, w3) if k < 31 and not (hold and k == 7) else ("", "")
            mf(0, 0, ab, bb)
            a(r0)
            mf1(0, ab+4, bb, k)
            a(r1)
            if not hold: a(f"s_add_u32 m0, s49, {2048*u}")
            mf(0, 1, ab, bb+4)
            if not hold: dma(k+8, 0)
            if u == 7: a(f"s_mov_b64 exec, 1\nds_add_u32 v177, v167 offset:{4*(k >> 3)}\ns_mov_b64 exec, -1")
            mf1(1, ab+4, bb+4, k)
            if not hold: dma(k+8, 1); adv(k+9)
        a(f"s_waitcnt vmcnt({vm.n('xc')})")
    ffn1(False)
    a("s_branch L_F1done\nL_F1w3:")
    ffn1(True)
    a(f"""
    L_F1done:
    s_mov_b32 s63, 0
    s_getreg_b32 s61, hwreg(HW_REG_XCC_ID, 0, 4)
    s_setprio 3
    s_branch L_xc_c
    L_xc:
    {xcload}
    s_add_u32 s63, s63, 1
    s_cmp_gt_u32 s63, {SPIN_MAX}
    s_cbranch_scc1 L_xc_x
    s_waitcnt vmcnt(0)
    L_xc_c:
    v_cmp_ne_u32 vcc, {sTAG}, v194
    s_cbranch_vccnz L_xc
    L_xc_x:
    v_cmp_ne_u32 vcc, s61, v195
    s_nop 3
    s_cmp_eq_u64 vcc, 0
    s_cselect_b32 s101, {0 if o.get('nofast') else 1}, 0
    """)
    nst = [0]
    def hstore(ins):
        nst[0] += 1
        a(f"s_cbranch_scc1 L_hs{nst[0]}a\n{ins} sc1\ns_branch L_hs{nst[0]}b\nL_hs{nst[0]}a:\n{ins}\nL_hs{nst[0]}b:")
    stamp(4)
    def hst(mt, nt):
        b = ACC(mt, nt)
        for r in range(16): a(f"v_max_f32 v{b+r}, 0, v{b+r}")
        for r in range(8): a(f"v_pk_mul_f32 {vr(b+2*r,2)}, {vr(b+2*r,2)}, {vr(b+2*r,2)}")
        for r in range(8): a(f"v_cvt_pk_bf16_f32 v{b+r}, v{b+2*r}, v{b+2*r+1}")
        so = "s25" if nt else "s24"
        st = hstore if o.get("hpre") else (lambda ins: a(ins + " sc1"))
        a("s_cmp_eq_u32 s101, 1")
        st(f"buffer_store_dwordx4 {vr(b,4)}, v166, {srd(SWS)}, {so} offen offset:{2048*mt}")
        st(f"buffer_store_dwordx4 {vr(b+4,4)}, v166, {srd(SWS)}, {so} offen offset:{2048*mt+1024}")
    hst(0, 0); hst(0, 1)
    a(f"s_cmp_eq_u32 {gw}, 3\ns_cbranch_scc1 L_gate")
    hst(1, 0); hst(1, 1)
    a(f"""
    s_branch L_gated
    L_gate:
    v_mul_f32 v16, {0x80000000 | LOG2E}, v16
    v_mul_f32 v48, {0x80000000 | LOG2E}, v48
    v_exp_f32 v16, v16
    v_exp_f32 v48, v48
    s_nop 0
    v_add_f32 v16, 1.0, v16
    v_add_f32 v48, 1.0, v48
    v_rcp_f32 v16, v16
    v_rcp_f32 v48, v48
    s_nop 1
    ds_write_b32 v192, v16
    ds_write_b32 v192, v48 offset:128
    L_gated:
    s_mov_b64 exec, 1
    ds_add_u32 v177, v167 offset:16
    s_mov_b64 exec, -1
    """)
    def fin(B, sfx, first):
        a(f"""
        s_mov_b32 s63, 0
        L_fw{sfx}:
        ds_read_b32 v{B}, v176
        s_add_u32 s63, s63, 1
        s_cmp_gt_u32 s63, {SPIN_MAX}
        s_cbranch_scc1 L_fw{sfx}_x
        s_waitcnt lgkmcnt(0)
        v_cmp_ne_u32 vcc, {sTAG}, v{B}
        s_cbranch_vccz L_fw{sfx}_x
        s_sleep 3
        s_branch L_fw{sfx}
        L_fw{sfx}_x:
        ds_read2st64_b32 {vr(B+32,2)}, v181 offset0:32 offset1:33
        ds_read2st64_b32 {vr(B+34,2)}, v181 offset0:34 offset1:35
        """)
        for w in range(4):
            for r in range(4): a(f"ds_read2st64_b32 {vr(B+8*w+2*r,2)}, v181 offset0:{8*r+w} offset1:{8*r+4+w}")
        a(f"s_cmp_eq_u32 s58, 1\ns_waitcnt lgkmcnt(8)\nv_pk_add_f32 {vr(B+32,2)}, {vr(B+32,2)}, {vr(B+34,2)}")
        for r in range(4): a(f"v_pk_add_f32 {vr(B+2*r,2)}, {vr(B+2*r,2)}, {vr(B+8+2*r,2)}")
        a(f"v_add_f32 v{B+32}, v{B+32}, v{B+33}\ns_waitcnt lgkmcnt(0)")
        for r in range(4): a(f"v_pk_add_f32 {vr(B+16+2*r,2)}, {vr(B+16+2*r,2)}, {vr(B+24+2*r,2)}")
        a(f"v_rcp_f32 v{B+32}, v{B+32}")
        for r in range(4): a(f"v_pk_add_f32 {vr(B+2*r,2)}, {vr(B+2*r,2)}, {vr(B+16+2*r,2)}")
        a(f"v_mul_f32 v{B+32}, v{B+32}, v164")
        for r in range(4): a(f"v_pk_mul_f32 {vr(B+2*r,2)}, {vr(B+2*r,2)}, {vr(B+32,2)} op_sel_hi:[1,0]")
        for r in range(4): a(f"v_cvt_pk_bf16_f32 v{B+r}, v{B+2*r}, v{B+2*r+1}")
        for r in range(4): a(f"v_min_u32 v{B+r}, -2, v{B+r}")
        ins = f"buffer_store_dwordx4 {vr(B,4)}, v166, {srd(SWS)}, {'s8' if first else 's4'} offen"
        if first: a(ins + " sc1")
        else: hstore(ins)
        if first:
            a(f"""
            s_or_b32 s55, s2, {gw}
            s_cbranch_scc1 L_noep
            v_mov_b32 v{B+33}, {sTAG}
            s_mov_b64 exec, 1
            buffer_store_dword v{B+33}, off, {srd(SWS)}, 0 sc1
            s_mov_b64 exec, -1
            L_noep:
            """)
        else: a("s_nop 0")
    def flag_wait(lbl, vaddr, soff, sleep=2):
        a(f"""
        s_mov_b32 s63, 0
        {lbl}:
        buffer_load_dword v178, {vaddr}, {srd(SWS)}, {soff} offen sc1
        s_add_u32 s63, s63, 1
        s_cmp_gt_u32 s63, {SPIN_MAX}
        s_cbranch_scc1 {lbl}_x
        s_waitcnt vmcnt(0)
        v_cmp_ne_u32 vcc, {sTAG}, v178
        s_cbranch_vccz {lbl}_x
        s_sleep {sleep}
        s_branch {lbl}
        {lbl}_x:
        """)
    a(f"""
    v_mov_b32 v129, {sTAG}
    s_cmp_eq_u32 s101, 1
    s_mov_b64 exec, 1
    s_waitcnt vmcnt(0)
    """)
    hstore(f"buffer_store_dword v129, off, {srd(SWS)}, s26")
    a("s_mov_b64 exec, -1")
    stamp(5)
    lds_wait("L_gs1", "v177", 16, "4")
    a("ds_read_b32 v164, v192\nds_read_b32 v165, v192 offset:128")
    flag_wait("L_hw", "v180", "s27")
    a("v_mov_b32 v180, v193")
    stamp(6)
    a(f"""
    s_setprio 0
    s_mul_i32 s60, s6, 7168
    s_add_u32 s60, s60, s5
    s_add_u32 s61, s60, {112*1024}
    """)
    vm = VM()
    def hA(k): vm.op(f"buffer_load_dwordx4 {vr(64+8*(k%7),4)}, v166, {srd(SWS)}, s60 offen sc1", ("h", k)); a("s_add_u32 s60, s60, 1024")
    def hB(k): vm.op(f"buffer_load_dwordx4 {vr(68+8*(k%7),4)}, v166, {srd(SWS)}, s61 offen sc1", ("h", k)); a("s_add_u32 s61, s61, 1024")
    for k in range(7): hA(k); hB(k)
    def f2reads(k):
        ab = 120 + 8*(k & 1); slot = k % 7
        return (f"ds_read_b64_tr_b16 {vr(ab,2)}, v146 offset:{2048*slot}\nds_read_b64_tr_b16 {vr(ab+2,2)}, v146 offset:{2048*slot+1024}\n"
                f"ds_read_b64_tr_b16 {vr(ab+4,2)}, v147 offset:{2048*slot}\nds_read_b64_tr_b16 {vr(ab+6,2)}, v147 offset:{2048*slot+1024}")
    a(f2reads(0))
    for k in range(28):
        u = k % 7
        if u == 0 and k < 21: a(f"s_add_u32 s6, s6, 1\ns_and_b32 s6, s6, 3\ns_mul_i32 s54, s6, {7*16384}\ns_add_u32 s54, s54, s4\ns_mul_i32 s60, s6, 7168\ns_add_u32 s60, s60, s5\ns_add_u32 s61, s60, {112*1024}")
        if k == 21: a("s_mov_b32 s54, s7\ns_mov_b32 s60, s10\ns_mov_b32 s61, s65")
        if k == int(o.get("fink", 16)):
            a(f"s_setprio 3\nv_subrev_u32 v168, {OACC - X_}, v190\nv_subrev_u32 v169, {OACC - X_}, v191\nv_mov_b32 v170, v198")
            fin(196, "m", True)
            a("s_setprio 0")
        ab = 120 + 8*(k & 1); bb = 64 + 8*u
        need = [("h", k)] + ([("w", k+1)] if 7 <= k+1 < 28 else [])
        a(f"s_waitcnt vmcnt({vm.n(*need)}) lgkmcnt(0)")
        mf(0, 0, ab, bb, k == 0)
        if k < 27: a(f2reads(k+1))
        mf(1, 0, ab+4, bb, k == 0)
        if k < 25: hA(k+7)
        a(f"s_add_u32 m0, s49, {2048*u}")
        mf(0, 1, ab, bb+4, k == 0)
        sr = srd(SW2 if k < 21 else SWO)
        vm.op(f"buffer_load_dwordx4 v150, {sr}, s54 offen lds", ("w", k+7))
        vm.op(f"buffer_load_dwordx4 v151, {sr}, s54 offen offset:1024 lds", ("w", k+7))
        a("s_add_u32 s54, s54, 16384")
        mf(1, 1, ab+4, bb+4, k == 0)
        if k < 25: hB(k+7)
        if k == 0:
            a(f"s_cmp_eq_u32 {gw}, 3\ns_cbranch_scc0 L_nb2")
            for nt in range(2):
                mf(0, nt, 168, 160); mf(1, nt, 172, 160)
            a("L_nb2:")
    a("s_setprio 3")
    stamp(7)
    def cnt_add(off): a(f"s_mov_b64 exec, 1\nds_add_u32 v177, v167 offset:{off}\ns_mov_b64 exec, -1")
    a("v_sub_f32 v182, 1.0, v164\nv_sub_f32 v184, 1.0, v165\nv_mov_b32 v164, v165\ns_waitcnt vmcnt(0) lgkmcnt(0)")
    cnt_add(20)
    WOF = lambda i, mt: 192 + 8*i + 4*mt if (i, mt) != (7, 1) else 136
    for i in range(8):
        for mt in range(2):
            for e in range(2): a(f"ds_read_b64_tr_b16 {vr(WOF(i,mt)+2*e,2)}, v{146+mt} offset:{2048*i+1024*e}")
    for r in range(16): a(f"v_pk_mul_f32 {vr(2*r,2)}, {vr(2*r,2)}, v[182:183] op_sel_hi:[1,0]")
    for r in range(16, 32): a(f"v_pk_mul_f32 {vr(2*r,2)}, {vr(2*r,2)}, v[184:185] op_sel_hi:[1,0]")
    OF = lambda jj, sl: 64 + 8*sl + 4*jj
    def oload(jj, sl): return f"buffer_load_dwordx4 {vr(OF(jj, sl),4)}, v166, {srd(SWS)}, {('s10', 's65', 's8', 's9')[jj + 2*(sl >> 2)]} offen offset:{1024*(sl&3)} sc1"
    def ofrags(lbl, loads, regs, sleep, pre=False):
        n = len(loads)
        a("s_mov_b32 s63, 0")
        if pre: a(f"s_branch {lbl}_c")
        a(f"{lbl}:")
        a("\n".join(loads))
        a(f"s_add_u32 s63, s63, 1\ns_cmp_gt_u32 s63, {SPIN_MAX}\ns_cbranch_scc1 {lbl}_x\n{lbl}_c:")
        for i in range(n):
            r = regs[i]
            a(f"s_waitcnt vmcnt({n-1-i})")
            if not o.get("chk4"):
                a(f"v_max_u32 v178, v{r}, v{r+2}" if i == 0 else f"v_max3_u32 v178, v178, v{r}, v{r+2}")
            elif i == 0: a(f"v_max3_u32 v178, v{r}, v{r+1}, v{r+2}\nv_max_u32 v178, v178, v{r+3}")
            else: a(f"v_max3_u32 v178, v178, v{r}, v{r+1}\nv_max3_u32 v178, v178, v{r+2}, v{r+3}")
        a(f"v_cmp_eq_u32 vcc, -1, v178\ns_cbranch_vccz {lbl}_x")
        if sleep: a(f"s_sleep {sleep}")
        a(f"s_branch {lbl}\n{lbl}_x:\ns_waitcnt vmcnt(0)")
    def wo_stage(lbl, nt, sls, sleep, pre):
        ks = [(jj, sl) for sl in sls for jj in range(2)]
        ofrags(lbl, [oload(*k) for k in ks], [OF(*k) for k in ks], sleep, pre)
        a("s_waitcnt lgkmcnt(0)\ns_setprio 0")
        for jj, sl in ks:
            i = 4*jj + (sl & 3)
            mf(0, nt, WOF(i, 0), OF(jj, sl)); mf(1, nt, WOF(i, 1), OF(jj, sl))
        a("s_setprio 3")
    stamp(8)
    wo_stage("L_o0", 0, range(4), 4, True)
    stamp(9)
    a(f"s_add_u32 s4, s8, 4096\ns_add_u32 s8, s10, 4096\ns_add_u32 s9, s65, 4096\nv_add_u32 v176, s32, v176\nv_add_u32 v181, s32, v181")
    a(f"s_mul_i32 s5, {gw}, {SLOT}\ns_cmp_lt_u32 {gw}, 2\ns_cselect_b32 s6, {OACC + 2*SLOT - X_}, 0\ns_add_u32 s5, s5, s6\ns_sub_u32 s5, s49, s5\ns_add_u32 s5, s5, {8192 + 2*SLOT - X_}")
    for mt in range(2):
        for i in range(4): a(f"ds_write_b128 v{186+i}, {vr(16*mt+4*i,4)} offset:{128*mt}")
    cnt_add(28)
    lds_wait("L_w1", "v177", 20, "4")
    FA = lambda s_, ct: (120 + 8*s_ + 4*ct) if s_ < 2 else (148 + 8*(s_-2) + 4*ct)
    for s_ in range(4):
        for ct in range(2):
            for e in range(2): a(f"ds_read_b64_tr_b16 {vr(FA(s_,ct)+2*e,2)}, v253 offset:{16384*s_+1024*e+32*ct}")
    cnt_add(24)
    a(f"s_cmp_lt_u32 {gw}, 2\ns_cbranch_scc0 L_nf\ns_mov_b32 s58, {0 if int(o.get('osc', 3)) >= 5 else 's101'}\ns_call_b64 s[14:15], L_fin\nL_nf:")
    lds_wait("L_rw", "v177", 28, "4", 1)
    for p in range(4):
        a(f"ds_read_b128 {vr(8*p,4)}, v{190 if p < 2 else 168} offset:{SLOT*(p&1)}\nds_read_b128 {vr(4+8*p,4)}, v{191 if p < 2 else 169} offset:{SLOT*(p&1)}")
    for i in range(4): a(f"v_add_u32 v{186+i}, s5, v{186+i}")
    a("s_waitcnt lgkmcnt(4)")
    for r in range(4): a(f"v_pk_add_f32 {vr(2*r,2)}, {vr(2*r,2)}, {vr(8+2*r,2)}")
    a("s_waitcnt lgkmcnt(0)")
    for r in range(4): a(f"v_pk_add_f32 {vr(16+2*r,2)}, {vr(16+2*r,2)}, {vr(24+2*r,2)}")
    for r in range(4): a(f"v_pk_add_f32 {vr(2*r,2)}, {vr(2*r,2)}, {vr(16+2*r,2)}")
    for r in range(4): a(f"v_cvt_pk_bf16_f32 v{172+r}, v{2*r}, v{2*r+1}")
    if int(o.get("oearly", 2)) == 2: a(f"buffer_store_dwordx4 v[172:175], v179, {srd(SOUT)}, s33 offen {o.get('ost0', 'sc1')}")
    stamp(10)
    wo_stage("L_o1", 1, (4, 5), 4, False)
    a(f"s_cmp_eq_u32 {gw}, 2\ns_cbranch_scc0 L_nf1\ns_mov_b32 s58, {0 if int(o.get('osc', 3)) >= 6 else 's101'}\ns_call_b64 s[14:15], L_fin\nL_nf1:")
    stamp(11)
    wo_stage("L_o1b", 1, (6,), 4, False)
    a("s_add_u32 s65, s11, 32768")
    fl = [f"buffer_load_dwordx4 {vr(108+0,4)}, v252, {srd(SWS)}, s11 offen sc1", f"buffer_load_dwordx4 {vr(104,4)}, v254, {srd(SWS)}, s11 offen sc1",
          f"buffer_load_dwordx4 {vr(100,4)}, v252, {srd(SWS)}, s65 offen sc1", f"buffer_load_dwordx4 {vr(140,4)}, v254, {srd(SWS)}, s65 offen sc1"]
    fr = [108, 104, 100, 140]
    if not o.get("nowarm"): a("\n".join(fl))
    lds_wait("L_w2", "v177", 24, "4")
    a("s_nop 2")
    for mt in range(2):
        for i in range(4): a(f"ds_write_b128 v{186+i}, {vr(32+16*mt+4*i,4)} offset:{128*mt}")
    cnt_add(32)
    lds_wait("L_rw1", "v177", 32, "4", 1)
    for p in range(4):
        a(f"ds_read_b128 {vr(64+8*p,4)}, v183 offset:{16384*p}\nds_read_b128 {vr(68+8*p,4)}, v185 offset:{16384*p}")
    a("s_waitcnt lgkmcnt(4)")
    for r in range(4): a(f"v_pk_add_f32 {vr(64+2*r,2)}, {vr(64+2*r,2)}, {vr(72+2*r,2)}")
    a("s_waitcnt lgkmcnt(0)")
    for r in range(4): a(f"v_pk_add_f32 {vr(80+2*r,2)}, {vr(80+2*r,2)}, {vr(88+2*r,2)}")
    for r in range(4): a(f"v_pk_add_f32 {vr(2*r,2)}, {vr(64+2*r,2)}, {vr(80+2*r,2)}")
    if int(o.get("oearly", 2)) == 1: a(f"buffer_store_dwordx4 v[172:175], v179, {srd(SOUT)}, s33 offen {o.get('ost0', 'sc1')}")
    stamp(12)
    if not o.get("narrow"):
        a(f"""
        v_add_u32 v171, {X_ + 5*SLOT}, v166
        s_cmp_eq_u32 {gw}, 3
        s_barrier
        s_cbranch_scc0 L_nf2
        ds_read2st64_b32 v[96:97], v170 offset0:32 offset1:33
        ds_read2st64_b32 v[98:99], v170 offset0:34 offset1:35
        """)
        for w in range(4): a(f"ds_read_b128 {vr(64+8*w,4)}, v171 offset:{1024*w}\nds_read_b128 {vr(68+8*w,4)}, v171 offset:{1024*w+4096}")
        a("s_cmp_eq_u32 s101, 1\ns_waitcnt lgkmcnt(8)\nv_pk_add_f32 v[96:97], v[96:97], v[98:99]\ns_waitcnt lgkmcnt(4)\nv_add_f32 v96, v96, v97")
        for r in range(4): a(f"v_pk_add_f32 {vr(64+2*r,2)}, {vr(64+2*r,2)}, {vr(72+2*r,2)}")
        a("v_rcp_f32 v96, v96\ns_waitcnt lgkmcnt(0)")
        for r in range(4): a(f"v_pk_add_f32 {vr(80+2*r,2)}, {vr(80+2*r,2)}, {vr(88+2*r,2)}")
        a("v_mul_f32 v96, v96, v164")
        for r in range(4): a(f"v_pk_add_f32 {vr(64+2*r,2)}, {vr(64+2*r,2)}, {vr(80+2*r,2)}")
        for r in range(4): a(f"v_pk_mul_f32 {vr(64+2*r,2)}, {vr(64+2*r,2)}, v[96:97] op_sel_hi:[1,0]")
        for r in range(4): a(f"v_cvt_pk_bf16_f32 v{64+r}, v{64+2*r}, v{65+2*r}")
        for r in range(4): a(f"v_min_u32 v{64+r}, -2, v{64+r}")
        hstore(f"buffer_store_dwordx4 v[64:67], v166, {srd(SWS)}, s4 offen")
        a("L_nf2:")
    elif not o.get("fin4"):
        a(f"s_mov_b32 s58, s101\ns_barrier\ns_cmp_eq_u32 {gw}, 3\ns_cbranch_scc0 L_nf2\ns_call_b64 s[14:15], L_fwf_x\nL_nf2:")
    else:
        a(f"""
    s_lshl_b32 s60, {gw}, 10
    s_sub_u32 s4, s4, s60
    s_lshl2_add_u32 s4, {gw}, s4
    s_add_u32 s4, s4, 3072
    s_cmp_eq_u32 s101, 1
    s_barrier
    ds_read2st64_b32 v[72:73], v170 offset0:32 offset1:33
    ds_read2st64_b32 v[74:75], v170 offset0:34 offset1:35
    ds_read2st64_b32 v[64:65], v171 offset0:0 offset1:4
    ds_read2st64_b32 v[66:67], v171 offset0:1 offset1:5
    ds_read2st64_b32 v[68:69], v171 offset0:2 offset1:6
    ds_read2st64_b32 v[70:71], v171 offset0:3 offset1:7
    s_waitcnt lgkmcnt(4)
    v_pk_add_f32 v[72:73], v[72:73], v[74:75]
    s_waitcnt lgkmcnt(2)
    v_pk_add_f32 v[64:65], v[64:65], v[66:67]
    v_add_f32 v72, v72, v73
    s_waitcnt lgkmcnt(0)
    v_pk_add_f32 v[68:69], v[68:69], v[70:71]
    v_rcp_f32 v72, v72
    v_pk_add_f32 v[64:65], v[64:65], v[68:69]
    v_mul_f32 v72, v72, v164
    v_pk_mul_f32 v[64:65], v[64:65], v[72:73] op_sel_hi:[1,0]
    v_cvt_pk_bf16_f32 v64, v64, v65
    v_min_u32 v64, -2, v64
        """)
        hstore(f"buffer_store_dword v64, v166, {srd(SWS)}, s4 offen")
    stamp(13)
    ofrags("L_o2", fl, fr, 0)
    stamp(14)
    if int(o.get("oearly", 2)) == 0: a(f"buffer_store_dwordx4 v[172:175], v179, {srd(SOUT)}, s33 offen {o.get('ost0', 'sc1')}")
    for s_ in range(4):
        for ct in range(2): a(f"v_mfma_f32_16x16x32_bf16 {vr(4*ct,4)}, {vr(FA(s_,ct),4)}, {vr(fr[s_],4)}, {vr(4*ct,4)}")
    a("""
    s_nop 6
    v_cvt_pk_bf16_f32 v8, v0, v1
    v_cvt_pk_bf16_f32 v9, v2, v3
    v_cvt_pk_bf16_f32 v10, v4, v5
    v_cvt_pk_bf16_f32 v11, v6, v7
    s_nop 1
    v_permlane16_swap_b32 v8, v10
    v_permlane16_swap_b32 v9, v11
    """)
    a(f"buffer_store_dwordx4 v[8:11], v180, {srd(SOUT)}, s34 offen {o.get('ost1', '')}")
    stamp(15)
    a("s_branch L_gend")
    if not o.get("g6l"): a("L_gsetupx:\ns_mov_b32 s55, s38\ns_call_b64 s[38:39], L_gsetup\ns_call_b64 s[38:39], L_gsetup2\ns_mov_b32 s38, s55\ns_mov_b32 s39, 0x00020000\ns_setpc_b64 s[58:59]")
    a("L_gsetup:")
    gsetup1()
    a("s_setpc_b64 s[38:39]\nL_gsetup2:")
    gsetup2(True)
    a("L_gsx:\ns_setpc_b64 s[38:39]")
    a("L_fin:")
    fin(64, "f", False)
    a("s_setpc_b64 s[14:15]\nL_gend:")
    if diag: a(f"s_add_u32 {sW}, {sW}, 4")
    diag_out("g")
    a("L_end:\ns_endpgm")

    hdr = open(os.path.join(os.path.dirname(os.path.abspath(__file__)), "..", "cdna_kernels", NAME + ".s.ref")).read().split("\n")
    i0 = next(i for i, l in enumerate(hdr) if l.startswith("; Override"))
    head = "\n".join(hdr[:i0]) + f"\n; @launch grid=(256,1,1) block=(512,1,1) lds={LDS_BYTES}\n"
    head += DOC
    return head + f""".amdgcn_target "amdgcn-amd-amdhsa--gfx950"
.text
.globl {NAME}_kernel
.p2align 8
.type {NAME}_kernel,@function
{NAME}_kernel:
{a.text()}.section .rodata,"a"
.p2align 6
.amdhsa_kernel {NAME}_kernel
  .amdhsa_next_free_vgpr 256
  .amdhsa_next_free_sgpr 102
  .amdhsa_accum_offset 256
  .amdhsa_group_segment_fixed_size 0
  .amdhsa_kernarg_size 112
  .amdhsa_user_sgpr_count 2
  .amdhsa_user_sgpr_kernarg_segment_ptr 1
  .amdhsa_system_sgpr_workgroup_id_x 1
.end_amdhsa_kernel
"""

if __name__ == "__main__":
    out = sys.argv[1] if len(sys.argv) > 1 else os.path.join(os.path.dirname(os.path.abspath(__file__)), "..", "cdna_kernels", NAME + ".s")
    opts = dict(x.split("=") if "=" in x else (x, 1) for x in sys.argv[2:])
    open(out, "w").write(gen(diag=bool(opts.pop("diag", 0)), opts=opts))
```

```python
import sys, os
NAME = "gated_mix__grouped_kv_mqa__dense_activation_squared_relu__prompt"

class Asm:
    def __init__(self): self.l = []
    def __call__(self, s):
        for x in s.strip("\n").split("\n"):
            x = x.strip()
            if not x: continue
            self.l.append(x if x.endswith(":") else "    " + x)
    def text(self): return "\n".join(self.l) + "\n"

def vr(a, n): return f"v[{a}:{a+n-1}]"

X_ = 0; W_ = 65536; S_ = 131072
OACC = S_; SLOT = 10240
QF = S_ + 2*SLOT
MISC = QF + 8192
M_G = MISC
M_QMAX = MISC + 256
M_KMAX = MISC + 260
M_CNTA = MISC + 264
M_CNTG = MISC + 272
M_CNTS = MISC + 320
M_M = MISC + 1024
M_GATE = MISC + 2048
M_TAG = MISC + 3072
M_Q0 = MISC + 352
M_GO = MISC + 356
M_B1 = MISC + 3136
M_B2 = MISC + 3584
LDS_BYTES = 163840
WS_EPOCH = 0
WS_KVF = 0x1000
WS_KVF1 = 0x4000
WS_HF = 0x10000
WS_OF = 0x40000
WS_K = 0x80000
WS_V = 0x90000
WS_O = 0x100000
WS_H = 0x400000
WS_DIAG = 0xC00000
WS_SIZE = 0x1000000
SX, SWQ, SWKV, SWO, SW1, SB1, SW2, SB2, SGT, SOUT, SWS, SH = 4, 8, 12, 16, 20, 24, 28, 32, 36, 40, 44, 56
def srd(b): return f"s[{b}:{b+3}]"
sW, sGRP, sJ, sTAG, sC0 = "s50", "s51", "s52", "s53", "s3"
QSCALE = 0x3eb8aa3b
LOG2E = 0x3fb8aa3b
SPIN_MAX = 1000000

DOC = """;
;                   8 query tiles (32 rows x 1 head) over them; partial sums go to LDS.
; workgroup takes L_slowgo, which subtracts the true row maximum over all 2048 keys.
; Hand-offs between workgroups go through d_ws. Flags carry a tag derived from a word of d_ws that one workgroup
"""

def gen(diag=False, opts=None):
    o = dict(opts or {})
    a = Asm()
    nstamp = [0]
    rt = o.get("rt") or o.get("enc")
    def xtouch(i0):
        if o.get("nopf") or o.get("vt") or o.get("lt"): return ""
        return f"s_mul_i32 s59, s2, 7168\ns_add_u32 s36, s{SW2}, s59\ns_addc_u32 s37, s{SW2+1}, 0\n" + "\n".join(f"s_load_dword s56, s[36:37], {64*i}" for i in range(i0, i0+7)) + "\n"
    inG = [False]
    gsetup_s = f"""
    s_load_dwordx2 s[{SW1}:{SW1+1}], s[0:1], 48
    s_load_dwordx2 s[{SWO}:{SWO+1}], s[0:1], 32
    s_load_dwordx2 s[{SW2}:{SW2+1}], s[0:1], 64
    s_load_dwordx2 s[{SOUT}:{SOUT+1}], s[0:1], 88
    s_mov_b32 s{SW1+2}, 1835008
    s_mov_b32 s{SW1+3}, 0x00020000
    s_mov_b32 s{SWO+2}, 524288
    s_mov_b32 s{SWO+3}, 0x00020000
    s_mov_b32 s{SW2+2}, 1835008
    s_mov_b32 s{SW2+3}, 0x00020000
    s_mov_b32 s{SOUT+2}, 2097152
    s_mov_b32 s{SOUT+3}, 0x00020000
    """
    def cnt_dbg(off):
        if not o.get("cnt"): return ""
        return f"s_load_dwordx2 s[16:17], s[0:1], 96\ns_mov_b32 s18, 256\ns_mov_b32 s19, 0x00020000\nv_mov_b32 v253, 1\ns_waitcnt lgkmcnt(0)\ns_mov_b64 exec, 1\nbuffer_atomic_add v253, off, s[16:19], 0 offset:{off} sc1\ns_mov_b64 exec, -1"
    def hstamp(i):
        if diag and o.get("hd"): a(f"s_memtime s[{68+2*i}:{69+2*i}]")
    def stamp(i):
        if o.get("lite"):
            if i in (6, 15) or (i == 8 and not inG[0]): a(f"s_memrealtime s[{68+2*i}:{69+2*i}]")
            return
        if diag and not (o.get("hd") and i > 8):
            a(f"{'s_memrealtime' if rt else 's_memtime'} s[{68+2*i}:{69+2*i}]")
    def diag_out(lbl):
        if diag and o.get("enc"):
            role, st = o["enc"][0], int(o["enc"][1:])
            wv = {"a": int(o.get("wv", 0)), "g": 7}[role]
            if lbl == role:
                a(f"s_cmp_lg_u32 s2, 0\ns_cbranch_scc1 L_encx{lbl}\ns_cmp_lg_u32 {sW}, {wv}\ns_cbranch_scc1 L_encx{lbl}\ns_waitcnt lgkmcnt(0)")
                if o.get("cnt"): a(f"s_load_dwordx2 s[16:17], s[0:1], 96\ns_mov_b32 s18, 256\ns_mov_b32 s19, 0x00020000\ns_waitcnt lgkmcnt(0)\nbuffer_load_dword v1, off, s[16:19], 0 offset:{4*int(o['cnt'])-4} sc1\ns_waitcnt vmcnt(0)\nv_readfirstlane_b32 s60, v1\ns_nop 3\ns_mul_i32 s60, s60, 10")
                elif st < 16: a(f"s_sub_u32 s60, s{68+2*st}, s66\ns_lshl_b32 s60, s60, 4")
                else: a("s_mov_b32 s60, 0")
                a(f"s_add_u32 s60, s60, 5000\nL_enc{lbl}:\ns_sleep 4\ns_memrealtime s[62:63]\ns_waitcnt lgkmcnt(0)\ns_sub_u32 s62, s62, s66\ns_cmp_lt_u32 s62, s60\ns_cbranch_scc1 L_enc{lbl}\nL_encx{lbl}:")
        elif diag and rt:
            idx = {"a": [(1, 1), (2, 2), (4, 3), (5, 4), (6, 5), (7, 6), (8, 7)], "s": [], "g": [(2, 8), (3, 9), (4, 10), (6, 11), (7, 12), (15, 13), (9, 14), (11, 15)]}[lbl]
            a("s_load_dwordx2 s[60:61], s[0:1], 96\ns_mov_b32 s62, 256\ns_mov_b32 s63, 0x00020000\ns_waitcnt vmcnt(0) lgkmcnt(0)\ns_mov_b64 exec, 1")
            a("s_not_b32 s66, s66\nv_mov_b32 v1, s66\nbuffer_atomic_umax v1, off, s[60:63], 0\ns_nop 1")
            for st, d in idx:
                a(f"v_mov_b32 v1, s{68+2*st}\nbuffer_atomic_umax v1, off, s[60:63], 0 offset:{4*d}\ns_nop 1")
            a("s_waitcnt vmcnt(0)")
        elif diag:
            a(f"s_lshl_b32 s60, s2, 3\ns_add_u32 s60, s60, {sW}\ns_lshl_b32 s60, s60, 7\ns_add_u32 s60, s60, {WS_DIAG}")
            a("s_waitcnt vmcnt(0) lgkmcnt(0)\ns_mov_b64 exec, 1")
            for i in range(17):
                a(f"v_mov_b32 v1, s{66+2*i}\nbuffer_store_dword v1, off, {srd(SWS)}, s60 offset:{4*i}\ns_nop 1")
            a("s_waitcnt vmcnt(0)")

    L = "v255"
    def tr_addr(dst, hmul, t0=1, t1=2):
        a(f"""
        v_lshrrev_b32 v{t0}, 5, {L}
        v_bfe_u32 v{t1}, {L}, 2, 2
        v_mad_u32_u24 v{t0}, v{t0}, {hmul}, v{t1}
        v_lshlrev_b32 v{t0}, 7, v{t0}
        v_bfe_u32 v{t1}, {L}, 3, 1
        v_lshl_or_b32 v{t0}, v{t1}, 6, v{t0}
        v_bfe_u32 v{t1}, {L}, 4, 1
        v_lshl_or_b32 v{t0}, v{t1}, 5, v{t0}
        v_and_b32 v{t1}, 3, {L}
        v_lshl_or_b32 v{dst}, v{t1}, 3, v{t0}
        """)
    def gsetup1():
        a(f"""
        s_sub_u32 s101, {sW}, 4
        s_lshr_b32 s48, {sJ}, 1
        s_mul_i32 s48, s48, 7
        s_and_b32 s63, {sJ}, 1
        s_lshl_b32 s62, s63, 2
        s_add_u32 s62, s62, s101
        s_cmp_eq_u32 s101, 3
        s_cselect_b32 s62, 3, s62
        s_cselect_b32 s63, s63, 0
        s_add_u32 s48, s48, s62
        s_lshl_b32 s48, s48, 1
        s_add_u32 s48, s48, s63
        s_lshl_b32 s100, s48, 6
        s_mul_i32 s54, {sC0}, {128*3584}
        s_add_u32 s54, s54, s100
        s_lshl_b32 s49, s101, 14
        s_add_u32 s49, s49, {W_}
        v_lshrrev_b32 v14, 3, {L}
        v_and_b32 v15, 7, {L}
        v_bfe_u32 v3, {L}, 4, 1
        v_lshlrev_b32 v3, 2, v3
        v_xor_b32 v2, v3, v15
        v_lshlrev_b32 v2, 4, v2
        v_lshl_or_b32 v150, v14, 10, v2
        v_add_u32 v151, 7168, v150
        v_mul_u32_u24 v148, 3584, v14
        v_add_u32 v148, v148, v2
        v_add_u32 v149, {8*3584-1024}, v148
        v_lshlrev_b32 v180, 5, v15
        v_lshlrev_b32 v2, 1, v15
        v_xor_b32 v2, v14, v2
        v_lshlrev_b32 v2, 4, v2
        v_lshl_or_b32 v190, v14, 8, v2
        s_lshl_b32 s62, s101, 11
        s_add_u32 s62, s62, {OACC}
        v_add_u32 v190, s62, v190
        v_xor_b32 v191, 16, v190
        v_lshlrev_b32 v2, 4, v15
        v_lshl_or_b32 v179, v14, 10, v2
        v_and_b32 v1, 31, {L}
        v_lshrrev_b32 v14, 5, {L}
        v_xor_b32 v2, v14, v15
        v_lshlrev_b32 v2, 4, v2
        v_lshl_or_b32 v186, v1, 8, v2
        s_mul_i32 s62, {sJ}, 7
        s_sub_u32 s62, s48, s62
        s_lshl_b32 s62, s62, 6
        s_add_u32 s62, s62, {M_B1}
        v_lshlrev_b32 v13, 1, v1
        v_add_u32 v12, s62, v13
        v_add_u32 v13, {M_B2}, v13
        v_lshlrev_b32 v192, 2, v1
        v_add_u32 v192, {M_G}, v192
        v_and_b32 v3, 15, {L}
        v_xor_b32 v3, v14, v3
        v_lshlrev_b32 v3, 4, v3
        v_lshl_or_b32 v136, v1, 8, v3
        """)
        for k in range(1, 8): a(f"v_xor_b32 v{136+k}, {32*k}, v136")
        tr_addr(144, 8)
        a("v_add_u32 v144, s49, v144\nv_xor_b32 v145, 64, v144")
    def gsetup2(w7):
        tr_addr(146, 4)
        a("v_add_u32 v146, s49, v146\nv_xor_b32 v147, 64, v146")
        for r in (153, 154, 155, 157, 158, 159, 161, 162, 163, 169, 170, 171, 173, 174, 175): a(f"v_mov_b32 v{r}, 0")
        a(f"""
        v_cmp_gt_u32 vcc, 32, {L}
        v_mov_b32 v1, 0x3f80
        v_lshlrev_b32 v166, 4, {L}
        v_cndmask_b32 v160, 0, v1, vcc
        v_mov_b32 v167, 1
        v_mov_b32 v177, {M_CNTG}
        v_mov_b64 v[200:201], -1
        v_mov_b64 v[202:203], -1
        s_and_b32 s62, s101, 1
        s_lshr_b32 s63, s101, 1
        v_and_b32 v1, 15, {L}
        v_lshl_add_u32 v1, s62, 4, v1
        v_lshrrev_b32 v2, 4, {L}
        v_xor_b32 v3, v2, v15
        v_lshlrev_b32 v3, 4, v3
        v_lshl_or_b32 v3, v1, 8, v3
        s_lshl_b32 s62, s63, 7
        s_add_u32 s62, s62, {W_ + 8192}
        v_add_u32 v183, s62, v3
        v_xor_b32 v185, 64, v183
        ; v252/v254 = (g4>>1)*8192 + 16*(row + 32*(g4&1)) (+16384)
        v_and_b32 v3, 1, v2
        v_lshl_add_u32 v252, v3, 5, v1
        v_lshlrev_b32 v252, 4, v252
        v_lshl_add_u32 v252, v14, 13, v252
        v_add_u32 v254, 0x4000, v252
        v_lshlrev_b32 v193, 10, v1
        v_lshl_or_b32 v193, v3, 5, v193
        v_lshl_or_b32 v193, v14, 4, v193
        s_lshl_b32 s62, s63, 6
        v_add_u32 v193, s62, v193
        ; v253 = W + 2048*(4*(g4>>1)+3) + (4h + r')*128 + 16*((4ch + (c'>>1)) ^ 4*(r'>>1)) + 8*(c'&1)
        v_bfe_u32 v1, {L}, 2, 2
        v_lshl_or_b32 v1, v3, 2, v1
        v_lshlrev_b32 v1, 7, v1
        v_lshl_or_b32 v1, v14, 13, v1
        v_bfe_u32 v2, {L}, 3, 1
        v_xor_b32 v2, s63, v2
        v_lshl_or_b32 v1, v2, 6, v1
        v_and_b32 v2, 3, {L}
        v_lshl_or_b32 v1, v2, 3, v1
        v_add_u32 v253, {W_ + 6144}, v1
        v_lshlrev_b32 v196, 7, {L}
        v_lshlrev_b32 v198, 2, {L}
        v_add_u32 v198, {X_ + 5*SLOT}, v198
        s_lshl_b32 s62, s101, 11
        v_add_u32 v199, s62, v198
        s_mul_i32 s62, s101, {SLOT}
        s_add_u32 s63, s62, {OACC}
        s_sub_u32 s62, s62, {2*SLOT - X_}
        s_cmp_lt_u32 s101, 2
        s_cselect_b32 s62, s63, s62
        v_lshlrev_b32 v181, 2, {L}
        v_add_u32 v181, s62, v181
        v_add_u32 v186, s62, v186
        v_xor_b32 v187, 32, v186
        v_xor_b32 v188, 64, v186
        v_xor_b32 v189, 0x60, v186
        s_add_u32 s62, s62, {9216 + 252}
        v_lshl_add_u32 v176, v2, 8, s62
    """)
        if w7: a(f"""
        s_cmp_eq_u32 s101, 3
        s_cbranch_scc0 L_gsx
        v_bfe_u32 v2, {L}, 2, 2
        v_lshl_or_b32 v2, v14, 3, v2
        v_lshlrev_b32 v2, 6, v2
        v_bfe_u32 v3, {L}, 4, 1
        v_lshl_or_b32 v2, v3, 5, v2
        v_and_b32 v3, 3, {L}
        v_lshl_or_b32 v2, v3, 3, v2
        v_add_u32 v144, s49, v2
        v_lshlrev_b32 v145, 4, v14
        v_add_u32 v145, {M_GATE}, v145
        v_lshrrev_b32 v1, 2, {L}
        v_mul_u32_u24 v148, 3584, v1
        v_lshl_add_u32 v148, v3, 4, v148
        """)
    if diag: a("s_memrealtime s[66:67]\ns_memtime s[68:69]")
    a(f"""
    s_cmp_ge_u32 s2, 256
    s_cbranch_scc1 L_end
    s_load_dwordx4 s[{SWKV}:{SWKV+3}], s[0:1], 16
    s_load_dwordx2 s[{SX}:{SX+1}], s[0:1], 0
    s_load_dwordx2 s[{SWQ}:{SWQ+1}], s[0:1], 8
    s_load_dwordx2 s[{SWS}:{SWS+1}], s[0:1], 104
    s_getpc_b64 s[60:61]
    s_movk_i32 s62, {int(o.get('pf0', 6144))}
    s_mov_b32 s63, 0x00020000
    v_lshlrev_b32 v2, 7, v0
    v_lshrrev_b32 v1, 6, v0
    buffer_load_dword v197, v2, s[60:63], 0 offen
    v_and_b32 v255, 63, v0
    v_readfirstlane_b32 {sW}, v1
    s_and_b32 s54, s2, 7
    s_bfe_u32 {sJ}, s2, 0x30003
    s_lshr_b32 s55, s2, 6
    s_lshl2_add_u32 {sGRP}, s54, s55
    s_mov_b32 s{SX+2}, 2097152
    s_mov_b32 s{SX+3}, s63
    s_add_u32 {sC0}, s54, {sJ}
    s_and_b32 {sC0}, {sC0}, 3
    s_and_b32 s60, {sJ}, 3
    v_lshrrev_b32 v3, 4, {L}
    v_and_b32 v2, 15, {L}
    v_xor_b32 v12, v3, v2
    v_lshlrev_b32 v12, 4, v12
    v_lshl_or_b32 v4, v3, 10, v12
    v_xor_b32 v5, 64, v4
    v_add_u32 v5, 3072, v5
    v_xor_b32 v6, 0x80, v4
    v_add_u32 v6, 6144, v6
    v_xor_b32 v7, 0xc0, v4
    v_add_u32 v7, 9216, v7
    v_lshlrev_b32 v1, 4, {L}
    """)
    if diag:
        for i in (range(2, 17) if not o.get("lite") else ()): a(f"s_mov_b32 s{66+2*i}, 0")
    a(f"""
    s_cmp_eq_u32 {sW}, 7
    s_cbranch_scc0 L_nKV
    """)
    a(f"""
    s_setprio 3
    s_lshl2_add_u32 s64, {sGRP}, s60
    s_lshl_b32 s62, s64, 14
    s_lshl_b32 s65, s60, 12
    s_mov_b32 s61, {sC0}
    v_and_b32 v8, 1, v3
    v_lshlrev_b32 v8, 9, v8
    v_lshl_or_b32 v8, v2, 4, v8
    v_lshrrev_b32 v9, 1, v3
    v_lshl_or_b32 v8, v9, 3, v8
    v_mov_b64 v[10:11], -1
    s_lshr_b32 s54, s64, 1
    s_lshl_b32 s54, s54, 10
    s_and_b32 s55, s64, 1
    s_lshl_b32 s55, s55, 8
    s_add_u32 s54, s54, s55
    s_add_u32 s54, s54, {WS_K}
    s_add_u32 s55, s54, {WS_V - WS_K}
    s_mov_b32 s{SWS+2}, {WS_SIZE}
    s_mov_b32 s{SWS+3}, s63
    s_lshl3_add_u32 s57, {sGRP}, {sJ}
    s_lshl_b32 s57, s57, 5
    s_add_u32 s58, s57, {WS_KVF1}
    s_add_u32 s57, s57, {WS_KVF}
    s_cmp_lt_u32 {sJ}, 4
    s_cselect_b32 s54, s54, s55
    s_waitcnt lgkmcnt(0)
    buffer_store_dwordx2 v[10:11], v8, {srd(SWS)}, s54 offen sc1
    s_load_dword {sTAG}, s[{SWS}:{SWS+1}], 0
    s_load_dword s56, s[{SWS}:{SWS+1}], s57
    s_load_dword s56, s[{SWS}:{SWS+1}], s58
    s_cselect_b32 s{SWKV}, s{SWKV}, s{SWKV+2}
    s_cselect_b32 s{SWKV+1}, s{SWKV+1}, s{SWKV+3}
    s_movk_i32 s{SWKV+2}, 16384
    s_mov_b32 s{SWKV+3}, 0x00020000
    """)
    hstamp(9)
    for i in range(4):
        a(f"s_mov_b32 m0, {OACC + 4096*i}\ns_lshl_b32 s55, s61, 12")
        for q in range(4): a(f"buffer_load_dwordx4 v1, {srd(SWKV)}, s55 offen offset:{1024*q} lds")
        a(f"s_lshl_b32 s55, s61, 8\ns_add_u32 m0, s65, {X_ + 16384*i}\ns_add_u32 s55, s55, s62")
        for q in range(4): a(f"buffer_load_dwordx4 v{4+q}, {srd(SX)}, s55 offen offset:{1024*q} lds")
        if i < 3: a("s_add_u32 s61, s61, 1\ns_and_b32 s61, s61, 3")
        if i == int(o.get("b0", 3)): a("s_barrier")
    hstamp(11)
    a(f"""
    s_load_dwordx2 s[{SW2}:{SW2+1}], s[0:1], 48
    v_lshlrev_b32 v5, 8, v3
    v_lshl_or_b32 v5, v2, 3, v5
    v_add_u32 v5, {OACC}, v5
    v_lshl_or_b32 v12, v2, 8, v12
    v_add_u32 v12, s65, v12
    v_xor_b32 v13, 64, v12
    v_xor_b32 v14, 0x80, v12
    v_xor_b32 v15, 0xc0, v12
    v_mov_b32 v6, {M_TAG}
    s_getreg_b32 s61, hwreg(HW_REG_XCC_ID, 0, 4)
    v_mov_b32 v11, s61
    s_cmp_lt_u32 {sJ}, 4
    s_cselect_b32 s63, -1, 0
    """)
    def kvreads(s):
        if s & 3 == 0: a(f"s_waitcnt vmcnt({24 if s == 0 else 25 - 2*s})")
        if s == 0: stamp(1)
        a(f"ds_read_b64_tr_b16 {vr(128+4*s,2)}, v5 offset:{1024*s}\nds_read_b64_tr_b16 {vr(130+4*s,2)}, v5 offset:{1024*s+128}")
        a(f"ds_read_b128 {vr(64+4*s,4)}, v{12+(s&3)} offset:{16384*(s>>2)}")
    for s in range(4): kvreads(s)
    a(f"""
    s_waitcnt lgkmcnt(0)
    s_mul_i32 {sTAG}, {sTAG}, 0x9E3779B1
    s_add_u32 {sTAG}, {sTAG}, 0x7F4A7C15
    s_or_b32 {sTAG}, {sTAG}, 1
    s_cmp_lt_u32 {sJ}, 4
    v_mov_b32 v10, {sTAG}
    s_mov_b64 exec, 1
    buffer_store_dwordx2 v[10:11], off, {srd(SWS)}, s57 sc1
    ds_write_b32 v6, v10
    s_mov_b64 exec, -1
    s_cbranch_scc0 L_KVv
    """)
    for swap in range(2):
        for s in range(16):
            if s + 4 < 16: kvreads(s+4)
            a(f"s_waitcnt lgkmcnt({min(12, 3*(15-s))})")
            A_, B_ = (64+4*s, 128+4*s) if swap else (128+4*s, 64+4*s)
            a(f"v_mfma_f32_16x16x32_bf16 v[192:195], {vr(A_,4)}, {vr(B_,4)}, {'0' if s == 0 else 'v[192:195]'}")
        if not swap: a("s_branch L_KVd\nL_KVv:")
    a(f"""
    L_KVd:
    s_cmp_lt_u32 {sJ}, 4
    s_cselect_b32 s61, {QSCALE}, 1.0
    s_nop 5
    v_mul_f32 v192, s61, v192
    v_mul_f32 v193, s61, v193
    v_mul_f32 v194, s61, v194
    v_mul_f32 v195, s61, v195
    """)
    hstamp(12)
    a(f"""
    v_cvt_pk_bf16_f32 v196, v192, v193
    v_cvt_pk_bf16_f32 v197, v194, v195
    v_min_u32 v196, -2, v196
    v_min_u32 v197, -2, v197
    buffer_store_dwordx2 v[196:197], v8, {srd(SWS)}, s54 offen sc1
    {"" if not o.get("b1early") else "s_barrier"}
    v_mul_f32 v8, v192, v192
    v_fmac_f32 v8, v193, v193
    v_fmac_f32 v8, v194, v194
    v_fmac_f32 v8, v195, v195
    v_mov_b32 v9, v8
    s_nop 1
    v_permlane32_swap_b32 v8, v9
    v_add_f32 v8, v8, v9
    v_mov_b32 v9, v8
    s_nop 1
    v_permlane16_swap_b32 v8, v9
    v_add_f32 v8, v8, v9
    s_nop 1
    v_max_u32_dpp v8, v8, v8 row_ror:8 row_mask:0xf bank_mask:0xf
    s_nop 1
    v_max_u32_dpp v8, v8, v8 row_ror:4 row_mask:0xf bank_mask:0xf
    s_nop 1
    v_max_u32_dpp v8, v8, v8 row_ror:2 row_mask:0xf bank_mask:0xf
    s_nop 1
    v_max_u32_dpp v9, v8, v8 row_ror:1 row_mask:0xf bank_mask:0xf
    s_mov_b64 exec, 1
    v_and_b32 v11, s63, v9
    buffer_store_dwordx2 v[10:11], off, {srd(SWS)}, s58 sc1
    s_mov_b64 exec, -1
    s_setprio 0
    """)
    hstamp(13)
    a(("s_barrier\n" if not o.get("b1early") else "") + xtouch(105) + gsetup_s)
    stamp(2)
    a(f"""
    """)
    late = f"s_setprio {o.get('gprio', 1)}\ns_call_b64 s[38:39], L_gsetup\ns_call_b64 s[38:39], L_gsetup2\ns_branch L_Gjoin"
    a(f"""
    s_barrier
    s_barrier
    s_barrier
    s_barrier
    {late}
    """)

    a(f"""
    L_nKV:
    s_load_dwordx2 s[{SW2}:{SW2+1}], s[0:1], 48
    s_mov_b32 s{SWS+2}, {WS_SIZE}
    s_mov_b32 s{SWS+3}, s63
    s_cmp_lt_u32 {sW}, 4
    s_cbranch_scc1 L_A1
    """)
    a(f"""
    s_cmp_eq_u32 {sW}, 5
    s_cbranch_scc1 L_G5
    s_cmp_eq_u32 {sW}, 6
    s_cbranch_scc1 L_G6
    """)
    def loader(n, chunk, t0):
        a("s_waitcnt lgkmcnt(0)\ns_barrier")
        pre = int(o.get("lpre", 3))
        for i in range(pre): chunk(i)
        gp = int(o.get("gp", 2))
        a(f"s_waitcnt vmcnt({(pre-1)*n})\ns_barrier")
        for i in range(pre, 4): chunk(i)
        a(xtouch(t0) + gsetup_s)
        a(f"s_waitcnt vmcnt({2*n})\ns_barrier\ns_waitcnt vmcnt({n})\ns_barrier\ns_waitcnt vmcnt(0)\ns_barrier\ns_barrier")
        a(late)
    a(f"s_lshl_b32 s61, {sGRP}, 16")
    for r in range(3): a(f"s_add_u32 s{33+r}, s60, {r+1}\ns_and_b32 s{33+r}, s{33+r}, 3\ns_lshl_b32 s{57+r}, s{33+r}, 14\ns_add_u32 s{57+r}, s{57+r}, s61\ns_lshl_b32 s{33+r}, s{33+r}, 12")
    def xchunk(i):
        a(f"s_add_u32 s55, {sC0}, {i}\ns_and_b32 s55, s55, 3\ns_lshl_b32 s55, s55, 8")
        for r in range(3):
            a(f"s_add_u32 m0, s{33+r}, {X_ + 16384*i}\ns_add_u32 s60, s{57+r}, s55")
            for q in range(4): a(f"buffer_load_dwordx4 v{4+q}, {srd(SX)}, s60 offen offset:{1024*q} lds")
    loader(12, xchunk, 91)
    a(f"""
    L_G5:
    s_mov_b32 s{SWQ+2}, 524288
    s_mov_b32 s{SWQ+3}, 0x00020000
    v_lshrrev_b32 v1, 3, {L}
    v_and_b32 v2, 7, {L}
    v_bfe_u32 v3, {L}, 4, 1
    v_lshlrev_b32 v3, 2, v3
    v_xor_b32 v2, v3, v2
    v_lshlrev_b32 v2, 4, v2
    v_lshl_or_b32 v8, v1, 10, v2
    v_add_u32 v9, 7168, v8
    v_add_u32 v10, 14336, v8
    v_add_u32 v11, 21504, v8
    s_lshl_b32 s64, {sJ}, 7
    """)
    def wchunk(i):
        a(f"s_add_u32 s55, {sC0}, {i}\ns_and_b32 s55, s55, 3\ns_lshl_b32 s55, s55, 17\ns_add_u32 s55, s55, s64")
        for r in range(4):
            a(f"s_mov_b32 m0, {W_ + 16384*i + 4096*r}\n" + ("s_add_u32 s55, s55, 32768" if r else "s_nop 0"))
            for q in range(4): a(f"buffer_load_dwordx4 v{8+q}, {srd(SWQ)}, s55 offen offset:{1024*q} lds")
    loader(16, wchunk, 98)
    a(f"""
    L_G6:
    s_load_dwordx2 s[{SB1}:{SB1+1}], s[0:1], 56
    s_load_dwordx2 s[{SB2}:{SB2+1}], s[0:1], 72
    s_load_dwordx2 s[{SGT}:{SGT+1}], s[0:1], 80
    s_lshl_b32 s60, {sJ}, 7
    s_waitcnt lgkmcnt(0)
    s_barrier
    s_mul_i32 s61, s2, 7168
    s_add_u32 s61, s61, 3584
    s_add_u32 s64, s{SW2}, s61
    s_addc_u32 s65, s{SW2+1}, 0
    s_mov_b32 s{SB1+2}, 3584
    s_mov_b32 s{SB1+3}, 0x00020000
    s_mov_b32 s{SB2+2}, 1024
    s_mov_b32 s{SB2+3}, 0x00020000
    s_mov_b32 s{SGT+2}, 1024
    s_mov_b32 s{SGT+3}, 0x00020000
    v_mov_b32 v4, 0
    v_mov_b32 v5, 0
    v_mov_b32 v6, 0
    v_mov_b32 v7, 0
    v_lshlrev_b32 v16, 4, {L}
    v_add_u32 v2, {MISC}, v16
    v_mov_b32 v8, 0xff800000
    v_mov_b32 v9, v8
    v_mov_b32 v10, v8
    v_mov_b32 v11, v8
    ds_write_b128 v2, v[4:7]
    ds_write_b128 v2, v[8:11] offset:1024
    v_add_u32 v2, {OACC + SLOT + 9216}, v16
    ds_write_b128 v2, v[4:7]
    s_lshl_b32 s57, {sC0}, 4
    s_mul_i32 s61, {sJ}, 448
    s_mov_b32 m0, {M_GATE}
    s_waitcnt lgkmcnt(0)
    """)
    def g6touch(i0, i1):
        if not o.get("nopf") and not o.get("vt") and not o.get("lt"):
            for i in range(i0, i1): a(f"s_load_dword s56, s[64:65], {64*i}")
    g6touch(0, 14)
    a(f"""
    {"s_call_b64 s[58:59], L_gsetupx" if not o.get("g6l") else ""}
    v_add_u32 v1, s57, {L}
    v_and_b32 v1, 63, v1
    v_lshlrev_b32 v1, 4, v1
    s_barrier
    buffer_load_dwordx4 v1, {srd(SGT)}, 0 offen lds
    s_mov_b32 m0, {M_B1}
    s_mov_b64 exec, 0xfffffff
    buffer_load_dwordx4 v16, {srd(SB1)}, s61 offen lds
    s_mov_b32 m0, {M_B2}
    s_mov_b64 exec, 0xff
    buffer_load_dwordx4 v16, {srd(SB2)}, s60 offen lds
    s_mov_b64 exec, -1
    """)
    g6touch(14, 28)
    a("s_barrier\ns_barrier")
    a(gsetup_s)
    g6touch(28, 35)
    a("s_waitcnt vmcnt(0)\ns_barrier")
    a(f"""
    s_barrier
    {"s_branch L_Gjoin" if not o.get("g6l") else late}
    """)
    a(f"""
    L_A1:
    """)
    if not o.get("sc") and not o.get("vt"):
        a(f"""
        s_cmp_eq_u32 {sW}, 1
        s_cbranch_scc0 L_A1b
        v_lshlrev_b32 v2, 7, {L}
        s_getpc_b64 s[16:17]
        L_pc:
        s_mov_b32 s18, L_end - L_pc
        s_mov_b32 s19, 0x00020000
        s_lshr_b32 s57, s2, 3
        s_mul_i32 s57, s57, {128*9}
        s_mov_b64 exec, 0x1ff
        buffer_load_dword v197, v2, s[16:19], s57 offen
        s_mov_b64 exec, -1
        L_A1b:
        """)
    if o.get("ae"):
        a(f"s_waitcnt lgkmcnt(0)\ns_mul_i32 s61, {sW}, 896\ns_mul_i32 s60, s2, 7168\ns_add_u32 s60, s60, s61\ns_add_u32 s{SW2}, s{SW2}, s60\ns_addc_u32 s{SW2+1}, s{SW2+1}, 0")
        for i in range(14): a(f"s_load_dword s56, s[{SW2}:{SW2+1}], {64*i}")
    if o.get("vt"):
        a(f"""
        s_cmp_gt_u32 {sW}, 1
        s_cbranch_scc1 L_A1b
        v_lshlrev_b32 v2, 7, {L}
        s_cmp_eq_u32 {sW}, 0
        s_cbranch_scc1 L_A1a
        s_getpc_b64 s[16:17]
        L_pc:
        s_mov_b32 s18, L_end - L_pc
        s_mov_b32 s19, 0x00020000
        s_lshr_b32 s57, s2, 3
        s_mul_i32 s57, s57, {128*9}
        s_mov_b64 exec, 0x1ff
        buffer_load_dword v197, v2, s[16:19], s57 offen
        s_mov_b64 exec, -1
        s_branch L_A1b
        L_A1a:
        s_mov_b32 s{SW2+2}, 1835008
        s_mov_b32 s{SW2+3}, 0x00020000
        s_mul_i32 s57, s2, 7168
        s_lshr_b64 exec, -1, 8
        s_waitcnt lgkmcnt(0)
        buffer_load_dword v197, v2, {srd(SW2)}, s57 offen
        s_mov_b64 exec, -1
        L_A1b:
        """)
    a(f"""
    {"" if o.get("ae") else "s_waitcnt lgkmcnt(0)"}
    s_barrier
    """)
    def codetouch(lbl):
        a(f"""
        s_getpc_b64 s[16:17]
        {lbl}:
        s_mov_b32 s18, L_end - {lbl}
        s_mov_b32 s19, 0x00020000
        s_lshr_b32 s57, s2, 3
        s_lshl2_add_u32 s57, s57, {sW}
        s_mul_i32 s57, s57, 384
        """)
        for i in range(6): a(f"s_buffer_load_dword s56, s[16:19], s57 offset:{64*i}")
    if o.get("sc"): codetouch("L_pc")
    def w1touch(first, n):
        if o.get("nopf") or o.get("vt"): return
        a(f"s_mul_i32 s60, s2, 7168\ns_add_u32 s60, s60, {first}\ns_add_u32 s{SW2}, s{SW2}, s60\ns_addc_u32 s{SW2+1}, s{SW2+1}, 0")
        if o.get("lt"): return
        for i in range(n): a(f"s_load_dword s56, s[{SW2}:{SW2+1}], {64*i}")
    stamp(1)
    a(f"s_mul_i32 s61, {sW}, {1792 if o.get('lt') else 896}")
    if not o.get("ae") and not o.get("an"): w1touch("s61", 0 if o.get("aq") else 14)
    a(f"""
    s_lshr_b32 s60, {sW}, 1
    s_lshl_b32 s60, s60, 13
    v_and_b32 v1, 31, {L}
    v_lshrrev_b32 v2, 5, {L}
    v_and_b32 v3, 15, {L}
    v_xor_b32 v3, v2, v3
    v_lshlrev_b32 v3, 4, v3
    v_lshl_or_b32 v168, v1, 8, v3
    v_add_u32 v168, s60, v168
    s_mov_b64 s[12:13], s[{SWS}:{SWS+1}]
    s_mov_b32 s15, 0x00020000
    """)
    XA = [168, 169, 170, 171, 176, 177, 178, 179]
    for k in range(1, 8): a(f"v_xor_b32 v{XA[k]}, {32*k}, v168")
    tr_addr(184, 8)
    a(f"""
    s_and_b32 s60, {sW}, 1
    s_lshl_b32 s60, s60, 6
    v_xor_b32 v184, s60, v184
    v_add_u32 v184, {W_}, v184
    v_and_b32 v1, 11, {L}
    v_cmp_eq_u32 vcc, 0, v1
    v_mov_b32 v2, 0x3f803f80
    v_lshlrev_b32 v250, 4, {L}
    v_cndmask_b32 v68, 0, v2, vcc
    v_mov_b32 v251, {M_QMAX}
    v_mov_b32 v69, v68
    v_lshlrev_b32 v247, 5, {L}
    s_lshl_b32 s60, {sW}, 8
    s_add_u32 s60, s60, {OACC}
    v_lshlrev_b32 v244, 2, {L}
    v_add_u32 v244, s60, v244
    v_add_u32 v246, {QF}, v250
    v_add_u32 v252, {WS_V - WS_K}, v250
    s_lshr_b32 s60, {sW}, 1
    s_lshl_b32 s60, s60, 12
    s_and_b32 s61, {sW}, 1
    s_lshl_b32 s61, s61, 11
    s_add_u32 s60, s60, s61
    v_add_u32 v220, s60, v246
    s_lshl_b32 s60, {sW}, 11
    s_add_u32 s61, s60, {WS_KVF1}
    s_add_u32 s60, s60, {WS_KVF}
    s_lshl_b32 s54, {sW}, 14
    s_add_u32 s54, s54, {WS_K}
    s_and_b32 s55, {sJ}, 3
    s_lshl_b32 s55, s55, 12
    s_mov_b32 s63, 0
    s_add_u32 s8, s54, s55
    s_add_u32 s55, s55, 4096
    s_and_b32 s55, s55, 0x3fff
    s_add_u32 s9, s54, s55
    s_add_u32 s55, s55, 4096
    s_and_b32 s55, s55, 0x3fff
    s_add_u32 s10, s54, s55
    s_add_u32 s55, s55, 4096
    s_and_b32 s55, s55, 0x3fff
    s_add_u32 s11, s54, s55
    """)
    def padinit():
        for t in range(16):
            for r in (68 + 8*t, 70 + 8*t):
                if r != 68: a(f"v_mov_b64 {vr(r,2)}, v[68:69]")
    padinit()
    def qreads(ks):
        b = 192 + 8*(ks % 3)
        a(f"ds_read_b64_tr_b16 {vr(b,2)}, v184 offset:{2048*ks}")
        a(f"ds_read_b64_tr_b16 {vr(b+2,2)}, v184 offset:{2048*ks+512}")
        a(f"ds_read_b128 {vr(b+4,4)}, v{XA[ks&7]} offset:{16384*(ks>>3)}")
    poll = f"buffer_load_dwordx2 v[248:249], v247, {srd(SWS)}, s60 offen sc1"
    D = int(o.get("D", 5))
    early = True
    pollc = int(o.get("pollc", 2))
    poll1 = f"buffer_load_dwordx2 v[248:249], v247, {srd(SWS)}, s61 offen sc1"
    def kvload(t):
        return [f"buffer_load_dwordx4 {vr(4*t,4)}, v250, s[12:15], s{8+(t>>2)} offen offset:{1024*(t&3)} sc1",
                f"buffer_load_dwordx4 {vr(64+8*t,4)}, v252, s[12:15], s{8+(t>>2)} offen offset:{1024*(t&3)} sc1"]
    first = [x for t in range(D) for x in kvload(t)]
    KQ = int(o.get("kq", 4)); CK = int(o.get("ck", 2))
    for c in range(4):
        a(("s_waitcnt vmcnt(0) lgkmcnt(0)\n" if c == 0 else "") + "s_barrier")
        if c == 0: stamp(2)
        if c > 0: hstamp(12 + c)
        if c == 1: a(f"v_mov_b32 v253, {M_TAG}\nds_read_b32 v253, v253")
        if c == pollc: a(poll)
        qreads(8*c); qreads(8*c+1)
        def gate():
            a(f"s_waitcnt vmcnt(0)\nv_cmp_ne_u32 vcc, {sTAG}, v248\ns_nop 3\ns_cmp_eq_u64 vcc, 0\ns_cselect_b32 s14, {WS_SIZE}, 0\n{poll1.replace(srd(SWS), 's[12:15]')}")
        for k in range(8):
            ks = 8*c + k
            if k < 6:
                qreads(ks+2); a("s_waitcnt lgkmcnt(6)")
            else:
                a(f"s_waitcnt lgkmcnt({3*(7-k)})")
            if c == 3 and k == 0: hstamp(11)
            if c == 3 and k == 7: hstamp(12)
            if c == 3 and k == 7: a("s_barrier")
            b = 192 + 8*(ks % 3)
            a(f"v_mfma_f32_32x32x16_bf16 v[224:239], {vr(b,4)}, {vr(b+4,4)}, {'0' if ks == 0 else 'v[224:239]'}")
            if c == 3 and k == CK and pollc < 3: gate()
            if c == 3 and CK <= k < CK + KQ and pollc < 3: a(first[k - CK])
        if c == 1: a(f"v_readfirstlane_b32 {sTAG}, v253")
    stamp(3)
    rest = first[KQ:]
    aq = "\n".join(f"s_load_dword s56, s[{SW2}:{SW2+1}], {64*i}" for i in range(14)) if o.get("aq") else ""
    if pollc == 3:
        a(f"s_waitcnt vmcnt(0)\nv_cmp_ne_u32 vcc, {sTAG}, v248\ns_nop 3\ns_cmp_eq_u64 vcc, 0\ns_cselect_b32 s14, {WS_SIZE}, 0\n{poll1.replace(srd(SWS), 's[12:15]')}")
        a("\n".join(first[:KQ]))
    a(f"s_setprio 2\nv_mov_b32 v245, {sTAG}\ns_mov_b32 s63, 0\n" + "\n".join(rest) + f"\ns_nop {max(0, 8 - len(rest))}")
    for r in range(8): a(f"v_cvt_pk_bf16_f32 v{192+r}, v{224+2*r}, v{225+2*r}")
    a("ds_write_b128 v220, v[192:195]\nds_write_b128 v220, v[196:199] offset:1024")
    a(f"s_cmp_lg_u32 {sW}, 0\ns_cbranch_scc1 L_q0s\nds_write_b32 v251, v245 offset:{M_Q0 - M_QMAX}\nL_q0s:")
    stamp(4)
    q0r = f"ds_read_b32 v210, v251 offset:{M_Q0 - M_QMAX}\nds_read_b128 v[240:243], v246"
    a(q0r)
    a("v_dot2_f32_bf16 v208, v192, v192, 0\nv_dot2_f32_bf16 v209, v196, v196, 0")
    for r in range(1, 4): a(f"v_dot2_f32_bf16 v208, v{192+r}, v{192+r}, v208\nv_dot2_f32_bf16 v209, v{196+r}, v{196+r}, v209")
    a(f"""
    s_branch L_q0c
    L_q0w:
    {q0r}
    s_add_u32 s63, s63, 1
    s_cmp_gt_u32 s63, {SPIN_MAX}
    s_cbranch_scc1 L_q0x
    L_q0c:
    s_waitcnt lgkmcnt(0)
    v_cmp_ne_u32 vcc, {sTAG}, v210
    s_cbranch_vccnz L_q0w
    L_q0x:
    s_waitcnt vmcnt({2*D})
    v_cmp_ne_u32 vcc, {sTAG}, v248
    s_cbranch_vccnz L_kvlate
    L_kvgo:
    """)
    stamp(5)
    a(f"""
    v_permlane32_swap_b32 v208, v209
    v_max_u32_dpp v249, v249, v249 row_ror:8 row_mask:0xf bank_mask:0xf
    v_add_f32 v254, v208, v209
    v_mov_b32 v253, 1
    v_max_u32_dpp v249, v249, v249 row_ror:4 row_mask:0xf bank_mask:0xf
    v_max_u32_dpp v254, v254, v254 row_ror:8 row_mask:0xf bank_mask:0xf
    s_mov_b32 s64, 0x00010001
    v_max_u32_dpp v249, v249, v249 row_ror:2 row_mask:0xf bank_mask:0xf
    v_max_u32_dpp v254, v254, v254 row_ror:4 row_mask:0xf bank_mask:0xf
    s_mov_b32 s65, 0x00010001
    v_max_u32_dpp v249, v249, v249 row_ror:1 row_mask:0xf bank_mask:0xf
    v_max_u32_dpp v254, v254, v254 row_ror:2 row_mask:0xf bank_mask:0xf
    v_add_u32 v246, 1024, v246
    s_mov_b32 s62, 6
    v_max_u32_dpp v254, v254, v254 row_ror:1 row_mask:0xf bank_mask:0xf
    s_mov_b64 exec, s[64:65]
    ds_max_u32 v251, v254
    ds_max_u32 v251, v249 offset:4
    ds_add_u32 v251, v253 offset:8
    s_mov_b64 exec, -1
    s_mov_b32 s64, {0 if o.get('noG') else 0x24}
    s_mov_b32 s65, 0
    {aq}
    L_qk0:
    s_waitcnt vmcnt({2*D-1})
    v_mfma_f32_32x32x16_bf16 v[192:207], v[0:3], v[240:243], 0
    v_max_u32 v254, v0, v2
    s_nop 1
    """)
    stamp(6)
    if diag and not o.get("lite"): a("s_memrealtime s[86:87]")
    flush = [f"ds_write2st64_b32 v244, v{224+2*r}, v{225+2*r} offset0:{8*r} offset1:{8*r+4}" for r in range(4)] + ["ds_write2st64_b32 v244, v232, v245 offset0:32 offset1:36", f"v_add_u32 v244, {0 if o.get('noG') else SLOT}, v244"]
    def tile(t, peel=False):
        first = peel and t == 0
        S = [192, 208]
        cur = S[t & 1]; nxt = S[(t+1) & 1]
        Kn = 4*((t+1) % 16); Vp = 64 + 8*((t-1) % 16) + 4; Vc = 64 + 8*t
        m0 = f"v_mfma_f32_32x32x16_bf16 v[224:239], {vr(Vp,4)}, {vr(nxt+4,4)}, v[224:239]"
        m1 = f"v_mfma_f32_32x32x16_bf16 {vr(nxt,16)}, {vr(Kn,4)}, v[240:243], 0"
        m2 = f"v_mfma_f32_32x32x16_bf16 v[224:239], {vr(Vc,4)}, {vr(cur,4)}, {'0' if t == 0 else 'v[224:239]'}"
        e = lambda i: f"v_exp_f32 v{cur+i}, v{cur+i}"
        c = lambda i: f"v_cvt_pk_bf16_f32 v{cur+i}, v{cur+2*i}, v{cur+2*i+1}"
        cp7 = f"v_cvt_pk_bf16_f32 v{nxt+7}, v{nxt+14}, v{nxt+15}"
        seq = []
        if peel:
            if t + D < 16: seq += kvload(t + D)
            lt = [int(x) for x in str(o.get("lt", "")).split(",") if x]
            if t in lt: seq += [f"s_load_dword s56, s[{SW2}:{SW2+1}], {64*(7*lt.index(t) + i)}" for i in range(7)]
            if t == int(o.get("go", 11)): seq.append(f"ds_write_b32 v251, v245 offset:{M_GO - M_QMAX}")
            seq.append(f"s_waitcnt vmcnt({max(2*min(t+D+1, 16) - (2*t+3), 0)})")
            seq.append(f"v_max3_u32 v254, v254, v{Vc}, v{Vc+2}")
            if t < 15: seq.append(f"v_max3_u32 v254, v254, v{Kn}, v{Kn+2}")
            seq += [f"v_permlane16_swap_b32 v{Vc+r}, v{Vc+4+r}" for r in range(4)]
        qn = ["ds_read_b128 v[240:243], v246", "v_add_u32 v246, 1024, v246"]
        if peel: qn.append("ds_read_b96 v[248:250], v251")
        if not o.get("clus") and not o.get("even"):
            seq += [e(0)] + ([] if first else [cp7]) + [e(1), e(2), c(0)] + ([] if first else [m0]) + [e(3), e(4)]
            if t == 15: seq.append("s_waitcnt lgkmcnt(0)")
            seq += [e(5), m1]
            if t == 14: seq += qn
            seq += [e(6), e(7), e(8), c(1), e(9), e(10), e(11), c(2), e(12)]
            if t == 0 and not first: seq += (flush if not o.get("noflush") else [])
            seq += [e(13), c(3), c(4), e(14), m2, c(5), c(6)]
        elif o.get("even") or (t == 0 and not first):
            seq += [e(0)] + ([] if first else [cp7]) + [e(1), e(2)] + ([] if first else [m0]) + [c(0), e(3), e(4), c(1), e(5), e(6)]
            if t == 15: seq.append("s_waitcnt lgkmcnt(0)")
            seq.append(m1)
            if t == 14: seq += qn
            seq += [c(2), e(7), e(8), c(3), e(9), e(10)]
            if t == 0 and not first: seq += (flush if not o.get("noflush") else [])
            seq += [c(4), m2, e(11), e(12), c(5), e(13), e(14), c(6)]
        else:
            seq += [e(0)] + ([] if first else [cp7]) + [e(1), e(2), e(3)]
            if t == 15: seq.append("s_waitcnt lgkmcnt(0)")
            seq += [e(4), e(5)] + ([] if first else [m0]) + [e(6), e(7), c(0), c(1), m1, c(2), c(3), e(8), e(9), m2]
            if t == 14: seq += qn
            seq += [e(10), c(4), e(11), e(12), c(5), e(13), e(14), c(6)]
        if t == 15 and not peel: seq += ["s_bitcmp1_b32 s64, s62"]
        seq += [e(15)]
        a("\n".join(seq))
    for t in range(16): tile(t, peel=True)
    stamp(7)
    a(f"""
    v_cmp_eq_u32 vcc, -1, v254
    {"s_cmp_eq_u32 s65, 0" if o.get("force_redo") else ""}
    {"s_cbranch_scc1 L_redo" if o.get("force_redo") else ""}
    s_cbranch_vccnz L_redo
    L_clean:
    v_cmp_ne_u32 vcc, 16, v250
    v_mul_f32 v248, v248, v249
    s_mov_b32 s63, 0
    s_cbranch_vccnz L_chk2
    v_cmp_nge_f32 vcc, 0x45700000, v248
    {"s_nop 0" if o.get("force_slow") else "s_cbranch_vccz L_top"}
    s_branch L_slowgo
    .p2align 6
    L_top:
    """)
    for t in range(16): tile(t)
    if diag and not rt and not o.get("hd") and not o.get("lite"):
        a("s_cselect_b32 s57, 1, 0\ns_cmp_lt_u32 s62, 2\ns_cbranch_scc1 L_nst\ns_mov_b32 s90, s92\ns_mov_b32 s92, s94\ns_mov_b32 s94, s96\ns_mov_b32 s96, s98\ns_memtime s[98:99]\ns_waitcnt lgkmcnt(0)\nL_nst:\ns_cmp_eq_u32 s57, 1")
    a(f"""
    s_cbranch_scc1 L_check
    s_sub_u32 s62, s62, 1
    s_cbranch_scc0 L_top
    v_cvt_pk_bf16_f32 v215, v222, v223
    s_nop 1
    v_mfma_f32_32x32x16_bf16 v[224:239], {vr(64+8*15+4,4)}, v[212:215], v[224:239]
    L_last:
    s_lshl_b32 s60, {sW}, 10
    s_add_u32 s60, s60, {X_ + 5*SLOT}
    v_lshlrev_b32 v247, 4, {L}
    v_add_u32 v247, s60, v247
    s_nop 7
    """)
    lastflush = flush[:5] if o.get("narrow") else ["ds_write_b128 v247, v[224:227]", "ds_write_b128 v247, v[228:231] offset:4096", "ds_write_b32 v244, v232 offset:8192"]
    a("\n".join(lastflush) + "\ns_waitcnt lgkmcnt(0)")
    stamp(8)
    if diag and not o.get("lite"): a("s_memrealtime s[88:89]")
    a("s_barrier")
    diag_out("a")
    a("s_endpgm")
    a(f"""
    L_kvlate:
    s_sleep {o.get('lsl', 4)}
    {poll1}
    s_add_u32 s63, s63, 1
    s_cmp_gt_u32 s63, {SPIN_MAX}
    s_cbranch_scc1 L_kvlate2
    s_waitcnt vmcnt(0)
    v_cmp_ne_u32 vcc, {sTAG}, v248
    s_cbranch_vccnz L_kvlate
    L_kvlate2:
    {cnt_dbg(0)}
    s_mov_b32 s14, {WS_SIZE}
    """)
    a("\n".join(first) + "\ns_branch L_kvgo")
    a(f"""
    L_redo:
    {cnt_dbg(4)}
    s_add_u32 s65, s65, 1
    s_cmp_gt_u32 s65, 1000
    s_cbranch_scc1 L_clean
    v_and_b32 v250, 11, {L}
    v_cmp_eq_u32 vcc, 0, v250
    v_mov_b32 v249, 0x3f803f80
    v_lshlrev_b32 v250, 4, {L}
    v_cndmask_b32 v68, 0, v249, vcc
    v_add_u32 v246, {QF}, v250
    v_mov_b32 v69, v68
    s_nop 7
    s_nop 7
    ds_read_b128 v[240:243], v246
    v_add_u32 v246, 1024, v246
    """)
    padinit()
    a("\n".join(first) + "\ns_waitcnt lgkmcnt(0)\ns_branch L_qk0")
    a(f"""
    L_check:
    s_mov_b32 s63, 0
    s_sub_u32 s62, s62, 1
    s_cmp_eq_u32 s62, 4
    s_cselect_b32 s60, 4, 12
    s_cselect_b32 s61, {OACC + 2*SLOT - X_}, 0
    s_add_u32 s60, s60, {M_CNTG}
    v_mov_b32 v249, s60
    L_xw:
    ds_read_b32 v248, v249
    s_add_u32 s63, s63, 1
    s_cmp_gt_u32 s63, {SPIN_MAX}
    s_cbranch_scc1 L_xw_x
    s_waitcnt lgkmcnt(0)
    v_cmp_ne_u32 vcc, 4, v248
    s_cbranch_vccnz L_xw
    L_xw_x:
    v_subrev_u32 v244, s61, v244
    s_branch L_top
    L_chk2:
    ds_read_b96 v[248:250], v251
    s_add_u32 s63, s63, 1
    s_cmp_gt_u32 s63, {SPIN_MAX}
    s_cbranch_scc1 L_chk3
    s_waitcnt lgkmcnt(0)
    v_cmp_ne_u32 vcc, 16, v250
    s_cbranch_vccnz L_chk2
    L_chk3:
    v_mul_f32 v248, v248, v249
    v_cmp_nge_f32 vcc, 0x45700000, v248
    {"s_nop 0" if o.get("force_slow") else "s_cbranch_vccz L_top"}
    L_slowgo:
    """)
    a(f"""
    v_lshlrev_b32 v246, 4, {L}
    v_add_u32 v246, {QF}, v246
    v_and_b32 v247, 31, {L}
    v_lshlrev_b32 v247, 2, v247
    v_add_u32 v247, {M_M}, v247
    v_mov_b32 v251, {M_CNTS}
    s_mov_b32 s62, 8
    L_slow:
    ds_read_b128 v[240:243], v246
    v_add_u32 v246, 1024, v246
    v_mov_b32 v248, 0xff800000
    s_waitcnt lgkmcnt(0)
    """)
    for t in range(16):
        a(f"v_mfma_f32_32x32x16_bf16 v[192:207], {vr(4*t,4)}, v[240:243], 0\ns_nop 11")
        for r in range(8): a(f"v_max3_f32 v248, v248, v{192+2*r}, v{193+2*r}")
    a(f"""
    ds_max_f32 v247, v248
    s_mov_b64 exec, 1
    ds_add_u32 v251, v253
    s_mov_b64 exec, -1
    s_mov_b32 s63, 0
    L_slow2:
    s_sleep 1
    ds_read_b32 v249, v251
    s_add_u32 s63, s63, 1
    s_cmp_gt_u32 s63, {SPIN_MAX}
    s_cbranch_scc1 L_slow3
    s_waitcnt lgkmcnt(0)
    v_cmp_ne_u32 vcc, 4, v249
    s_cbranch_vccnz L_slow2
    L_slow3:
    ds_read_b32 v248, v247
    v_add_u32 v247, 128, v247
    v_add_u32 v251, 4, v251
    s_waitcnt lgkmcnt(0)
    """)
    for t in range(16):
        a(f"v_mfma_f32_32x32x16_bf16 v[192:207], {vr(4*t,4)}, v[240:243], 0\ns_nop 11")
        for r in range(16): a(f"v_sub_f32 v{192+r}, v{192+r}, v248")
        for r in range(16): a(f"v_exp_f32 v{192+r}, v{192+r}")
        a("s_nop 0")
        for r in range(8): a(f"v_cvt_pk_bf16_f32 v{208+r}, v{192+2*r}, v{193+2*r}")
        a("s_nop 1")
        a(f"v_mfma_f32_32x32x16_bf16 v[224:239], {vr(64+8*t,4)}, v[208:211], {'0' if t == 0 else 'v[224:239]'}")
        a(f"v_mfma_f32_32x32x16_bf16 v[224:239], {vr(68+8*t,4)}, v[212:215], v[224:239]")
    a(f"""
    s_cmp_lg_u32 s62, 6
    s_cbranch_scc1 L_slow5
    s_mov_b32 s63, 0
    v_mov_b32 v249, {M_CNTG + 12}
    L_slow4:
    ds_read_b32 v248, v249
    s_add_u32 s63, s63, 1
    s_cmp_gt_u32 s63, {SPIN_MAX}
    s_cbranch_scc1 L_slow4x
    s_waitcnt lgkmcnt(0)
    v_cmp_ne_u32 vcc, 4, v248
    s_cbranch_vccnz L_slow4
    L_slow4x:
    v_subrev_u32 v244, {OACC + 2*SLOT - X_}, v244
    L_slow5:
    s_cmp_eq_u32 s62, 1
    s_cbranch_scc1 L_last
    """)
    a("s_nop 11")
    a("\n".join(flush))
    a(f"""
    s_sub_u32 s62, s62, 1
    s_branch L_slow
    """)

    a(f"""
    L_Gjoin:
    s_sub_u32 {sW}, {sW}, 4
    """)
    gw = sW
    inG[0] = True
    def lds_wait(lbl, addr, off, val, sleep=2):
        a(f"""
        s_mov_b32 s63, 0
        {lbl}:
        ds_read_b32 v178, {addr} offset:{off}
        s_add_u32 s63, s63, 1
        s_cmp_gt_u32 s63, {SPIN_MAX}
        s_cbranch_scc1 {lbl}_x
        s_waitcnt lgkmcnt(0)
        v_cmp_ne_u32 vcc, {val}, v178
        s_cbranch_vccz {lbl}_x
        s_sleep {sleep}
        s_branch {lbl}
        {lbl}_x:
        """)
    a(f"""
    ds_read_b32 v178, v177 offset:{M_TAG - M_CNTG}
    ds_read_u16 v152, v12
    ds_read_u16 v156, v12 offset:64
    ds_read_u16 v168, v13
    ds_read_u16 v172, v13 offset:64
    s_setprio 3
    s_waitcnt lgkmcnt(0)
    v_readfirstlane_b32 {sTAG}, v178
    s_nop 3
    """)
    if o.get("noG"): a("s_barrier\ns_branch L_gend")
    PRE = int(o.get("pre", 8))
    if int(o.get("go", 11)) >= 0 and not PRE: lds_wait("L_go", "v177", M_GO - M_CNTG, sTAG, 3)
    a(f"""
    s_setprio 0
    s_lshl_b32 s64, {sGRP}, 8
    s_add_u32 s64, s64, {WS_KVF}
    s_mul_i32 s4, {gw}, {448*1024}
    s_lshl_b32 s55, {sJ}, 7
    s_add_u32 s4, s4, s55
    s_lshl_b32 s7, {gw}, 17
    s_add_u32 s7, s7, s55
    s_mul_i32 s5, {sGRP}, {2*112*1024}
    s_add_u32 s5, s5, {WS_H}
    s_lshl_b32 s24, s48, 11
    s_add_u32 s24, s24, s5
    s_add_u32 s25, s24, {112*1024}
    s_mul_i32 s61, {gw}, {28*1024}
    s_add_u32 s5, s5, s61
    s_and_b32 s6, {sGRP}, {0 if o.get('norot2') else 3}
    s_lshl_b32 s10, {sGRP}, 3
    s_add_u32 s8, s10, {sJ}
    s_lshl_b32 s26, s8, 2
    s_add_u32 s26, s26, {gw}
    s_lshl_b32 s26, s26, 5
    s_add_u32 s26, s26, {WS_HF}
    s_lshl_b32 s8, s8, 3
    s_add_u32 s8, s8, {gw}
    s_lshl_b32 s8, s8, 10
    s_add_u32 s8, s8, {WS_O}
    s_add_u32 s9, s8, 4096
    s_lshl_b32 s60, {gw}, 1
    s_add_u32 s10, s10, s60
    s_lshl_b32 s27, s10, 7
    s_add_u32 s27, s27, {WS_HF}
    s_lshl_b32 s10, s10, 13
    s_add_u32 s10, s10, {WS_O}
    s_add_u32 s65, s10, 8192
    s_lshl_b32 s33, {sGRP}, 16
    s_add_u32 s11, s33, {WS_O + 7*1024}
    s_add_u32 s33, s33, s55
    s_add_u32 s34, s33, 0x8000
    s_lshl_b32 s60, {gw}, 13
    s_add_u32 s33, s33, s60
    s_movk_i32 s32, {4*SLOT // 4}
    s_cmp_lt_u32 {gw}, 2
    s_cselect_b32 s32, {(2*SLOT + X_ - OACC) // 4 & 0xffffffff}, s32
    s_lshl_b32 s32, s32, 2
    """)
    stamp(3)
    a(f"s_cmp_eq_u32 {gw}, 3\ns_cbranch_scc1 L_F1w3")
    ACC = lambda mt, nt: 32*nt + 16*mt
    def mf(mt, nt, A_, B_, c0=False):
        d = vr(ACC(mt, nt), 16)
        a(f"v_mfma_f32_32x32x16_bf16 {d}, {vr(A_,4)}, {vr(B_,4)}, {'0' if c0 else d}")
    class VM:
        def __init__(s_): s_.ops = []
        def op(s_, ins, tag=None): a(ins); s_.ops.append(tag)
        def n(s_, *tags): return len(s_.ops) - 1 - max(i for i, t in enumerate(s_.ops) if t in tags)
    xcload = f"buffer_load_dwordx2 v[194:195], v180, {srd(SWS)}, s64 offen sc1"
    def f1reads(k, w3):
        ab = 120 + 8*(k & 1); bb = 64 + 8*(k & 1); u = k & 7; xo = 16384*(k >> 3)
        r0 = [f"ds_read_b64_tr_b16 {vr(ab,2)}, v144 offset:{2048*u}", f"ds_read_b64_tr_b16 {vr(ab+2,2)}, v144 offset:{2048*u+(256 if w3 else 512)}", f"ds_read_b128 {vr(bb,4)}, v{136+u} offset:{xo}"]
        if not w3: r1 = [f"ds_read_b64_tr_b16 {vr(ab+4,2)}, v145 offset:{2048*u}", f"ds_read_b64_tr_b16 {vr(ab+6,2)}, v145 offset:{2048*u+512}"]
        else: r1 = ["s_mov_b64 exec, s[36:37]", f"ds_read_b128 {vr(ab+4,4)}, v145 offset:{32*k}", "s_mov_b64 exec, -1"]
        r1.append(f"ds_read_b128 {vr(bb+4,4)}, v{136+u} offset:{xo+8192}")
        return "\n".join(r0), "\n".join(r1)
    def ffn1(w3):
        vm = VM()
        def dma(k, half):
            if k < 32:
                if half == 0: vm.op(f"buffer_load_dwordx4 v148, {srd(SW1)}, s54 offen lds", k)
                elif not w3: vm.op(f"buffer_load_dwordx4 v149, {srd(SW1)}, s54 offen offset:1024 lds", k)
            else:
                vm.op(f"buffer_load_dwordx4 v{150+half}, {srd(SW2 if k < 39 else SWO)}, s54 offen offset:{1024*half} lds", k)
        def adv(k):
            if k < 32 and k & 7: a(f"s_add_u32 s54, s54, {16*3584}")
            elif k < 32: a(f"s_add_u32 s55, {sC0}, {k >> 3}\ns_and_b32 s55, s55, 3\ns_mul_i32 s55, s55, {128*3584}\ns_add_u32 s54, s100, s55")
            elif k == 32: a(f"s_mul_i32 s54, s6, {7*16384}\ns_add_u32 s54, s54, s4")
            elif k < 39: a("s_add_u32 s54, s54, 16384")
            elif k == 39: a(f"s_add_u32 s54, s7, {7*16384}")
        for k in range(8):
            a(f"s_add_u32 m0, s49, {2048*k}\ns_nop 0")
            dma(k, 0); dma(k, 1); adv(k+1)
        if w3: a("s_setprio 3\nv_mov_b64 v[124:125], 0\nv_mov_b64 v[126:127], 0\nv_mov_b64 v[132:133], 0\nv_mov_b64 v[134:135], 0\ns_mov_b32 s36, 0x10100101\ns_mov_b32 s37, 0x10100101\ns_setprio 0")
        a(f"s_waitcnt vmcnt({vm.n(0)})")
        a("\n".join(f1reads(0, w3)))
        for nt in range(2):
            mf(0, nt, 152, 160, True)
            if not w3: mf(1, nt, 156, 160, True)
        def mf1(nt, A_, B_, k):
            if not w3: return mf(1, nt, A_, B_)
            d = vr(ACC(1, nt), 4)
            a(f"v_mfma_f32_16x16x32_bf16 {d}, {vr(A_,4)}, {vr(B_,4)}, {d if k else '0'}")
        for k in range(32):
            u = k & 7
            ab = 120 + 8*(k & 1); bb = 64 + 8*(k & 1)
            if k == 12:
                for so in ("s8", "s9"): vm.op(f"buffer_store_dwordx4 v[200:203], v166, {srd(SWS)}, {so} offen sc1")
                vm.op(f"buffer_load_dword v178, v180, {srd(SWS)}, s27 offen sc1")
                vm.op(xcload, "xc")
                if not w3 and not o.get("nopf"):
                    a(f"""
                    s_cmp_eq_u32 {gw}, 0
                    s_cbranch_scc0 L_f1m
                    s_mul_i32 s60, s2, 7168
                    s_lshr_b64 exec, -1, 8
                    buffer_load_dword v178, v196, {srd(SW2)}, s60 offen
                    s_mov_b64 exec, 0xffff
                    s_lshl_b32 s60, s2, 11
                    buffer_load_dword v178, v196, {srd(SWO)}, s60 offen
                    s_mov_b64 exec, -1
                    L_f1m:
                    """)
                if o.get("hpre"):
                    for so in ("s24", "s25"):
                        for q in range(2 if w3 else 4): vm.op(f"buffer_load_dwordx4 v[204:207], v166, {srd(SWS)}, {so} offen offset:{1024*q}")
            if PRE and k == PRE:
                a("s_setprio 3")
                lds_wait("L_go" + "ab"[w3], "v177", M_GO - M_CNTG, sTAG, 2)
                a("s_setprio 0")
                for kk in range(8, 8 + PRE):
                    a(f"s_add_u32 m0, s49, {2048*(kk & 7)}\ns_nop 0")
                    dma(kk, 0); dma(kk, 1); adv(kk+1)
                if PRE == 8:
                    a(f"s_waitcnt vmcnt({vm.n(8)})")
                    a("\n".join(f1reads(8, w3)))
            hold = k < PRE
            a(f"s_waitcnt vmcnt({vm.n(k+1) if k < 31 and not (hold and k == 7) else 63}) lgkmcnt(0)")
            r0, r1 = f1reads(k+1, w3) if k < 31 and not (hold and k == 7) else ("", "")
            mf(0, 0, ab, bb)
            a(r0)
            mf1(0, ab+4, bb, k)
            a(r1)
            if not hold: a(f"s_add_u32 m0, s49, {2048*u}")
            mf(0, 1, ab, bb+4)
            if not hold: dma(k+8, 0)
            if u == 7: a(f"s_mov_b64 exec, 1\nds_add_u32 v177, v167 offset:{4*(k >> 3)}\ns_mov_b64 exec, -1")
            mf1(1, ab+4, bb+4, k)
            if not hold: dma(k+8, 1); adv(k+9)
        a(f"s_waitcnt vmcnt({vm.n('xc')})")
    ffn1(False)
    a("s_branch L_F1done\nL_F1w3:")
    ffn1(True)
    a(f"""
    L_F1done:
    s_mov_b32 s63, 0
    s_getreg_b32 s61, hwreg(HW_REG_XCC_ID, 0, 4)
    s_setprio 3
    s_branch L_xc_c
    L_xc:
    {xcload}
    s_add_u32 s63, s63, 1
    s_cmp_gt_u32 s63, {SPIN_MAX}
    s_cbranch_scc1 L_xc_x
    s_waitcnt vmcnt(0)
    L_xc_c:
    v_cmp_ne_u32 vcc, {sTAG}, v194
    s_cbranch_vccnz L_xc
    L_xc_x:
    v_cmp_ne_u32 vcc, s61, v195
    s_nop 3
    s_cmp_eq_u64 vcc, 0
    s_cselect_b32 s101, {0 if o.get('nofast') else 1}, 0
    """)
    nst = [0]
    def hstore(ins):
        nst[0] += 1
        a(f"s_cbranch_scc1 L_hs{nst[0]}a\n{ins} sc1\ns_branch L_hs{nst[0]}b\nL_hs{nst[0]}a:\n{ins}\nL_hs{nst[0]}b:")
    stamp(4)
    def hst(mt, nt):
        b = ACC(mt, nt)
        for r in range(16): a(f"v_max_f32 v{b+r}, 0, v{b+r}")
        for r in range(8): a(f"v_pk_mul_f32 {vr(b+2*r,2)}, {vr(b+2*r,2)}, {vr(b+2*r,2)}")
        for r in range(8): a(f"v_cvt_pk_bf16_f32 v{b+r}, v{b+2*r}, v{b+2*r+1}")
        so = "s25" if nt else "s24"
        st = hstore if o.get("hpre") else (lambda ins: a(ins + " sc1"))
        a("s_cmp_eq_u32 s101, 1")
        st(f"buffer_store_dwordx4 {vr(b,4)}, v166, {srd(SWS)}, {so} offen offset:{2048*mt}")
        st(f"buffer_store_dwordx4 {vr(b+4,4)}, v166, {srd(SWS)}, {so} offen offset:{2048*mt+1024}")
    hst(0, 0); hst(0, 1)
    a(f"s_cmp_eq_u32 {gw}, 3\ns_cbranch_scc1 L_gate")
    hst(1, 0); hst(1, 1)
    a(f"""
    s_branch L_gated
    L_gate:
    v_mul_f32 v16, {0x80000000 | LOG2E}, v16
    v_mul_f32 v48, {0x80000000 | LOG2E}, v48
    v_exp_f32 v16, v16
    v_exp_f32 v48, v48
    s_nop 0
    v_add_f32 v16, 1.0, v16
    v_add_f32 v48, 1.0, v48
    v_rcp_f32 v16, v16
    v_rcp_f32 v48, v48
    s_nop 1
    ds_write_b32 v192, v16
    ds_write_b32 v192, v48 offset:128
    L_gated:
    s_mov_b64 exec, 1
    ds_add_u32 v177, v167 offset:16
    s_mov_b64 exec, -1
    """)
    def fin(B, sfx, first):
        a(f"""
        s_mov_b32 s63, 0
        L_fw{sfx}:
        ds_read_b32 v{B}, v176
        s_add_u32 s63, s63, 1
        s_cmp_gt_u32 s63, {SPIN_MAX}
        s_cbranch_scc1 L_fw{sfx}_x
        s_waitcnt lgkmcnt(0)
        v_cmp_ne_u32 vcc, {sTAG}, v{B}
        s_cbranch_vccz L_fw{sfx}_x
        s_sleep 3
        s_branch L_fw{sfx}
        L_fw{sfx}_x:
        ds_read2st64_b32 {vr(B+32,2)}, v181 offset0:32 offset1:33
        ds_read2st64_b32 {vr(B+34,2)}, v181 offset0:34 offset1:35
        """)
        for w in range(4):
            for r in range(4): a(f"ds_read2st64_b32 {vr(B+8*w+2*r,2)}, v181 offset0:{8*r+w} offset1:{8*r+4+w}")
        a(f"s_cmp_eq_u32 s58, 1\ns_waitcnt lgkmcnt(8)\nv_pk_add_f32 {vr(B+32,2)}, {vr(B+32,2)}, {vr(B+34,2)}")
        for r in range(4): a(f"v_pk_add_f32 {vr(B+2*r,2)}, {vr(B+2*r,2)}, {vr(B+8+2*r,2)}")
        a(f"v_add_f32 v{B+32}, v{B+32}, v{B+33}\ns_waitcnt lgkmcnt(0)")
        for r in range(4): a(f"v_pk_add_f32 {vr(B+16+2*r,2)}, {vr(B+16+2*r,2)}, {vr(B+24+2*r,2)}")
        a(f"v_rcp_f32 v{B+32}, v{B+32}")
        for r in range(4): a(f"v_pk_add_f32 {vr(B+2*r,2)}, {vr(B+2*r,2)}, {vr(B+16+2*r,2)}")
        a(f"v_mul_f32 v{B+32}, v{B+32}, v164")
        for r in range(4): a(f"v_pk_mul_f32 {vr(B+2*r,2)}, {vr(B+2*r,2)}, {vr(B+32,2)} op_sel_hi:[1,0]")
        for r in range(4): a(f"v_cvt_pk_bf16_f32 v{B+r}, v{B+2*r}, v{B+2*r+1}")
        for r in range(4): a(f"v_min_u32 v{B+r}, -2, v{B+r}")
        ins = f"buffer_store_dwordx4 {vr(B,4)}, v166, {srd(SWS)}, {'s8' if first else 's4'} offen"
        if first: a(ins + " sc1")
        else: hstore(ins)
        if first:
            a(f"""
            s_or_b32 s55, s2, {gw}
            s_cbranch_scc1 L_noep
            v_mov_b32 v{B+33}, {sTAG}
            s_mov_b64 exec, 1
            buffer_store_dword v{B+33}, off, {srd(SWS)}, 0 sc1
            s_mov_b64 exec, -1
            L_noep:
            """)
        else: a("s_nop 0")
    def flag_wait(lbl, vaddr, soff, sleep=2):
        a(f"""
        s_mov_b32 s63, 0
        {lbl}:
        buffer_load_dword v178, {vaddr}, {srd(SWS)}, {soff} offen sc1
        s_add_u32 s63, s63, 1
        s_cmp_gt_u32 s63, {SPIN_MAX}
        s_cbranch_scc1 {lbl}_x
        s_waitcnt vmcnt(0)
        v_cmp_ne_u32 vcc, {sTAG}, v178
        s_cbranch_vccz {lbl}_x
        s_sleep {sleep}
        s_branch {lbl}
        {lbl}_x:
        """)
    a(f"""
    v_mov_b32 v129, {sTAG}
    s_cmp_eq_u32 s101, 1
    s_mov_b64 exec, 1
    s_waitcnt vmcnt(0)
    """)
    hstore(f"buffer_store_dword v129, off, {srd(SWS)}, s26")
    a("s_mov_b64 exec, -1")
    stamp(5)
    lds_wait("L_gs1", "v177", 16, "4")
    a("ds_read_b32 v164, v192\nds_read_b32 v165, v192 offset:128")
    flag_wait("L_hw", "v180", "s27")
    a("v_mov_b32 v180, v193")
    stamp(6)
    a(f"""
    s_setprio 0
    s_mul_i32 s60, s6, 7168
    s_add_u32 s60, s60, s5
    s_add_u32 s61, s60, {112*1024}
    """)
    vm = VM()
    def hA(k): vm.op(f"buffer_load_dwordx4 {vr(64+8*(k%7),4)}, v166, {srd(SWS)}, s60 offen sc1", ("h", k)); a("s_add_u32 s60, s60, 1024")
    def hB(k): vm.op(f"buffer_load_dwordx4 {vr(68+8*(k%7),4)}, v166, {srd(SWS)}, s61 offen sc1", ("h", k)); a("s_add_u32 s61, s61, 1024")
    for k in range(7): hA(k); hB(k)
    def f2reads(k):
        ab = 120 + 8*(k & 1); slot = k % 7
        return (f"ds_read_b64_tr_b16 {vr(ab,2)}, v146 offset:{2048*slot}\nds_read_b64_tr_b16 {vr(ab+2,2)}, v146 offset:{2048*slot+1024}\n"
                f"ds_read_b64_tr_b16 {vr(ab+4,2)}, v147 offset:{2048*slot}\nds_read_b64_tr_b16 {vr(ab+6,2)}, v147 offset:{2048*slot+1024}")
    a(f2reads(0))
    for k in range(28):
        u = k % 7
        if u == 0 and k < 21: a(f"s_add_u32 s6, s6, 1\ns_and_b32 s6, s6, 3\ns_mul_i32 s54, s6, {7*16384}\ns_add_u32 s54, s54, s4\ns_mul_i32 s60, s6, 7168\ns_add_u32 s60, s60, s5\ns_add_u32 s61, s60, {112*1024}")
        if k == 21: a("s_mov_b32 s54, s7\ns_mov_b32 s60, s10\ns_mov_b32 s61, s65")
        if k == int(o.get("fink", 16)):
            a(f"s_setprio 3\nv_subrev_u32 v168, {OACC - X_}, v190\nv_subrev_u32 v169, {OACC - X_}, v191\nv_mov_b32 v170, v198")
            fin(196, "m", True)
            a("s_setprio 0")
        ab = 120 + 8*(k & 1); bb = 64 + 8*u
        need = [("h", k)] + ([("w", k+1)] if 7 <= k+1 < 28 else [])
        a(f"s_waitcnt vmcnt({vm.n(*need)}) lgkmcnt(0)")
        mf(0, 0, ab, bb, k == 0)
        if k < 27: a(f2reads(k+1))
        mf(1, 0, ab+4, bb, k == 0)
        if k < 25: hA(k+7)
        a(f"s_add_u32 m0, s49, {2048*u}")
        mf(0, 1, ab, bb+4, k == 0)
        sr = srd(SW2 if k < 21 else SWO)
        vm.op(f"buffer_load_dwordx4 v150, {sr}, s54 offen lds", ("w", k+7))
        vm.op(f"buffer_load_dwordx4 v151, {sr}, s54 offen offset:1024 lds", ("w", k+7))
        a("s_add_u32 s54, s54, 16384")
        mf(1, 1, ab+4, bb+4, k == 0)
        if k < 25: hB(k+7)
        if k == 0:
            a(f"s_cmp_eq_u32 {gw}, 3\ns_cbranch_scc0 L_nb2")
            for nt in range(2):
                mf(0, nt, 168, 160); mf(1, nt, 172, 160)
            a("L_nb2:")
    a("s_setprio 3")
    stamp(7)
    def cnt_add(off): a(f"s_mov_b64 exec, 1\nds_add_u32 v177, v167 offset:{off}\ns_mov_b64 exec, -1")
    a("v_sub_f32 v182, 1.0, v164\nv_sub_f32 v184, 1.0, v165\nv_mov_b32 v164, v165\ns_waitcnt vmcnt(0) lgkmcnt(0)")
    cnt_add(20)
    WOF = lambda i, mt: 192 + 8*i + 4*mt if (i, mt) != (7, 1) else 136
    for i in range(8):
        for mt in range(2):
            for e in range(2): a(f"ds_read_b64_tr_b16 {vr(WOF(i,mt)+2*e,2)}, v{146+mt} offset:{2048*i+1024*e}")
    for r in range(16): a(f"v_pk_mul_f32 {vr(2*r,2)}, {vr(2*r,2)}, v[182:183] op_sel_hi:[1,0]")
    for r in range(16, 32): a(f"v_pk_mul_f32 {vr(2*r,2)}, {vr(2*r,2)}, v[184:185] op_sel_hi:[1,0]")
    OF = lambda jj, sl: 64 + 8*sl + 4*jj
    def oload(jj, sl): return f"buffer_load_dwordx4 {vr(OF(jj, sl),4)}, v166, {srd(SWS)}, {('s10', 's65', 's8', 's9')[jj + 2*(sl >> 2)]} offen offset:{1024*(sl&3)} sc1"
    def ofrags(lbl, loads, regs, sleep, pre=False):
        n = len(loads)
        a("s_mov_b32 s63, 0")
        if pre: a(f"s_branch {lbl}_c")
        a(f"{lbl}:")
        a("\n".join(loads))
        a(f"s_add_u32 s63, s63, 1\ns_cmp_gt_u32 s63, {SPIN_MAX}\ns_cbranch_scc1 {lbl}_x\n{lbl}_c:")
        for i in range(n):
            r = regs[i]
            a(f"s_waitcnt vmcnt({n-1-i})")
            if not o.get("chk4"):
                a(f"v_max_u32 v178, v{r}, v{r+2}" if i == 0 else f"v_max3_u32 v178, v178, v{r}, v{r+2}")
            elif i == 0: a(f"v_max3_u32 v178, v{r}, v{r+1}, v{r+2}\nv_max_u32 v178, v178, v{r+3}")
            else: a(f"v_max3_u32 v178, v178, v{r}, v{r+1}\nv_max3_u32 v178, v178, v{r+2}, v{r+3}")
        a(f"v_cmp_eq_u32 vcc, -1, v178\ns_cbranch_vccz {lbl}_x")
        if sleep: a(f"s_sleep {sleep}")
        a(f"s_branch {lbl}\n{lbl}_x:\ns_waitcnt vmcnt(0)")
    def wo_stage(lbl, nt, sls, sleep, pre):
        ks = [(jj, sl) for sl in sls for jj in range(2)]
        ofrags(lbl, [oload(*k) for k in ks], [OF(*k) for k in ks], sleep, pre)
        a("s_waitcnt lgkmcnt(0)\ns_setprio 0")
        for jj, sl in ks:
            i = 4*jj + (sl & 3)
            mf(0, nt, WOF(i, 0), OF(jj, sl)); mf(1, nt, WOF(i, 1), OF(jj, sl))
        a("s_setprio 3")
    stamp(8)
    wo_stage("L_o0", 0, range(4), 4, True)
    stamp(9)
    a(f"s_add_u32 s4, s8, 4096\ns_add_u32 s8, s10, 4096\ns_add_u32 s9, s65, 4096\nv_add_u32 v176, s32, v176\nv_add_u32 v181, s32, v181")
    a(f"s_mul_i32 s5, {gw}, {SLOT}\ns_cmp_lt_u32 {gw}, 2\ns_cselect_b32 s6, {OACC + 2*SLOT - X_}, 0\ns_add_u32 s5, s5, s6\ns_sub_u32 s5, s49, s5\ns_add_u32 s5, s5, {8192 + 2*SLOT - X_}")
    for mt in range(2):
        for i in range(4): a(f"ds_write_b128 v{186+i}, {vr(16*mt+4*i,4)} offset:{128*mt}")
    cnt_add(28)
    lds_wait("L_w1", "v177", 20, "4")
    FA = lambda s_, ct: (120 + 8*s_ + 4*ct) if s_ < 2 else (148 + 8*(s_-2) + 4*ct)
    for s_ in range(4):
        for ct in range(2):
            for e in range(2): a(f"ds_read_b64_tr_b16 {vr(FA(s_,ct)+2*e,2)}, v253 offset:{16384*s_+1024*e+32*ct}")
    cnt_add(24)
    a(f"s_cmp_lt_u32 {gw}, 2\ns_cbranch_scc0 L_nf\ns_mov_b32 s58, {0 if int(o.get('osc', 3)) >= 5 else 's101'}\ns_call_b64 s[14:15], L_fin\nL_nf:")
    lds_wait("L_rw", "v177", 28, "4", 1)
    for p in range(4):
        a(f"ds_read_b128 {vr(8*p,4)}, v{190 if p < 2 else 168} offset:{SLOT*(p&1)}\nds_read_b128 {vr(4+8*p,4)}, v{191 if p < 2 else 169} offset:{SLOT*(p&1)}")
    for i in range(4): a(f"v_add_u32 v{186+i}, s5, v{186+i}")
    a("s_waitcnt lgkmcnt(4)")
    for r in range(4): a(f"v_pk_add_f32 {vr(2*r,2)}, {vr(2*r,2)}, {vr(8+2*r,2)}")
    a("s_waitcnt lgkmcnt(0)")
    for r in range(4): a(f"v_pk_add_f32 {vr(16+2*r,2)}, {vr(16+2*r,2)}, {vr(24+2*r,2)}")
    for r in range(4): a(f"v_pk_add_f32 {vr(2*r,2)}, {vr(2*r,2)}, {vr(16+2*r,2)}")
    for r in range(4): a(f"v_cvt_pk_bf16_f32 v{172+r}, v{2*r}, v{2*r+1}")
    if int(o.get("oearly", 2)) == 2: a(f"buffer_store_dwordx4 v[172:175], v179, {srd(SOUT)}, s33 offen {o.get('ost0', 'sc1')}")
    stamp(10)
    wo_stage("L_o1", 1, (4, 5), 4, False)
    a(f"s_cmp_eq_u32 {gw}, 2\ns_cbranch_scc0 L_nf1\ns_mov_b32 s58, {0 if int(o.get('osc', 3)) >= 6 else 's101'}\ns_call_b64 s[14:15], L_fin\nL_nf1:")
    stamp(11)
    wo_stage("L_o1b", 1, (6,), 4, False)
    a("s_add_u32 s65, s11, 32768")
    fl = [f"buffer_load_dwordx4 {vr(108+0,4)}, v252, {srd(SWS)}, s11 offen sc1", f"buffer_load_dwordx4 {vr(104,4)}, v254, {srd(SWS)}, s11 offen sc1",
          f"buffer_load_dwordx4 {vr(100,4)}, v252, {srd(SWS)}, s65 offen sc1", f"buffer_load_dwordx4 {vr(140,4)}, v254, {srd(SWS)}, s65 offen sc1"]
    fr = [108, 104, 100, 140]
    if not o.get("nowarm"): a("\n".join(fl))
    lds_wait("L_w2", "v177", 24, "4")
    a("s_nop 2")
    for mt in range(2):
        for i in range(4): a(f"ds_write_b128 v{186+i}, {vr(32+16*mt+4*i,4)} offset:{128*mt}")
    cnt_add(32)
    lds_wait("L_rw1", "v177", 32, "4", 1)
    for p in range(4):
        a(f"ds_read_b128 {vr(64+8*p,4)}, v183 offset:{16384*p}\nds_read_b128 {vr(68+8*p,4)}, v185 offset:{16384*p}")
    a("s_waitcnt lgkmcnt(4)")
    for r in range(4): a(f"v_pk_add_f32 {vr(64+2*r,2)}, {vr(64+2*r,2)}, {vr(72+2*r,2)}")
    a("s_waitcnt lgkmcnt(0)")
    for r in range(4): a(f"v_pk_add_f32 {vr(80+2*r,2)}, {vr(80+2*r,2)}, {vr(88+2*r,2)}")
    for r in range(4): a(f"v_pk_add_f32 {vr(2*r,2)}, {vr(64+2*r,2)}, {vr(80+2*r,2)}")
    if int(o.get("oearly", 2)) == 1: a(f"buffer_store_dwordx4 v[172:175], v179, {srd(SOUT)}, s33 offen {o.get('ost0', 'sc1')}")
    stamp(12)
    if not o.get("narrow"):
        a(f"""
        v_add_u32 v171, {X_ + 5*SLOT}, v166
        s_cmp_eq_u32 {gw}, 3
        s_barrier
        s_cbranch_scc0 L_nf2
        ds_read2st64_b32 v[96:97], v170 offset0:32 offset1:33
        ds_read2st64_b32 v[98:99], v170 offset0:34 offset1:35
        """)
        for w in range(4): a(f"ds_read_b128 {vr(64+8*w,4)}, v171 offset:{1024*w}\nds_read_b128 {vr(68+8*w,4)}, v171 offset:{1024*w+4096}")
        a("s_cmp_eq_u32 s101, 1\ns_waitcnt lgkmcnt(8)\nv_pk_add_f32 v[96:97], v[96:97], v[98:99]\ns_waitcnt lgkmcnt(4)\nv_add_f32 v96, v96, v97")
        for r in range(4): a(f"v_pk_add_f32 {vr(64+2*r,2)}, {vr(64+2*r,2)}, {vr(72+2*r,2)}")
        a("v_rcp_f32 v96, v96\ns_waitcnt lgkmcnt(0)")
        for r in range(4): a(f"v_pk_add_f32 {vr(80+2*r,2)}, {vr(80+2*r,2)}, {vr(88+2*r,2)}")
        a("v_mul_f32 v96, v96, v164")
        for r in range(4): a(f"v_pk_add_f32 {vr(64+2*r,2)}, {vr(64+2*r,2)}, {vr(80+2*r,2)}")
        for r in range(4): a(f"v_pk_mul_f32 {vr(64+2*r,2)}, {vr(64+2*r,2)}, v[96:97] op_sel_hi:[1,0]")
        for r in range(4): a(f"v_cvt_pk_bf16_f32 v{64+r}, v{64+2*r}, v{65+2*r}")
        for r in range(4): a(f"v_min_u32 v{64+r}, -2, v{64+r}")
        hstore(f"buffer_store_dwordx4 v[64:67], v166, {srd(SWS)}, s4 offen")
        a("L_nf2:")
    elif not o.get("fin4"):
        a(f"s_mov_b32 s58, s101\ns_barrier\ns_cmp_eq_u32 {gw}, 3\ns_cbranch_scc0 L_nf2\ns_call_b64 s[14:15], L_fwf_x\nL_nf2:")
    else:
        a(f"""
    s_lshl_b32 s60, {gw}, 10
    s_sub_u32 s4, s4, s60
    s_lshl2_add_u32 s4, {gw}, s4
    s_add_u32 s4, s4, 3072
    s_cmp_eq_u32 s101, 1
    s_barrier
    ds_read2st64_b32 v[72:73], v170 offset0:32 offset1:33
    ds_read2st64_b32 v[74:75], v170 offset0:34 offset1:35
    ds_read2st64_b32 v[64:65], v171 offset0:0 offset1:4
    ds_read2st64_b32 v[66:67], v171 offset0:1 offset1:5
    ds_read2st64_b32 v[68:69], v171 offset0:2 offset1:6
    ds_read2st64_b32 v[70:71], v171 offset0:3 offset1:7
    s_waitcnt lgkmcnt(4)
    v_pk_add_f32 v[72:73], v[72:73], v[74:75]
    s_waitcnt lgkmcnt(2)
    v_pk_add_f32 v[64:65], v[64:65], v[66:67]
    v_add_f32 v72, v72, v73
    s_waitcnt lgkmcnt(0)
    v_pk_add_f32 v[68:69], v[68:69], v[70:71]
    v_rcp_f32 v72, v72
    v_pk_add_f32 v[64:65], v[64:65], v[68:69]
    v_mul_f32 v72, v72, v164
    v_pk_mul_f32 v[64:65], v[64:65], v[72:73] op_sel_hi:[1,0]
    v_cvt_pk_bf16_f32 v64, v64, v65
    v_min_u32 v64, -2, v64
        """)
        hstore(f"buffer_store_dword v64, v166, {srd(SWS)}, s4 offen")
    stamp(13)
    ofrags("L_o2", fl, fr, 0)
    stamp(14)
    if int(o.get("oearly", 2)) == 0: a(f"buffer_store_dwordx4 v[172:175], v179, {srd(SOUT)}, s33 offen {o.get('ost0', 'sc1')}")
    for s_ in range(4):
        for ct in range(2): a(f"v_mfma_f32_16x16x32_bf16 {vr(4*ct,4)}, {vr(FA(s_,ct),4)}, {vr(fr[s_],4)}, {vr(4*ct,4)}")
    a("""
    s_nop 6
    v_cvt_pk_bf16_f32 v8, v0, v1
    v_cvt_pk_bf16_f32 v9, v2, v3
    v_cvt_pk_bf16_f32 v10, v4, v5
    v_cvt_pk_bf16_f32 v11, v6, v7
    s_nop 1
    v_permlane16_swap_b32 v8, v10
    v_permlane16_swap_b32 v9, v11
    """)
    a(f"buffer_store_dwordx4 v[8:11], v180, {srd(SOUT)}, s34 offen {o.get('ost1', '')}")
    stamp(15)
    a("s_branch L_gend")
    if not o.get("g6l"): a("L_gsetupx:\ns_mov_b32 s55, s38\ns_call_b64 s[38:39], L_gsetup\ns_call_b64 s[38:39], L_gsetup2\ns_mov_b32 s38, s55\ns_mov_b32 s39, 0x00020000\ns_setpc_b64 s[58:59]")
    a("L_gsetup:")
    gsetup1()
    a("s_setpc_b64 s[38:39]\nL_gsetup2:")
    gsetup2(True)
    a("L_gsx:\ns_setpc_b64 s[38:39]")
    a("L_fin:")
    fin(64, "f", False)
    a("s_setpc_b64 s[14:15]\nL_gend:")
    if diag: a(f"s_add_u32 {sW}, {sW}, 4")
    diag_out("g")
    a("L_end:\ns_endpgm")

    hdr = open(os.path.join(os.path.dirname(os.path.abspath(__file__)), "..", "cdna_kernels", NAME + ".s.ref")).read().split("\n")
    i0 = next(i for i, l in enumerate(hdr) if l.startswith("; Override"))
    head = "\n".join(hdr[:i0]) + f"\n; @launch grid=(256,1,1) block=(512,1,1) lds={LDS_BYTES}\n"
    head += DOC
    return head + f""".amdgcn_target "amdgcn-amd-amdhsa--gfx950"
.text
.globl {NAME}_kernel
.p2align 8
.type {NAME}_kernel,@function
{NAME}_kernel:
{a.text()}.section .rodata,"a"
.p2align 6
.amdhsa_kernel {NAME}_kernel
  .amdhsa_next_free_vgpr 256
  .amdhsa_next_free_sgpr 102
  .amdhsa_accum_offset 256
  .amdhsa_group_segment_fixed_size 0
  .amdhsa_kernarg_size 112
  .amdhsa_user_sgpr_count 2
  .amdhsa_user_sgpr_kernarg_segment_ptr 1
  .amdhsa_system_sgpr_workgroup_id_x 1
.end_amdhsa_kernel
"""

if __name__ == "__main__":
    out = sys.argv[1] if len(sys.argv) > 1 else os.path.join(os.path.dirname(os.path.abspath(__file__)), "..", "cdna_kernels", NAME + ".s")
    opts = dict(x.split("=") if "=" in x else (x, 1) for x in sys.argv[2:])
    open(out, "w").write(gen(diag=bool(opts.pop("diag", 0)), opts=opts))
```
